```python
import torch

def _softmax(x, axis=-1):
    return torch.softmax(x, dim=axis)
def _gelu(x):
    return torch.nn.functional.gelu(x, approximate="tanh")
def _silu(x):
    return torch.nn.functional.silu(x)
def _sigmoid(x):
    return torch.sigmoid(x)
def _layernorm(x, axis=-1, eps=1e-5):
    m = x.mean(dim=axis, keepdim=True)
    v = x.var(dim=axis, keepdim=True, unbiased=False)
    return (x - m) / torch.sqrt(v + eps)
def _scatter_add(tgt, idx, src, axis=0):
    return tgt.clone().index_add_(axis, idx, src)
def _segment_sum(src, seg, n):
    out = torch.zeros((n,) + src.shape[1:], dtype=src.dtype)
    return out.index_add_(0, seg, src)
def _pad(x, pw):
    flat = tuple(v for pair in reversed(pw) for v in pair)
    return torch.nn.functional.pad(x, flat)

kernel_name = 'concat_heads__gqa_block_cached__gqa_block_cached__near_ridge'

def setup_inputs():

    _w = (lambda a: (lambda t: t.to(torch.bfloat16) if t.is_floating_point() else t)(torch.as_tensor(a)))
    def _A_setup():
        B, Sq, D = 16, 128, 448
        Hq, Hkv, Sk, Dh = 16, 8, 512, 256
        assert Hq % Hkv == 0, (Hq, Hkv)
        return {
            "x": _w((lambda *s: torch.randn(*s, dtype=torch.bfloat16) * 0.8)(B, Sq, D)),
            "k_cache": _w((lambda *s: torch.randn(*s, dtype=torch.bfloat16) * 0.8)(B, Hkv, Sk, Dh)),
            "v_cache": _w((lambda *s: torch.randn(*s, dtype=torch.bfloat16) * 0.05)(B, Hkv, Sk, Dh)),
            "wq": _w((lambda *s: torch.randn(*s, dtype=torch.bfloat16) * 0.8)(D, Hq * Dh) * (D ** -0.5)),
            "wo": _w((lambda *s: torch.randn(*s, dtype=torch.bfloat16) * 0.05)(Hq * Dh, D) * ((Hq * Dh) ** -0.5)),
        }
    _A_in = _A_setup()

    def _B_setup():
        B, Sq, D = 16, 128, 448
        Hq, Hkv, Sk, Dh = 16, 8, 512, 256
        assert Hq % Hkv == 0, (Hq, Hkv)
        return {
            "x": _w((lambda *s: torch.randn(*s, dtype=torch.bfloat16) * 0.8)(B, Sq, D)),
            "k_cache": _w((lambda *s: torch.randn(*s, dtype=torch.bfloat16) * 0.8)(B, Hkv, Sk, Dh)),
            "v_cache": _w((lambda *s: torch.randn(*s, dtype=torch.bfloat16) * 0.05)(B, Hkv, Sk, Dh)),
            "wq": _w((lambda *s: torch.randn(*s, dtype=torch.bfloat16) * 0.8)(D, Hq * Dh) * (D ** -0.5)),
            "wo": _w((lambda *s: torch.randn(*s, dtype=torch.bfloat16) * 0.05)(Hq * Dh, D) * ((Hq * Dh) ** -0.5)),
        }
    _B_in = _B_setup()

    return {
        "A_x": _A_in["x"],
        "A_k_cache": _A_in["k_cache"],
        "A_v_cache": _A_in["v_cache"],
        "A_wq": _A_in["wq"],
        "A_wo": _A_in["wo"],
        "B_x": _B_in["x"],
        "B_k_cache": _B_in["k_cache"],
        "B_v_cache": _B_in["v_cache"],
        "B_wq": _B_in["wq"],
        "B_wo": _B_in["wo"],
    }

def reference(A_x, A_k_cache, A_v_cache, A_wq, A_wo, B_x, B_k_cache, B_v_cache, B_wq, B_wo):
    def _A_ref(x, k_cache, v_cache, wq, wo):
        B, Sq, D = x.shape
        Hq, Dh = 16, 256
        Hkv = k_cache.shape[1]
        rep = Hq // Hkv
        q = (lambda x, *d: x.permute(*d))((x @ wq).reshape(B, Sq, Hq, Dh), 0, 2, 1, 3)
        k = (lambda x, n, axis: torch.repeat_interleave(x, n, dim=axis))(k_cache, rep, axis=1)
        v = (lambda x, n, axis: torch.repeat_interleave(x, n, dim=axis))(v_cache, rep, axis=1)
        scores = torch.einsum("bhqd,bhkd->bhqk", q, k) * (Dh ** -0.5)
        p = _softmax(scores, axis=-1)
        o = torch.einsum("bhqk,bhkd->bhqd", p, v)
        return (lambda x, *d: x.permute(*d))(o, 0, 2, 1, 3).reshape(B, Sq, Hq * Dh) @ wo

    def _B_ref(x, k_cache, v_cache, wq, wo):
        B, Sq, D = x.shape
        Hq, Dh = 16, 256
        Hkv = k_cache.shape[1]
        rep = Hq // Hkv
        q = (lambda x, *d: x.permute(*d))((x @ wq).reshape(B, Sq, Hq, Dh), 0, 2, 1, 3)
        k = (lambda x, n, axis: torch.repeat_interleave(x, n, dim=axis))(k_cache, rep, axis=1)
        v = (lambda x, n, axis: torch.repeat_interleave(x, n, dim=axis))(v_cache, rep, axis=1)
        scores = torch.einsum("bhqd,bhkd->bhqk", q, k) * (Dh ** -0.5)
        p = _softmax(scores, axis=-1)
        o = torch.einsum("bhqk,bhkd->bhqd", p, v)
        return (lambda x, *d: x.permute(*d))(o, 0, 2, 1, 3).reshape(B, Sq, Hq * Dh) @ wo

    a = _A_ref(A_x, A_k_cache, A_v_cache, A_wq, A_wo)
    b = _B_ref(B_x, B_k_cache, B_v_cache, B_wq, B_wo)
    return torch.concatenate([a, b], axis=-1)
```

```python
import math
import sys

NAME = "concat_heads__gqa_block_cached__gqa_block_cached__near_ridge"
OUT = f"cdna_kernels/{NAME}.s"

TILE = 17408
PAIR = 2 * TILE
RING = 4 * PAIR
LDS_BYTES = 160 * 1024


class Em:
    def __init__(self):
        self.lines = []
        self.pos = 0
        self.mfma_w = {}
        self.mfma_c = {}
        self.valu_w = {}
        self.trans_w = {}
        self.lds_q = []
        self.vm_q = []
        self.capture = None

    def raw(self, s, slots=1):
        (self.capture if self.capture is not None else self.lines).append("    " + s)
        self.pos += slots

    def label(self, s):
        (self.capture if self.capture is not None else self.lines).append(s + ":")

    def comment(self, s):
        (self.capture if self.capture is not None else self.lines).append("    ; " + s)

    def nop(self, n):
        while n > 0:
            k = min(n, 16)
            self.raw(f"s_nop {k - 1}", k)
            n -= k

    def _need(self, table, regs, dist):
        need = 0
        for r in regs:
            p = table.get(r)
            if p is not None:
                have = self.pos - p - 1
                need = max(need, dist - have)
        return need

    def salu(self, s):
        self.raw(s)

    def valu(self, s, dst=(), src=(), trans=False):
        n = self._need(self.mfma_w, list(dst) + list(src), 12)
        n = max(n, self._need(self.mfma_c, dst, 7))
        if not trans:
            n = max(n, self._need(self.trans_w, src, 1))
        if n > 0:
            self.nop(n)
        p = self.pos
        self.raw(s)
        for r in dst:
            self.valu_w[r] = p
            if trans:
                self.trans_w[r] = p
            else:
                self.trans_w.pop(r, None)

    def mfma(self, d, a, b, c):
        D = list(range(d, d + 16))
        A = list(range(a, a + 4))
        B = list(range(b, b + 4))
        C = list(range(c, c + 16)) if c is not None else []
        n = self._need(self.valu_w, A + B + C, 2)
        n = max(n, self._need(self.mfma_w, A + B, 12))
        if c is not None and c != d:
            n = max(n, self._need(self.mfma_w, C, 10))
        if c is None:
            pass
        if n > 0:
            self.nop(n)
        p = self.pos
        cs = f"v[{c}:{c + 15}]" if c is not None else "0"
        self.raw(f"v_mfma_f32_32x32x16_bf16 v[{d}:{d + 15}], v[{a}:{a + 3}], v[{b}:{b + 3}], {cs}")
        for r in D:
            self.mfma_w[r] = p
        for r in C:
            self.mfma_c[r] = p

    def ds(self, s, tag, dst=(), src=()):
        n = self._need(self.mfma_w, list(dst) + list(src), 12)
        if n > 0:
            self.nop(n)
        self.raw(s)
        self.lds_q.append(tag)
        assert len(self.lds_q) <= 15, "too many LDS ops outstanding"

    def vmem(self, s, tag, dst=(), src=()):
        n = self._need(self.mfma_w, list(dst) + list(src), 12)
        if n > 0:
            self.nop(n)
        self.raw(s)
        self.vm_q.append(tag)
        assert len(self.vm_q) <= 63

    def wait_lds(self, tag):
        idx = max((i for i, t in enumerate(self.lds_q) if t == tag), default=-1)
        if idx < 0:
            return
        n = len(self.lds_q) - 1 - idx
        self.raw(f"s_waitcnt lgkmcnt({n})")
        self.lds_q = self.lds_q[idx + 1:]

    def wait_lds_all(self):
        if self.lds_q:
            self.raw("s_waitcnt lgkmcnt(0)")
            self.lds_q = []

    def wait_vm(self, tag):
        idx = max((i for i, t in enumerate(self.vm_q) if t == tag), default=-1)
        if idx < 0:
            return
        n = len(self.vm_q) - 1 - idx
        self.raw(f"s_waitcnt vmcnt({n})")
        self.vm_q = self.vm_q[idx + 1:]

    def wait_vm_all(self):
        if self.vm_q:
            self.raw("s_waitcnt vmcnt(0)")
            self.vm_q = []

    def loop(self, name, n, body, counter):
        assert self.capture is None
        self.salu(f"s_mov_b32 {counter}, {n}")
        texts = []
        for i in range(n):
            self.capture = []
            body(i)
            self.salu(f"s_sub_u32 {counter}, {counter}, 1")
            self.salu(f"s_cmp_lg_u32 {counter}, 0")
            self.salu(f"s_cbranch_scc1 {name}")
            texts.append(self.capture)
            self.capture = None
        for i in range(1, n):
            if texts[i] != texts[0]:
                for a, b in zip(texts[0], texts[i]):
                    if a != b:
                        print("LOOP MISMATCH", name, i, a, "|", b)
                        break
                raise SystemExit(f"loop {name}: iteration {i} differs from iteration 0")
        self.label(name)
        self.lines.extend(texts[0])


def vr(base, n):
    return f"v[{base}:{base + n - 1}]"


S_X, S_K, S_V, S_WQ, S_WO, S_P = 8, 12, 16, 20, 24, 28
S_W = 32
S_HH = 33
S_QB = 34
S_RD = 35
S_DM = 36
S_T0, S_T1, S_T2, S_T3 = 37, 38, 39, 40
S_CNT = 41
S_C = 42
S_NC = 43
S_THR = 44
S_OFFA = 45
S_OFFB = 46
S_XOFF = 47
S_WM0A = 48
S_WM0B = 49
S_POFF = 50
S_EXW = 51
S_EXR = 52
S_KA = 56

V_O = 0
V_Q = 128
V_X = 128
V_S0, V_S1 = 192, 208
V_FR = 224
V_M = 240
V_PATA, V_PATB, V_RDA, V_RDB = 240, 241, 242, 243
V_DLIN, V_DK = 244, 245
V_NEGM, V_LSUM, V_TMAX, V_TMP = 246, 247, 248, 249
V_XOFF = 250
V_LANE = 251
V_T2 = 252
V_T3 = 253

NB = 4
DPF = 3


def srd(e, dst, lo, hi, size):
    e.salu(f"s_mov_b32 s{dst}, s{lo}")
    e.salu(f"s_and_b32 s{dst + 1}, s{hi}, 0xffff")
    e.salu(f"s_mov_b32 s{dst + 2}, {size}")
    e.salu(f"s_mov_b32 s{dst + 3}, 0x00020000")


def adv_slot(e, s):
    e.salu(f"s_add_u32 s{s}, s{s}, {PAIR}")
    e.salu(f"s_cmp_ge_u32 s{s}, {RING}")
    e.salu(f"s_cselect_b32 s{S_T3}, {RING}, 0")
    e.salu(f"s_sub_u32 s{s}, s{s}, s{S_T3}")


def dma(e, voff, sr, soff, m0expr, tag, off=0):
    sg, imm = m0expr
    e.salu(f"s_add_u32 m0, s{sg}, {imm}")
    e.salu("s_nop 0")
    o = f" offset:{off}" if off else ""
    e.vmem(f"buffer_load_dwordx4 v{voff}, s[{sr}:{sr + 3}], s{soff} offen{o} lds", tag)


def dma_wq_pair(e, tag):
    e.salu(f"s_add_u32 s{S_T0}, s{S_DM}, s{S_WM0A}")
    for e2 in range(2):
        for ee in range(2):
            e.salu(f"s_add_u32 s{S_T1}, s{S_OFFA}, {(16 * e2 + ee) * 8192}")
            dma(e, V_DLIN, S_WQ, S_T1, (S_T0, e2 * TILE + ee * 1088), tag)
    e.salu(f"s_add_u32 s{S_OFFA}, s{S_OFFA}, {32 * 8192}")
    adv_slot(e, S_DM)


def dma_kv_pair(e, tag, k=True, v=True):
    if k:
        e.salu(f"s_add_u32 s{S_T0}, s{S_DM}, s{S_WM0A}")
        dma(e, V_DK, S_K, S_OFFA, (S_T0, 0), tag)
        dma(e, V_DK, S_K, S_OFFA, (S_T0, 32), tag, off=1024)
        e.salu(f"s_add_u32 s{S_OFFA}, s{S_OFFA}, 16384")
    if v:
        e.salu(f"s_add_u32 s{S_T0}, s{S_DM}, s{S_WM0B}")
        dma(e, V_DLIN, S_V, S_OFFB, (S_T0, 0), tag)
        dma(e, V_DLIN, S_V, S_OFFB, (S_T0, 64), tag, off=1024)
        e.salu(f"s_add_u32 s{S_OFFB}, s{S_OFFB}, 16384")
    adv_slot(e, S_DM)


def dma_wo_pair(e, tag, p, vdwo):
    e.salu(f"s_add_u32 s{S_T0}, s{S_DM}, s{S_WM0A}")
    for t2 in range(2):
        qd = (2 * p + t2) & 3
        for ee in range(2):
            e.salu(f"s_add_u32 s{S_T1}, s{S_XOFF}, {(128 * qd + 8 * ee) * 896}")
            dma(e, vdwo, S_WO, S_T1, (S_T0, t2 * TILE + ee * 1024), tag)
    if p & 1:
        e.salu(f"s_add_u32 s{S_XOFF}, s{S_XOFF}, 128")
    adv_slot(e, S_DM)


class FragStream:
    def __init__(self, e, base=V_FR, nb=NB):
        self.e = e
        self.base = base
        self.nb = nb
        self.issued = 0
        self.queue = []

    def buf(self, i):
        return self.base + 4 * (i % self.nb)

    def push(self, fn):
        self.queue.append(fn)

    def issue_next(self):
        while self.queue:
            fn = self.queue.pop(0)
            if fn[0] == "pre":
                fn[1]()
                continue
            i = self.issued
            fn[1](self.buf(i), ("fr", i))
            self.issued += 1
            return True
        return False


def rd_tr(e, areg, off0, off1):
    def f(dst, tag):
        e.ds(f"ds_read_b64_tr_b16 {vr(dst, 2)}, v{areg} offset:{off0}", tag, dst=range(dst, dst + 2))
        e.ds(f"ds_read_b64_tr_b16 {vr(dst + 2, 2)}, v{areg} offset:{off1}", tag, dst=range(dst + 2, dst + 4))
    return ("rd", f)


def rd_128(e, areg, off):
    def f(dst, tag):
        e.ds(f"ds_read_b128 {vr(dst, 4)}, v{areg} offset:{off}", tag, dst=range(dst, dst + 4))
    return ("rd", f)


def gen_attn(e):
    e.label("attn_kernel")
    e.salu("s_cmp_ge_u32 s2, 256")
    e.salu("s_cbranch_scc1 L_attn_exit")
    e.salu(f"s_load_dwordx16 s[{S_KA}:{S_KA + 15}], s[0:1], 0")
    e.salu(f"s_load_dwordx4 s[{S_KA + 16}:{S_KA + 19}], s[0:1], 64")
    e.salu(f"s_load_dwordx2 s[{S_KA + 20}:{S_KA + 21}], s[0:1], 96")
    e.salu(f"s_and_b32 s{S_T0}, s2, 7")
    e.salu(f"s_lshr_b32 s{S_T1}, s2, 3")
    e.salu(f"s_and_b32 s{S_T2}, s{S_T1}, 15")
    e.valu(f"v_lshrrev_b32 v1, 6, v0", dst=[1], src=[0])
    e.valu(f"v_and_b32 v{V_LANE}, 63, v0", dst=[V_LANE], src=[0])
    e.salu("s_nop 0")
    e.raw(f"v_readfirstlane_b32 s{S_W}, v1")
    e.salu("s_nop 3")
    e.salu(f"s_lshr_b32 s{S_HH}, s{S_W}, 2")
    e.salu(f"s_and_b32 s{S_QB}, s{S_W}, 3")
    e.salu("s_waitcnt lgkmcnt(0)")
    e.salu(f"s_cmp_ge_u32 s{S_T1}, 16")
    for i in range(10):
        e.salu(f"s_cselect_b32 s{S_KA + i}, s{S_KA + 10 + i}, s{S_KA + i}")
    e.salu(f"s_mul_i32 s{S_T3}, s{S_T2}, 114688")
    e.salu(f"s_add_u32 s{S_KA}, s{S_KA}, s{S_T3}")
    e.salu(f"s_addc_u32 s{S_KA + 1}, s{S_KA + 1}, 0")
    srd(e, S_X, S_KA, S_KA + 1, 114688)
    e.salu(f"s_lshl_b32 s{S_T3}, s{S_T2}, 3")
    e.salu(f"s_add_u32 s{S_T3}, s{S_T3}, s{S_T0}")
    e.salu(f"s_lshl_b32 s{S_T3}, s{S_T3}, 18")
    e.salu(f"s_add_u32 s{S_KA + 2}, s{S_KA + 2}, s{S_T3}")
    e.salu(f"s_addc_u32 s{S_KA + 3}, s{S_KA + 3}, 0")
    srd(e, S_K, S_KA + 2, S_KA + 3, 262144)
    e.salu(f"s_add_u32 s{S_KA + 4}, s{S_KA + 4}, s{S_T3}")
    e.salu(f"s_addc_u32 s{S_KA + 5}, s{S_KA + 5}, 0")
    srd(e, S_V, S_KA + 4, S_KA + 5, 262144)
    e.salu(f"s_lshl_b32 s{S_T3}, s{S_T0}, 10")
    e.salu(f"s_add_u32 s{S_KA + 6}, s{S_KA + 6}, s{S_T3}")
    e.salu(f"s_addc_u32 s{S_KA + 7}, s{S_KA + 7}, 0")
    srd(e, S_WQ, S_KA + 6, S_KA + 7, 448 * 8192)
    e.salu(f"s_sub_u32 s{S_WQ + 2}, s{S_WQ + 2}, s{S_T3}")
    e.salu(f"s_mul_i32 s{S_T3}, s{S_T0}, 458752")
    e.salu(f"s_add_u32 s{S_KA + 8}, s{S_KA + 8}, s{S_T3}")
    e.salu(f"s_addc_u32 s{S_KA + 9}, s{S_KA + 9}, 0")
    srd(e, S_WO, S_KA + 8, S_KA + 9, 458752)
    e.salu(f"s_mul_i32 s{S_T3}, s2, 229376")
    e.salu(f"s_add_u32 s{S_KA + 20}, s{S_KA + 20}, s{S_T3}")
    e.salu(f"s_addc_u32 s{S_KA + 21}, s{S_KA + 21}, 0")
    srd(e, S_P, S_KA + 20, S_KA + 21, 229376)
    c = math.log2(math.e) / 16.0
    import struct
    cbits = struct.unpack("<I", struct.pack("<f", c))[0]
    ncbits = struct.unpack("<I", struct.pack("<f", -c))[0]
    e.salu(f"s_mov_b32 s{S_C}, {cbits:#x}")
    e.salu(f"s_mov_b32 s{S_NC}, {ncbits:#x}")
    e.salu(f"s_mov_b32 s{S_THR}, 0x41000000")

    L = V_LANE
    t1, t2, t3, t4 = 1, 2, 3, 4

    def V(s, d, *src):
        e.valu(s, dst=[d], src=list(src))

    V(f"v_bfe_u32 v{t1}, v{L}, 4, 1", t1, L)
    V(f"v_lshlrev_b32 v5, 5, v{t1}", 5, t1)
    V(f"v_and_b32 v{t1}, 1, v{L}", t1, L)
    V(f"v_lshlrev_b32 v{t1}, 4, v{t1}", t1, t1)
    V(f"v_add_u32 v5, v5, v{t1}", 5, 5, t1)
    V(f"v_bfe_u32 v{t1}, v{L}, 1, 1", t1, L)
    V(f"v_lshlrev_b32 v{t1}, 3, v{t1}", t1, t1)
    V(f"v_add_u32 v5, v5, v{t1}", 5, 5, t1)
    V(f"v_lshrrev_b32 v6, 5, v{L}", 6, L)
    V(f"v_bfe_u32 v7, v{L}, 2, 2", 7, L)
    V(f"v_lshlrev_b32 v{V_DLIN}, 4, v{L}", V_DLIN, L)
    V(f"v_and_b32 v{t1}, 31, v{L}", t1, L)
    V(f"v_xor_b32 v{t1}, v{t1}, v6", t1, t1, 6)
    V(f"v_lshlrev_b32 v{t1}, 4, v{t1}", t1, t1)
    V(f"v_lshl_add_u32 v{V_DK}, v6, 9, v{t1}", V_DK, 6, t1)
    V(f"v_lshl_add_u32 v{t1}, v6, 3, v7", t1, 6, 7)
    V(f"v_mul_u32_u24 v{t1}, 1088, v{t1}", t1, t1)
    V(f"v_add_u32 v{t1}, v{t1}, v5", t1, t1, 5)
    e.salu(f"s_lshl_b32 s{S_T3}, s{S_HH}, 9")
    V(f"v_add_u32 v{V_PATA}, s{S_T3}, v{t1}", V_PATA, t1)
    V(f"v_and_b32 v{t1}, 31, v{L}", t1, L)
    e.salu(f"s_lshl_b32 s{S_T3}, s{S_QB}, 5")
    V(f"v_add_u32 v{t1}, s{S_T3}, v{t1}", t1, t1)
    V(f"v_mul_u32_u24 v{t1}, 896, v{t1}", t1, t1)
    V(f"v_lshl_add_u32 v{V_XOFF}, v6, 4, v{t1}", V_XOFF, 6, t1)

    e.salu(f"s_mul_i32 s{S_WM0A}, s{S_W}, {2 * 1088}")
    e.salu(f"s_lshl_b32 s{S_OFFA}, s{S_W}, 14")
    e.salu(f"s_mov_b32 s{S_DM}, 0")
    e.salu(f"s_mov_b32 s{S_RD}, 0")
    e.salu(f"s_mov_b32 s{S_XOFF}, 0")

    def xload(i, tag):
        e.vmem(f"buffer_load_dwordx4 {vr(V_X + 4 * i, 4)}, v{V_XOFF}, s[{S_X}:{S_X + 3}], s{S_XOFF} offen",
               tag, dst=range(V_X + 4 * i, V_X + 4 * i + 4))
        e.salu(f"s_add_u32 s{S_XOFF}, s{S_XOFF}, 32")

    dma_wq_pair(e, ("D", 0))
    xload(0, ("x", 0))
    dma_wq_pair(e, ("D", 1))
    xload(1, ("x", 1))
    xload(2, ("x", 2))
    dma_wq_pair(e, ("D", 2))
    xload(3, ("x", 3))
    for i in range(128):
        V(f"v_mov_b32 v{V_O + i}, 0", V_O + i)
    V(f"v_add_u32 v{V_RDA}, s{S_RD}, v{V_PATA}", V_RDA, V_PATA)
    e.wait_vm(("D", 0))
    e.salu("s_barrier")

    fs = FragStream(e)

    def p1_frags(G):
        for e2 in range(2):
            for ct in range(8):
                off = e2 * TILE + ct * 64
                fs.push(rd_tr(e, V_RDA, off, off + 4 * 1088))

    def next_rd_a():
        adv_slot(e, S_RD)
        V(f"v_add_u32 v{V_RDA}, s{S_RD}, v{V_PATA}", V_RDA, V_PATA)

    mf_idx = [0]

    def consume_mfma(d, b, c):
        i = mf_idx[0]
        assert i < fs.issued
        e.wait_lds(("fr", i))
        e.mfma(d, fs.buf(i), b, c)
        mf_idx[0] += 1
        fs.issue_next()

    def p1_step(G, xi, issue, push_next, last=False):
        for e2 in range(2):
            ks = 2 * G + e2
            e.wait_vm(("x", ks))
            for ct in range(8):
                consume_mfma(V_O + 16 * ct, V_X + 4 * (xi + e2), V_O + 16 * ct)
                if e2 == 0 and ct == 7:
                    if not last:
                        xload(xi, ("x", ks + 4))
                    e.wait_vm(("D", G + 1))
                    e.salu("s_barrier")
                    issue()
                    push_next()
            if e2 == 1 and not last:
                xload(xi + 1, ("x", ks + 4))

    p1_frags(0)
    for _ in range(DPF):
        fs.issue_next()

    def push_p1(G):
        def f():
            fs.push(("pre", next_rd_a))
            p1_frags(G)
        return f

    def p1_body(i):
        G = 2 * i
        p1_step(G, 0, lambda: dma_wq_pair(e, ("D", G + 3)), push_p1(G + 1))
        p1_step(G + 1, 2, lambda: dma_wq_pair(e, ("D", G + 4)), push_p1(G + 2))

    e.loop("L_p1", 5, p1_body, f"s{S_CNT}")

    def kv_setup():
        e.salu(f"s_mul_i32 s{S_WM0A}, s{S_W}, {2 * 1056}")
        e.salu(f"s_mul_i32 s{S_WM0B}, s{S_W}, {2 * 1088}")
        e.salu(f"s_add_u32 s{S_WM0B}, s{S_WM0B}, {TILE}")
        e.salu(f"s_lshl_b32 s{S_OFFA}, s{S_W}, 11")
        e.salu(f"s_lshl_b32 s{S_OFFB}, s{S_W}, 11")

    p1_step(10, 0, lambda: dma_wq_pair(e, ("D", 13)), push_p1(11))

    def iss14():
        kv_setup()
        dma_kv_pair(e, ("D", 14), k=True, v=False)
    p1_step(11, 2, iss14, push_p1(12))
    p1_step(12, 0, lambda: dma_kv_pair(e, ("D", 15)), push_p1(13), last=True)

    def kv_patterns():
        a, b2, c2 = V_T2, V_T3, V_TMP
        V(f"v_and_b32 v{a}, 7, v{L}", a, L)
        V(f"v_bfe_u32 v{b2}, v{L}, 4, 1", b2, L)
        V(f"v_lshl_add_u32 v{a}, v{b2}, 3, v{a}", a, b2, a)
        V(f"v_mul_u32_u24 v{a}, 1056, v{a}", a, a)
        V(f"v_bfe_u32 v{b2}, v{L}, 3, 1", b2, L)
        V(f"v_lshl_add_u32 v{a}, v{b2}, 9, v{a}", a, b2, a)
        V(f"v_lshrrev_b32 v{c2}, 5, v{L}", c2, L)
        V(f"v_xor_b32 v{b2}, v{b2}, v{c2}", b2, b2, c2)
        V(f"v_lshl_add_u32 v{V_PATA}, v{b2}, 4, v{a}", V_PATA, b2, a)
        V(f"v_bfe_u32 v{a}, v{L}, 2, 2", a, L)
        V(f"v_lshl_add_u32 v{a}, v{c2}, 2, v{a}", a, c2, a)
        V(f"v_mul_u32_u24 v{a}, 1088, v{a}", a, a)
        V(f"v_bfe_u32 v{b2}, v{L}, 4, 1", b2, L)
        V(f"v_lshl_add_u32 v{a}, v{b2}, 5, v{a}", a, b2, a)
        V(f"v_and_b32 v{b2}, 1, v{L}", b2, L)
        V(f"v_lshl_add_u32 v{a}, v{b2}, 4, v{a}", a, b2, a)
        V(f"v_bfe_u32 v{b2}, v{L}, 1, 1", b2, L)
        V(f"v_lshl_add_u32 v{a}, v{b2}, 3, v{a}", a, b2, a)
        V(f"v_add_u32 v{V_PATB}, {TILE}, v{a}", V_PATB, a)

    def k_frags():
        for ks in range(16):
            fs.push(rd_128(e, V_RDA, ks * 32))

    def v_frags():
        for ks2 in range(2):
            for j in range(8):
                off = ks2 * 8 * 1088 + j * 64
                fs.push(rd_tr(e, V_RDB, off, off + 512))

    def next_rd_kv():
        adv_slot(e, S_RD)
        V(f"v_add_u32 v{V_RDA}, s{S_RD}, v{V_PATA}", V_RDA, V_PATA)
        V(f"v_add_u32 v{V_RDB}, s{S_RD}, v{V_PATB}", V_RDB, V_PATB)

    def push_k0():
        def pre():
            kv_patterns()
            next_rd_kv()
        fs.push(("pre", pre))
        k_frags()

    p1_step(13, 2, lambda: dma_kv_pair(e, ("D", 16)), push_k0, last=True)

    for i in range(64):
        e.valu(f"v_cvt_pk_bf16_f32 v{V_Q + i}, v{2 * i}, v{2 * i + 1}", dst=[V_Q + i], src=[2 * i, 2 * i + 1])
    for i in range(128):
        V(f"v_mov_b32 v{V_O + i}, 0", V_O + i)
    V(f"v_mov_b32 v{V_LSUM}, 0", V_LSUM)

    def qk_stage(sn, fillers, mid=None):
        nf = len(fillers)
        k = 0
        for ks in range(16):
            consume_mfma(sn, V_Q + 4 * ks, sn if ks else None)
            tgt = (nf * (ks + 1) + 15) // 16
            while k < tgt:
                fillers[k]()
                k += 1
            if mid is not None and ks == mid[0]:
                mid[1]()

    def exp_fillers(sc):
        fl = []
        for p in range(8):
            a, b = sc + 2 * p, sc + 2 * p + 1
            fl.append(lambda a=a: e.valu(f"v_fma_f32 v{a}, v{a}, s{S_C}, v{V_NEGM}", dst=[a], src=[a, V_NEGM]))
            fl.append(lambda b=b: e.valu(f"v_fma_f32 v{b}, v{b}, s{S_C}, v{V_NEGM}", dst=[b], src=[b, V_NEGM]))
            fl.append(lambda a=a: e.valu(f"v_exp_f32 v{a}, v{a}", dst=[a], src=[a], trans=True))
            fl.append(lambda b=b: e.valu(f"v_exp_f32 v{b}, v{b}", dst=[b], src=[b], trans=True))
            fl.append(lambda a=a: e.valu(f"v_add_f32 v{V_LSUM}, v{V_LSUM}, v{a}", dst=[V_LSUM], src=[V_LSUM, a]))
            fl.append(lambda b=b: e.valu(f"v_add_f32 v{V_LSUM}, v{V_LSUM}, v{b}", dst=[V_LSUM], src=[V_LSUM, b]))
            fl.append(lambda a=a, b=b, p=p: e.valu(f"v_cvt_pk_bf16_f32 v{sc + p}, v{a}, v{b}", dst=[sc + p], src=[a, b]))
        return fl

    def max_fillers(sn):
        fl = []
        fl.append(lambda: e.valu(f"v_max3_f32 v{V_TMAX}, v{sn}, v{sn + 1}, v{sn + 2}", dst=[V_TMAX], src=[sn, sn + 1, sn + 2]))
        for i in range(3, 15, 2):
            fl.append(lambda i=i: e.valu(f"v_max3_f32 v{V_TMAX}, v{V_TMAX}, v{sn + i}, v{sn + i + 1}",
                                         dst=[V_TMAX], src=[V_TMAX, sn + i, sn + i + 1]))
        fl.append(lambda: e.valu(f"v_max_f32 v{V_TMAX}, v{V_TMAX}, v{sn + 15}", dst=[V_TMAX], src=[V_TMAX, sn + 15]))
        return fl

    def cross_half_max(reg, tmp):
        V(f"v_mov_b32 v{tmp}, v{reg}", tmp, reg)
        e.nop(2)
        e.valu(f"v_permlane32_swap_b32 v{reg}, v{tmp}", dst=[reg, tmp], src=[reg, tmp])
        V(f"v_max_f32 v{reg}, v{reg}, v{tmp}", reg, reg, tmp)

    def mid14():
        e.wait_vm(("D", 15))
        e.salu("s_barrier")
        dma_kv_pair(e, ("D", 17))
        fs.push(("pre", next_rd_kv))
        k_frags()
        v_frags()
    qk_stage(V_S0, [], mid=(4, mid14))
    for f in max_fillers(V_S0):
        f()
    cross_half_max(V_TMAX, V_TMP)
    V(f"v_mul_f32 v{V_NEGM}, s{S_NC}, v{V_TMAX}", V_NEGM, V_TMAX)

    rare = []

    def p2_step(t, issue, has_qk=True, push_next=None, tagname=""):
        G = 15 + t
        sc = V_S0 if t % 2 == 0 else V_S1
        sn = V_S1 if t % 2 == 0 else V_S0
        fl = exp_fillers(sc)
        if has_qk:
            qk_stage(sn, fl)
        else:
            for f in fl:
                f()
        mx = max_fillers(sn) if has_qk else []
        k = 0
        for idx in range(16):
            ks2, j = idx >> 3, idx & 7
            consume_mfma(V_O + 16 * j, sc + 4 * ks2, V_O + 16 * j)
            if idx == 3:
                e.wait_vm(("D", G + 1))
                e.salu("s_barrier")
                issue()
                if push_next is not None:
                    push_next()
            if idx >= 5 and k < len(mx):
                mx[k]()
                k += 1
                if k < len(mx):
                    mx[k]()
                    k += 1
        if has_qk:
            assert k == len(mx)
            e.valu(f"v_fma_f32 v{V_TMP}, v{V_TMAX}, s{S_C}, v{V_NEGM}", dst=[V_TMP], src=[V_TMAX, V_NEGM])
            e.valu(f"v_cmp_lt_f32 vcc, s{S_THR}, v{V_TMP}", dst=[], src=[V_TMP])
            e.salu("s_nop 3")
            e.salu(f"s_cbranch_vccnz L_rare_{tagname}")
            e.label(f"L_back_{tagname}")
            rare.append(tagname)

    def push_kv():
        fs.push(("pre", next_rd_kv))
        k_frags()
        v_frags()

    def p2_body(i):
        t = 2 * i
        p2_step(t, lambda: dma_kv_pair(e, ("D", 15 + t + 3)), push_next=push_kv, tagname="a")
        p2_step(t + 1, lambda: dma_kv_pair(e, ("D", 15 + t + 4)), push_next=push_kv, tagname="b")

    e.loop("L_p2", 6, p2_body, f"s{S_CNT}")
    rare[:] = ["a", "b"]

    p2_step(12, lambda: dma_kv_pair(e, ("D", 30), k=False, v=True), push_next=push_kv, tagname="c")

    V_DWO = V_T2

    def wo_setup():
        a, b2 = V_T3, V_TMP
        V(f"v_bfe_u32 v{a}, v{L}, 4, 1", a, L)
        V(f"v_lshlrev_b32 v{a}, 2, v{a}", a, a)
        V(f"v_and_b32 v{b2}, 7, v{L}", b2, L)
        V(f"v_xor_b32 v{a}, v{a}, v{b2}", a, a, b2)
        V(f"v_lshlrev_b32 v{a}, 4, v{a}", a, a)
        V(f"v_lshrrev_b32 v{b2}, 3, v{L}", b2, L)
        V(f"v_mul_u32_u24 v{b2}, 896, v{b2}", b2, b2)
        V(f"v_add_u32 v{V_DWO}, v{a}, v{b2}", V_DWO, a, b2)
        e.salu(f"s_lshl_b32 s{S_WM0A}, s{S_W}, 11")
        e.salu(f"s_mul_i32 s{S_XOFF}, s{S_W}, {16 * 896}")

    def iss_wo0():
        wo_setup()
        dma_wo_pair(e, ("D", 31), 0, V_DWO)
    p2_step(13, iss_wo0, push_next=push_kv, tagname="d")

    def push_v_only():
        fs.push(("pre", next_rd_kv))
        v_frags()
    p2_step(14, lambda: None, push_next=push_v_only, tagname="e")
    p2_step(15, lambda: None, has_qk=False)

    V(f"v_mov_b32 v{V_TMP}, v{V_LSUM}", V_TMP, V_LSUM)
    e.nop(2)
    e.valu(f"v_permlane32_swap_b32 v{V_LSUM}, v{V_TMP}", dst=[V_LSUM, V_TMP], src=[V_LSUM, V_TMP])
    V(f"v_add_f32 v{V_LSUM}, v{V_LSUM}, v{V_TMP}", V_LSUM, V_LSUM, V_TMP)
    e.valu(f"v_rcp_f32 v{V_LSUM}, v{V_LSUM}", dst=[V_LSUM], src=[V_LSUM], trans=True)
    e.nop(1)
    for i in range(128):
        V(f"v_mul_f32 v{i}, v{i}, v{V_LSUM}", i, i, V_LSUM)
    for i in range(64):
        e.valu(f"v_cvt_pk_bf16_f32 v{i}, v{2 * i}, v{2 * i + 1}", dst=[i], src=[2 * i, 2 * i + 1])
    P3_LANE, P3_DWO, P3_PAT, P3_RD, P3_EX, P3_T = 64, 65, 66, 67, 68, 69
    P3_ACC = 80
    P3_FR = 96
    V(f"v_mov_b32 v{P3_LANE}, v{L}", P3_LANE, L)
    V(f"v_mov_b32 v{P3_DWO}, v{V_DWO}", P3_DWO, V_DWO)
    V(f"v_lshlrev_b32 v{P3_EX}, 4, v{P3_LANE}", P3_EX, P3_LANE)
    e.salu(f"s_lshl_b32 s{S_EXW}, s{S_W}, 13")
    e.salu(f"s_xor_b32 s{S_EXR}, s{S_EXW}, {4 << 13}")
    V(f"v_add_u32 v{P3_T}, s{S_EXW}, v{P3_EX}", P3_T, P3_EX)
    V(f"v_add_u32 v{P3_EX}, s{S_EXR}, v{P3_EX}", P3_EX, P3_EX)
    e.wait_lds_all()
    e.salu("s_barrier")
    e.salu(f"s_cmp_eq_u32 s{S_HH}, 0")
    e.salu("s_cbranch_scc0 L_ex_h1")
    for variant in range(2):
        own = 128 + 64 * variant
        oth = 128 + 64 * (1 - variant)
        if variant == 1:
            e.label("L_ex_h1")
        for i in range(64):
            V(f"v_mov_b32 v{own + i}, v{i}", own + i, i)
        for rnd in range(2):
            for i in range(8):
                rg = 32 * rnd + 4 * i
                e.ds(f"ds_write_b128 v{P3_T}, {vr(rg, 4)} offset:{i * 1024}", "exw", src=range(rg, rg + 4))
            e.wait_lds_all()
            e.salu("s_barrier")
            for i in range(8):
                rg = oth + 32 * rnd + 4 * i
                e.ds(f"ds_read_b128 {vr(rg, 4)}, v{P3_EX} offset:{i * 1024}", "exr", dst=range(rg, rg + 4))
            e.wait_lds_all()
            e.salu("s_barrier")
        if variant == 0:
            e.salu("s_branch L_ex_done")
    e.label("L_ex_done")

    dma_wo_pair(e, ("D", 32), 1, P3_DWO)
    dma_wo_pair(e, ("D", 33), 2, P3_DWO)
    a, b2 = P3_T, P3_RD
    Lp = P3_LANE
    V(f"v_lshrrev_b32 v{a}, 5, v{Lp}", a, Lp)
    V(f"v_bfe_u32 v{b2}, v{Lp}, 2, 2", b2, Lp)
    V(f"v_lshl_add_u32 v{a}, v{a}, 3, v{b2}", a, a, b2)
    V(f"v_lshlrev_b32 v{a}, 7, v{a}", a, a)
    V(f"v_bfe_u32 v{b2}, v{Lp}, 3, 1", b2, Lp)
    V(f"v_xor_b32 v{b2}, s{S_HH}, v{b2}", b2, b2)
    V(f"v_lshl_add_u32 v{a}, v{b2}, 6, v{a}", a, b2, a)
    V(f"v_bfe_u32 v{b2}, v{Lp}, 4, 1", b2, Lp)
    V(f"v_lshl_add_u32 v{a}, v{b2}, 5, v{a}", a, b2, a)
    V(f"v_and_b32 v{b2}, 1, v{Lp}", b2, Lp)
    V(f"v_lshl_add_u32 v{a}, v{b2}, 4, v{a}", a, b2, a)
    V(f"v_bfe_u32 v{b2}, v{Lp}, 1, 1", b2, Lp)
    V(f"v_lshl_add_u32 v{P3_PAT}, v{b2}, 3, v{a}", P3_PAT, b2, a)
    V(f"v_lshlrev_b32 v{P3_EX}, 4, v{Lp}", P3_EX, Lp)
    e.salu(f"s_mul_i32 s{S_POFF}, s{S_W}, {7 * 4096}")
    e.salu(f"s_mov_b32 s{S_RD}, {3 * PAIR}")
    V(f"v_add_u32 v{P3_RD}, s{S_RD}, v{P3_PAT}", P3_RD, P3_PAT)
    e.wait_vm(("D", 31))
    e.salu("s_barrier")

    fs3 = FragStream(e, base=P3_FR, nb=8)
    D3 = 6
    m3 = [0]

    def p3_frags():
        for t2 in range(2):
            for kk in range(8):
                off = t2 * TILE + kk * 2048
                fs3.push(rd_tr(e, P3_RD, off, off + 512))

    def next_rd3():
        adv_slot(e, S_RD)
        V(f"v_add_u32 v{P3_RD}, s{S_RD}, v{P3_PAT}", P3_RD, P3_PAT)

    def consume3(d, b, c):
        i = m3[0]
        assert i < fs3.issued
        e.wait_lds(("fr", i))
        e.mfma(d, fs3.buf(i), b, c)
        m3[0] += 1
        fs3.issue_next()

    p3_frags()
    for _ in range(D3):
        fs3.issue_next()

    def p3_step(p, issue, push):
        G = 31 + p
        half = p & 1
        for idx in range(16):
            cs = 16 * half + idx
            consume3(P3_ACC, 128 + 4 * cs, None if cs == 0 else P3_ACC)
            if idx == 3:
                e.wait_vm(("D", G + 1))
                e.salu("s_barrier")
                issue()
                if push:
                    fs3.push(("pre", next_rd3))
                    p3_frags()
        if half == 1:
            for q4 in range(4):
                rg = P3_ACC + 4 * q4
                e.vmem(f"buffer_store_dwordx4 {vr(rg, 4)}, v{P3_EX}, s[{S_P}:{S_P + 3}], s{S_POFF} offen offset:{q4 * 1024}",
                       ("st", p), src=range(rg, rg + 4))
            e.salu(f"s_add_u32 s{S_POFF}, s{S_POFF}, 4096")
            e.nop(1)

    def p3_body(i):
        p = 2 * i
        p3_step(p, lambda: dma_wo_pair(e, ("D", 31 + p + 3), p + 3, P3_DWO), True)
        p3_step(p + 1, lambda: dma_wo_pair(e, ("D", 31 + p + 4), p + 4, P3_DWO), True)

    p3_body(0)
    e.loop("L_p3", 4, lambda i: p3_body(i + 1), f"s{S_CNT}")
    p3_step(10, lambda: dma_wo_pair(e, ("D", 31 + 13), 13, P3_DWO), True)
    p3_step(11, lambda: None, True)
    p3_step(12, lambda: None, True)
    p3_step(13, lambda: None, False)
    e.label("L_attn_exit")
    e.salu("s_endpgm")

    for tg in rare:
        e.label(f"L_rare_{tg}")
        e.raw("s_nop 15", 16)
        e.raw(f"v_mov_b32 v{V_TMP}, v{V_TMAX}")
        e.raw("s_nop 1", 2)
        e.raw(f"v_permlane32_swap_b32 v{V_TMAX}, v{V_TMP}")
        e.raw(f"v_max_f32 v{V_TMAX}, v{V_TMAX}, v{V_TMP}")
        e.raw(f"v_mul_f32 v{V_TMAX}, s{S_NC}, v{V_TMAX}")
        e.raw(f"v_min_f32 v{V_TMAX}, v{V_TMAX}, v{V_NEGM}")
        e.raw(f"v_sub_f32 v{V_TMP}, v{V_TMAX}, v{V_NEGM}")
        e.raw(f"v_exp_f32 v{V_TMP}, v{V_TMP}")
        e.raw(f"v_mov_b32 v{V_NEGM}, v{V_TMAX}")
        e.raw("s_nop 0")
        e.raw(f"v_mul_f32 v{V_LSUM}, v{V_LSUM}, v{V_TMP}")
        for i in range(128):
            e.raw(f"v_mul_f32 v{i}, v{i}, v{V_TMP}")
        e.raw("s_nop 1", 2)
        e.raw(f"s_branch L_back_{tg}")


def gen_reduce(e):
    e.label("reduce_kernel")
    e.salu("s_cmp_ge_u32 s2, 896")
    e.salu("s_cbranch_scc1 L_red_exit")
    e.salu("s_load_dwordx2 s[4:5], s[0:1], 80")
    e.salu("s_load_dwordx2 s[6:7], s[0:1], 96")
    e.salu("s_mul_hi_u32 s8, s2, 0x924924a")
    e.salu("s_mul_i32 s9, s8, 28")
    e.salu("s_sub_u32 s9, s2, s9")
    e.salu("s_lshl_b32 s9, s9, 1")
    e.raw("v_and_b32 v1, 63, v0")
    e.raw("v_bfe_u32 v2, v0, 6, 1")
    e.raw("v_lshrrev_b32 v3, 7, v0")
    e.raw("v_add_u32 v3, s9, v3")
    e.raw("v_lshlrev_b32 v4, 12, v3")
    e.raw("v_lshl_add_u32 v4, v2, 11, v4")
    e.raw("v_lshl_add_u32 v4, v1, 4, v4")
    e.salu("s_waitcnt lgkmcnt(0)")
    e.salu("s_mul_i32 s10, s8, 1835008")
    e.salu("s_add_u32 s6, s6, s10")
    e.salu("s_addc_u32 s7, s7, 0")
    e.salu("s_mov_b32 s12, s6")
    e.salu("s_and_b32 s13, s7, 0xffff")
    e.salu("s_mov_b32 s14, 1835008")
    e.salu("s_mov_b32 s15, 0x00020000")
    e.salu("s_mov_b32 s16, s4")
    e.salu("s_and_b32 s17, s5, 0xffff")
    e.salu("s_mov_b32 s18, 3670016")
    e.salu("s_mov_b32 s19, 0x00020000")
    for h in range(8):
        e.salu(f"s_mov_b32 s20, {h * 229376}")
        e.raw(f"buffer_load_dwordx4 v[{16 + 8 * h}:{19 + 8 * h}], v4, s[12:15], s20 offen")
        e.raw(f"buffer_load_dwordx4 v[{20 + 8 * h}:{23 + 8 * h}], v4, s[12:15], s20 offen offset:1024")
    e.raw("v_mul_u32_u24 v5, 37, v3")
    e.raw("v_lshrrev_b32 v5, 8, v5")
    e.raw("v_mul_u32_u24 v6, 7, v5")
    e.raw("v_sub_u32 v6, v3, v6")
    e.raw("v_and_b32 v7, 3, v5")
    e.raw("v_lshrrev_b32 v5, 2, v5")
    e.raw("v_and_b32 v8, 31, v1")
    e.raw("v_lshl_add_u32 v8, v7, 5, v8")
    e.raw("v_lshlrev_b32 v9, 6, v6")
    e.raw("v_lshl_add_u32 v9, v5, 5, v9")
    e.raw("v_lshl_add_u32 v9, v2, 4, v9")
    e.raw("v_lshrrev_b32 v10, 5, v1")
    e.raw("v_lshl_add_u32 v9, v10, 3, v9")
    e.salu("s_and_b32 s21, s8, 15")
    e.salu("s_lshr_b32 s22, s8, 4")
    e.salu("s_mul_i32 s21, s21, 229376")
    e.salu("s_mul_i32 s22, s22, 896")
    e.salu("s_add_u32 s21, s21, s22")
    e.raw("v_mul_u32_u24 v8, 1792, v8")
    e.raw("v_lshl_add_u32 v8, v9, 1, v8")
    for h in range(1, 8):
        e.salu(f"s_waitcnt vmcnt({2 * (7 - h)})")
        for i in range(8):
            e.raw(f"v_add_f32 v{16 + i}, v{16 + i}, v{16 + 8 * h + i}")
    for i in range(4):
        e.raw(f"v_cvt_pk_bf16_f32 v{12 + i}, v{16 + 2 * i}, v{17 + 2 * i}")
    e.raw("buffer_store_dwordx4 v[12:15], v8, s[16:19], s21 offen")
    e.label("L_red_exit")
    e.salu("s_endpgm")


def main():
    ref = open(OUT + ".ref").read().splitlines()
    head = [l for l in ref if l.startswith(";") and "@launch" not in l]
    out = list(head)
    out.append(f"; @launch kernel=attn_kernel grid=(256,1,1) block=(512,1,1) lds={LDS_BYTES}")
    out.append("; @launch kernel=reduce_kernel grid=(896,1,1) block=(256,1,1) lds=0")
    out.append('.amdgcn_target "amdgcn-amd-amdhsa--gfx950"')
    out.append(".text")
    e = Em()
    out += [".globl attn_kernel", ".p2align 8", ".type attn_kernel,@function"]
    gen_attn(e)
    out += e.lines
    e2 = Em()
    out += [".globl reduce_kernel", ".p2align 8", ".type reduce_kernel,@function"]
    gen_reduce(e2)
    out += e2.lines
    out.append('.section .rodata,"a"')
    for k, vg, sg in (("attn_kernel", 256, 96), ("reduce_kernel", 80, 32)):
        out += [".p2align 6", f".amdhsa_kernel {k}",
                f"  .amdhsa_next_free_vgpr {vg}",
                f"  .amdhsa_next_free_sgpr {sg}",
                f"  .amdhsa_accum_offset {vg}",
                "  .amdhsa_group_segment_fixed_size 0",
                "  .amdhsa_kernarg_size 104",
                "  .amdhsa_user_sgpr_count 2",
                "  .amdhsa_user_sgpr_kernarg_segment_ptr 1",
                "  .amdhsa_system_sgpr_workgroup_id_x 1",
                ".end_amdhsa_kernel"]
    open(OUT, "w").write("\n".join(out) + "\n")
    print("wrote", OUT, len(out), "lines")


if __name__ == "__main__":
    main()
```

```python
import math
import sys
import os

NAME = "concat_heads__gqa_block_cached__gqa_block_cached__near_ridge"
OUT = f"cdna_kernels/{NAME}.s"
OUTFILE = sys.argv[1] if len(sys.argv) > 1 else OUT

STAMPS = os.environ.get("STAMPS", "0") == "1"
X_NOVM = os.environ.get("NOVM", "0") == "1"
X_NOBAR = os.environ.get("NOBAR", "0") == "1"
X_NODMA = os.environ.get("NODMA", "0") == "1"

ROTMASK = int(os.environ.get("ROTMASK", "15"))
TILE = 17408
PAIR = 2 * TILE
RING = 4 * PAIR
LDS_BYTES = 160 * 1024


class Em:
    def __init__(self):
        self.lines = []
        self.pos = 0
        self.mfma_w = {}
        self.mfma_c = {}
        self.valu_w = {}
        self.trans_w = {}
        self.lds_q = []
        self.vm_q = []
        self.capture = None

    def raw(self, s, slots=1):
        (self.capture if self.capture is not None else self.lines).append("    " + s)
        self.pos += slots

    def label(self, s):
        (self.capture if self.capture is not None else self.lines).append(s + ":")

    def comment(self, s):
        (self.capture if self.capture is not None else self.lines).append("    ; " + s)

    def nop(self, n):
        while n > 0:
            k = min(n, 16)
            self.raw(f"s_nop {k - 1}", k)
            n -= k

    def _need(self, table, regs, dist):
        need = 0
        for r in regs:
            p = table.get(r)
            if p is not None:
                have = self.pos - p - 1
                need = max(need, dist - have)
        return need

    def salu(self, s):
        if X_NOBAR and s == "s_barrier":
            s = "s_nop 0"
        self.raw(s)

    def valu(self, s, dst=(), src=(), trans=False):
        n = self._need(self.mfma_w, list(dst) + list(src), 12)
        n = max(n, self._need(self.mfma_c, dst, 7))
        if not trans:
            n = max(n, self._need(self.trans_w, src, 1))
        if n > 0:
            self.nop(n)
        p = self.pos
        self.raw(s)
        for r in dst:
            self.valu_w[r] = p
            if trans:
                self.trans_w[r] = p
            else:
                self.trans_w.pop(r, None)

    def mfma(self, d, a, b, c):
        D = list(range(d, d + 16))
        A = list(range(a, a + 4))
        B = list(range(b, b + 4))
        C = list(range(c, c + 16)) if c is not None else []
        n = self._need(self.valu_w, A + B + C, 2)
        n = max(n, self._need(self.mfma_w, A + B, 12))
        if c is not None and c != d:
            n = max(n, self._need(self.mfma_w, C, 10))
        if c is None:
            pass
        if n > 0:
            self.nop(n)
        p = self.pos
        cs = f"v[{c}:{c + 15}]" if c is not None else "0"
        self.raw(f"v_mfma_f32_32x32x16_bf16 v[{d}:{d + 15}], v[{a}:{a + 3}], v[{b}:{b + 3}], {cs}")
        for r in D:
            self.mfma_w[r] = p
        for r in C:
            self.mfma_c[r] = p

    def ds(self, s, tag, dst=(), src=()):
        n = self._need(self.mfma_w, list(dst) + list(src), 12)
        if n > 0:
            self.nop(n)
        self.raw(s)
        self.lds_q.append(tag)
        assert len(self.lds_q) <= 15, "too many LDS ops outstanding"

    def vmem(self, s, tag, dst=(), src=()):
        n = self._need(self.mfma_w, list(dst) + list(src), 12)
        if n > 0:
            self.nop(n)
        self.raw(s)
        self.vm_q.append(tag)
        assert len(self.vm_q) <= 63

    def wait_lds(self, tag):
        idx = max((i for i, t in enumerate(self.lds_q) if t == tag), default=-1)
        if idx < 0:
            return
        n = len(self.lds_q) - 1 - idx
        self.raw(f"s_waitcnt lgkmcnt({n})")
        self.lds_q = self.lds_q[idx + 1:]

    def wait_lds_all(self):
        if self.lds_q:
            self.raw("s_waitcnt lgkmcnt(0)")
            self.lds_q = []

    def wait_vm(self, tag):
        idx = max((i for i, t in enumerate(self.vm_q) if t == tag), default=-1)
        if idx < 0:
            return
        n = len(self.vm_q) - 1 - idx
        if X_NOVM and tag[0] == "D":
            self.raw("s_nop 0")
        else:
            self.raw(f"s_waitcnt vmcnt({n})")
        self.vm_q = self.vm_q[idx + 1:]

    def wait_vm_all(self):
        if self.vm_q:
            self.raw("s_waitcnt vmcnt(0)")
            self.vm_q = []

    def loop(self, name, n, body, counter):
        assert self.capture is None
        self.salu(f"s_mov_b32 {counter}, {n}")
        texts = []
        for i in range(n):
            self.capture = []
            body(i)
            self.salu(f"s_sub_u32 {counter}, {counter}, 1")
            self.salu(f"s_cmp_lg_u32 {counter}, 0")
            self.salu(f"s_cbranch_scc1 {name}")
            texts.append(self.capture)
            self.capture = None
        for i in range(1, n):
            if texts[i] != texts[0]:
                for a, b in zip(texts[0], texts[i]):
                    if a != b:
                        print("LOOP MISMATCH", name, i, a, "|", b)
                        break
                raise SystemExit(f"loop {name}: iteration {i} differs from iteration 0")
        self.label(name)
        self.lines.extend(texts[0])


def vr(base, n):
    return f"v[{base}:{base + n - 1}]"


S_X, S_K, S_V, S_WQ, S_WO, S_P = 8, 12, 16, 20, 24, 28
S_W = 32
S_HH = 33
S_QB = 34
S_RD = 35
S_DM = 36
S_T0, S_T1, S_T2, S_T3 = 37, 38, 39, 40
S_CNT = 41
S_C = 42
S_NC = 43
S_THR = 44
S_OFFA = 45
S_OFFB = 46
S_XOFF = 47
S_WM0A = 48
S_WM0B = 49
S_POFF = 50
S_EXW = 51
S_EXR = 52
S_KA = 56

V_O = 0
V_Q = 128
V_X = 128
V_S0, V_S1 = 192, 208
V_FR = 224
V_M = 240
V_PATA, V_PATB, V_RDA, V_RDB = 240, 241, 242, 243
V_DLIN, V_DK = 244, 245
V_NEGM, V_LSUM, V_TMAX, V_TMP = 246, 247, 248, 249
V_XOFF = 250
V_LANE = 251
V_T2 = 252
V_T3 = 253

import os

S_ST = 78


def stamp(e, i):
    if not STAMPS:
        return
    e.raw("s_memtime s[90:91]")
    e.raw("s_waitcnt lgkmcnt(0)")
    e.lds_q = []
    e.salu(f"s_mov_b32 s{S_ST + i}, s90")
    if i in (0, 5):
        e.raw("s_memrealtime s[90:91]")
        e.raw("s_waitcnt lgkmcnt(0)")
        e.salu(f"s_mov_b32 s{S_ST + 6 + (i == 5)}, s90")


def stamp_flush(e, n):
    if not STAMPS:
        return
    e.salu("s_load_dwordx2 s[90:91], s[0:1], 96")
    e.salu("s_waitcnt lgkmcnt(0)")
    e.salu("s_add_u32 s90, s90, 0x8000000")
    e.salu("s_addc_u32 s91, s91, 0")
    e.salu("s_mov_b32 s92, s90")
    e.salu("s_and_b32 s93, s91, 0xffff")
    e.salu("s_mov_b32 s94, 0x100000")
    e.salu("s_mov_b32 s95, 0x00020000")
    e.salu(f"s_lshl_b32 s90, s2, 3")
    e.salu(f"s_add_u32 s90, s90, s{S_W}")
    e.salu(f"s_lshl_b32 s90, s90, 6")
    e.raw("s_nop 15", 16)
    e.raw("v_mov_b32 v1, 0")
    for i in range(n):
        e.raw(f"v_mov_b32 v0, s{S_ST + i}")
        e.raw(f"buffer_store_dword v0, v1, s[92:95], s90 offen offset:{4 * i}")
        e.raw("s_waitcnt vmcnt(0)")


NB = 4
DPF = 3


def srd(e, dst, lo, hi, size):
    e.salu(f"s_mov_b32 s{dst}, s{lo}")
    e.salu(f"s_and_b32 s{dst + 1}, s{hi}, 0xffff")
    e.salu(f"s_mov_b32 s{dst + 2}, {size}")
    e.salu(f"s_mov_b32 s{dst + 3}, 0x00020000")


def adv_slot(e, s):
    e.salu(f"s_add_u32 s{s}, s{s}, {PAIR}")
    e.salu(f"s_cmp_ge_u32 s{s}, {RING}")
    e.salu(f"s_cselect_b32 s{S_T3}, {RING}, 0")
    e.salu(f"s_sub_u32 s{s}, s{s}, s{S_T3}")


KVPOL = os.environ.get("KVPOL", "nt")
STPOL = os.environ.get("STPOL", "nt")
STPOL = (" " + STPOL) if STPOL else ""
RDPOL = os.environ.get("RDPOL", "nt")
RDPOL = (" " + RDPOL) if RDPOL else ""


def dma(e, voff, sr, soff, m0expr, tag, off=0):
    sg, imm = m0expr
    e.salu(f"s_add_u32 m0, s{sg}, {imm}")
    e.salu("s_nop 0")
    o = f" offset:{off}" if off else ""
    if X_NODMA:
        e.salu("s_nop 0")
        return
    pol = (" " + KVPOL) if (sr in (S_K, S_V) and KVPOL) else ""
    e.vmem(f"buffer_load_dwordx4 v{voff}, s[{sr}:{sr + 3}], s{soff} offen{o}{pol} lds", tag)


def dma_wq_pair(e, tag):
    e.salu(f"s_add_u32 s{S_T0}, s{S_DM}, s{S_WM0A}")
    for e2 in range(2):
        for ee in range(2):
            e.salu(f"s_add_u32 s{S_T1}, s{S_OFFA}, {(16 * e2 + ee) * 8192}")
            dma(e, V_DLIN, S_WQ, S_T1, (S_T0, e2 * TILE + ee * 1088), tag)
    e.salu(f"s_add_u32 s{S_OFFA}, s{S_OFFA}, {32 * 8192}")
    adv_slot(e, S_DM)


def dma_kv_pair(e, tag, k=True, v=True):
    if k:
        e.salu(f"s_add_u32 s{S_T0}, s{S_DM}, s{S_WM0A}")
        dma(e, V_DK, S_K, S_OFFA, (S_T0, 0), tag)
        dma(e, V_DK, S_K, S_OFFA, (S_T0, 32), tag, off=1024)
        e.salu(f"s_add_u32 s{S_OFFA}, s{S_OFFA}, 16384")
        e.salu(f"s_and_b32 s{S_OFFA}, s{S_OFFA}, 0x3ffff")
    if v:
        e.salu(f"s_add_u32 s{S_T0}, s{S_DM}, s{S_WM0B}")
        dma(e, V_DLIN, S_V, S_OFFB, (S_T0, 0), tag)
        dma(e, V_DLIN, S_V, S_OFFB, (S_T0, 64), tag, off=1024)
        e.salu(f"s_add_u32 s{S_OFFB}, s{S_OFFB}, 16384")
        e.salu(f"s_and_b32 s{S_OFFB}, s{S_OFFB}, 0x3ffff")
    adv_slot(e, S_DM)


def dma_wo_pair(e, tag, p, vdwo):
    e.salu(f"s_add_u32 s{S_T0}, s{S_DM}, s{S_WM0A}")
    for t2 in range(2):
        qd = (2 * p + t2) & 3
        for ee in range(2):
            e.salu(f"s_add_u32 s{S_T1}, s{S_XOFF}, {(128 * qd + 8 * ee) * 896}")
            dma(e, vdwo, S_WO, S_T1, (S_T0, t2 * TILE + ee * 1024), tag)
    if p & 1:
        e.salu(f"s_add_u32 s{S_XOFF}, s{S_XOFF}, 128")
    adv_slot(e, S_DM)


class FragStream:
    def __init__(self, e, base=V_FR, nb=NB):
        self.e = e
        self.base = base
        self.nb = nb
        self.issued = 0
        self.queue = []

    def buf(self, i):
        return self.base + 4 * (i % self.nb)

    def push(self, fn):
        self.queue.append(fn)

    def issue_next(self):
        while self.queue:
            fn = self.queue.pop(0)
            if fn[0] == "pre":
                fn[1]()
                continue
            i = self.issued
            fn[1](self.buf(i), ("fr", i))
            self.issued += 1
            return True
        return False


def rd_tr(e, areg, off0, off1):
    def f(dst, tag):
        e.ds(f"ds_read_b64_tr_b16 {vr(dst, 2)}, v{areg} offset:{off0}", tag, dst=range(dst, dst + 2))
        e.ds(f"ds_read_b64_tr_b16 {vr(dst + 2, 2)}, v{areg} offset:{off1}", tag, dst=range(dst + 2, dst + 4))
    return ("rd", f)


def rd_128(e, areg, off):
    def f(dst, tag):
        e.ds(f"ds_read_b128 {vr(dst, 4)}, v{areg} offset:{off}", tag, dst=range(dst, dst + 4))
    return ("rd", f)


def gen_attn(e):
    e.label("attn_kernel")
    e.salu("s_cmp_ge_u32 s2, 256")
    e.salu("s_cbranch_scc1 L_attn_exit")
    e.salu(f"s_load_dwordx16 s[{S_KA}:{S_KA + 15}], s[0:1], 0")
    e.salu(f"s_load_dwordx4 s[{S_KA + 16}:{S_KA + 19}], s[0:1], 64")
    e.salu(f"s_load_dwordx2 s[{S_KA + 20}:{S_KA + 21}], s[0:1], 96")
    e.salu(f"s_and_b32 s{S_T0}, s2, 7")
    e.salu(f"s_lshr_b32 s{S_T1}, s2, 3")
    e.salu(f"s_and_b32 s{S_T2}, s{S_T1}, 15")
    e.valu(f"v_lshrrev_b32 v1, 6, v0", dst=[1], src=[0])
    e.valu(f"v_and_b32 v{V_LANE}, 63, v0", dst=[V_LANE], src=[0])
    e.salu("s_nop 0")
    e.raw(f"v_readfirstlane_b32 s{S_W}, v1")
    e.salu("s_nop 3")
    e.salu(f"s_lshr_b32 s{S_HH}, s{S_W}, 2")
    e.salu(f"s_and_b32 s{S_QB}, s{S_W}, 3")
    e.salu("s_waitcnt lgkmcnt(0)")
    e.salu(f"s_cmp_ge_u32 s{S_T1}, 16")
    for i in range(10):
        e.salu(f"s_cselect_b32 s{S_KA + i}, s{S_KA + 10 + i}, s{S_KA + i}")
    e.salu(f"s_mul_i32 s{S_T3}, s{S_T2}, 114688")
    e.salu(f"s_add_u32 s{S_KA}, s{S_KA}, s{S_T3}")
    e.salu(f"s_addc_u32 s{S_KA + 1}, s{S_KA + 1}, 0")
    srd(e, S_X, S_KA, S_KA + 1, 114688)
    e.salu(f"s_lshl_b32 s{S_T3}, s{S_T2}, 3")
    e.salu(f"s_add_u32 s{S_T3}, s{S_T3}, s{S_T0}")
    e.salu(f"s_lshl_b32 s{S_T3}, s{S_T3}, 18")
    e.salu(f"s_add_u32 s{S_KA + 2}, s{S_KA + 2}, s{S_T3}")
    e.salu(f"s_addc_u32 s{S_KA + 3}, s{S_KA + 3}, 0")
    srd(e, S_K, S_KA + 2, S_KA + 3, 262144)
    e.salu(f"s_add_u32 s{S_KA + 4}, s{S_KA + 4}, s{S_T3}")
    e.salu(f"s_addc_u32 s{S_KA + 5}, s{S_KA + 5}, 0")
    srd(e, S_V, S_KA + 4, S_KA + 5, 262144)
    e.salu(f"s_lshl_b32 s{S_T3}, s{S_T0}, 10")
    e.salu(f"s_add_u32 s{S_KA + 6}, s{S_KA + 6}, s{S_T3}")
    e.salu(f"s_addc_u32 s{S_KA + 7}, s{S_KA + 7}, 0")
    srd(e, S_WQ, S_KA + 6, S_KA + 7, 448 * 8192)
    e.salu(f"s_sub_u32 s{S_WQ + 2}, s{S_WQ + 2}, s{S_T3}")
    e.salu(f"s_mul_i32 s{S_T3}, s{S_T0}, 458752")
    e.salu(f"s_add_u32 s{S_KA + 8}, s{S_KA + 8}, s{S_T3}")
    e.salu(f"s_addc_u32 s{S_KA + 9}, s{S_KA + 9}, 0")
    srd(e, S_WO, S_KA + 8, S_KA + 9, 458752)
    e.salu(f"s_mul_i32 s{S_T3}, s2, 114688")
    e.salu(f"s_add_u32 s{S_KA + 20}, s{S_KA + 20}, s{S_T3}")
    e.salu(f"s_addc_u32 s{S_KA + 21}, s{S_KA + 21}, 0")
    srd(e, S_P, S_KA + 20, S_KA + 21, 114688)
    c = math.log2(math.e) / 16.0
    import struct
    cbits = struct.unpack("<I", struct.pack("<f", c))[0]
    ncbits = struct.unpack("<I", struct.pack("<f", -c))[0]
    e.salu(f"s_mov_b32 s{S_C}, {cbits:#x}")
    e.salu(f"s_mov_b32 s{S_NC}, {ncbits:#x}")
    e.salu(f"s_mov_b32 s{S_THR}, 0x41000000")

    stamp(e, 0)
    L = V_LANE
    t1, t2, t3, t4 = 1, 2, 3, 4

    def V(s, d, *src):
        e.valu(s, dst=[d], src=list(src))

    V(f"v_bfe_u32 v{t1}, v{L}, 4, 1", t1, L)
    V(f"v_lshlrev_b32 v5, 5, v{t1}", 5, t1)
    V(f"v_and_b32 v{t1}, 1, v{L}", t1, L)
    V(f"v_lshlrev_b32 v{t1}, 4, v{t1}", t1, t1)
    V(f"v_add_u32 v5, v5, v{t1}", 5, 5, t1)
    V(f"v_bfe_u32 v{t1}, v{L}, 1, 1", t1, L)
    V(f"v_lshlrev_b32 v{t1}, 3, v{t1}", t1, t1)
    V(f"v_add_u32 v5, v5, v{t1}", 5, 5, t1)
    V(f"v_lshrrev_b32 v6, 5, v{L}", 6, L)
    V(f"v_bfe_u32 v7, v{L}, 2, 2", 7, L)
    V(f"v_lshlrev_b32 v{V_DLIN}, 4, v{L}", V_DLIN, L)
    V(f"v_and_b32 v{t1}, 31, v{L}", t1, L)
    V(f"v_xor_b32 v{t1}, v{t1}, v6", t1, t1, 6)
    V(f"v_lshlrev_b32 v{t1}, 4, v{t1}", t1, t1)
    V(f"v_lshl_add_u32 v{V_DK}, v6, 9, v{t1}", V_DK, 6, t1)
    V(f"v_lshl_add_u32 v{t1}, v6, 3, v7", t1, 6, 7)
    V(f"v_mul_u32_u24 v{t1}, 1088, v{t1}", t1, t1)
    V(f"v_add_u32 v{t1}, v{t1}, v5", t1, t1, 5)
    e.salu(f"s_lshl_b32 s{S_T3}, s{S_HH}, 9")
    V(f"v_add_u32 v{V_PATA}, s{S_T3}, v{t1}", V_PATA, t1)
    V(f"v_and_b32 v{t1}, 31, v{L}", t1, L)
    e.salu(f"s_lshl_b32 s{S_T3}, s{S_QB}, 5")
    V(f"v_add_u32 v{t1}, s{S_T3}, v{t1}", t1, t1)
    V(f"v_mul_u32_u24 v{t1}, 896, v{t1}", t1, t1)
    V(f"v_lshl_add_u32 v{V_XOFF}, v6, 4, v{t1}", V_XOFF, 6, t1)

    e.salu(f"s_mul_i32 s{S_WM0A}, s{S_W}, {2 * 1088}")
    e.salu(f"s_lshl_b32 s{S_OFFA}, s{S_W}, 14")
    e.salu(f"s_mov_b32 s{S_DM}, 0")
    e.salu(f"s_mov_b32 s{S_RD}, 0")
    e.salu(f"s_mov_b32 s{S_XOFF}, 0")

    def xload(i, tag):
        e.vmem(f"buffer_load_dwordx4 {vr(V_X + 4 * i, 4)}, v{V_XOFF}, s[{S_X}:{S_X + 3}], s{S_XOFF} offen",
               tag, dst=range(V_X + 4 * i, V_X + 4 * i + 4))
        e.salu(f"s_add_u32 s{S_XOFF}, s{S_XOFF}, 32")

    dma_wq_pair(e, ("D", 0))
    xload(0, ("x", 0))
    dma_wq_pair(e, ("D", 1))
    xload(1, ("x", 1))
    xload(2, ("x", 2))
    dma_wq_pair(e, ("D", 2))
    xload(3, ("x", 3))
    for i in range(128):
        V(f"v_mov_b32 v{V_O + i}, 0", V_O + i)
    V(f"v_add_u32 v{V_RDA}, s{S_RD}, v{V_PATA}", V_RDA, V_PATA)
    e.wait_vm(("D", 0))
    e.salu("s_barrier")

    stamp(e, 1)
    fs = FragStream(e)

    def p1_frags(G):
        for e2 in range(2):
            for ct in range(8):
                off = e2 * TILE + ct * 64
                fs.push(rd_tr(e, V_RDA, off, off + 4 * 1088))

    def next_rd_a():
        adv_slot(e, S_RD)
        V(f"v_add_u32 v{V_RDA}, s{S_RD}, v{V_PATA}", V_RDA, V_PATA)

    mf_idx = [0]

    def consume_mfma(d, b, c):
        i = mf_idx[0]
        assert i < fs.issued
        e.wait_lds(("fr", i))
        e.mfma(d, fs.buf(i), b, c)
        mf_idx[0] += 1
        fs.issue_next()

    def p1_step(G, xi, issue, push_next, last=False):
        for e2 in range(2):
            ks = 2 * G + e2
            e.wait_vm(("x", ks))
            for ct in range(8):
                consume_mfma(V_O + 16 * ct, V_X + 4 * (xi + e2), V_O + 16 * ct)
                if e2 == 0 and ct == 7:
                    if not last:
                        xload(xi, ("x", ks + 4))
                    e.wait_vm(("D", G + 1))
                    e.salu("s_barrier")
                    issue()
                    push_next()
            if e2 == 1 and not last:
                xload(xi + 1, ("x", ks + 4))

    p1_frags(0)
    for _ in range(DPF):
        fs.issue_next()

    def push_p1(G):
        def f():
            fs.push(("pre", next_rd_a))
            p1_frags(G)
        return f

    def p1_body(i):
        G = 2 * i
        p1_step(G, 0, lambda: dma_wq_pair(e, ("D", G + 3)), push_p1(G + 1))
        p1_step(G + 1, 2, lambda: dma_wq_pair(e, ("D", G + 4)), push_p1(G + 2))

    e.loop("L_p1", 5, p1_body, f"s{S_CNT}")

    def kv_setup():
        e.salu(f"s_mul_i32 s{S_WM0A}, s{S_W}, {2 * 1056}")
        e.salu(f"s_mul_i32 s{S_WM0B}, s{S_W}, {2 * 1088}")
        e.salu(f"s_add_u32 s{S_WM0B}, s{S_WM0B}, {TILE}")
        e.salu(f"s_lshr_b32 s{S_OFFA}, s2, 4")
        e.salu(f"s_xor_b32 s{S_OFFA}, s{S_OFFA}, s2")
        e.salu(f"s_and_b32 s{S_OFFA}, s{S_OFFA}, {ROTMASK}")
        e.salu(f"s_lshl_b32 s{S_OFFA}, s{S_OFFA}, 14")
        e.salu(f"s_lshl_b32 s{S_OFFB}, s{S_W}, 11")
        e.salu(f"s_add_u32 s{S_OFFA}, s{S_OFFA}, s{S_OFFB}")
        e.salu(f"s_mov_b32 s{S_OFFB}, s{S_OFFA}")

    p1_step(10, 0, lambda: dma_wq_pair(e, ("D", 13)), push_p1(11))

    def iss14():
        kv_setup()
        dma_kv_pair(e, ("D", 14), k=True, v=False)
    p1_step(11, 2, iss14, push_p1(12))
    p1_step(12, 0, lambda: dma_kv_pair(e, ("D", 15)), push_p1(13), last=True)

    def kv_patterns():
        a, b2, c2 = V_T2, V_T3, V_TMP
        V(f"v_and_b32 v{a}, 7, v{L}", a, L)
        V(f"v_bfe_u32 v{b2}, v{L}, 4, 1", b2, L)
        V(f"v_lshl_add_u32 v{a}, v{b2}, 3, v{a}", a, b2, a)
        V(f"v_mul_u32_u24 v{a}, 1056, v{a}", a, a)
        V(f"v_bfe_u32 v{b2}, v{L}, 3, 1", b2, L)
        V(f"v_lshl_add_u32 v{a}, v{b2}, 9, v{a}", a, b2, a)
        V(f"v_lshrrev_b32 v{c2}, 5, v{L}", c2, L)
        V(f"v_xor_b32 v{b2}, v{b2}, v{c2}", b2, b2, c2)
        V(f"v_lshl_add_u32 v{V_PATA}, v{b2}, 4, v{a}", V_PATA, b2, a)
        V(f"v_bfe_u32 v{a}, v{L}, 2, 2", a, L)
        V(f"v_lshl_add_u32 v{a}, v{c2}, 2, v{a}", a, c2, a)
        V(f"v_mul_u32_u24 v{a}, 1088, v{a}", a, a)
        V(f"v_bfe_u32 v{b2}, v{L}, 4, 1", b2, L)
        V(f"v_lshl_add_u32 v{a}, v{b2}, 5, v{a}", a, b2, a)
        V(f"v_and_b32 v{b2}, 1, v{L}", b2, L)
        V(f"v_lshl_add_u32 v{a}, v{b2}, 4, v{a}", a, b2, a)
        V(f"v_bfe_u32 v{b2}, v{L}, 1, 1", b2, L)
        V(f"v_lshl_add_u32 v{a}, v{b2}, 3, v{a}", a, b2, a)
        V(f"v_add_u32 v{V_PATB}, {TILE}, v{a}", V_PATB, a)

    def k_frags():
        for ks in range(16):
            fs.push(rd_128(e, V_RDA, ks * 32))

    def v_frags():
        for ks2 in range(2):
            for j in range(8):
                off = ks2 * 8 * 1088 + j * 64
                fs.push(rd_tr(e, V_RDB, off, off + 512))

    def next_rd_kv():
        adv_slot(e, S_RD)
        V(f"v_add_u32 v{V_RDA}, s{S_RD}, v{V_PATA}", V_RDA, V_PATA)
        V(f"v_add_u32 v{V_RDB}, s{S_RD}, v{V_PATB}", V_RDB, V_PATB)

    def push_k0():
        def pre():
            kv_patterns()
            next_rd_kv()
        fs.push(("pre", pre))
        k_frags()

    p1_step(13, 2, lambda: dma_kv_pair(e, ("D", 16)), push_k0, last=True)

    stamp(e, 2)
    for i in range(64):
        e.valu(f"v_cvt_pk_bf16_f32 v{V_Q + i}, v{2 * i}, v{2 * i + 1}", dst=[V_Q + i], src=[2 * i, 2 * i + 1])
    for i in range(128):
        V(f"v_mov_b32 v{V_O + i}, 0", V_O + i)
    V(f"v_mov_b32 v{V_LSUM}, 0", V_LSUM)

    def qk_stage(sn, fillers, mid=None):
        nf = len(fillers)
        k = 0
        for ks in range(16):
            consume_mfma(sn, V_Q + 4 * ks, sn if ks else None)
            tgt = (nf * (ks + 1) + 15) // 16
            while k < tgt:
                fillers[k]()
                k += 1
            if mid is not None and ks == mid[0]:
                mid[1]()

    def exp_fillers(sc):
        fl = []
        for p in range(8):
            a, b = sc + 2 * p, sc + 2 * p + 1
            fl.append(lambda a=a: e.valu(f"v_fma_f32 v{a}, v{a}, s{S_C}, v{V_NEGM}", dst=[a], src=[a, V_NEGM]))
            fl.append(lambda b=b: e.valu(f"v_fma_f32 v{b}, v{b}, s{S_C}, v{V_NEGM}", dst=[b], src=[b, V_NEGM]))
            fl.append(lambda a=a: e.valu(f"v_exp_f32 v{a}, v{a}", dst=[a], src=[a], trans=True))
            fl.append(lambda b=b: e.valu(f"v_exp_f32 v{b}, v{b}", dst=[b], src=[b], trans=True))
            fl.append(lambda a=a: e.valu(f"v_add_f32 v{V_LSUM}, v{V_LSUM}, v{a}", dst=[V_LSUM], src=[V_LSUM, a]))
            fl.append(lambda b=b: e.valu(f"v_add_f32 v{V_LSUM}, v{V_LSUM}, v{b}", dst=[V_LSUM], src=[V_LSUM, b]))
            fl.append(lambda a=a, b=b, p=p: e.valu(f"v_cvt_pk_bf16_f32 v{sc + p}, v{a}, v{b}", dst=[sc + p], src=[a, b]))
        return fl

    def max_fillers(sn):
        fl = []
        fl.append(lambda: e.valu(f"v_max3_f32 v{V_TMAX}, v{sn}, v{sn + 1}, v{sn + 2}", dst=[V_TMAX], src=[sn, sn + 1, sn + 2]))
        for i in range(3, 15, 2):
            fl.append(lambda i=i: e.valu(f"v_max3_f32 v{V_TMAX}, v{V_TMAX}, v{sn + i}, v{sn + i + 1}",
                                         dst=[V_TMAX], src=[V_TMAX, sn + i, sn + i + 1]))
        fl.append(lambda: e.valu(f"v_max_f32 v{V_TMAX}, v{V_TMAX}, v{sn + 15}", dst=[V_TMAX], src=[V_TMAX, sn + 15]))
        return fl

    def cross_half_max(reg, tmp):
        V(f"v_mov_b32 v{tmp}, v{reg}", tmp, reg)
        e.nop(2)
        e.valu(f"v_permlane32_swap_b32 v{reg}, v{tmp}", dst=[reg, tmp], src=[reg, tmp])
        V(f"v_max_f32 v{reg}, v{reg}, v{tmp}", reg, reg, tmp)

    def mid14():
        e.wait_vm(("D", 15))
        e.salu("s_barrier")
        dma_kv_pair(e, ("D", 17))
        fs.push(("pre", next_rd_kv))
        k_frags()
        v_frags()
    qk_stage(V_S0, [], mid=(4, mid14))
    for f in max_fillers(V_S0):
        f()
    cross_half_max(V_TMAX, V_TMP)
    V(f"v_mul_f32 v{V_NEGM}, s{S_NC}, v{V_TMAX}", V_NEGM, V_TMAX)

    rare = []

    def p2_step(t, issue, has_qk=True, push_next=None, tagname=""):
        G = 15 + t
        sc = V_S0 if t % 2 == 0 else V_S1
        sn = V_S1 if t % 2 == 0 else V_S0
        fl = exp_fillers(sc)
        if has_qk:
            qk_stage(sn, fl)
        else:
            for f in fl:
                f()
        mx = max_fillers(sn) if has_qk else []
        k = 0
        for idx in range(16):
            ks2, j = idx >> 3, idx & 7
            consume_mfma(V_O + 16 * j, sc + 4 * ks2, V_O + 16 * j)
            if idx == 3:
                e.wait_vm(("D", G + 1))
                e.salu("s_barrier")
                issue()
                if push_next is not None:
                    push_next()
            if idx >= 5 and k < len(mx):
                mx[k]()
                k += 1
                if k < len(mx):
                    mx[k]()
                    k += 1
        if has_qk:
            assert k == len(mx)
            e.valu(f"v_fma_f32 v{V_TMP}, v{V_TMAX}, s{S_C}, v{V_NEGM}", dst=[V_TMP], src=[V_TMAX, V_NEGM])
            e.valu(f"v_cmp_lt_f32 vcc, s{S_THR}, v{V_TMP}", dst=[], src=[V_TMP])
            e.salu("s_nop 3")
            e.salu(f"s_cbranch_vccnz L_rare_{tagname}")
            e.label(f"L_back_{tagname}")
            rare.append(tagname)

    def push_kv():
        fs.push(("pre", next_rd_kv))
        k_frags()
        v_frags()

    def p2_body(i):
        t = 2 * i
        p2_step(t, lambda: dma_kv_pair(e, ("D", 15 + t + 3)), push_next=push_kv, tagname="a")
        p2_step(t + 1, lambda: dma_kv_pair(e, ("D", 15 + t + 4)), push_next=push_kv, tagname="b")

    e.loop("L_p2", 6, p2_body, f"s{S_CNT}")
    rare[:] = ["a", "b"]

    p2_step(12, lambda: dma_kv_pair(e, ("D", 30), k=False, v=True), push_next=push_kv, tagname="c")

    V_DWO = V_T2

    def wo_setup():
        a, b2 = V_T3, V_TMP
        V(f"v_bfe_u32 v{a}, v{L}, 4, 1", a, L)
        V(f"v_lshlrev_b32 v{a}, 2, v{a}", a, a)
        V(f"v_and_b32 v{b2}, 7, v{L}", b2, L)
        V(f"v_xor_b32 v{a}, v{a}, v{b2}", a, a, b2)
        V(f"v_lshlrev_b32 v{a}, 4, v{a}", a, a)
        V(f"v_lshrrev_b32 v{b2}, 3, v{L}", b2, L)
        V(f"v_mul_u32_u24 v{b2}, 896, v{b2}", b2, b2)
        V(f"v_add_u32 v{V_DWO}, v{a}, v{b2}", V_DWO, a, b2)
        e.salu(f"s_lshl_b32 s{S_WM0A}, s{S_W}, 11")
        e.salu(f"s_mul_i32 s{S_XOFF}, s{S_W}, {16 * 896}")

    def iss_wo0():
        wo_setup()
        dma_wo_pair(e, ("D", 31), 0, V_DWO)
    p2_step(13, iss_wo0, push_next=push_kv, tagname="d")

    def push_v_only():
        fs.push(("pre", next_rd_kv))
        v_frags()
    p2_step(14, lambda: None, push_next=push_v_only, tagname="e")
    p2_step(15, lambda: None, has_qk=False)

    stamp(e, 3)
    V(f"v_mov_b32 v{V_TMP}, v{V_LSUM}", V_TMP, V_LSUM)
    e.nop(2)
    e.valu(f"v_permlane32_swap_b32 v{V_LSUM}, v{V_TMP}", dst=[V_LSUM, V_TMP], src=[V_LSUM, V_TMP])
    V(f"v_add_f32 v{V_LSUM}, v{V_LSUM}, v{V_TMP}", V_LSUM, V_LSUM, V_TMP)
    e.valu(f"v_rcp_f32 v{V_LSUM}, v{V_LSUM}", dst=[V_LSUM], src=[V_LSUM], trans=True)
    e.nop(1)
    for i in range(128):
        V(f"v_mul_f32 v{i}, v{i}, v{V_LSUM}", i, i, V_LSUM)
    for i in range(64):
        e.valu(f"v_cvt_pk_bf16_f32 v{i}, v{2 * i}, v{2 * i + 1}", dst=[i], src=[2 * i, 2 * i + 1])
    P3_LANE, P3_DWO, P3_PAT, P3_RD, P3_EX, P3_T = 64, 65, 66, 67, 68, 69
    P3_ACC = 80
    P3_PK = 72
    P3_FR = 96
    V(f"v_mov_b32 v{P3_LANE}, v{L}", P3_LANE, L)
    V(f"v_mov_b32 v{P3_DWO}, v{V_DWO}", P3_DWO, V_DWO)
    V(f"v_lshlrev_b32 v{P3_EX}, 4, v{P3_LANE}", P3_EX, P3_LANE)
    e.salu(f"s_lshl_b32 s{S_EXW}, s{S_W}, 13")
    e.salu(f"s_xor_b32 s{S_EXR}, s{S_EXW}, {4 << 13}")
    V(f"v_add_u32 v{P3_T}, s{S_EXW}, v{P3_EX}", P3_T, P3_EX)
    V(f"v_add_u32 v{P3_EX}, s{S_EXR}, v{P3_EX}", P3_EX, P3_EX)
    e.wait_lds_all()
    e.salu("s_barrier")
    e.salu(f"s_cmp_eq_u32 s{S_HH}, 0")
    e.salu("s_cbranch_scc0 L_ex_h1")
    for variant in range(2):
        own = 128 + 64 * variant
        oth = 128 + 64 * (1 - variant)
        if variant == 1:
            e.label("L_ex_h1")
        for i in range(64):
            V(f"v_mov_b32 v{own + i}, v{i}", own + i, i)
        for rnd in range(2):
            for i in range(8):
                rg = 32 * rnd + 4 * i
                e.ds(f"ds_write_b128 v{P3_T}, {vr(rg, 4)} offset:{i * 1024}", "exw", src=range(rg, rg + 4))
            e.wait_lds_all()
            e.salu("s_barrier")
            for i in range(8):
                rg = oth + 32 * rnd + 4 * i
                e.ds(f"ds_read_b128 {vr(rg, 4)}, v{P3_EX} offset:{i * 1024}", "exr", dst=range(rg, rg + 4))
            e.wait_lds_all()
            e.salu("s_barrier")
        if variant == 0:
            e.salu("s_branch L_ex_done")
    e.label("L_ex_done")

    dma_wo_pair(e, ("D", 32), 1, P3_DWO)
    dma_wo_pair(e, ("D", 33), 2, P3_DWO)
    a, b2 = P3_T, P3_RD
    Lp = P3_LANE
    V(f"v_lshrrev_b32 v{a}, 5, v{Lp}", a, Lp)
    V(f"v_bfe_u32 v{b2}, v{Lp}, 2, 2", b2, Lp)
    V(f"v_lshl_add_u32 v{a}, v{a}, 3, v{b2}", a, a, b2)
    V(f"v_lshlrev_b32 v{a}, 7, v{a}", a, a)
    V(f"v_bfe_u32 v{b2}, v{Lp}, 3, 1", b2, Lp)
    V(f"v_xor_b32 v{b2}, s{S_HH}, v{b2}", b2, b2)
    V(f"v_lshl_add_u32 v{a}, v{b2}, 6, v{a}", a, b2, a)
    V(f"v_bfe_u32 v{b2}, v{Lp}, 4, 1", b2, Lp)
    V(f"v_lshl_add_u32 v{a}, v{b2}, 5, v{a}", a, b2, a)
    V(f"v_and_b32 v{b2}, 1, v{Lp}", b2, Lp)
    V(f"v_lshl_add_u32 v{a}, v{b2}, 4, v{a}", a, b2, a)
    V(f"v_bfe_u32 v{b2}, v{Lp}, 1, 1", b2, Lp)
    V(f"v_lshl_add_u32 v{P3_PAT}, v{b2}, 3, v{a}", P3_PAT, b2, a)
    V(f"v_lshlrev_b32 v{P3_EX}, 4, v{Lp}", P3_EX, Lp)
    e.salu(f"s_mul_i32 s{S_POFF}, s{S_W}, {7 * 2048}")
    e.salu(f"s_mov_b32 s{S_RD}, {3 * PAIR}")
    V(f"v_add_u32 v{P3_RD}, s{S_RD}, v{P3_PAT}", P3_RD, P3_PAT)
    e.wait_vm(("D", 31))
    e.salu("s_barrier")

    stamp(e, 4)
    fs3 = FragStream(e, base=P3_FR, nb=8)
    D3 = 6
    m3 = [0]

    def p3_frags():
        for t2 in range(2):
            for kk in range(8):
                off = t2 * TILE + kk * 2048
                fs3.push(rd_tr(e, P3_RD, off, off + 512))

    def next_rd3():
        adv_slot(e, S_RD)
        V(f"v_add_u32 v{P3_RD}, s{S_RD}, v{P3_PAT}", P3_RD, P3_PAT)

    def consume3(d, b, c):
        i = m3[0]
        assert i < fs3.issued
        e.wait_lds(("fr", i))
        e.mfma(d, fs3.buf(i), b, c)
        m3[0] += 1
        fs3.issue_next()

    p3_frags()
    for _ in range(D3):
        fs3.issue_next()

    def p3_step(p, issue, push):
        G = 31 + p
        half = p & 1
        for idx in range(16):
            cs = 16 * half + idx
            consume3(P3_ACC, 128 + 4 * cs, None if cs == 0 else P3_ACC)
            if idx == 3:
                e.wait_vm(("D", G + 1))
                e.salu("s_barrier")
                issue()
                if push:
                    fs3.push(("pre", next_rd3))
                    p3_frags()
        if half == 1:
            for i in range(8):
                e.valu(f"v_cvt_pk_bf16_f32 v{P3_PK + i}, v{P3_ACC + 2 * i}, v{P3_ACC + 2 * i + 1}",
                       dst=[P3_PK + i], src=[P3_ACC + 2 * i, P3_ACC + 2 * i + 1])
            for q4 in range(2):
                rg = P3_PK + 4 * q4
                e.vmem(f"buffer_store_dwordx4 {vr(rg, 4)}, v{P3_EX}, s[{S_P}:{S_P + 3}], s{S_POFF} offen offset:{q4 * 1024}{STPOL}",
                       ("st", p), src=range(rg, rg + 4))
            e.salu(f"s_add_u32 s{S_POFF}, s{S_POFF}, 2048")
            e.nop(1)

    def p3_body(i):
        p = 2 * i
        p3_step(p, lambda: dma_wo_pair(e, ("D", 31 + p + 3), p + 3, P3_DWO), True)
        p3_step(p + 1, lambda: dma_wo_pair(e, ("D", 31 + p + 4), p + 4, P3_DWO), True)

    p3_body(0)
    e.loop("L_p3", 4, lambda i: p3_body(i + 1), f"s{S_CNT}")
    p3_step(10, lambda: dma_wo_pair(e, ("D", 31 + 13), 13, P3_DWO), True)
    p3_step(11, lambda: None, True)
    p3_step(12, lambda: None, True)
    p3_step(13, lambda: None, False)
    stamp(e, 5)
    stamp_flush(e, 8)
    e.label("L_attn_exit")
    e.salu("s_endpgm")

    for tg in rare:
        e.label(f"L_rare_{tg}")
        e.raw("s_nop 15", 16)
        e.raw(f"v_mov_b32 v{V_TMP}, v{V_TMAX}")
        e.raw("s_nop 1", 2)
        e.raw(f"v_permlane32_swap_b32 v{V_TMAX}, v{V_TMP}")
        e.raw(f"v_max_f32 v{V_TMAX}, v{V_TMAX}, v{V_TMP}")
        e.raw(f"v_mul_f32 v{V_TMAX}, s{S_NC}, v{V_TMAX}")
        e.raw(f"v_min_f32 v{V_TMAX}, v{V_TMAX}, v{V_NEGM}")
        e.raw(f"v_sub_f32 v{V_TMP}, v{V_TMAX}, v{V_NEGM}")
        e.raw(f"v_exp_f32 v{V_TMP}, v{V_TMP}")
        e.raw(f"v_mov_b32 v{V_NEGM}, v{V_TMAX}")
        e.raw("s_nop 0")
        e.raw(f"v_mul_f32 v{V_LSUM}, v{V_LSUM}, v{V_TMP}")
        for i in range(128):
            e.raw(f"v_mul_f32 v{i}, v{i}, v{V_TMP}")
        e.raw("s_nop 1", 2)
        e.raw(f"s_branch L_back_{tg}")


def gen_reduce(e):
    e.label("reduce_kernel")
    e.salu("s_cmp_ge_u32 s2, 896")
    e.salu("s_cbranch_scc1 L_red_exit")
    e.salu("s_load_dwordx2 s[4:5], s[0:1], 80")
    e.salu("s_load_dwordx2 s[6:7], s[0:1], 96")
    e.salu("s_mul_hi_u32 s8, s2, 0x924924a")
    e.salu("s_mul_i32 s9, s8, 28")
    e.salu("s_sub_u32 s9, s2, s9")
    e.salu("s_lshl_b32 s9, s9, 1")
    e.raw("v_and_b32 v1, 63, v0")
    e.raw("v_bfe_u32 v2, v0, 6, 1")
    e.raw("v_lshrrev_b32 v3, 7, v0")
    e.raw("v_add_u32 v3, s9, v3")
    e.raw("v_lshlrev_b32 v4, 11, v3")
    e.raw("v_lshl_add_u32 v4, v2, 10, v4")
    e.raw("v_lshl_add_u32 v4, v1, 4, v4")
    e.salu("s_waitcnt lgkmcnt(0)")
    e.salu("s_mul_i32 s10, s8, 917504")
    e.salu("s_add_u32 s6, s6, s10")
    e.salu("s_addc_u32 s7, s7, 0")
    e.salu("s_mov_b32 s12, s6")
    e.salu("s_and_b32 s13, s7, 0xffff")
    e.salu("s_mov_b32 s14, 917504")
    e.salu("s_mov_b32 s15, 0x00020000")
    e.salu("s_mov_b32 s16, s4")
    e.salu("s_and_b32 s17, s5, 0xffff")
    e.salu("s_mov_b32 s18, 3670016")
    e.salu("s_mov_b32 s19, 0x00020000")
    for h in range(8):
        e.salu(f"s_mov_b32 s20, {h * 114688}")
        e.raw(f"buffer_load_dwordx4 v[{24 + 4 * h}:{27 + 4 * h}], v4, s[12:15], s20 offen{RDPOL}")
    e.raw("v_mul_u32_u24 v5, 37, v3")
    e.raw("v_lshrrev_b32 v5, 8, v5")
    e.raw("v_mul_u32_u24 v6, 7, v5")
    e.raw("v_sub_u32 v6, v3, v6")
    e.raw("v_and_b32 v7, 3, v5")
    e.raw("v_lshrrev_b32 v5, 2, v5")
    e.raw("v_and_b32 v8, 31, v1")
    e.raw("v_lshl_add_u32 v8, v7, 5, v8")
    e.raw("v_lshlrev_b32 v9, 6, v6")
    e.raw("v_lshl_add_u32 v9, v5, 5, v9")
    e.raw("v_lshl_add_u32 v9, v2, 4, v9")
    e.raw("v_lshrrev_b32 v10, 5, v1")
    e.raw("v_lshl_add_u32 v9, v10, 3, v9")
    e.salu("s_and_b32 s21, s8, 15")
    e.salu("s_lshr_b32 s22, s8, 4")
    e.salu("s_mul_i32 s21, s21, 229376")
    e.salu("s_mul_i32 s22, s22, 896")
    e.salu("s_add_u32 s21, s21, s22")
    e.salu("s_mov_b32 s23, 0xffff0000")
    e.raw("v_mul_u32_u24 v8, 1792, v8")
    e.raw("v_lshl_add_u32 v8, v9, 1, v8")
    for h in range(8):
        e.salu(f"s_waitcnt vmcnt({7 - h})")
        for i in range(4):
            r = 24 + 4 * h + i
            if h == 0:
                e.raw(f"v_lshlrev_b32 v{16 + 2 * i}, 16, v{r}")
                e.raw(f"v_and_b32 v{17 + 2 * i}, s23, v{r}")
            else:
                e.raw(f"v_lshlrev_b32 v11, 16, v{r}")
                e.raw(f"v_and_b32 v12, s23, v{r}")
                e.raw(f"v_add_f32 v{16 + 2 * i}, v{16 + 2 * i}, v11")
                e.raw(f"v_add_f32 v{17 + 2 * i}, v{17 + 2 * i}, v12")
    for i in range(4):
        e.raw(f"v_cvt_pk_bf16_f32 v{12 + i}, v{16 + 2 * i}, v{17 + 2 * i}")
    e.raw("buffer_store_dwordx4 v[12:15], v8, s[16:19], s21 offen")
    e.label("L_red_exit")
    e.salu("s_endpgm")


def main():
    ref = open(OUT + ".ref").read().splitlines()
    head = [l for l in ref if l.startswith(";") and "@launch" not in l]
    out = list(head)
    out.append(f"; @launch kernel=attn_kernel grid=(256,1,1) block=(512,1,1) lds={LDS_BYTES}")
    out.append("; @launch kernel=reduce_kernel grid=(896,1,1) block=(256,1,1) lds=0")
    out.append('.amdgcn_target "amdgcn-amd-amdhsa--gfx950"')
    out.append(".text")
    e = Em()
    out += [".globl attn_kernel", ".p2align 8", ".type attn_kernel,@function"]
    gen_attn(e)
    out += e.lines
    e2 = Em()
    out += [".globl reduce_kernel", ".p2align 8", ".type reduce_kernel,@function"]
    gen_reduce(e2)
    out += e2.lines
    out.append('.section .rodata,"a"')
    for k, vg, sg in (("attn_kernel", 256, 96), ("reduce_kernel", 56, 32)):
        out += [".p2align 6", f".amdhsa_kernel {k}",
                f"  .amdhsa_next_free_vgpr {vg}",
                f"  .amdhsa_next_free_sgpr {sg}",
                f"  .amdhsa_accum_offset {vg}",
                "  .amdhsa_group_segment_fixed_size 0",
                "  .amdhsa_kernarg_size 104",
                "  .amdhsa_user_sgpr_count 2",
                "  .amdhsa_user_sgpr_kernarg_segment_ptr 1",
                "  .amdhsa_system_sgpr_workgroup_id_x 1",
                ".end_amdhsa_kernel"]
    open(OUTFILE, "w").write("\n".join(out) + "\n")
    print("wrote", OUTFILE, len(out), "lines")


if __name__ == "__main__":
    main()
```

```python
import math
import sys
import os

NAME = "concat_heads__gqa_block_cached__gqa_block_cached__near_ridge"
OUT = f"cdna_kernels/{NAME}.s"
OUTFILE = sys.argv[1] if len(sys.argv) > 1 else OUT

STAMPS = os.environ.get("STAMPS", "0") == "1"
X_NOVM = os.environ.get("NOVM", "0") == "1"
X_NOBAR = os.environ.get("NOBAR", "0") == "1"
X_NODMA = os.environ.get("NODMA", "0") == "1"

ROTMASK = int(os.environ.get("ROTMASK", "15"))
TILE = 17408
PAIR = 2 * TILE
RING = 4 * PAIR
LDS_BYTES = 160 * 1024


class Em:
    def __init__(self):
        self.lines = []
        self.pos = 0
        self.mfma_w = {}
        self.mfma_c = {}
        self.valu_w = {}
        self.trans_w = {}
        self.lds_q = []
        self.vm_q = []
        self.capture = None

    def raw(self, s, slots=1):
        (self.capture if self.capture is not None else self.lines).append("    " + s)
        self.pos += slots

    def label(self, s):
        (self.capture if self.capture is not None else self.lines).append(s + ":")

    def comment(self, s):
        (self.capture if self.capture is not None else self.lines).append("    ; " + s)

    def nop(self, n):
        while n > 0:
            k = min(n, 16)
            self.raw(f"s_nop {k - 1}", k)
            n -= k

    def _need(self, table, regs, dist):
        need = 0
        for r in regs:
            p = table.get(r)
            if p is not None:
                have = self.pos - p - 1
                need = max(need, dist - have)
        return need

    def salu(self, s):
        if X_NOBAR and s == "s_barrier":
            s = "s_nop 0"
        self.raw(s)

    def valu(self, s, dst=(), src=(), trans=False):
        n = self._need(self.mfma_w, list(dst) + list(src), 12)
        n = max(n, self._need(self.mfma_c, dst, 7))
        if not trans:
            n = max(n, self._need(self.trans_w, src, 1))
        if n > 0:
            self.nop(n)
        p = self.pos
        self.raw(s)
        for r in dst:
            self.valu_w[r] = p
            if trans:
                self.trans_w[r] = p
            else:
                self.trans_w.pop(r, None)

    def mfma(self, d, a, b, c):
        D = list(range(d, d + 16))
        A = list(range(a, a + 4))
        B = list(range(b, b + 4))
        C = list(range(c, c + 16)) if c is not None else []
        n = self._need(self.valu_w, A + B + C, 2)
        n = max(n, self._need(self.mfma_w, A + B, 12))
        if c is not None and c != d:
            n = max(n, self._need(self.mfma_w, C, 10))
        if c is None:
            pass
        if n > 0:
            self.nop(n)
        p = self.pos
        cs = f"v[{c}:{c + 15}]" if c is not None else "0"
        self.raw(f"v_mfma_f32_32x32x16_bf16 v[{d}:{d + 15}], v[{a}:{a + 3}], v[{b}:{b + 3}], {cs}")
        for r in D:
            self.mfma_w[r] = p
        for r in C:
            self.mfma_c[r] = p

    def ds(self, s, tag, dst=(), src=()):
        n = self._need(self.mfma_w, list(dst) + list(src), 12)
        if n > 0:
            self.nop(n)
        self.raw(s)
        self.lds_q.append(tag)
        assert len(self.lds_q) <= 15, "too many LDS ops outstanding"

    def vmem(self, s, tag, dst=(), src=()):
        n = self._need(self.mfma_w, list(dst) + list(src), 12)
        if n > 0:
            self.nop(n)
        self.raw(s)
        self.vm_q.append(tag)
        assert len(self.vm_q) <= 63

    def wait_lds(self, tag):
        idx = max((i for i, t in enumerate(self.lds_q) if t == tag), default=-1)
        if idx < 0:
            return
        n = len(self.lds_q) - 1 - idx
        self.raw(f"s_waitcnt lgkmcnt({n})")
        self.lds_q = self.lds_q[idx + 1:]

    def wait_lds_all(self):
        if self.lds_q:
            self.raw("s_waitcnt lgkmcnt(0)")
            self.lds_q = []

    def wait_vm(self, tag):
        idx = max((i for i, t in enumerate(self.vm_q) if t == tag), default=-1)
        if idx < 0:
            return
        n = len(self.vm_q) - 1 - idx
        if X_NOVM and tag[0] == "D":
            self.raw("s_nop 0")
        else:
            self.raw(f"s_waitcnt vmcnt({n})")
        self.vm_q = self.vm_q[idx + 1:]

    def wait_vm_all(self):
        if self.vm_q:
            self.raw("s_waitcnt vmcnt(0)")
            self.vm_q = []

    def loop(self, name, n, body, counter):
        assert self.capture is None
        self.salu(f"s_mov_b32 {counter}, {n}")
        texts = []
        for i in range(n):
            self.capture = []
            body(i)
            self.salu(f"s_sub_u32 {counter}, {counter}, 1")
            self.salu(f"s_cmp_lg_u32 {counter}, 0")
            self.salu(f"s_cbranch_scc1 {name}")
            texts.append(self.capture)
            self.capture = None
        for i in range(1, n):
            if texts[i] != texts[0]:
                for a, b in zip(texts[0], texts[i]):
                    if a != b:
                        print("LOOP MISMATCH", name, i, a, "|", b)
                        break
                raise SystemExit(f"loop {name}: iteration {i} differs from iteration 0")
        self.label(name)
        self.lines.extend(texts[0])


def vr(base, n):
    return f"v[{base}:{base + n - 1}]"


S_X, S_K, S_V, S_WQ, S_WO, S_P = 8, 12, 16, 20, 24, 28
S_W = 32
S_HH = 33
S_QB = 34
S_RD = 35
S_DM = 36
S_T0, S_T1, S_T2, S_T3 = 37, 38, 39, 40
S_CNT = 41
S_C = 42
S_NC = 43
S_THR = 44
S_OFFA = 45
S_OFFB = 46
S_XOFF = 47
S_WM0A = 48
S_WM0B = 49
S_POFF = 50
S_EXW = 51
S_EXR = 52
S_KA = 56

V_O = 0
V_Q = 128
V_X = 128
V_S0, V_S1 = 192, 208
V_FR = 224
V_M = 240
V_PATA, V_PATB, V_RDA, V_RDB = 240, 241, 242, 243
V_DLIN, V_DK = 244, 245
V_NEGM, V_LSUM, V_TMAX, V_TMP = 246, 247, 248, 249
V_XOFF = 250
V_LANE = 251
V_T2 = 252
V_T3 = 253

import os

S_ST = 78


def stamp(e, i):
    if not STAMPS:
        return
    e.raw("s_memtime s[90:91]")
    e.raw("s_waitcnt lgkmcnt(0)")
    e.lds_q = []
    e.salu(f"s_mov_b32 s{S_ST + i}, s90")
    if i in (0, 5):
        e.raw("s_memrealtime s[90:91]")
        e.raw("s_waitcnt lgkmcnt(0)")
        e.salu(f"s_mov_b32 s{S_ST + 6 + (i == 5)}, s90")


def stamp_flush(e, n):
    if not STAMPS:
        return
    e.salu("s_load_dwordx2 s[90:91], s[0:1], 96")
    e.salu("s_waitcnt lgkmcnt(0)")
    e.salu("s_add_u32 s90, s90, 0x8000000")
    e.salu("s_addc_u32 s91, s91, 0")
    e.salu("s_mov_b32 s92, s90")
    e.salu("s_and_b32 s93, s91, 0xffff")
    e.salu("s_mov_b32 s94, 0x100000")
    e.salu("s_mov_b32 s95, 0x00020000")
    e.salu(f"s_lshl_b32 s90, s2, 3")
    e.salu(f"s_add_u32 s90, s90, s{S_W}")
    e.salu(f"s_lshl_b32 s90, s90, 6")
    e.raw("s_nop 15", 16)
    e.raw("v_mov_b32 v1, 0")
    for i in range(n):
        e.raw(f"v_mov_b32 v0, s{S_ST + i}")
        e.raw(f"buffer_store_dword v0, v1, s[92:95], s90 offen offset:{4 * i}")
        e.raw("s_waitcnt vmcnt(0)")


NB = 4
DPF = 3


def srd(e, dst, lo, hi, size):
    e.salu(f"s_mov_b32 s{dst}, s{lo}")
    e.salu(f"s_and_b32 s{dst + 1}, s{hi}, 0xffff")
    e.salu(f"s_mov_b32 s{dst + 2}, {size}")
    e.salu(f"s_mov_b32 s{dst + 3}, 0x00020000")


def adv_slot(e, s):
    e.salu(f"s_add_u32 s{s}, s{s}, {PAIR}")
    e.salu(f"s_cmp_ge_u32 s{s}, {RING}")
    e.salu(f"s_cselect_b32 s{S_T3}, {RING}, 0")
    e.salu(f"s_sub_u32 s{s}, s{s}, s{S_T3}")


KVPOL = os.environ.get("KVPOL", "nt")
STPOL = os.environ.get("STPOL", "")
STPOL = (" " + STPOL) if STPOL else ""
RDPOL = os.environ.get("RDPOL", "nt")
RDPOL = (" " + RDPOL) if RDPOL else ""


def dma(e, voff, sr, soff, m0expr, tag, off=0):
    sg, imm = m0expr
    e.salu(f"s_add_u32 m0, s{sg}, {imm}")
    e.salu("s_nop 0")
    o = f" offset:{off}" if off else ""
    if X_NODMA:
        e.salu("s_nop 0")
        return
    pol = (" " + KVPOL) if (sr in (S_K, S_V) and KVPOL) else ""
    e.vmem(f"buffer_load_dwordx4 v{voff}, s[{sr}:{sr + 3}], s{soff} offen{o}{pol} lds", tag)


def dma_wq_pair(e, tag):
    e.salu(f"s_add_u32 s{S_T0}, s{S_DM}, s{S_WM0A}")
    for e2 in range(2):
        for ee in range(2):
            e.salu(f"s_add_u32 s{S_T1}, s{S_OFFA}, {(16 * e2 + ee) * 8192}")
            dma(e, V_DLIN, S_WQ, S_T1, (S_T0, e2 * TILE + ee * 1088), tag)
    e.salu(f"s_add_u32 s{S_OFFA}, s{S_OFFA}, {32 * 8192}")
    adv_slot(e, S_DM)


def dma_kv_pair(e, tag, k=True, v=True):
    if k:
        e.salu(f"s_add_u32 s{S_T0}, s{S_DM}, s{S_WM0A}")
        dma(e, V_DK, S_K, S_OFFA, (S_T0, 0), tag)
        dma(e, V_DK, S_K, S_OFFA, (S_T0, 32), tag, off=1024)
        e.salu(f"s_add_u32 s{S_OFFA}, s{S_OFFA}, 16384")
        e.salu(f"s_and_b32 s{S_OFFA}, s{S_OFFA}, 0x3ffff")
    if v:
        e.salu(f"s_add_u32 s{S_T0}, s{S_DM}, s{S_WM0B}")
        dma(e, V_DLIN, S_V, S_OFFB, (S_T0, 0), tag)
        dma(e, V_DLIN, S_V, S_OFFB, (S_T0, 64), tag, off=1024)
        e.salu(f"s_add_u32 s{S_OFFB}, s{S_OFFB}, 16384")
        e.salu(f"s_and_b32 s{S_OFFB}, s{S_OFFB}, 0x3ffff")
    adv_slot(e, S_DM)


def dma_wo_pair(e, tag, p, vdwo):
    e.salu(f"s_add_u32 s{S_T0}, s{S_DM}, s{S_WM0A}")
    for t2 in range(2):
        qd = (2 * p + t2) & 3
        for ee in range(2):
            e.salu(f"s_add_u32 s{S_T1}, s{S_XOFF}, {(128 * qd + 8 * ee) * 896}")
            dma(e, vdwo, S_WO, S_T1, (S_T0, t2 * TILE + ee * 1024), tag)
    if p & 1:
        e.salu(f"s_add_u32 s{S_XOFF}, s{S_XOFF}, 128")
    adv_slot(e, S_DM)


class FragStream:
    def __init__(self, e, base=V_FR, nb=NB):
        self.e = e
        self.base = base
        self.nb = nb
        self.issued = 0
        self.queue = []

    def buf(self, i):
        return self.base + 4 * (i % self.nb)

    def push(self, fn):
        self.queue.append(fn)

    def issue_next(self):
        while self.queue:
            fn = self.queue.pop(0)
            if fn[0] == "pre":
                fn[1]()
                continue
            i = self.issued
            fn[1](self.buf(i), ("fr", i))
            self.issued += 1
            return True
        return False


def rd_tr(e, areg, off0, off1):
    def f(dst, tag):
        e.ds(f"ds_read_b64_tr_b16 {vr(dst, 2)}, v{areg} offset:{off0}", tag, dst=range(dst, dst + 2))
        e.ds(f"ds_read_b64_tr_b16 {vr(dst + 2, 2)}, v{areg} offset:{off1}", tag, dst=range(dst + 2, dst + 4))
    return ("rd", f)


def rd_128(e, areg, off):
    def f(dst, tag):
        e.ds(f"ds_read_b128 {vr(dst, 4)}, v{areg} offset:{off}", tag, dst=range(dst, dst + 4))
    return ("rd", f)


def gen_attn(e):
    e.label("attn_kernel")
    e.salu("s_cmp_ge_u32 s2, 256")
    e.salu("s_cbranch_scc1 L_attn_exit")
    e.salu(f"s_load_dwordx16 s[{S_KA}:{S_KA + 15}], s[0:1], 0")
    e.salu(f"s_load_dwordx4 s[{S_KA + 16}:{S_KA + 19}], s[0:1], 64")
    e.salu(f"s_load_dwordx2 s[{S_KA + 20}:{S_KA + 21}], s[0:1], 96")
    e.salu(f"s_and_b32 s{S_T0}, s2, 7")
    e.salu(f"s_lshr_b32 s{S_T1}, s2, 3")
    e.salu(f"s_and_b32 s{S_T2}, s{S_T1}, 15")
    e.valu(f"v_lshrrev_b32 v1, 6, v0", dst=[1], src=[0])
    e.valu(f"v_and_b32 v{V_LANE}, 63, v0", dst=[V_LANE], src=[0])
    e.salu("s_nop 0")
    e.raw(f"v_readfirstlane_b32 s{S_W}, v1")
    e.salu("s_nop 3")
    e.salu(f"s_lshr_b32 s{S_HH}, s{S_W}, 2")
    e.salu(f"s_and_b32 s{S_QB}, s{S_W}, 3")
    e.salu("s_waitcnt lgkmcnt(0)")
    e.salu(f"s_cmp_ge_u32 s{S_T1}, 16")
    for i in range(10):
        e.salu(f"s_cselect_b32 s{S_KA + i}, s{S_KA + 10 + i}, s{S_KA + i}")
    e.salu(f"s_mul_i32 s{S_T3}, s{S_T2}, 114688")
    e.salu(f"s_add_u32 s{S_KA}, s{S_KA}, s{S_T3}")
    e.salu(f"s_addc_u32 s{S_KA + 1}, s{S_KA + 1}, 0")
    srd(e, S_X, S_KA, S_KA + 1, 114688)
    e.salu(f"s_lshl_b32 s{S_T3}, s{S_T2}, 3")
    e.salu(f"s_add_u32 s{S_T3}, s{S_T3}, s{S_T0}")
    e.salu(f"s_lshl_b32 s{S_T3}, s{S_T3}, 18")
    e.salu(f"s_add_u32 s{S_KA + 2}, s{S_KA + 2}, s{S_T3}")
    e.salu(f"s_addc_u32 s{S_KA + 3}, s{S_KA + 3}, 0")
    srd(e, S_K, S_KA + 2, S_KA + 3, 262144)
    e.salu(f"s_add_u32 s{S_KA + 4}, s{S_KA + 4}, s{S_T3}")
    e.salu(f"s_addc_u32 s{S_KA + 5}, s{S_KA + 5}, 0")
    srd(e, S_V, S_KA + 4, S_KA + 5, 262144)
    e.salu(f"s_lshl_b32 s{S_T3}, s{S_T0}, 10")
    e.salu(f"s_add_u32 s{S_KA + 6}, s{S_KA + 6}, s{S_T3}")
    e.salu(f"s_addc_u32 s{S_KA + 7}, s{S_KA + 7}, 0")
    srd(e, S_WQ, S_KA + 6, S_KA + 7, 448 * 8192)
    e.salu(f"s_sub_u32 s{S_WQ + 2}, s{S_WQ + 2}, s{S_T3}")
    e.salu(f"s_mul_i32 s{S_T3}, s{S_T0}, 458752")
    e.salu(f"s_add_u32 s{S_KA + 8}, s{S_KA + 8}, s{S_T3}")
    e.salu(f"s_addc_u32 s{S_KA + 9}, s{S_KA + 9}, 0")
    srd(e, S_WO, S_KA + 8, S_KA + 9, 458752)
    e.salu(f"s_mul_i32 s{S_T3}, s2, 114688")
    e.salu(f"s_add_u32 s{S_KA + 20}, s{S_KA + 20}, s{S_T3}")
    e.salu(f"s_addc_u32 s{S_KA + 21}, s{S_KA + 21}, 0")
    srd(e, S_P, S_KA + 20, S_KA + 21, 114688)
    c = math.log2(math.e) / 16.0
    import struct
    cbits = struct.unpack("<I", struct.pack("<f", c))[0]
    ncbits = struct.unpack("<I", struct.pack("<f", -c))[0]
    e.salu(f"s_mov_b32 s{S_C}, {cbits:#x}")
    e.salu(f"s_mov_b32 s{S_NC}, {ncbits:#x}")
    e.salu(f"s_mov_b32 s{S_THR}, 0x41000000")

    stamp(e, 0)
    L = V_LANE
    t1, t2, t3, t4 = 1, 2, 3, 4

    def V(s, d, *src):
        e.valu(s, dst=[d], src=list(src))

    V(f"v_bfe_u32 v{t1}, v{L}, 4, 1", t1, L)
    V(f"v_lshlrev_b32 v5, 5, v{t1}", 5, t1)
    V(f"v_and_b32 v{t1}, 1, v{L}", t1, L)
    V(f"v_lshlrev_b32 v{t1}, 4, v{t1}", t1, t1)
    V(f"v_add_u32 v5, v5, v{t1}", 5, 5, t1)
    V(f"v_bfe_u32 v{t1}, v{L}, 1, 1", t1, L)
    V(f"v_lshlrev_b32 v{t1}, 3, v{t1}", t1, t1)
    V(f"v_add_u32 v5, v5, v{t1}", 5, 5, t1)
    V(f"v_lshrrev_b32 v6, 5, v{L}", 6, L)
    V(f"v_bfe_u32 v7, v{L}, 2, 2", 7, L)
    V(f"v_lshlrev_b32 v{V_DLIN}, 4, v{L}", V_DLIN, L)
    V(f"v_and_b32 v{t1}, 31, v{L}", t1, L)
    V(f"v_xor_b32 v{t1}, v{t1}, v6", t1, t1, 6)
    V(f"v_lshlrev_b32 v{t1}, 4, v{t1}", t1, t1)
    V(f"v_lshl_add_u32 v{V_DK}, v6, 9, v{t1}", V_DK, 6, t1)
    V(f"v_lshl_add_u32 v{t1}, v6, 3, v7", t1, 6, 7)
    V(f"v_mul_u32_u24 v{t1}, 1088, v{t1}", t1, t1)
    V(f"v_add_u32 v{t1}, v{t1}, v5", t1, t1, 5)
    e.salu(f"s_lshl_b32 s{S_T3}, s{S_HH}, 9")
    V(f"v_add_u32 v{V_PATA}, s{S_T3}, v{t1}", V_PATA, t1)
    V(f"v_bfe_u32 v{t1}, v{L}, 4, 2", t1, L)
    V(f"v_and_b32 v{t2}, 3, v{L}", t2, L)
    V(f"v_xor_b32 v{t1}, v{t1}, v{t2}", t1, t1, t2)
    V(f"v_lshlrev_b32 v{t1}, 4, v{t1}", t1, t1)
    V(f"v_lshrrev_b32 v{t2}, 2, v{L}", t2, L)
    V(f"v_mul_u32_u24 v{t2}, 896, v{t2}", t2, t2)
    V(f"v_add_u32 v{V_XOFF}, v{t1}, v{t2}", V_XOFF, t1, t2)
    V(f"v_and_b32 v{t1}, 31, v{L}", t1, L)
    e.salu(f"s_lshl_b32 s{S_T3}, s{S_QB}, 5")
    V(f"v_add_u32 v{t1}, s{S_T3}, v{t1}", t1, t1)
    V(f"v_lshlrev_b32 v{t1}, 6, v{t1}", t1, t1)
    V(f"v_bfe_u32 v{t2}, v{L}, 2, 2", t2, L)
    V(f"v_xor_b32 v{t2}, v{t2}, v6", t2, t2, 6)
    V(f"v_lshl_add_u32 v{t1}, v{t2}, 4, v{t1}", t1, t2, t1)
    V(f"v_add_u32 v{V_PATB}, {RING}, v{t1}", V_PATB, t1)

    e.salu(f"s_mul_i32 s{S_WM0A}, s{S_W}, {2 * 1088}")
    e.salu(f"s_lshl_b32 s{S_OFFA}, s{S_W}, 14")
    e.salu(f"s_mov_b32 s{S_DM}, 0")
    e.salu(f"s_mov_b32 s{S_RD}, 0")
    e.salu(f"s_mul_i32 s{S_XOFF}, s{S_W}, {16 * 896}")
    e.salu(f"s_lshl_b32 s{S_EXW}, s{S_W}, 10")
    e.salu(f"s_add_u32 s{S_EXW}, s{S_EXW}, {RING}")
    e.salu(f"s_mov_b32 s{S_EXR}, 0")
    e.salu(f"s_mov_b32 s{S_POFF}, 0")

    def adv_x(sr):
        e.salu(f"s_add_u32 s{sr}, s{sr}, 8192")
        e.salu(f"s_cmp_ge_u32 s{sr}, 24576")
        e.salu(f"s_cselect_b32 s{sr}, 0, s{sr}")

    def xdma(tag):
        e.salu(f"s_add_u32 s{S_T0}, s{S_EXW}, s{S_POFF}")
        dma(e, V_XOFF, S_X, S_XOFF, (S_T0, 0), tag)
        e.salu(f"s_add_u32 s{S_XOFF}, s{S_XOFF}, 64")
        adv_x(S_POFF)

    def xread(xi, G):
        V(f"v_add_u32 v{V_RDB}, s{S_EXR}, v{V_PATB}", V_RDB, V_PATB)
        e.ds(f"ds_read_b128 {vr(V_X + 4 * xi, 4)}, v{V_RDB}", ("x", 2 * G), dst=range(V_X + 4 * xi, V_X + 4 * xi + 4))
        V(f"v_xor_b32 v{V_RDB}, 32, v{V_RDB}", V_RDB, V_RDB)
        e.ds(f"ds_read_b128 {vr(V_X + 4 * xi + 4, 4)}, v{V_RDB}", ("x", 2 * G + 1),
             dst=range(V_X + 4 * xi + 4, V_X + 4 * xi + 8))
        adv_x(S_EXR)

    dma_wq_pair(e, ("D", 0))
    xdma(("X", 0))
    dma_wq_pair(e, ("D", 1))
    xdma(("X", 1))
    dma_wq_pair(e, ("D", 2))
    for i in range(128):
        V(f"v_mov_b32 v{V_O + i}, 0", V_O + i)
    V(f"v_add_u32 v{V_RDA}, s{S_RD}, v{V_PATA}", V_RDA, V_PATA)
    e.wait_vm(("X", 0))
    e.salu("s_barrier")

    stamp(e, 1)
    xread(0, 0)
    e.wait_lds(("x", 1))
    fs = FragStream(e)

    def p1_frags(G):
        for e2 in range(2):
            for ct in range(8):
                off = e2 * TILE + ct * 64
                fs.push(rd_tr(e, V_RDA, off, off + 4 * 1088))

    def next_rd_a():
        adv_slot(e, S_RD)
        V(f"v_add_u32 v{V_RDA}, s{S_RD}, v{V_PATA}", V_RDA, V_PATA)

    mf_idx = [0]

    def consume_mfma(d, b, c):
        i = mf_idx[0]
        assert i < fs.issued
        e.wait_lds(("fr", i))
        e.mfma(d, fs.buf(i), b, c)
        mf_idx[0] += 1
        fs.issue_next()

    def p1_step(G, xi, issue, push_next, last=False):
        for e2 in range(2):
            ks = 2 * G + e2
            e.wait_lds(("x", ks))
            for ct in range(8):
                consume_mfma(V_O + 16 * ct, V_X + 4 * (xi + e2), V_O + 16 * ct)
                if e2 == 0 and ct == 7:
                    if G + 1 <= 13:
                        e.wait_vm(("X", G + 1))
                    e.wait_vm(("D", G + 1))
                    e.salu("s_barrier")
                    if G + 2 <= 13:
                        xdma(("X", G + 2))
                    issue()
                    if G + 1 <= 13:
                        xread(2 - xi, G + 1)
                    push_next()

    p1_frags(0)
    for _ in range(DPF):
        fs.issue_next()

    def push_p1(G):
        def f():
            fs.push(("pre", next_rd_a))
            p1_frags(G)
        return f

    def p1_body(i):
        G = 2 * i
        p1_step(G, 0, lambda: dma_wq_pair(e, ("D", G + 3)), push_p1(G + 1))
        p1_step(G + 1, 2, lambda: dma_wq_pair(e, ("D", G + 4)), push_p1(G + 2))

    e.loop("L_p1", 5, p1_body, f"s{S_CNT}")

    def kv_setup():
        e.salu(f"s_mul_i32 s{S_WM0A}, s{S_W}, {2 * 1056}")
        e.salu(f"s_mul_i32 s{S_WM0B}, s{S_W}, {2 * 1088}")
        e.salu(f"s_add_u32 s{S_WM0B}, s{S_WM0B}, {TILE}")
        e.salu(f"s_lshr_b32 s{S_OFFA}, s2, 4")
        e.salu(f"s_xor_b32 s{S_OFFA}, s{S_OFFA}, s2")
        e.salu(f"s_and_b32 s{S_OFFA}, s{S_OFFA}, {ROTMASK}")
        e.salu(f"s_lshl_b32 s{S_OFFA}, s{S_OFFA}, 14")
        e.salu(f"s_lshl_b32 s{S_OFFB}, s{S_W}, 11")
        e.salu(f"s_add_u32 s{S_OFFA}, s{S_OFFA}, s{S_OFFB}")
        e.salu(f"s_mov_b32 s{S_OFFB}, s{S_OFFA}")

    p1_step(10, 0, lambda: dma_wq_pair(e, ("D", 13)), push_p1(11))

    def iss14():
        kv_setup()
        dma_kv_pair(e, ("D", 14), k=True, v=False)
    p1_step(11, 2, iss14, push_p1(12))
    p1_step(12, 0, lambda: dma_kv_pair(e, ("D", 15)), push_p1(13), last=True)

    def kv_patterns():
        a, b2, c2 = V_T2, V_T3, V_TMP
        V(f"v_and_b32 v{a}, 7, v{L}", a, L)
        V(f"v_bfe_u32 v{b2}, v{L}, 4, 1", b2, L)
        V(f"v_lshl_add_u32 v{a}, v{b2}, 3, v{a}", a, b2, a)
        V(f"v_mul_u32_u24 v{a}, 1056, v{a}", a, a)
        V(f"v_bfe_u32 v{b2}, v{L}, 3, 1", b2, L)
        V(f"v_lshl_add_u32 v{a}, v{b2}, 9, v{a}", a, b2, a)
        V(f"v_lshrrev_b32 v{c2}, 5, v{L}", c2, L)
        V(f"v_xor_b32 v{b2}, v{b2}, v{c2}", b2, b2, c2)
        V(f"v_lshl_add_u32 v{V_PATA}, v{b2}, 4, v{a}", V_PATA, b2, a)
        V(f"v_bfe_u32 v{a}, v{L}, 2, 2", a, L)
        V(f"v_lshl_add_u32 v{a}, v{c2}, 2, v{a}", a, c2, a)
        V(f"v_mul_u32_u24 v{a}, 1088, v{a}", a, a)
        V(f"v_bfe_u32 v{b2}, v{L}, 4, 1", b2, L)
        V(f"v_lshl_add_u32 v{a}, v{b2}, 5, v{a}", a, b2, a)
        V(f"v_and_b32 v{b2}, 1, v{L}", b2, L)
        V(f"v_lshl_add_u32 v{a}, v{b2}, 4, v{a}", a, b2, a)
        V(f"v_bfe_u32 v{b2}, v{L}, 1, 1", b2, L)
        V(f"v_lshl_add_u32 v{a}, v{b2}, 3, v{a}", a, b2, a)
        V(f"v_add_u32 v{V_PATB}, {TILE}, v{a}", V_PATB, a)

    def k_frags():
        for ks in range(16):
            fs.push(rd_128(e, V_RDA, ks * 32))

    def v_frags():
        for ks2 in range(2):
            for j in range(8):
                off = ks2 * 8 * 1088 + j * 64
                fs.push(rd_tr(e, V_RDB, off, off + 512))

    def next_rd_kv():
        adv_slot(e, S_RD)
        V(f"v_add_u32 v{V_RDA}, s{S_RD}, v{V_PATA}", V_RDA, V_PATA)
        V(f"v_add_u32 v{V_RDB}, s{S_RD}, v{V_PATB}", V_RDB, V_PATB)

    def push_k0():
        def pre():
            kv_patterns()
            next_rd_kv()
        fs.push(("pre", pre))
        k_frags()

    p1_step(13, 2, lambda: dma_kv_pair(e, ("D", 16)), push_k0, last=True)

    stamp(e, 2)
    for i in range(64):
        e.valu(f"v_cvt_pk_bf16_f32 v{V_Q + i}, v{2 * i}, v{2 * i + 1}", dst=[V_Q + i], src=[2 * i, 2 * i + 1])
    for i in range(128):
        V(f"v_mov_b32 v{V_O + i}, 0", V_O + i)
    V(f"v_mov_b32 v{V_LSUM}, 0", V_LSUM)

    def qk_stage(sn, fillers, mid=None):
        nf = len(fillers)
        k = 0
        for ks in range(16):
            consume_mfma(sn, V_Q + 4 * ks, sn if ks else None)
            tgt = (nf * (ks + 1) + 15) // 16
            while k < tgt:
                fillers[k]()
                k += 1
            if mid is not None and ks == mid[0]:
                mid[1]()

    def exp_fillers(sc):
        fl = []
        for p in range(8):
            a, b = sc + 2 * p, sc + 2 * p + 1
            fl.append(lambda a=a: e.valu(f"v_fma_f32 v{a}, v{a}, s{S_C}, v{V_NEGM}", dst=[a], src=[a, V_NEGM]))
            fl.append(lambda b=b: e.valu(f"v_fma_f32 v{b}, v{b}, s{S_C}, v{V_NEGM}", dst=[b], src=[b, V_NEGM]))
            fl.append(lambda a=a: e.valu(f"v_exp_f32 v{a}, v{a}", dst=[a], src=[a], trans=True))
            fl.append(lambda b=b: e.valu(f"v_exp_f32 v{b}, v{b}", dst=[b], src=[b], trans=True))
            fl.append(lambda a=a: e.valu(f"v_add_f32 v{V_LSUM}, v{V_LSUM}, v{a}", dst=[V_LSUM], src=[V_LSUM, a]))
            fl.append(lambda b=b: e.valu(f"v_add_f32 v{V_LSUM}, v{V_LSUM}, v{b}", dst=[V_LSUM], src=[V_LSUM, b]))
            fl.append(lambda a=a, b=b, p=p: e.valu(f"v_cvt_pk_bf16_f32 v{sc + p}, v{a}, v{b}", dst=[sc + p], src=[a, b]))
        return fl

    def max_fillers(sn):
        fl = []
        fl.append(lambda: e.valu(f"v_max3_f32 v{V_TMAX}, v{sn}, v{sn + 1}, v{sn + 2}", dst=[V_TMAX], src=[sn, sn + 1, sn + 2]))
        for i in range(3, 15, 2):
            fl.append(lambda i=i: e.valu(f"v_max3_f32 v{V_TMAX}, v{V_TMAX}, v{sn + i}, v{sn + i + 1}",
                                         dst=[V_TMAX], src=[V_TMAX, sn + i, sn + i + 1]))
        fl.append(lambda: e.valu(f"v_max_f32 v{V_TMAX}, v{V_TMAX}, v{sn + 15}", dst=[V_TMAX], src=[V_TMAX, sn + 15]))
        return fl

    def cross_half_max(reg, tmp):
        V(f"v_mov_b32 v{tmp}, v{reg}", tmp, reg)
        e.nop(2)
        e.valu(f"v_permlane32_swap_b32 v{reg}, v{tmp}", dst=[reg, tmp], src=[reg, tmp])
        V(f"v_max_f32 v{reg}, v{reg}, v{tmp}", reg, reg, tmp)

    def mid14():
        e.wait_vm(("D", 15))
        e.salu("s_barrier")
        dma_kv_pair(e, ("D", 17))
        fs.push(("pre", next_rd_kv))
        k_frags()
        v_frags()
    qk_stage(V_S0, [], mid=(4, mid14))
    for f in max_fillers(V_S0):
        f()
    cross_half_max(V_TMAX, V_TMP)
    V(f"v_mul_f32 v{V_NEGM}, s{S_NC}, v{V_TMAX}", V_NEGM, V_TMAX)

    rare = []

    def p2_step(t, issue, has_qk=True, push_next=None, tagname=""):
        G = 15 + t
        sc = V_S0 if t % 2 == 0 else V_S1
        sn = V_S1 if t % 2 == 0 else V_S0
        fl = exp_fillers(sc)
        if has_qk:
            qk_stage(sn, fl)
        else:
            for f in fl:
                f()
        mx = max_fillers(sn) if has_qk else []
        k = 0
        for idx in range(16):
            ks2, j = idx >> 3, idx & 7
            consume_mfma(V_O + 16 * j, sc + 4 * ks2, V_O + 16 * j)
            if idx == 3:
                e.wait_vm(("D", G + 1))
                e.salu("s_barrier")
                issue()
                if push_next is not None:
                    push_next()
            if idx >= 5 and k < len(mx):
                mx[k]()
                k += 1
                if k < len(mx):
                    mx[k]()
                    k += 1
        if has_qk:
            assert k == len(mx)
            e.valu(f"v_fma_f32 v{V_TMP}, v{V_TMAX}, s{S_C}, v{V_NEGM}", dst=[V_TMP], src=[V_TMAX, V_NEGM])
            e.valu(f"v_cmp_lt_f32 vcc, s{S_THR}, v{V_TMP}", dst=[], src=[V_TMP])
            e.salu("s_nop 3")
            e.salu(f"s_cbranch_vccnz L_rare_{tagname}")
            e.label(f"L_back_{tagname}")
            rare.append(tagname)

    def push_kv():
        fs.push(("pre", next_rd_kv))
        k_frags()
        v_frags()

    def p2_body(i):
        t = 2 * i
        p2_step(t, lambda: dma_kv_pair(e, ("D", 15 + t + 3)), push_next=push_kv, tagname="a")
        p2_step(t + 1, lambda: dma_kv_pair(e, ("D", 15 + t + 4)), push_next=push_kv, tagname="b")

    e.loop("L_p2", 6, p2_body, f"s{S_CNT}")
    rare[:] = ["a", "b"]

    p2_step(12, lambda: dma_kv_pair(e, ("D", 30), k=False, v=True), push_next=push_kv, tagname="c")

    V_DWO = V_T2

    def wo_setup():
        a, b2 = V_T3, V_TMP
        V(f"v_bfe_u32 v{a}, v{L}, 4, 1", a, L)
        V(f"v_lshlrev_b32 v{a}, 2, v{a}", a, a)
        V(f"v_and_b32 v{b2}, 7, v{L}", b2, L)
        V(f"v_xor_b32 v{a}, v{a}, v{b2}", a, a, b2)
        V(f"v_lshlrev_b32 v{a}, 4, v{a}", a, a)
        V(f"v_lshrrev_b32 v{b2}, 3, v{L}", b2, L)
        V(f"v_mul_u32_u24 v{b2}, 896, v{b2}", b2, b2)
        V(f"v_add_u32 v{V_DWO}, v{a}, v{b2}", V_DWO, a, b2)
        e.salu(f"s_lshl_b32 s{S_WM0A}, s{S_W}, 11")
        e.salu(f"s_mul_i32 s{S_XOFF}, s{S_W}, {16 * 896}")

    def iss_wo0():
        wo_setup()
        dma_wo_pair(e, ("D", 31), 0, V_DWO)
    p2_step(13, iss_wo0, push_next=push_kv, tagname="d")

    def push_v_only():
        fs.push(("pre", next_rd_kv))
        v_frags()
    p2_step(14, lambda: None, push_next=push_v_only, tagname="e")
    p2_step(15, lambda: None, has_qk=False)

    stamp(e, 3)
    V(f"v_mov_b32 v{V_TMP}, v{V_LSUM}", V_TMP, V_LSUM)
    e.nop(2)
    e.valu(f"v_permlane32_swap_b32 v{V_LSUM}, v{V_TMP}", dst=[V_LSUM, V_TMP], src=[V_LSUM, V_TMP])
    V(f"v_add_f32 v{V_LSUM}, v{V_LSUM}, v{V_TMP}", V_LSUM, V_LSUM, V_TMP)
    e.valu(f"v_rcp_f32 v{V_LSUM}, v{V_LSUM}", dst=[V_LSUM], src=[V_LSUM], trans=True)
    e.nop(1)
    for i in range(128):
        V(f"v_mul_f32 v{i}, v{i}, v{V_LSUM}", i, i, V_LSUM)
    for i in range(64):
        e.valu(f"v_cvt_pk_bf16_f32 v{i}, v{2 * i}, v{2 * i + 1}", dst=[i], src=[2 * i, 2 * i + 1])
    P3_LANE, P3_DWO, P3_PAT, P3_RD, P3_EX, P3_T = 64, 65, 66, 67, 68, 69
    P3_ACC = 80
    P3_PK = 72
    P3_FR = 96
    V(f"v_mov_b32 v{P3_LANE}, v{L}", P3_LANE, L)
    V(f"v_mov_b32 v{P3_DWO}, v{V_DWO}", P3_DWO, V_DWO)
    V(f"v_lshlrev_b32 v{P3_EX}, 4, v{P3_LANE}", P3_EX, P3_LANE)
    e.salu(f"s_lshl_b32 s{S_EXW}, s{S_W}, 13")
    e.salu(f"s_xor_b32 s{S_EXR}, s{S_EXW}, {4 << 13}")
    V(f"v_add_u32 v{P3_T}, s{S_EXW}, v{P3_EX}", P3_T, P3_EX)
    V(f"v_add_u32 v{P3_EX}, s{S_EXR}, v{P3_EX}", P3_EX, P3_EX)
    e.wait_lds_all()
    e.salu("s_barrier")
    e.salu(f"s_cmp_eq_u32 s{S_HH}, 0")
    e.salu("s_cbranch_scc0 L_ex_h1")
    for variant in range(2):
        own = 128 + 64 * variant
        oth = 128 + 64 * (1 - variant)
        if variant == 1:
            e.label("L_ex_h1")
        for i in range(64):
            V(f"v_mov_b32 v{own + i}, v{i}", own + i, i)
        for rnd in range(2):
            for i in range(8):
                rg = 32 * rnd + 4 * i
                e.ds(f"ds_write_b128 v{P3_T}, {vr(rg, 4)} offset:{i * 1024}", "exw", src=range(rg, rg + 4))
            e.wait_lds_all()
            e.salu("s_barrier")
            for i in range(8):
                rg = oth + 32 * rnd + 4 * i
                e.ds(f"ds_read_b128 {vr(rg, 4)}, v{P3_EX} offset:{i * 1024}", "exr", dst=range(rg, rg + 4))
            e.wait_lds_all()
            e.salu("s_barrier")
        if variant == 0:
            e.salu("s_branch L_ex_done")
    e.label("L_ex_done")

    dma_wo_pair(e, ("D", 32), 1, P3_DWO)
    dma_wo_pair(e, ("D", 33), 2, P3_DWO)
    a, b2 = P3_T, P3_RD
    Lp = P3_LANE
    V(f"v_lshrrev_b32 v{a}, 5, v{Lp}", a, Lp)
    V(f"v_bfe_u32 v{b2}, v{Lp}, 2, 2", b2, Lp)
    V(f"v_lshl_add_u32 v{a}, v{a}, 3, v{b2}", a, a, b2)
    V(f"v_lshlrev_b32 v{a}, 7, v{a}", a, a)
    V(f"v_bfe_u32 v{b2}, v{Lp}, 3, 1", b2, Lp)
    V(f"v_xor_b32 v{b2}, s{S_HH}, v{b2}", b2, b2)
    V(f"v_lshl_add_u32 v{a}, v{b2}, 6, v{a}", a, b2, a)
    V(f"v_bfe_u32 v{b2}, v{Lp}, 4, 1", b2, Lp)
    V(f"v_lshl_add_u32 v{a}, v{b2}, 5, v{a}", a, b2, a)
    V(f"v_and_b32 v{b2}, 1, v{Lp}", b2, Lp)
    V(f"v_lshl_add_u32 v{a}, v{b2}, 4, v{a}", a, b2, a)
    V(f"v_bfe_u32 v{b2}, v{Lp}, 1, 1", b2, Lp)
    V(f"v_lshl_add_u32 v{P3_PAT}, v{b2}, 3, v{a}", P3_PAT, b2, a)
    V(f"v_lshlrev_b32 v{P3_EX}, 4, v{Lp}", P3_EX, Lp)
    e.salu(f"s_mul_i32 s{S_POFF}, s{S_W}, {7 * 2048}")
    e.salu(f"s_mov_b32 s{S_RD}, {3 * PAIR}")
    V(f"v_add_u32 v{P3_RD}, s{S_RD}, v{P3_PAT}", P3_RD, P3_PAT)
    e.wait_vm(("D", 31))
    e.salu("s_barrier")

    stamp(e, 4)
    fs3 = FragStream(e, base=P3_FR, nb=8)
    D3 = 6
    m3 = [0]

    def p3_frags():
        for t2 in range(2):
            for kk in range(8):
                off = t2 * TILE + kk * 2048
                fs3.push(rd_tr(e, P3_RD, off, off + 512))

    def next_rd3():
        adv_slot(e, S_RD)
        V(f"v_add_u32 v{P3_RD}, s{S_RD}, v{P3_PAT}", P3_RD, P3_PAT)

    def consume3(d, b, c):
        i = m3[0]
        assert i < fs3.issued
        e.wait_lds(("fr", i))
        e.mfma(d, fs3.buf(i), b, c)
        m3[0] += 1
        fs3.issue_next()

    p3_frags()
    for _ in range(D3):
        fs3.issue_next()

    def p3_step(p, issue, push):
        G = 31 + p
        half = p & 1
        for idx in range(16):
            cs = 16 * half + idx
            consume3(P3_ACC, 128 + 4 * cs, None if cs == 0 else P3_ACC)
            if idx == 3:
                e.wait_vm(("D", G + 1))
                e.salu("s_barrier")
                issue()
                if push:
                    fs3.push(("pre", next_rd3))
                    p3_frags()
        if half == 1:
            for i in range(8):
                e.valu(f"v_cvt_pk_bf16_f32 v{P3_PK + i}, v{P3_ACC + 2 * i}, v{P3_ACC + 2 * i + 1}",
                       dst=[P3_PK + i], src=[P3_ACC + 2 * i, P3_ACC + 2 * i + 1])
            for q4 in range(2):
                rg = P3_PK + 4 * q4
                e.vmem(f"buffer_store_dwordx4 {vr(rg, 4)}, v{P3_EX}, s[{S_P}:{S_P + 3}], s{S_POFF} offen offset:{q4 * 1024}{STPOL}",
                       ("st", p), src=range(rg, rg + 4))
            e.salu(f"s_add_u32 s{S_POFF}, s{S_POFF}, 2048")
            e.nop(1)

    def p3_body(i):
        p = 2 * i
        p3_step(p, lambda: dma_wo_pair(e, ("D", 31 + p + 3), p + 3, P3_DWO), True)
        p3_step(p + 1, lambda: dma_wo_pair(e, ("D", 31 + p + 4), p + 4, P3_DWO), True)

    p3_body(0)
    e.loop("L_p3", 4, lambda i: p3_body(i + 1), f"s{S_CNT}")
    p3_step(10, lambda: dma_wo_pair(e, ("D", 31 + 13), 13, P3_DWO), True)
    p3_step(11, lambda: None, True)
    p3_step(12, lambda: None, True)
    p3_step(13, lambda: None, False)
    stamp(e, 5)
    stamp_flush(e, 8)
    e.label("L_attn_exit")
    e.salu("s_endpgm")

    for tg in rare:
        e.label(f"L_rare_{tg}")
        e.raw("s_nop 15", 16)
        e.raw(f"v_mov_b32 v{V_TMP}, v{V_TMAX}")
        e.raw("s_nop 1", 2)
        e.raw(f"v_permlane32_swap_b32 v{V_TMAX}, v{V_TMP}")
        e.raw(f"v_max_f32 v{V_TMAX}, v{V_TMAX}, v{V_TMP}")
        e.raw(f"v_mul_f32 v{V_TMAX}, s{S_NC}, v{V_TMAX}")
        e.raw(f"v_min_f32 v{V_TMAX}, v{V_TMAX}, v{V_NEGM}")
        e.raw(f"v_sub_f32 v{V_TMP}, v{V_TMAX}, v{V_NEGM}")
        e.raw(f"v_exp_f32 v{V_TMP}, v{V_TMP}")
        e.raw(f"v_mov_b32 v{V_NEGM}, v{V_TMAX}")
        e.raw("s_nop 0")
        e.raw(f"v_mul_f32 v{V_LSUM}, v{V_LSUM}, v{V_TMP}")
        for i in range(128):
            e.raw(f"v_mul_f32 v{i}, v{i}, v{V_TMP}")
        e.raw("s_nop 1", 2)
        e.raw(f"s_branch L_back_{tg}")


def gen_reduce(e):
    e.label("reduce_kernel")
    e.salu("s_cmp_ge_u32 s2, 896")
    e.salu("s_cbranch_scc1 L_red_exit")
    e.salu("s_load_dwordx2 s[4:5], s[0:1], 80")
    e.salu("s_load_dwordx2 s[6:7], s[0:1], 96")
    e.salu("s_mul_hi_u32 s8, s2, 0x924924a")
    e.salu("s_mul_i32 s9, s8, 28")
    e.salu("s_sub_u32 s9, s2, s9")
    e.salu("s_lshl_b32 s9, s9, 1")
    e.raw("v_and_b32 v1, 63, v0")
    e.raw("v_bfe_u32 v2, v0, 6, 1")
    e.raw("v_lshrrev_b32 v3, 7, v0")
    e.raw("v_add_u32 v3, s9, v3")
    e.raw("v_lshlrev_b32 v4, 11, v3")
    e.raw("v_lshl_add_u32 v4, v2, 10, v4")
    e.raw("v_lshl_add_u32 v4, v1, 4, v4")
    e.salu("s_waitcnt lgkmcnt(0)")
    e.salu("s_mul_i32 s10, s8, 917504")
    e.salu("s_add_u32 s6, s6, s10")
    e.salu("s_addc_u32 s7, s7, 0")
    e.salu("s_mov_b32 s12, s6")
    e.salu("s_and_b32 s13, s7, 0xffff")
    e.salu("s_mov_b32 s14, 917504")
    e.salu("s_mov_b32 s15, 0x00020000")
    e.salu("s_mov_b32 s16, s4")
    e.salu("s_and_b32 s17, s5, 0xffff")
    e.salu("s_mov_b32 s18, 3670016")
    e.salu("s_mov_b32 s19, 0x00020000")
    for h in range(8):
        e.salu(f"s_mov_b32 s20, {h * 114688}")
        e.raw(f"buffer_load_dwordx4 v[{24 + 4 * h}:{27 + 4 * h}], v4, s[12:15], s20 offen{RDPOL}")
    e.raw("v_mul_u32_u24 v5, 37, v3")
    e.raw("v_lshrrev_b32 v5, 8, v5")
    e.raw("v_mul_u32_u24 v6, 7, v5")
    e.raw("v_sub_u32 v6, v3, v6")
    e.raw("v_and_b32 v7, 3, v5")
    e.raw("v_lshrrev_b32 v5, 2, v5")
    e.raw("v_and_b32 v8, 31, v1")
    e.raw("v_lshl_add_u32 v8, v7, 5, v8")
    e.raw("v_lshlrev_b32 v9, 6, v6")
    e.raw("v_lshl_add_u32 v9, v5, 5, v9")
    e.raw("v_lshl_add_u32 v9, v2, 4, v9")
    e.raw("v_lshrrev_b32 v10, 5, v1")
    e.raw("v_lshl_add_u32 v9, v10, 3, v9")
    e.salu("s_and_b32 s21, s8, 15")
    e.salu("s_lshr_b32 s22, s8, 4")
    e.salu("s_mul_i32 s21, s21, 229376")
    e.salu("s_mul_i32 s22, s22, 896")
    e.salu("s_add_u32 s21, s21, s22")
    e.salu("s_mov_b32 s23, 0xffff0000")
    e.raw("v_mul_u32_u24 v8, 1792, v8")
    e.raw("v_lshl_add_u32 v8, v9, 1, v8")
    for h in range(8):
        e.salu(f"s_waitcnt vmcnt({7 - h})")
        for i in range(4):
            r = 24 + 4 * h + i
            if h == 0:
                e.raw(f"v_lshlrev_b32 v{16 + 2 * i}, 16, v{r}")
                e.raw(f"v_and_b32 v{17 + 2 * i}, s23, v{r}")
            else:
                e.raw(f"v_lshlrev_b32 v11, 16, v{r}")
                e.raw(f"v_and_b32 v12, s23, v{r}")
                e.raw(f"v_add_f32 v{16 + 2 * i}, v{16 + 2 * i}, v11")
                e.raw(f"v_add_f32 v{17 + 2 * i}, v{17 + 2 * i}, v12")
    for i in range(4):
        e.raw(f"v_cvt_pk_bf16_f32 v{12 + i}, v{16 + 2 * i}, v{17 + 2 * i}")
    e.raw("buffer_store_dwordx4 v[12:15], v8, s[16:19], s21 offen")
    e.label("L_red_exit")
    e.salu("s_endpgm")


def main():
    ref = open(OUT + ".ref").read().splitlines()
    head = [l for l in ref if l.startswith(";") and "@launch" not in l]
    out = list(head)
    out.append(f"; @launch kernel=attn_kernel grid=(256,1,1) block=(512,1,1) lds={LDS_BYTES}")
    out.append("; @launch kernel=reduce_kernel grid=(896,1,1) block=(256,1,1) lds=0")
    out.append('.amdgcn_target "amdgcn-amd-amdhsa--gfx950"')
    out.append(".text")
    e = Em()
    out += [".globl attn_kernel", ".p2align 8", ".type attn_kernel,@function"]
    gen_attn(e)
    out += e.lines
    e2 = Em()
    out += [".globl reduce_kernel", ".p2align 8", ".type reduce_kernel,@function"]
    gen_reduce(e2)
    out += e2.lines
    out.append('.section .rodata,"a"')
    for k, vg, sg in (("attn_kernel", 256, 96), ("reduce_kernel", 56, 32)):
        out += [".p2align 6", f".amdhsa_kernel {k}",
                f"  .amdhsa_next_free_vgpr {vg}",
                f"  .amdhsa_next_free_sgpr {sg}",
                f"  .amdhsa_accum_offset {vg}",
                "  .amdhsa_group_segment_fixed_size 0",
                "  .amdhsa_kernarg_size 104",
                "  .amdhsa_user_sgpr_count 2",
                "  .amdhsa_user_sgpr_kernarg_segment_ptr 1",
                "  .amdhsa_system_sgpr_workgroup_id_x 1",
                ".end_amdhsa_kernel"]
    open(OUTFILE, "w").write("\n".join(out) + "\n")
    print("wrote", OUTFILE, len(out), "lines")


if __name__ == "__main__":
    main()
```

```python
import math
import sys
import os

NAME = "concat_heads__gqa_block_cached__gqa_block_cached__near_ridge"
OUT = f"cdna_kernels/{NAME}.s"
OUTFILE = sys.argv[1] if len(sys.argv) > 1 else OUT

STAMPS = os.environ.get("STAMPS", "0") == "1"
X_NOVM = os.environ.get("NOVM", "0") == "1"
X_NOBAR = os.environ.get("NOBAR", "0") == "1"
X_NODMA = os.environ.get("NODMA", "0") == "1"

ROTMASK = int(os.environ.get("ROTMASK", "15"))
TILE = 17408
PAIR = 2 * TILE
RING = 4 * PAIR
LDS_BYTES = 160 * 1024


class Em:
    def __init__(self):
        self.lines = []
        self.pos = 0
        self.mfma_w = {}
        self.mfma_c = {}
        self.valu_w = {}
        self.trans_w = {}
        self.lds_q = []
        self.vm_q = []
        self.capture = None

    def raw(self, s, slots=1):
        (self.capture if self.capture is not None else self.lines).append("    " + s)
        self.pos += slots

    def label(self, s):
        (self.capture if self.capture is not None else self.lines).append(s + ":")

    def comment(self, s):
        (self.capture if self.capture is not None else self.lines).append("    ; " + s)

    def nop(self, n):
        while n > 0:
            k = min(n, 16)
            self.raw(f"s_nop {k - 1}", k)
            n -= k

    def _need(self, table, regs, dist):
        need = 0
        for r in regs:
            p = table.get(r)
            if p is not None:
                have = self.pos - p - 1
                need = max(need, dist - have)
        return need

    def salu(self, s):
        if X_NOBAR and s == "s_barrier":
            s = "s_nop 0"
        self.raw(s)

    def valu(self, s, dst=(), src=(), trans=False):
        n = self._need(self.mfma_w, list(dst) + list(src), 12)
        n = max(n, self._need(self.mfma_c, dst, 7))
        if not trans:
            n = max(n, self._need(self.trans_w, src, 1))
        if n > 0:
            self.nop(n)
        p = self.pos
        self.raw(s)
        for r in dst:
            self.valu_w[r] = p
            if trans:
                self.trans_w[r] = p
            else:
                self.trans_w.pop(r, None)

    def mfma(self, d, a, b, c):
        D = list(range(d, d + 16))
        A = list(range(a, a + 4))
        B = list(range(b, b + 4))
        C = list(range(c, c + 16)) if c is not None else []
        n = self._need(self.valu_w, A + B + C, 2)
        n = max(n, self._need(self.mfma_w, A + B, 12))
        if c is not None and c != d:
            n = max(n, self._need(self.mfma_w, C, 10))
        if c is None:
            pass
        if n > 0:
            self.nop(n)
        p = self.pos
        cs = f"v[{c}:{c + 15}]" if c is not None else "0"
        self.raw(f"v_mfma_f32_32x32x16_bf16 v[{d}:{d + 15}], v[{a}:{a + 3}], v[{b}:{b + 3}], {cs}")
        for r in D:
            self.mfma_w[r] = p
        for r in C:
            self.mfma_c[r] = p

    def ds(self, s, tag, dst=(), src=()):
        n = self._need(self.mfma_w, list(dst) + list(src), 12)
        if n > 0:
            self.nop(n)
        self.raw(s)
        self.lds_q.append(tag)
        assert len(self.lds_q) <= 15, "too many LDS ops outstanding"

    def vmem(self, s, tag, dst=(), src=()):
        n = self._need(self.mfma_w, list(dst) + list(src), 12)
        if n > 0:
            self.nop(n)
        self.raw(s)
        self.vm_q.append(tag)
        assert len(self.vm_q) <= 63

    def wait_lds(self, tag):
        idx = max((i for i, t in enumerate(self.lds_q) if t == tag), default=-1)
        if idx < 0:
            return
        n = len(self.lds_q) - 1 - idx
        self.raw(f"s_waitcnt lgkmcnt({n})")
        self.lds_q = self.lds_q[idx + 1:]

    def wait_lds_all(self):
        if self.lds_q:
            self.raw("s_waitcnt lgkmcnt(0)")
            self.lds_q = []

    def wait_vm(self, tag):
        idx = max((i for i, t in enumerate(self.vm_q) if t == tag), default=-1)
        if idx < 0:
            return
        n = len(self.vm_q) - 1 - idx
        if X_NOVM and tag[0] == "D":
            self.raw("s_nop 0")
        else:
            self.raw(f"s_waitcnt vmcnt({n})")
        self.vm_q = self.vm_q[idx + 1:]

    def wait_vm_all(self):
        if self.vm_q:
            self.raw("s_waitcnt vmcnt(0)")
            self.vm_q = []

    def loop(self, name, n, body, counter):
        assert self.capture is None
        self.salu(f"s_mov_b32 {counter}, {n}")
        texts = []
        for i in range(n):
            self.capture = []
            body(i)
            self.salu(f"s_sub_u32 {counter}, {counter}, 1")
            self.salu(f"s_cmp_lg_u32 {counter}, 0")
            self.salu(f"s_cbranch_scc1 {name}")
            texts.append(self.capture)
            self.capture = None
        for i in range(1, n):
            if texts[i] != texts[0]:
                for a, b in zip(texts[0], texts[i]):
                    if a != b:
                        print("LOOP MISMATCH", name, i, a, "|", b)
                        break
                raise SystemExit(f"loop {name}: iteration {i} differs from iteration 0")
        self.label(name)
        self.lines.extend(texts[0])


def vr(base, n):
    return f"v[{base}:{base + n - 1}]"


S_X, S_K, S_V, S_WQ, S_WO, S_P = 8, 12, 16, 20, 24, 28
S_W = 32
S_HH = 33
S_QB = 34
S_RD = 35
S_DM = 36
S_T0, S_T1, S_T2, S_T3 = 37, 38, 39, 40
S_CNT = 41
S_C = 42
S_NC = 43
S_THR = 44
S_OFFA = 45
S_OFFB = 46
S_XOFF = 47
S_WM0A = 48
S_WM0B = 49
S_POFF = 50
S_EXW = 51
S_EXR = 52
S_D0, S_D1 = 53, 54
S_WM0C = 55
S_KA = 56

V_O = 0
V_Q = 128
V_X = 128
V_S0, V_S1 = 192, 208
V_FR = 224
V_M = 240
V_PATA, V_PATB, V_RDA, V_RDB = 240, 241, 242, 243
V_DLIN, V_DK = 244, 245
V_NEGM, V_LSUM, V_TMAX, V_TMP = 246, 247, 248, 249
V_XOFF = 250
V_LANE = 251
V_T2 = 252
V_T3 = 253

import os

S_ST = 78


def stamp(e, i):
    if not STAMPS:
        return
    e.raw("s_memtime s[90:91]")
    e.raw("s_waitcnt lgkmcnt(0)")
    e.lds_q = []
    e.salu(f"s_mov_b32 s{S_ST + i}, s90")
    if i in (0, 5):
        e.raw("s_memrealtime s[90:91]")
        e.raw("s_waitcnt lgkmcnt(0)")
        e.salu(f"s_mov_b32 s{S_ST + 6 + (i == 5)}, s90")


def stamp_flush(e, n):
    if not STAMPS:
        return
    e.salu("s_load_dwordx2 s[90:91], s[0:1], 96")
    e.salu("s_waitcnt lgkmcnt(0)")
    e.salu("s_add_u32 s90, s90, 0x8000000")
    e.salu("s_addc_u32 s91, s91, 0")
    e.salu("s_mov_b32 s92, s90")
    e.salu("s_and_b32 s93, s91, 0xffff")
    e.salu("s_mov_b32 s94, 0x100000")
    e.salu("s_mov_b32 s95, 0x00020000")
    e.salu(f"s_lshl_b32 s90, s2, 3")
    e.salu(f"s_add_u32 s90, s90, s{S_W}")
    e.salu(f"s_lshl_b32 s90, s90, 6")
    e.raw("s_nop 15", 16)
    e.raw("v_mov_b32 v1, 0")
    for i in range(n):
        e.raw(f"v_mov_b32 v0, s{S_ST + i}")
        e.raw(f"buffer_store_dword v0, v1, s[92:95], s90 offen offset:{4 * i}")
        e.raw("s_waitcnt vmcnt(0)")


SP1 = int(os.environ.get("SP1", "1"))
SP2 = int(os.environ.get("SP2", "3"))
SP3 = int(os.environ.get("SP3", "2"))
BAR3 = int(os.environ.get("BAR3", "5"))
NB = 4
DPF = 3


def srd(e, dst, lo, hi, size):
    e.salu(f"s_mov_b32 s{dst}, s{lo}")
    e.salu(f"s_and_b32 s{dst + 1}, s{hi}, 0xffff")
    e.salu(f"s_mov_b32 s{dst + 2}, {size}")
    e.salu(f"s_mov_b32 s{dst + 3}, 0x00020000")


def adv_slot(e, s):
    e.salu(f"s_add_u32 s{s}, s{s}, {PAIR}")
    e.salu(f"s_cmp_ge_u32 s{s}, {RING}")
    e.salu(f"s_cselect_b32 s{S_T3}, {RING}, 0")
    e.salu(f"s_sub_u32 s{s}, s{s}, s{S_T3}")


KVPOL = os.environ.get("KVPOL", "nt")
STPOL = os.environ.get("STPOL", "")
STPOL = (" " + STPOL) if STPOL else ""
RDPOL = os.environ.get("RDPOL", "nt")
RDPOL = (" " + RDPOL) if RDPOL else ""


def dma(e, voff, sr, soff, m0expr, tag, off=0):
    sg, imm = m0expr
    e.salu(f"s_add_u32 m0, s{sg}, {imm}")
    e.salu("s_nop 0")
    o = f" offset:{off}" if off else ""
    if X_NODMA:
        e.salu("s_nop 0")
        return
    pol = (" " + KVPOL) if (sr in (S_K, S_V) and KVPOL) else ""
    e.vmem(f"buffer_load_dwordx4 v{voff}, s[{sr}:{sr + 3}], s{soff} offen{o}{pol} lds", tag)


def dma_wq_pair(e, tag):
    e.salu(f"s_add_u32 s{S_D0}, s{S_DM}, s{S_WM0A}")
    adv_slot(e, S_DM)
    out = []
    for e2 in range(2):
        for ee in range(2):
            def f(e2=e2, ee=ee):
                e.salu(f"s_add_u32 s{S_T1}, s{S_OFFA}, {(16 * e2 + ee) * 8192}")
                dma(e, V_DLIN, S_WQ, S_T1, (S_D0, e2 * TILE + ee * 1088), tag)
                if e2 == 1 and ee == 1:
                    e.salu(f"s_add_u32 s{S_OFFA}, s{S_OFFA}, {32 * 8192}")
            out.append(f)
    return out


def dma_kv_pair(e, tag, k=True, v=True):
    e.salu(f"s_add_u32 s{S_D0}, s{S_DM}, s{S_WM0A}")
    e.salu(f"s_add_u32 s{S_D1}, s{S_DM}, s{S_WM0B}")
    adv_slot(e, S_DM)
    out = []
    if k:
        out.append(lambda: dma(e, V_DK, S_K, S_OFFA, (S_D0, 0), tag))

        def k2():
            dma(e, V_DK, S_K, S_OFFA, (S_D0, 32), tag, off=1024)
            e.salu(f"s_add_u32 s{S_OFFA}, s{S_OFFA}, 16384")
            e.salu(f"s_and_b32 s{S_OFFA}, s{S_OFFA}, 0x3ffff")
        out.append(k2)
    if v:
        out.append(lambda: dma(e, V_DLIN, S_V, S_OFFB, (S_D1, 0), tag))

        def v2():
            dma(e, V_DLIN, S_V, S_OFFB, (S_D1, 64), tag, off=1024)
            e.salu(f"s_add_u32 s{S_OFFB}, s{S_OFFB}, 16384")
            e.salu(f"s_and_b32 s{S_OFFB}, s{S_OFFB}, 0x3ffff")
        out.append(v2)
    return out


def dma_wo_pair(e, tag, p, vdwo):
    e.salu(f"s_add_u32 s{S_D0}, s{S_DM}, s{S_WM0C}")
    adv_slot(e, S_DM)
    out = []
    i = p & 1
    for hd in range(2):
        for ee in range(2):
            def f(hd=hd, ee=ee):
                e.salu(f"s_add_u32 s{S_T1}, s{S_XOFF}, {(256 * hd + 128 * i + 8 * ee) * 896}")
                dma(e, vdwo, S_WO, S_T1, (S_D0, hd * TILE + ee * 1024), tag)
                if hd == 1 and ee == 1 and i == 1:
                    e.salu(f"s_add_u32 s{S_XOFF}, s{S_XOFF}, 128")
            out.append(f)
    return out


class FragStream:
    def __init__(self, e, base=V_FR, nb=NB):
        self.e = e
        self.base = base
        self.nb = nb
        self.issued = 0
        self.queue = []

    def buf(self, i):
        return self.base + 4 * (i % self.nb)

    def push(self, fn):
        self.queue.append(fn)

    def issue_next(self):
        while self.queue:
            fn = self.queue.pop(0)
            if fn[0] == "pre":
                fn[1]()
                continue
            i = self.issued
            fn[1](self.buf(i), ("fr", i))
            self.issued += 1
            return True
        return False


def rd_tr(e, areg, off0, off1):
    def f(dst, tag):
        e.ds(f"ds_read_b64_tr_b16 {vr(dst, 2)}, v{areg} offset:{off0}", tag, dst=range(dst, dst + 2))
        e.ds(f"ds_read_b64_tr_b16 {vr(dst + 2, 2)}, v{areg} offset:{off1}", tag, dst=range(dst + 2, dst + 4))
    return ("rd", f)


def rd_128(e, areg, off):
    def f(dst, tag):
        e.ds(f"ds_read_b128 {vr(dst, 4)}, v{areg} offset:{off}", tag, dst=range(dst, dst + 4))
    return ("rd", f)


def gen_attn(e):
    e.label("attn_kernel")
    e.salu("s_cmp_ge_u32 s2, 256")
    e.salu("s_cbranch_scc1 L_attn_exit")
    e.salu(f"s_load_dwordx16 s[{S_KA}:{S_KA + 15}], s[0:1], 0")
    e.salu(f"s_load_dwordx4 s[{S_KA + 16}:{S_KA + 19}], s[0:1], 64")
    e.salu(f"s_load_dwordx2 s[{S_KA + 20}:{S_KA + 21}], s[0:1], 96")
    e.salu(f"s_and_b32 s{S_T0}, s2, 7")
    e.salu(f"s_lshr_b32 s{S_T1}, s2, 3")
    e.salu(f"s_and_b32 s{S_T2}, s{S_T1}, 15")
    e.valu(f"v_lshrrev_b32 v1, 6, v0", dst=[1], src=[0])
    e.valu(f"v_and_b32 v{V_LANE}, 63, v0", dst=[V_LANE], src=[0])
    e.salu("s_nop 0")
    e.raw(f"v_readfirstlane_b32 s{S_W}, v1")
    e.salu("s_nop 3")
    e.salu(f"s_lshr_b32 s{S_HH}, s{S_W}, 2")
    e.salu(f"s_and_b32 s{S_QB}, s{S_W}, 3")
    e.salu("s_waitcnt lgkmcnt(0)")
    e.salu(f"s_cmp_ge_u32 s{S_T1}, 16")
    for i in range(10):
        e.salu(f"s_cselect_b32 s{S_KA + i}, s{S_KA + 10 + i}, s{S_KA + i}")
    e.salu(f"s_mul_i32 s{S_T3}, s{S_T2}, 114688")
    e.salu(f"s_add_u32 s{S_KA}, s{S_KA}, s{S_T3}")
    e.salu(f"s_addc_u32 s{S_KA + 1}, s{S_KA + 1}, 0")
    srd(e, S_X, S_KA, S_KA + 1, 114688)
    e.salu(f"s_lshl_b32 s{S_T3}, s{S_T2}, 3")
    e.salu(f"s_add_u32 s{S_T3}, s{S_T3}, s{S_T0}")
    e.salu(f"s_lshl_b32 s{S_T3}, s{S_T3}, 18")
    e.salu(f"s_add_u32 s{S_KA + 2}, s{S_KA + 2}, s{S_T3}")
    e.salu(f"s_addc_u32 s{S_KA + 3}, s{S_KA + 3}, 0")
    srd(e, S_K, S_KA + 2, S_KA + 3, 262144)
    e.salu(f"s_add_u32 s{S_KA + 4}, s{S_KA + 4}, s{S_T3}")
    e.salu(f"s_addc_u32 s{S_KA + 5}, s{S_KA + 5}, 0")
    srd(e, S_V, S_KA + 4, S_KA + 5, 262144)
    e.salu(f"s_lshl_b32 s{S_T3}, s{S_T0}, 10")
    e.salu(f"s_add_u32 s{S_KA + 6}, s{S_KA + 6}, s{S_T3}")
    e.salu(f"s_addc_u32 s{S_KA + 7}, s{S_KA + 7}, 0")
    srd(e, S_WQ, S_KA + 6, S_KA + 7, 448 * 8192)
    e.salu(f"s_sub_u32 s{S_WQ + 2}, s{S_WQ + 2}, s{S_T3}")
    e.salu(f"s_mul_i32 s{S_T3}, s{S_T0}, 458752")
    e.salu(f"s_add_u32 s{S_KA + 8}, s{S_KA + 8}, s{S_T3}")
    e.salu(f"s_addc_u32 s{S_KA + 9}, s{S_KA + 9}, 0")
    srd(e, S_WO, S_KA + 8, S_KA + 9, 458752)
    e.salu(f"s_mul_i32 s{S_T3}, s2, 114688")
    e.salu(f"s_add_u32 s{S_KA + 20}, s{S_KA + 20}, s{S_T3}")
    e.salu(f"s_addc_u32 s{S_KA + 21}, s{S_KA + 21}, 0")
    srd(e, S_P, S_KA + 20, S_KA + 21, 114688)
    c = math.log2(math.e) / 16.0
    import struct
    cbits = struct.unpack("<I", struct.pack("<f", c))[0]
    ncbits = struct.unpack("<I", struct.pack("<f", -c))[0]
    e.salu(f"s_mov_b32 s{S_C}, {cbits:#x}")
    e.salu(f"s_mov_b32 s{S_NC}, {ncbits:#x}")
    e.salu(f"s_mov_b32 s{S_THR}, 0x41000000")

    stamp(e, 0)
    L = V_LANE
    t1, t2, t3, t4 = 1, 2, 3, 4

    def V(s, d, *src):
        e.valu(s, dst=[d], src=list(src))

    V(f"v_bfe_u32 v{t1}, v{L}, 4, 1", t1, L)
    V(f"v_lshlrev_b32 v5, 5, v{t1}", 5, t1)
    V(f"v_and_b32 v{t1}, 1, v{L}", t1, L)
    V(f"v_lshlrev_b32 v{t1}, 4, v{t1}", t1, t1)
    V(f"v_add_u32 v5, v5, v{t1}", 5, 5, t1)
    V(f"v_bfe_u32 v{t1}, v{L}, 1, 1", t1, L)
    V(f"v_lshlrev_b32 v{t1}, 3, v{t1}", t1, t1)
    V(f"v_add_u32 v5, v5, v{t1}", 5, 5, t1)
    V(f"v_lshrrev_b32 v6, 5, v{L}", 6, L)
    V(f"v_bfe_u32 v7, v{L}, 2, 2", 7, L)
    V(f"v_lshlrev_b32 v{V_DLIN}, 4, v{L}", V_DLIN, L)
    V(f"v_and_b32 v{t1}, 31, v{L}", t1, L)
    V(f"v_xor_b32 v{t1}, v{t1}, v6", t1, t1, 6)
    V(f"v_lshlrev_b32 v{t1}, 4, v{t1}", t1, t1)
    V(f"v_lshl_add_u32 v{V_DK}, v6, 9, v{t1}", V_DK, 6, t1)
    V(f"v_lshl_add_u32 v{t1}, v6, 3, v7", t1, 6, 7)
    V(f"v_mul_u32_u24 v{t1}, 1088, v{t1}", t1, t1)
    V(f"v_add_u32 v{t1}, v{t1}, v5", t1, t1, 5)
    e.salu(f"s_lshl_b32 s{S_T3}, s{S_HH}, 9")
    V(f"v_add_u32 v{V_PATA}, s{S_T3}, v{t1}", V_PATA, t1)
    V(f"v_bfe_u32 v{t1}, v{L}, 4, 2", t1, L)
    V(f"v_and_b32 v{t2}, 3, v{L}", t2, L)
    V(f"v_xor_b32 v{t1}, v{t1}, v{t2}", t1, t1, t2)
    V(f"v_lshlrev_b32 v{t1}, 4, v{t1}", t1, t1)
    V(f"v_lshrrev_b32 v{t2}, 2, v{L}", t2, L)
    V(f"v_mul_u32_u24 v{t2}, 896, v{t2}", t2, t2)
    V(f"v_add_u32 v{V_XOFF}, v{t1}, v{t2}", V_XOFF, t1, t2)
    V(f"v_and_b32 v{t1}, 31, v{L}", t1, L)
    e.salu(f"s_lshl_b32 s{S_T3}, s{S_QB}, 5")
    V(f"v_add_u32 v{t1}, s{S_T3}, v{t1}", t1, t1)
    V(f"v_lshlrev_b32 v{t1}, 6, v{t1}", t1, t1)
    V(f"v_bfe_u32 v{t2}, v{L}, 2, 2", t2, L)
    V(f"v_xor_b32 v{t2}, v{t2}, v6", t2, t2, 6)
    V(f"v_lshl_add_u32 v{t1}, v{t2}, 4, v{t1}", t1, t2, t1)
    V(f"v_add_u32 v{V_PATB}, {RING}, v{t1}", V_PATB, t1)

    e.salu(f"s_mul_i32 s{S_WM0A}, s{S_W}, {2 * 1088}")
    e.salu(f"s_lshl_b32 s{S_OFFA}, s{S_W}, 14")
    e.salu(f"s_mov_b32 s{S_DM}, 0")
    e.salu(f"s_mov_b32 s{S_RD}, 0")
    e.salu(f"s_mul_i32 s{S_XOFF}, s{S_W}, {16 * 896}")
    e.salu(f"s_lshl_b32 s{S_EXW}, s{S_W}, 10")
    e.salu(f"s_add_u32 s{S_EXW}, s{S_EXW}, {RING}")
    e.salu(f"s_mov_b32 s{S_EXR}, 0")
    e.salu(f"s_mov_b32 s{S_POFF}, 0")

    def adv_x(sr):
        e.salu(f"s_add_u32 s{sr}, s{sr}, 8192")
        e.salu(f"s_cmp_ge_u32 s{sr}, 24576")
        e.salu(f"s_cselect_b32 s{sr}, 0, s{sr}")

    def xdma(tag):
        e.salu(f"s_add_u32 s{S_T0}, s{S_EXW}, s{S_POFF}")
        dma(e, V_XOFF, S_X, S_XOFF, (S_T0, 0), tag)
        e.salu(f"s_add_u32 s{S_XOFF}, s{S_XOFF}, 64")
        adv_x(S_POFF)

    def xread(xi, G):
        V(f"v_add_u32 v{V_RDB}, s{S_EXR}, v{V_PATB}", V_RDB, V_PATB)
        e.ds(f"ds_read_b128 {vr(V_X + 4 * xi, 4)}, v{V_RDB}", ("x", 2 * G), dst=range(V_X + 4 * xi, V_X + 4 * xi + 4))
        V(f"v_xor_b32 v{V_RDB}, 32, v{V_RDB}", V_RDB, V_RDB)
        e.ds(f"ds_read_b128 {vr(V_X + 4 * xi + 4, 4)}, v{V_RDB}", ("x", 2 * G + 1),
             dst=range(V_X + 4 * xi + 4, V_X + 4 * xi + 8))
        adv_x(S_EXR)

    def run(lst):
        for f in lst:
            f()
    run(dma_wq_pair(e, ("D", 0)))
    xdma(("X", 0))
    run(dma_wq_pair(e, ("D", 1)))
    xdma(("X", 1))
    run(dma_wq_pair(e, ("D", 2)))
    for i in range(128):
        V(f"v_mov_b32 v{V_O + i}, 0", V_O + i)
    V(f"v_add_u32 v{V_RDA}, s{S_RD}, v{V_PATA}", V_RDA, V_PATA)
    e.wait_vm(("X", 0))
    e.salu("s_barrier")

    stamp(e, 1)
    xread(0, 0)
    e.wait_lds(("x", 1))
    fs = FragStream(e)
    dq = []
    dq_state = {"sp": 2, "cnt": 0}

    def defer(lst, sp):
        assert not dq, "previous DMA pieces still pending"
        dq.extend(lst)
        dq_state["sp"] = sp
        dq_state["cnt"] = 0

    def p1_frags(G):
        for e2 in range(2):
            for ct in range(8):
                off = e2 * TILE + ct * 64
                fs.push(rd_tr(e, V_RDA, off, off + 4 * 1088))

    def next_rd_a():
        adv_slot(e, S_RD)
        V(f"v_add_u32 v{V_RDA}, s{S_RD}, v{V_PATA}", V_RDA, V_PATA)

    mf_idx = [0]

    def consume_mfma(d, b, c):
        i = mf_idx[0]
        assert i < fs.issued
        e.wait_lds(("fr", i))
        e.mfma(d, fs.buf(i), b, c)
        mf_idx[0] += 1
        fs.issue_next()
        if dq:
            dq_state["cnt"] += 1
            if dq_state["cnt"] >= dq_state["sp"]:
                dq_state["cnt"] = 0
                dq.pop(0)()

    def p1_step(G, xi, issue, push_next):
        for e2 in range(2):
            ks = 2 * G + e2
            e.wait_lds(("x", ks))
            for ct in range(8):
                consume_mfma(V_O + 16 * ct, V_X + 4 * (xi + e2), V_O + 16 * ct)
                if e2 == 0 and ct == 7:
                    if G + 1 <= 13:
                        e.wait_vm(("X", G + 1))
                    e.wait_vm(("D", G + 1))
                    e.salu("s_barrier")
                    if G + 1 <= 13:
                        xread(2 - xi, G + 1)
                    pieces = []
                    if G + 2 <= 13:
                        pieces.append(lambda: xdma(("X", G + 2)))
                    pieces += issue()
                    defer(pieces, SP1)
                    push_next()

    p1_frags(0)
    for _ in range(DPF):
        fs.issue_next()

    def push_p1(G):
        def f():
            fs.push(("pre", next_rd_a))
            p1_frags(G)
        return f

    def p1_body(i):
        G = 2 * i
        p1_step(G, 0, lambda: dma_wq_pair(e, ("D", G + 3)), push_p1(G + 1))
        p1_step(G + 1, 2, lambda: dma_wq_pair(e, ("D", G + 4)), push_p1(G + 2))

    e.loop("L_p1", 5, p1_body, f"s{S_CNT}")

    def kv_setup():
        e.salu(f"s_mul_i32 s{S_WM0A}, s{S_W}, {2 * 1056}")
        e.salu(f"s_mul_i32 s{S_WM0B}, s{S_W}, {2 * 1088}")
        e.salu(f"s_add_u32 s{S_WM0B}, s{S_WM0B}, {TILE}")
        e.salu(f"s_lshr_b32 s{S_OFFA}, s2, 4")
        e.salu(f"s_xor_b32 s{S_OFFA}, s{S_OFFA}, s2")
        e.salu(f"s_and_b32 s{S_OFFA}, s{S_OFFA}, {ROTMASK}")
        e.salu(f"s_lshl_b32 s{S_OFFA}, s{S_OFFA}, 14")
        e.salu(f"s_lshl_b32 s{S_OFFB}, s{S_W}, 11")
        e.salu(f"s_add_u32 s{S_OFFA}, s{S_OFFA}, s{S_OFFB}")
        e.salu(f"s_mov_b32 s{S_OFFB}, s{S_OFFA}")

    p1_step(10, 0, lambda: dma_wq_pair(e, ("D", 13)), push_p1(11))

    def iss14():
        kv_setup()
        return dma_kv_pair(e, ("D", 14), k=True, v=False)
    p1_step(11, 2, iss14, push_p1(12))
    p1_step(12, 0, lambda: dma_kv_pair(e, ("D", 15)), push_p1(13))

    def kv_patterns():
        a, b2, c2 = V_T2, V_T3, V_TMP
        V(f"v_and_b32 v{a}, 7, v{L}", a, L)
        V(f"v_bfe_u32 v{b2}, v{L}, 4, 1", b2, L)
        V(f"v_lshl_add_u32 v{a}, v{b2}, 3, v{a}", a, b2, a)
        V(f"v_mul_u32_u24 v{a}, 1056, v{a}", a, a)
        V(f"v_bfe_u32 v{b2}, v{L}, 3, 1", b2, L)
        V(f"v_lshl_add_u32 v{a}, v{b2}, 9, v{a}", a, b2, a)
        V(f"v_lshrrev_b32 v{c2}, 5, v{L}", c2, L)
        V(f"v_xor_b32 v{b2}, v{b2}, v{c2}", b2, b2, c2)
        V(f"v_lshl_add_u32 v{V_PATA}, v{b2}, 4, v{a}", V_PATA, b2, a)
        V(f"v_bfe_u32 v{a}, v{L}, 2, 2", a, L)
        V(f"v_lshl_add_u32 v{a}, v{c2}, 2, v{a}", a, c2, a)
        V(f"v_mul_u32_u24 v{a}, 1088, v{a}", a, a)
        V(f"v_bfe_u32 v{b2}, v{L}, 4, 1", b2, L)
        V(f"v_lshl_add_u32 v{a}, v{b2}, 5, v{a}", a, b2, a)
        V(f"v_and_b32 v{b2}, 1, v{L}", b2, L)
        V(f"v_lshl_add_u32 v{a}, v{b2}, 4, v{a}", a, b2, a)
        V(f"v_bfe_u32 v{b2}, v{L}, 1, 1", b2, L)
        V(f"v_lshl_add_u32 v{a}, v{b2}, 3, v{a}", a, b2, a)
        V(f"v_add_u32 v{V_PATB}, {TILE}, v{a}", V_PATB, a)

    def k_frags():
        for ks in range(16):
            fs.push(rd_128(e, V_RDA, ks * 32))

    def v_frags(jmajor=False):
        order = [(ks2, j) for j in range(8) for ks2 in range(2)] if jmajor else \
                [(ks2, j) for ks2 in range(2) for j in range(8)]
        for ks2, j in order:
            off = ks2 * 8 * 1088 + j * 64
            fs.push(rd_tr(e, V_RDB, off, off + 512))

    def next_rd_kv():
        adv_slot(e, S_RD)
        V(f"v_add_u32 v{V_RDA}, s{S_RD}, v{V_PATA}", V_RDA, V_PATA)
        V(f"v_add_u32 v{V_RDB}, s{S_RD}, v{V_PATB}", V_RDB, V_PATB)

    def push_k0():
        def pre():
            kv_patterns()
            next_rd_kv()
        fs.push(("pre", pre))
        k_frags()

    p1_step(13, 2, lambda: dma_kv_pair(e, ("D", 16)), push_k0)

    stamp(e, 2)
    for i in range(64):
        e.valu(f"v_cvt_pk_bf16_f32 v{V_Q + i}, v{2 * i}, v{2 * i + 1}", dst=[V_Q + i], src=[2 * i, 2 * i + 1])
    V(f"v_mov_b32 v{V_LSUM}, 0", V_LSUM)

    def qk_stage(sn, fillers, mid=None):
        nf = len(fillers)
        k = 0
        for ks in range(16):
            consume_mfma(sn, V_Q + 4 * ks, sn if ks else None)
            tgt = (nf * (ks + 1) + 15) // 16
            while k < tgt:
                fillers[k]()
                k += 1
            if mid is not None and ks == mid[0]:
                mid[1]()

    def exp_fillers(sc):
        fl = []
        for p in range(8):
            a, b = sc + 2 * p, sc + 2 * p + 1
            fl.append(lambda a=a: e.valu(f"v_fma_f32 v{a}, v{a}, s{S_C}, v{V_NEGM}", dst=[a], src=[a, V_NEGM]))
            fl.append(lambda b=b: e.valu(f"v_fma_f32 v{b}, v{b}, s{S_C}, v{V_NEGM}", dst=[b], src=[b, V_NEGM]))
            fl.append(lambda a=a: e.valu(f"v_exp_f32 v{a}, v{a}", dst=[a], src=[a], trans=True))
            fl.append(lambda b=b: e.valu(f"v_exp_f32 v{b}, v{b}", dst=[b], src=[b], trans=True))
            fl.append(lambda a=a: e.valu(f"v_add_f32 v{V_LSUM}, v{V_LSUM}, v{a}", dst=[V_LSUM], src=[V_LSUM, a]))
            fl.append(lambda b=b: e.valu(f"v_add_f32 v{V_LSUM}, v{V_LSUM}, v{b}", dst=[V_LSUM], src=[V_LSUM, b]))
            fl.append(lambda a=a, b=b, p=p: e.valu(f"v_cvt_pk_bf16_f32 v{sc + p}, v{a}, v{b}", dst=[sc + p], src=[a, b]))
        return fl

    def max_fillers(sn):
        fl = []
        fl.append(lambda: e.valu(f"v_max3_f32 v{V_TMAX}, v{sn}, v{sn + 1}, v{sn + 2}", dst=[V_TMAX], src=[sn, sn + 1, sn + 2]))
        for i in range(3, 15, 2):
            fl.append(lambda i=i: e.valu(f"v_max3_f32 v{V_TMAX}, v{V_TMAX}, v{sn + i}, v{sn + i + 1}",
                                         dst=[V_TMAX], src=[V_TMAX, sn + i, sn + i + 1]))
        fl.append(lambda: e.valu(f"v_max_f32 v{V_TMAX}, v{V_TMAX}, v{sn + 15}", dst=[V_TMAX], src=[V_TMAX, sn + 15]))
        return fl

    def cross_half(op, reg, tmp):
        V(f"v_mov_b32 v{tmp}, v{reg}", tmp, reg)
        e.nop(2)
        e.valu(f"v_permlane32_swap_b32 v{reg}, v{tmp}", dst=[reg, tmp], src=[reg, tmp])
        V(f"{op} v{reg}, v{reg}, v{tmp}", reg, reg, tmp)

    def mid14():
        e.wait_vm(("D", 15))
        e.salu("s_barrier")
        defer(dma_kv_pair(e, ("D", 17)), SP2)
        fs.push(("pre", next_rd_kv))
        k_frags()
        v_frags()
    zf = [(lambda i=i: V(f"v_mov_b32 v{V_O + i}, 0", V_O + i)) for i in range(128)]
    qk_stage(V_S0, zf, mid=(3, mid14))
    for f in max_fillers(V_S0):
        f()
    cross_half("v_max_f32", V_TMAX, V_TMP)
    V(f"v_mul_f32 v{V_NEGM}, s{S_NC}, v{V_TMAX}", V_NEGM, V_TMAX)

    rare = []

    def p2_step(t, issue, push_next=None, tagname=""):
        G = 15 + t
        sc = V_S0 if t % 2 == 0 else V_S1
        sn = V_S1 if t % 2 == 0 else V_S0
        fl = exp_fillers(sc)
        qk_stage(sn, fl)
        mx = max_fillers(sn)
        k = 0
        for idx in range(16):
            ks2, j = idx >> 3, idx & 7
            consume_mfma(V_O + 16 * j, sc + 4 * ks2, V_O + 16 * j)
            if idx == 3:
                e.wait_vm(("D", G + 1))
                e.salu("s_barrier")
                defer(issue(), SP2)
                push_next()
            if idx >= 5 and k < len(mx):
                mx[k]()
                k += 1
                if k < len(mx):
                    mx[k]()
                    k += 1
        assert k == len(mx)
        e.valu(f"v_fma_f32 v{V_TMP}, v{V_TMAX}, s{S_C}, v{V_NEGM}", dst=[V_TMP], src=[V_TMAX, V_NEGM])
        e.valu(f"v_cmp_lt_f32 vcc, s{S_THR}, v{V_TMP}", dst=[], src=[V_TMP])
        e.salu("s_nop 3")
        e.salu(f"s_cbranch_vccnz L_rare_{tagname}")
        e.label(f"L_back_{tagname}")
        rare.append(tagname)

    def push_kv():
        fs.push(("pre", next_rd_kv))
        k_frags()
        v_frags()

    def p2_body(i):
        t = 2 * i
        p2_step(t, lambda: dma_kv_pair(e, ("D", 15 + t + 3)), push_next=push_kv, tagname="a")
        p2_step(t + 1, lambda: dma_kv_pair(e, ("D", 15 + t + 4)), push_next=push_kv, tagname="b")

    e.loop("L_p2", 6, p2_body, f"s{S_CNT}")
    rare[:] = ["a", "b"]

    p2_step(12, lambda: dma_kv_pair(e, ("D", 30), k=False, v=True), push_next=push_kv, tagname="c")

    V_DWO = V_XOFF

    def wo_setup():
        a, b2 = V_T3, V_T2
        V(f"v_bfe_u32 v{a}, v{L}, 4, 1", a, L)
        V(f"v_lshlrev_b32 v{a}, 2, v{a}", a, a)
        V(f"v_and_b32 v{b2}, 7, v{L}", b2, L)
        V(f"v_xor_b32 v{a}, v{a}, v{b2}", a, a, b2)
        V(f"v_lshlrev_b32 v{a}, 4, v{a}", a, a)
        V(f"v_lshrrev_b32 v{b2}, 3, v{L}", b2, L)
        V(f"v_mul_u32_u24 v{b2}, 896, v{b2}", b2, b2)
        V(f"v_add_u32 v{V_DWO}, v{a}, v{b2}", V_DWO, a, b2)
        e.salu(f"s_lshl_b32 s{S_WM0C}, s{S_W}, 11")
        e.salu(f"s_mul_i32 s{S_XOFF}, s{S_W}, {16 * 896}")

    def iss_wo0():
        wo_setup()
        return dma_wo_pair(e, ("D", 31), 0, V_DWO)
    p2_step(13, iss_wo0, push_next=push_kv, tagname="d")

    def push_v_only():
        fs.push(("pre", next_rd_kv))
        v_frags(jmajor=True)
    p2_step(14, lambda: dma_wo_pair(e, ("D", 32), 1, V_DWO), push_next=push_v_only, tagname="e")

    V_OF = 128
    ACC = [(V_S0, V_S1), (0, 16)]
    V_R = 32
    V_PK = 48
    V_RDK, V_RDS = V_RDA, V_RDB
    V_EXW = [56, 57, 58, 59]
    V_EXR = [60, 61, 62, 63]
    V_STO = V_DLIN

    def wo_patterns():
        a, b2 = V_T2, V_T3
        V(f"v_lshrrev_b32 v{a}, 5, v{L}", a, L)
        V(f"v_bfe_u32 v{b2}, v{L}, 2, 2", b2, L)
        V(f"v_lshl_add_u32 v{a}, v{a}, 3, v{b2}", a, a, b2)
        V(f"v_lshlrev_b32 v{a}, 7, v{a}", a, a)
        V(f"v_bfe_u32 v{b2}, v{L}, 3, 1", b2, L)
        V(f"v_xor_b32 v{b2}, s{S_HH}, v{b2}", b2, b2)
        V(f"v_lshl_add_u32 v{a}, v{b2}, 6, v{a}", a, b2, a)
        V(f"v_bfe_u32 v{b2}, v{L}, 4, 1", b2, L)
        V(f"v_lshl_add_u32 v{a}, v{b2}, 5, v{a}", a, b2, a)
        V(f"v_and_b32 v{b2}, 1, v{L}", b2, L)
        V(f"v_lshl_add_u32 v{a}, v{b2}, 4, v{a}", a, b2, a)
        V(f"v_bfe_u32 v{b2}, v{L}, 1, 1", b2, L)
        V(f"v_lshl_add_u32 v{a}, v{b2}, 3, v{a}", a, b2, a)
        e.salu(f"s_mul_i32 s{S_T3}, s{S_HH}, {TILE}")
        V(f"v_add_u32 v{V_PATA}, s{S_T3}, v{a}", V_PATA, a)

    def next_rd3():
        adv_slot(e, S_RD)
        V(f"v_add_u32 v{V_RDK}, s{S_RD}, v{V_PATA}", V_RDK, V_PATA)
        V(f"v_xor_b32 v{V_RDS}, 64, v{V_RDK}", V_RDS, V_RDK)

    def p3_frags():
        for kk in range(8):
            for which in (V_RDS, V_RDK):
                off = kk * 2048
                fs.push(rd_tr(e, which, off, off + 512))

    def push_p3_first():
        def pre():
            wo_patterns()
            next_rd3()
        fs.push(("pre", pre))
        p3_frags()

    def push_p3():
        fs.push(("pre", next_rd3))
        p3_frags()

    def norm_fillers(j):
        fl = []
        for i in range(16):
            r = 16 * j + i
            fl.append(lambda r=r: V(f"v_mul_f32 v{r}, v{r}, v{V_LSUM}", r, r, V_LSUM))
        for i in range(8):
            r = 16 * j + 2 * i
            fl.append(lambda r=r, i=i: e.valu(f"v_cvt_pk_bf16_f32 v{V_OF + 8 * j + i}, v{r}, v{r + 1}",
                                              dst=[V_OF + 8 * j + i], src=[r, r + 1]))
        return fl

    sc = V_S1
    for f in exp_fillers(sc):
        f()
    cross_half("v_add_f32", V_LSUM, V_TMP)
    e.valu(f"v_rcp_f32 v{V_LSUM}, v{V_LSUM}", dst=[V_LSUM], src=[V_LSUM], trans=True)
    pend = []
    for idx in range(16):
        j, ks2 = idx >> 1, idx & 1
        consume_mfma(V_O + 16 * j, sc + 4 * ks2, V_O + 16 * j)
        if idx == 3:
            e.wait_vm(("D", 31))
            e.salu("s_barrier")
            defer(dma_wo_pair(e, ("D", 33), 2, V_DWO), SP2)
            push_p3_first()
        if ks2 == 1 and j >= 2:
            pend += norm_fillers(j - 2)
        for _ in range(12):
            if pend:
                pend.pop(0)()
    pend += norm_fillers(6) + norm_fillers(7)
    stamp(e, 3)
    stamp(e, 4)

    def ex_addr(dst, wreg):
        e.salu(f"s_lshl_b32 s{S_T0}, s{wreg}, 12")
        e.salu(f"s_add_u32 s{S_T0}, s{S_T0}, {RING}")
        e.salu(f"s_sub_u32 s{S_T1}, s{wreg}, 6")
        e.salu(f"s_mul_i32 s{S_T1}, s{S_T1}, {4 * TILE}")
        e.salu(f"s_add_u32 s{S_T1}, s{S_T1}, 16384")
        e.salu(f"s_cmp_ge_u32 s{wreg}, 6")
        e.salu(f"s_cselect_b32 s{S_T0}, s{S_T1}, s{S_T0}")
        e.salu(f"s_mov_b32 s{S_T1}, 1024")
        e.salu(f"s_cselect_b32 s{S_T1}, {TILE}, s{S_T1}")
        for i in range(4):
            V(f"v_add_u32 v{dst[i]}, s{S_T0}, v{V_DLIN}", dst[i], V_DLIN)
            if i < 3:
                e.salu(f"s_add_u32 s{S_T0}, s{S_T0}, s{S_T1}")

    def p3_setup():
        ex_addr(V_EXW, S_W)
        e.salu(f"s_xor_b32 s{S_EXR}, s{S_W}, 4")
        ex_addr(V_EXR, S_EXR)
        e.salu(f"s_mul_i32 s{S_POFF}, s{S_W}, {7 * 2048}")

    def send_fillers(s_):
        acc_s = ACC[s_ & 1][1]
        return [(lambda i=i: e.ds(f"ds_write_b128 v{V_EXW[i]}, {vr(acc_s + 4 * i, 4)}", ("exw", s_),
                                  src=range(acc_s + 4 * i, acc_s + 4 * i + 4))) for i in range(4)]

    def recv_reads(s_):
        for i in range(4):
            e.ds(f"ds_read_b128 {vr(V_R + 4 * i, 4)}, v{V_EXR[i]}", ("exr", s_), dst=range(V_R + 4 * i, V_R + 4 * i + 4))

    def fin_fillers(s_):
        acc_k = ACC[s_ & 1][0]
        fl = [lambda: e.wait_lds(("exr", s_))]
        for i in range(16):
            fl.append(lambda i=i: V(f"v_add_f32 v{V_R + i}, v{V_R + i}, v{acc_k + i}", V_R + i, V_R + i, acc_k + i))
        for i in range(8):
            fl.append(lambda i=i: e.valu(f"v_cvt_pk_bf16_f32 v{V_PK + i}, v{V_R + 2 * i}, v{V_R + 2 * i + 1}",
                                         dst=[V_PK + i], src=[V_R + 2 * i, V_R + 2 * i + 1]))

        def st():
            for q4 in range(2):
                rg = V_PK + 4 * q4
                e.vmem(f"buffer_store_dwordx4 {vr(rg, 4)}, v{V_STO}, s[{S_P}:{S_P + 3}], s{S_POFF} offen offset:{q4 * 1024}{STPOL}",
                       ("st", s_), src=range(rg, rg + 4))
            e.salu(f"s_add_u32 s{S_POFF}, s{S_POFF}, 2048")
        fl.append(st)
        return fl

    def p3_step(p, issue, push, extra=None):
        G = 31 + p
        s_, i = p >> 1, p & 1
        acc_k, acc_s = ACC[s_ & 1]
        ext = list(extra) if extra else []
        pre = []
        post = []
        if i == 0 and s_ >= 1:
            pre += send_fillers(s_ - 1)
        for idx in range(16):
            kk, which = idx >> 1, idx & 1
            acc = acc_s if which == 0 else acc_k
            first = (i == 0 and kk == 0)
            consume_mfma(acc, V_OF + 4 * (8 * i + kk), None if first else acc)
            if idx >= 1:
                for _ in range(4):
                    if pre:
                        pre.pop(0)()
                    elif ext:
                        ext.pop(0)()
                        if ext:
                            ext.pop(0)()
                    elif post and idx > BAR3 + 2:
                        post.pop(0)()
            if idx == BAR3:
                assert not pre
                if i == 0 and s_ >= 1:
                    e.wait_lds(("exw", s_ - 1))
                e.wait_vm(("D", G + 1))
                e.salu("s_barrier")
                if i == 0 and s_ >= 1:
                    recv_reads(s_ - 1)
                    post = fin_fillers(s_ - 1)
                defer(issue(), SP3)
                if push:
                    push_p3()
        assert not post and not pre and not ext

    p3_setup()

    def iss3(p):
        return (lambda: dma_wo_pair(e, ("D", 31 + p), p, V_DWO)) if p <= 13 else (lambda: [])

    p3_step(0, iss3(3), True, extra=pend)
    p3_step(1, iss3(4), True)
    p3_step(2, iss3(5), True)
    p3_step(3, iss3(6), True)

    def p3_body(it):
        p = 4 + 4 * it
        for d in range(4):
            p3_step(p + d, iss3(p + d + 3), True)

    e.loop("L_p3", 2, p3_body, f"s{S_CNT}") if False else [p3_body(0), p3_body(1)]
    p3_step(12, iss3(15), True)
    p3_step(13, iss3(16), False)
    for f in send_fillers(6):
        f()
    e.wait_lds(("exw", 6))
    e.salu("s_barrier")
    recv_reads(6)
    for f in fin_fillers(6):
        f()
    stamp(e, 5)
    stamp_flush(e, 8)
    e.label("L_attn_exit")
    e.salu("s_endpgm")

    for tg in rare:
        e.label(f"L_rare_{tg}")
        e.raw("s_nop 15", 16)
        e.raw(f"v_mov_b32 v{V_TMP}, v{V_TMAX}")
        e.raw("s_nop 1", 2)
        e.raw(f"v_permlane32_swap_b32 v{V_TMAX}, v{V_TMP}")
        e.raw(f"v_max_f32 v{V_TMAX}, v{V_TMAX}, v{V_TMP}")
        e.raw(f"v_mul_f32 v{V_TMAX}, s{S_NC}, v{V_TMAX}")
        e.raw(f"v_min_f32 v{V_TMAX}, v{V_TMAX}, v{V_NEGM}")
        e.raw(f"v_sub_f32 v{V_TMP}, v{V_TMAX}, v{V_NEGM}")
        e.raw(f"v_exp_f32 v{V_TMP}, v{V_TMP}")
        e.raw(f"v_mov_b32 v{V_NEGM}, v{V_TMAX}")
        e.raw("s_nop 0")
        e.raw(f"v_mul_f32 v{V_LSUM}, v{V_LSUM}, v{V_TMP}")
        for i in range(128):
            e.raw(f"v_mul_f32 v{i}, v{i}, v{V_TMP}")
        e.raw("s_nop 1", 2)
        e.raw(f"s_branch L_back_{tg}")


def gen_reduce(e):
    e.label("reduce_kernel")
    e.salu("s_cmp_ge_u32 s2, 896")
    e.salu("s_cbranch_scc1 L_red_exit")
    e.salu("s_load_dwordx2 s[4:5], s[0:1], 80")
    e.salu("s_load_dwordx2 s[6:7], s[0:1], 96")
    e.salu("s_mul_hi_u32 s8, s2, 0x924924a")
    e.salu("s_mul_i32 s9, s8, 28")
    e.salu("s_sub_u32 s9, s2, s9")
    e.salu("s_lshl_b32 s9, s9, 1")
    e.raw("v_and_b32 v1, 63, v0")
    e.raw("v_bfe_u32 v2, v0, 6, 1")
    e.raw("v_lshrrev_b32 v3, 7, v0")
    e.raw("v_add_u32 v3, s9, v3")
    e.raw("v_lshlrev_b32 v4, 11, v3")
    e.raw("v_lshl_add_u32 v4, v2, 10, v4")
    e.raw("v_lshl_add_u32 v4, v1, 4, v4")
    e.salu("s_waitcnt lgkmcnt(0)")
    e.salu("s_mul_i32 s10, s8, 917504")
    e.salu("s_add_u32 s6, s6, s10")
    e.salu("s_addc_u32 s7, s7, 0")
    e.salu("s_mov_b32 s12, s6")
    e.salu("s_and_b32 s13, s7, 0xffff")
    e.salu("s_mov_b32 s14, 917504")
    e.salu("s_mov_b32 s15, 0x00020000")
    e.salu("s_mov_b32 s16, s4")
    e.salu("s_and_b32 s17, s5, 0xffff")
    e.salu("s_mov_b32 s18, 3670016")
    e.salu("s_mov_b32 s19, 0x00020000")
    for h in range(8):
        e.salu(f"s_mov_b32 s20, {h * 114688}")
        e.raw(f"buffer_load_dwordx4 v[{24 + 4 * h}:{27 + 4 * h}], v4, s[12:15], s20 offen{RDPOL}")
    e.raw("v_mul_u32_u24 v5, 37, v3")
    e.raw("v_lshrrev_b32 v5, 8, v5")
    e.raw("v_mul_u32_u24 v6, 7, v5")
    e.raw("v_sub_u32 v6, v3, v6")
    e.raw("v_and_b32 v7, 3, v5")
    e.raw("v_lshrrev_b32 v5, 2, v5")
    e.raw("v_and_b32 v8, 31, v1")
    e.raw("v_lshl_add_u32 v8, v7, 5, v8")
    e.raw("v_lshlrev_b32 v9, 6, v6")
    e.raw("v_lshl_add_u32 v9, v5, 5, v9")
    e.raw("v_lshl_add_u32 v9, v2, 4, v9")
    e.raw("v_lshrrev_b32 v10, 5, v1")
    e.raw("v_lshl_add_u32 v9, v10, 3, v9")
    e.salu("s_and_b32 s21, s8, 15")
    e.salu("s_lshr_b32 s22, s8, 4")
    e.salu("s_mul_i32 s21, s21, 229376")
    e.salu("s_mul_i32 s22, s22, 896")
    e.salu("s_add_u32 s21, s21, s22")
    e.salu("s_mov_b32 s23, 0xffff0000")
    e.raw("v_mul_u32_u24 v8, 1792, v8")
    e.raw("v_lshl_add_u32 v8, v9, 1, v8")
    for h in range(8):
        e.salu(f"s_waitcnt vmcnt({7 - h})")
        for i in range(4):
            r = 24 + 4 * h + i
            if h == 0:
                e.raw(f"v_lshlrev_b32 v{16 + 2 * i}, 16, v{r}")
                e.raw(f"v_and_b32 v{17 + 2 * i}, s23, v{r}")
            else:
                e.raw(f"v_lshlrev_b32 v11, 16, v{r}")
                e.raw(f"v_and_b32 v12, s23, v{r}")
                e.raw(f"v_add_f32 v{16 + 2 * i}, v{16 + 2 * i}, v11")
                e.raw(f"v_add_f32 v{17 + 2 * i}, v{17 + 2 * i}, v12")
    for i in range(4):
        e.raw(f"v_cvt_pk_bf16_f32 v{12 + i}, v{16 + 2 * i}, v{17 + 2 * i}")
    e.raw("buffer_store_dwordx4 v[12:15], v8, s[16:19], s21 offen")
    e.label("L_red_exit")
    e.salu("s_endpgm")


def main():
    ref = open(OUT + ".ref").read().splitlines()
    head = [l for l in ref if l.startswith(";") and "@launch" not in l]
    out = list(head)
    out.append(f"; @launch kernel=attn_kernel grid=(256,1,1) block=(512,1,1) lds={LDS_BYTES}")
    out.append("; @launch kernel=reduce_kernel grid=(896,1,1) block=(256,1,1) lds=0")
    out.append('.amdgcn_target "amdgcn-amd-amdhsa--gfx950"')
    out.append(".text")
    e = Em()
    out += [".globl attn_kernel", ".p2align 8", ".type attn_kernel,@function"]
    gen_attn(e)
    out += e.lines
    e2 = Em()
    out += [".globl reduce_kernel", ".p2align 8", ".type reduce_kernel,@function"]
    gen_reduce(e2)
    out += e2.lines
    out.append('.section .rodata,"a"')
    for k, vg, sg in (("attn_kernel", 256, 96), ("reduce_kernel", 56, 32)):
        out += [".p2align 6", f".amdhsa_kernel {k}",
                f"  .amdhsa_next_free_vgpr {vg}",
                f"  .amdhsa_next_free_sgpr {sg}",
                f"  .amdhsa_accum_offset {vg}",
                "  .amdhsa_group_segment_fixed_size 0",
                "  .amdhsa_kernarg_size 104",
                "  .amdhsa_user_sgpr_count 2",
                "  .amdhsa_user_sgpr_kernarg_segment_ptr 1",
                "  .amdhsa_system_sgpr_workgroup_id_x 1",
                ".end_amdhsa_kernel"]
    open(OUTFILE, "w").write("\n".join(out) + "\n")
    print("wrote", OUTFILE, len(out), "lines")


if __name__ == "__main__":
    main()
```

```python
import math
import sys
import os

NAME = "concat_heads__gqa_block_cached__gqa_block_cached__near_ridge"
OUT = f"cdna_kernels/{NAME}.s"
OUTFILE = sys.argv[1] if len(sys.argv) > 1 else OUT

STAMPS = os.environ.get("STAMPS", "0") == "1"
X_NOVM = os.environ.get("NOVM", "0") == "1"
X_NOBAR = os.environ.get("NOBAR", "0") == "1"
X_NODMA = os.environ.get("NODMA", "0") == "1"

ROTMASK = int(os.environ.get("ROTMASK", "15"))
TILE = 17408
PAIR = 2 * TILE
RING = 4 * PAIR
LDS_BYTES = 160 * 1024


class Em:
    def __init__(self):
        self.lines = []
        self.pos = 0
        self.mfma_w = {}
        self.mfma_c = {}
        self.valu_w = {}
        self.trans_w = {}
        self.lds_q = []
        self.vm_q = []
        self.capture = None

    def raw(self, s, slots=1):
        (self.capture if self.capture is not None else self.lines).append("    " + s)
        self.pos += slots

    def label(self, s):
        (self.capture if self.capture is not None else self.lines).append(s + ":")

    def comment(self, s):
        (self.capture if self.capture is not None else self.lines).append("    ; " + s)

    def nop(self, n):
        while n > 0:
            k = min(n, 16)
            self.raw(f"s_nop {k - 1}", k)
            n -= k

    def _need(self, table, regs, dist):
        need = 0
        for r in regs:
            p = table.get(r)
            if p is not None:
                have = self.pos - p - 1
                need = max(need, dist - have)
        return need

    def salu(self, s):
        if X_NOBAR and s == "s_barrier":
            s = "s_nop 0"
        self.raw(s)

    def valu(self, s, dst=(), src=(), trans=False):
        n = self._need(self.mfma_w, list(dst) + list(src), 12)
        n = max(n, self._need(self.mfma_c, dst, 7))
        if not trans:
            n = max(n, self._need(self.trans_w, src, 1))
        if n > 0:
            self.nop(n)
        p = self.pos
        self.raw(s)
        for r in dst:
            self.valu_w[r] = p
            if trans:
                self.trans_w[r] = p
            else:
                self.trans_w.pop(r, None)

    def mfma(self, d, a, b, c):
        D = list(range(d, d + 16))
        A = list(range(a, a + 4))
        B = list(range(b, b + 4))
        C = list(range(c, c + 16)) if c is not None else []
        n = self._need(self.valu_w, A + B + C, 2)
        n = max(n, self._need(self.mfma_w, A + B, 12))
        if c is not None and c != d:
            n = max(n, self._need(self.mfma_w, C, 10))
        if c is None:
            pass
        if n > 0:
            self.nop(n)
        p = self.pos
        cs = f"v[{c}:{c + 15}]" if c is not None else "0"
        self.raw(f"v_mfma_f32_32x32x16_bf16 v[{d}:{d + 15}], v[{a}:{a + 3}], v[{b}:{b + 3}], {cs}")
        for r in D:
            self.mfma_w[r] = p
        for r in C:
            self.mfma_c[r] = p

    def ds(self, s, tag, dst=(), src=()):
        n = self._need(self.mfma_w, list(dst) + list(src), 12)
        if n > 0:
            self.nop(n)
        self.raw(s)
        self.lds_q.append(tag)
        assert len(self.lds_q) <= 15, "too many LDS ops outstanding"

    def vmem(self, s, tag, dst=(), src=(), cond=False):
        n = self._need(self.mfma_w, list(dst) + list(src), 12)
        if n > 0:
            self.nop(n)
        self.raw(s)
        self.vm_q.append((tag, cond))
        assert len(self.vm_q) <= 63

    def wait_lds(self, tag):
        idx = max((i for i, t in enumerate(self.lds_q) if t == tag), default=-1)
        if idx < 0:
            return
        n = len(self.lds_q) - 1 - idx
        self.raw(f"s_waitcnt lgkmcnt({n})")
        self.lds_q = self.lds_q[idx + 1:]

    def wait_lds_all(self):
        if self.lds_q:
            self.raw("s_waitcnt lgkmcnt(0)")
            self.lds_q = []

    def wait_vm(self, tag, extra=0):
        idx = max((i for i, t in enumerate(self.vm_q) if t[0] == tag), default=-1)
        if idx < 0:
            return
        n = sum(1 for t in self.vm_q[idx + 1:] if not t[1]) + extra
        if X_NOVM and tag[0] == "D":
            self.raw("s_nop 0")
        else:
            self.raw(f"s_waitcnt vmcnt({n})")
        if self.vm_q[idx][1]:
            self.vm_q = [t for t in self.vm_q if t[0] != tag]
        else:
            self.vm_q = self.vm_q[idx + 1:]

    def wait_vm_all(self):
        if self.vm_q:
            self.raw("s_waitcnt vmcnt(0)")
            self.vm_q = []

    def cond_begin(self):
        self._cpos = self.pos

    def cond_end(self):
        p0 = self._cpos
        for tb in (self.mfma_w, self.mfma_c, self.valu_w, self.trans_w):
            for r, p in tb.items():
                if p >= p0:
                    tb[r] = p0 - 1
        self.pos = p0

    def loop(self, name, n, body, counter):
        assert self.capture is None
        self.salu(f"s_mov_b32 {counter}, {n}")
        texts = []
        for i in range(n):
            self.capture = []
            body(i)
            self.salu(f"s_sub_u32 {counter}, {counter}, 1")
            self.salu(f"s_cmp_lg_u32 {counter}, 0")
            self.salu(f"s_cbranch_scc1 {name}")
            texts.append(self.capture)
            self.capture = None
        for i in range(1, n):
            if texts[i] != texts[0]:
                for a, b in zip(texts[0], texts[i]):
                    if a != b:
                        print("LOOP MISMATCH", name, i, a, "|", b)
                        break
                raise SystemExit(f"loop {name}: iteration {i} differs from iteration 0")
        self.label(name)
        self.lines.extend(texts[0])


def vr(base, n):
    return f"v[{base}:{base + n - 1}]"


S_X, S_K, S_V, S_WQ, S_WO, S_P = 8, 12, 16, 20, 24, 28
S_W = 32
S_HH = 33
S_QB = 34
S_RD = 35
S_DM = 36
S_T0, S_T1, S_T2, S_T3 = 37, 38, 39, 40
S_CNT = 41
S_C = 42
S_NC = 43
S_THR = 44
S_OFFA = 45
S_OFFB = 46
S_XOFF = 47
S_WM0A = 48
S_WM0B = 49
S_POFF = 50
S_EXW = 51
S_EXR = 52
S_D0, S_D1 = 53, 54
S_WM0C = 55
S_KA = 56
S_G, S_OUT, S_DBG = 60, 64, 68
S_BB4, S_OOFF, S_FL, S_LOFF = 72, 73, 74, 75

V_O = 0
V_Q = 128
V_X = 128
V_S0, V_S1 = 192, 208
V_FR = 224
V_M = 240
V_PATA, V_PATB, V_RDA, V_RDB = 240, 241, 242, 243
V_DLIN, V_DK = 244, 245
V_NEGM, V_LSUM, V_TMAX, V_TMP = 246, 247, 248, 249
V_XOFF = 250
V_LANE = 251
V_T2 = 252
V_T3 = 253

import os

S_ST = 88


def stamp(e, i):
    if not STAMPS:
        return
    e.raw("s_memtime s[96:97]")
    e.raw("s_waitcnt lgkmcnt(0)")
    e.lds_q = []
    e.salu(f"s_mov_b32 s{S_ST + i}, s96")
    if i in (0, 5):
        e.raw("s_memrealtime s[96:97]")
        e.raw("s_waitcnt lgkmcnt(0)")
        e.salu(f"s_mov_b32 s{S_ST + 6 + (i == 5)}, s96")


def stamp_flush(e, n):
    if not STAMPS:
        return
    e.salu("s_load_dwordx2 s[96:97], s[0:1], 96")
    e.salu("s_waitcnt lgkmcnt(0)")
    e.salu("s_add_u32 s96, s96, 0x8000000")
    e.salu("s_addc_u32 s97, s97, 0")
    e.salu("s_mov_b32 s8, s96")
    e.salu("s_and_b32 s9, s97, 0xffff")
    e.salu("s_mov_b32 s10, 0x100000")
    e.salu("s_mov_b32 s11, 0x00020000")
    e.salu(f"s_lshl_b32 s96, s2, 3")
    e.salu(f"s_add_u32 s96, s96, s{S_W}")
    e.salu(f"s_lshl_b32 s96, s96, 6")
    e.raw("s_nop 15", 16)
    e.raw("v_mov_b32 v1, 0")
    for i in range(n):
        e.raw(f"v_mov_b32 v0, s{S_ST + i}")
        e.raw(f"buffer_store_dword v0, v1, s[8:11], s96 offen offset:{4 * i}")
        e.raw("s_waitcnt vmcnt(0)")


SP1 = int(os.environ.get("SP1", "1"))
SP2 = int(os.environ.get("SP2", "3"))
SP3 = int(os.environ.get("SP3", "2"))
BAR3 = int(os.environ.get("BAR3", "5"))
NB = 4
DPF = 3


def srd(e, dst, lo, hi, size):
    e.salu(f"s_mov_b32 s{dst}, s{lo}")
    e.salu(f"s_and_b32 s{dst + 1}, s{hi}, 0xffff")
    e.salu(f"s_mov_b32 s{dst + 2}, {size}")
    e.salu(f"s_mov_b32 s{dst + 3}, 0x00020000")


def adv_slot(e, s):
    e.salu(f"s_add_u32 s{s}, s{s}, {PAIR}")
    e.salu(f"s_cmp_ge_u32 s{s}, {RING}")
    e.salu(f"s_cselect_b32 s{S_T3}, {RING}, 0")
    e.salu(f"s_sub_u32 s{s}, s{s}, s{S_T3}")


KVPOL = os.environ.get("KVPOL", "nt")
STPOL = os.environ.get("STPOL", "")
STPOL = (" " + STPOL) if STPOL else ""
RDPOL = os.environ.get("RDPOL", "nt")
RDPOL = (" " + RDPOL) if RDPOL else ""


def dma(e, voff, sr, soff, m0expr, tag, off=0):
    sg, imm = m0expr
    e.salu(f"s_add_u32 m0, s{sg}, {imm}")
    e.salu("s_nop 0")
    o = f" offset:{off}" if off else ""
    if X_NODMA:
        e.salu("s_nop 0")
        return
    pol = (" " + KVPOL) if (sr in (S_K, S_V) and KVPOL) else ""
    e.vmem(f"buffer_load_dwordx4 v{voff}, s[{sr}:{sr + 3}], s{soff} offen{o}{pol} lds", tag)


def dma_wq_pair(e, tag):
    e.salu(f"s_add_u32 s{S_D0}, s{S_DM}, s{S_WM0A}")
    adv_slot(e, S_DM)
    out = []
    for e2 in range(2):
        for ee in range(2):
            def f(e2=e2, ee=ee):
                e.salu(f"s_add_u32 s{S_T1}, s{S_OFFA}, {(16 * e2 + ee) * 8192}")
                dma(e, V_DLIN, S_WQ, S_T1, (S_D0, e2 * TILE + ee * 1088), tag)
                if e2 == 1 and ee == 1:
                    e.salu(f"s_add_u32 s{S_OFFA}, s{S_OFFA}, {32 * 8192}")
            out.append(f)
    return out


def dma_kv_pair(e, tag, k=True, v=True):
    e.salu(f"s_add_u32 s{S_D0}, s{S_DM}, s{S_WM0A}")
    e.salu(f"s_add_u32 s{S_D1}, s{S_DM}, s{S_WM0B}")
    adv_slot(e, S_DM)
    out = []
    if k:
        out.append(lambda: dma(e, V_DK, S_K, S_OFFA, (S_D0, 0), tag))

        def k2():
            dma(e, V_DK, S_K, S_OFFA, (S_D0, 32), tag, off=1024)
            e.salu(f"s_add_u32 s{S_OFFA}, s{S_OFFA}, 16384")
            e.salu(f"s_and_b32 s{S_OFFA}, s{S_OFFA}, 0x3ffff")
        out.append(k2)
    if v:
        out.append(lambda: dma(e, V_DLIN, S_V, S_OFFB, (S_D1, 0), tag))

        def v2():
            dma(e, V_DLIN, S_V, S_OFFB, (S_D1, 64), tag, off=1024)
            e.salu(f"s_add_u32 s{S_OFFB}, s{S_OFFB}, 16384")
            e.salu(f"s_and_b32 s{S_OFFB}, s{S_OFFB}, 0x3ffff")
        out.append(v2)
    return out


def dma_wo_pair(e, tag, p, vdwo):
    e.salu(f"s_add_u32 s{S_D0}, s{S_DM}, s{S_WM0C}")
    adv_slot(e, S_DM)
    out = []
    i = p & 1
    for hd in range(2):
        for ee in range(2):
            def f(hd=hd, ee=ee):
                e.salu(f"s_add_u32 s{S_T1}, s{S_XOFF}, {(256 * hd + 128 * i + 8 * ee) * 896}")
                dma(e, vdwo, S_WO, S_T1, (S_D0, hd * TILE + ee * 1024), tag)
                if hd == 1 and ee == 1 and i == 1:
                    e.salu(f"s_add_u32 s{S_XOFF}, s{S_XOFF}, 128")
            out.append(f)
    return out


class FragStream:
    def __init__(self, e, base=V_FR, nb=NB):
        self.e = e
        self.base = base
        self.nb = nb
        self.issued = 0
        self.queue = []

    def buf(self, i):
        return self.base + 4 * (i % self.nb)

    def push(self, fn):
        self.queue.append(fn)

    def issue_next(self):
        while self.queue:
            fn = self.queue.pop(0)
            if fn[0] == "pre":
                fn[1]()
                continue
            i = self.issued
            fn[1](self.buf(i), ("fr", i))
            self.issued += 1
            return True
        return False


def rd_tr(e, areg, off0, off1):
    def f(dst, tag):
        e.ds(f"ds_read_b64_tr_b16 {vr(dst, 2)}, v{areg} offset:{off0}", tag, dst=range(dst, dst + 2))
        e.ds(f"ds_read_b64_tr_b16 {vr(dst + 2, 2)}, v{areg} offset:{off1}", tag, dst=range(dst + 2, dst + 4))
    return ("rd", f)


def rd_128(e, areg, off):
    def f(dst, tag):
        e.ds(f"ds_read_b128 {vr(dst, 4)}, v{areg} offset:{off}", tag, dst=range(dst, dst + 4))
    return ("rd", f)


def gen_attn(e):
    e.label("attn_kernel")
    e.salu("s_cmp_ge_u32 s2, 256")
    e.salu("s_cbranch_scc1 L_attn_exit")
    e.salu(f"s_load_dwordx16 s[{S_KA}:{S_KA + 15}], s[0:1], 0")
    e.salu(f"s_load_dwordx4 s[{S_KA + 16}:{S_KA + 19}], s[0:1], 64")
    e.salu(f"s_load_dwordx2 s[{S_KA + 20}:{S_KA + 21}], s[0:1], 96")
    e.salu(f"s_load_dwordx4 s[80:83], s[0:1], 80")
    e.salu(f"s_and_b32 s{S_T0}, s2, 7")
    e.salu(f"s_lshr_b32 s{S_T1}, s2, 3")
    e.salu(f"s_and_b32 s{S_T2}, s{S_T1}, 15")
    e.valu(f"v_lshrrev_b32 v1, 6, v0", dst=[1], src=[0])
    e.valu(f"v_and_b32 v{V_LANE}, 63, v0", dst=[V_LANE], src=[0])
    e.salu("s_nop 0")
    e.raw(f"v_readfirstlane_b32 s{S_W}, v1")
    e.salu("s_nop 3")
    e.salu(f"s_lshr_b32 s{S_HH}, s{S_W}, 2")
    e.salu(f"s_and_b32 s{S_QB}, s{S_W}, 3")
    e.salu("s_waitcnt lgkmcnt(0)")
    e.salu(f"s_cmp_ge_u32 s{S_T1}, 16")
    for i in range(10):
        e.salu(f"s_cselect_b32 s{S_KA + i}, s{S_KA + 10 + i}, s{S_KA + i}")
    e.salu(f"s_mul_i32 s{S_T3}, s{S_T2}, 114688")
    e.salu(f"s_add_u32 s{S_KA}, s{S_KA}, s{S_T3}")
    e.salu(f"s_addc_u32 s{S_KA + 1}, s{S_KA + 1}, 0")
    srd(e, S_X, S_KA, S_KA + 1, 114688)
    e.salu(f"s_lshl_b32 s{S_T3}, s{S_T2}, 3")
    e.salu(f"s_add_u32 s{S_T3}, s{S_T3}, s{S_T0}")
    e.salu(f"s_lshl_b32 s{S_T3}, s{S_T3}, 18")
    e.salu(f"s_add_u32 s{S_KA + 2}, s{S_KA + 2}, s{S_T3}")
    e.salu(f"s_addc_u32 s{S_KA + 3}, s{S_KA + 3}, 0")
    srd(e, S_K, S_KA + 2, S_KA + 3, 262144)
    e.salu(f"s_add_u32 s{S_KA + 4}, s{S_KA + 4}, s{S_T3}")
    e.salu(f"s_addc_u32 s{S_KA + 5}, s{S_KA + 5}, 0")
    srd(e, S_V, S_KA + 4, S_KA + 5, 262144)
    e.salu(f"s_lshl_b32 s{S_T3}, s{S_T0}, 10")
    e.salu(f"s_add_u32 s{S_KA + 6}, s{S_KA + 6}, s{S_T3}")
    e.salu(f"s_addc_u32 s{S_KA + 7}, s{S_KA + 7}, 0")
    srd(e, S_WQ, S_KA + 6, S_KA + 7, 448 * 8192)
    e.salu(f"s_sub_u32 s{S_WQ + 2}, s{S_WQ + 2}, s{S_T3}")
    e.salu(f"s_mul_i32 s{S_T3}, s{S_T0}, 458752")
    e.salu(f"s_add_u32 s{S_KA + 8}, s{S_KA + 8}, s{S_T3}")
    e.salu(f"s_addc_u32 s{S_KA + 9}, s{S_KA + 9}, 0")
    srd(e, S_WO, S_KA + 8, S_KA + 9, 458752)
    e.salu(f"s_mul_i32 s{S_T3}, s{S_T1}, 917504")
    e.salu(f"s_add_u32 s84, s{S_KA + 20}, s{S_T3}")
    e.salu(f"s_addc_u32 s85, s{S_KA + 21}, 0")
    srd(e, S_G, 84, 85, 917504)
    srd(e, S_OUT, 80, 81, 3670016)
    srd(e, S_DBG, 82, 83, 256)
    e.salu(f"s_lshl_b32 s{S_BB4}, s{S_T1}, 2")
    e.salu(f"s_mul_i32 s{S_OOFF}, s{S_T2}, 229376")
    e.salu(f"s_lshr_b32 s{S_T3}, s{S_T1}, 4")
    e.salu(f"s_mul_i32 s{S_T3}, s{S_T3}, 896")
    e.salu(f"s_add_u32 s{S_OOFF}, s{S_OOFF}, s{S_T3}")
    e.salu(f"s_mul_i32 s{S_T3}, s2, 114688")
    e.salu(f"s_add_u32 s{S_KA + 20}, s{S_KA + 20}, s{S_T3}")
    e.salu(f"s_addc_u32 s{S_KA + 21}, s{S_KA + 21}, 0")
    srd(e, S_P, S_KA + 20, S_KA + 21, 114688)
    c = math.log2(math.e) / 16.0
    import struct
    cbits = struct.unpack("<I", struct.pack("<f", c))[0]
    ncbits = struct.unpack("<I", struct.pack("<f", -c))[0]
    e.salu(f"s_mov_b32 s{S_C}, {cbits:#x}")
    e.salu(f"s_mov_b32 s{S_NC}, {ncbits:#x}")
    e.salu(f"s_mov_b32 s{S_THR}, 0x41000000")

    stamp(e, 0)
    L = V_LANE
    t1, t2, t3, t4 = 1, 2, 3, 4

    def V(s, d, *src):
        e.valu(s, dst=[d], src=list(src))

    V(f"v_bfe_u32 v{t1}, v{L}, 4, 1", t1, L)
    V(f"v_lshlrev_b32 v5, 5, v{t1}", 5, t1)
    V(f"v_and_b32 v{t1}, 1, v{L}", t1, L)
    V(f"v_lshlrev_b32 v{t1}, 4, v{t1}", t1, t1)
    V(f"v_add_u32 v5, v5, v{t1}", 5, 5, t1)
    V(f"v_bfe_u32 v{t1}, v{L}, 1, 1", t1, L)
    V(f"v_lshlrev_b32 v{t1}, 3, v{t1}", t1, t1)
    V(f"v_add_u32 v5, v5, v{t1}", 5, 5, t1)
    V(f"v_lshrrev_b32 v6, 5, v{L}", 6, L)
    V(f"v_bfe_u32 v7, v{L}, 2, 2", 7, L)
    V(f"v_lshlrev_b32 v{V_DLIN}, 4, v{L}", V_DLIN, L)
    V(f"v_and_b32 v{t1}, 31, v{L}", t1, L)
    V(f"v_xor_b32 v{t1}, v{t1}, v6", t1, t1, 6)
    V(f"v_lshlrev_b32 v{t1}, 4, v{t1}", t1, t1)
    V(f"v_lshl_add_u32 v{V_DK}, v6, 9, v{t1}", V_DK, 6, t1)
    V(f"v_lshl_add_u32 v{t1}, v6, 3, v7", t1, 6, 7)
    V(f"v_mul_u32_u24 v{t1}, 1088, v{t1}", t1, t1)
    V(f"v_add_u32 v{t1}, v{t1}, v5", t1, t1, 5)
    e.salu(f"s_lshl_b32 s{S_T3}, s{S_HH}, 9")
    V(f"v_add_u32 v{V_PATA}, s{S_T3}, v{t1}", V_PATA, t1)
    V(f"v_bfe_u32 v{t1}, v{L}, 4, 2", t1, L)
    V(f"v_and_b32 v{t2}, 3, v{L}", t2, L)
    V(f"v_xor_b32 v{t1}, v{t1}, v{t2}", t1, t1, t2)
    V(f"v_lshlrev_b32 v{t1}, 4, v{t1}", t1, t1)
    V(f"v_lshrrev_b32 v{t2}, 2, v{L}", t2, L)
    V(f"v_mul_u32_u24 v{t2}, 896, v{t2}", t2, t2)
    V(f"v_add_u32 v{V_XOFF}, v{t1}, v{t2}", V_XOFF, t1, t2)
    V(f"v_and_b32 v{t1}, 31, v{L}", t1, L)
    e.salu(f"s_lshl_b32 s{S_T3}, s{S_QB}, 5")
    V(f"v_add_u32 v{t1}, s{S_T3}, v{t1}", t1, t1)
    V(f"v_lshlrev_b32 v{t1}, 6, v{t1}", t1, t1)
    V(f"v_bfe_u32 v{t2}, v{L}, 2, 2", t2, L)
    V(f"v_xor_b32 v{t2}, v{t2}, v6", t2, t2, 6)
    V(f"v_lshl_add_u32 v{t1}, v{t2}, 4, v{t1}", t1, t2, t1)
    V(f"v_add_u32 v{V_PATB}, {RING}, v{t1}", V_PATB, t1)

    e.salu(f"s_mul_i32 s{S_WM0A}, s{S_W}, {2 * 1088}")
    e.salu(f"s_lshl_b32 s{S_OFFA}, s{S_W}, 14")
    e.salu(f"s_mov_b32 s{S_DM}, 0")
    e.salu(f"s_mov_b32 s{S_RD}, 0")
    e.salu(f"s_mul_i32 s{S_XOFF}, s{S_W}, {16 * 896}")
    e.salu(f"s_lshl_b32 s{S_EXW}, s{S_W}, 10")
    e.salu(f"s_add_u32 s{S_EXW}, s{S_EXW}, {RING}")
    e.salu(f"s_mov_b32 s{S_EXR}, 0")
    e.salu(f"s_mov_b32 s{S_POFF}, 0")

    def adv_x(sr):
        e.salu(f"s_add_u32 s{sr}, s{sr}, 8192")
        e.salu(f"s_cmp_ge_u32 s{sr}, 24576")
        e.salu(f"s_cselect_b32 s{sr}, 0, s{sr}")

    def xdma(tag):
        e.salu(f"s_add_u32 s{S_T0}, s{S_EXW}, s{S_POFF}")
        dma(e, V_XOFF, S_X, S_XOFF, (S_T0, 0), tag)
        e.salu(f"s_add_u32 s{S_XOFF}, s{S_XOFF}, 64")
        adv_x(S_POFF)

    def xread(xi, G):
        V(f"v_add_u32 v{V_RDB}, s{S_EXR}, v{V_PATB}", V_RDB, V_PATB)
        e.ds(f"ds_read_b128 {vr(V_X + 4 * xi, 4)}, v{V_RDB}", ("x", 2 * G), dst=range(V_X + 4 * xi, V_X + 4 * xi + 4))
        V(f"v_xor_b32 v{V_RDB}, 32, v{V_RDB}", V_RDB, V_RDB)
        e.ds(f"ds_read_b128 {vr(V_X + 4 * xi + 4, 4)}, v{V_RDB}", ("x", 2 * G + 1),
             dst=range(V_X + 4 * xi + 4, V_X + 4 * xi + 8))
        adv_x(S_EXR)

    def run(lst):
        for f in lst:
            f()
    run(dma_wq_pair(e, ("D", 0)))
    xdma(("X", 0))
    run(dma_wq_pair(e, ("D", 1)))
    xdma(("X", 1))
    run(dma_wq_pair(e, ("D", 2)))
    for i in range(128):
        V(f"v_mov_b32 v{V_O + i}, 0", V_O + i)
    V(f"v_add_u32 v{V_RDA}, s{S_RD}, v{V_PATA}", V_RDA, V_PATA)
    e.wait_vm(("X", 0))
    e.salu("s_barrier")

    stamp(e, 1)
    xread(0, 0)
    e.wait_lds(("x", 1))
    fs = FragStream(e)
    dq = []
    dq_state = {"sp": 2, "cnt": 0}

    def defer(lst, sp):
        assert not dq, "previous DMA pieces still pending"
        dq.extend(lst)
        dq_state["sp"] = sp
        dq_state["cnt"] = 0

    def p1_frags(G):
        for e2 in range(2):
            for ct in range(8):
                off = e2 * TILE + ct * 64
                fs.push(rd_tr(e, V_RDA, off, off + 4 * 1088))

    def next_rd_a():
        adv_slot(e, S_RD)
        V(f"v_add_u32 v{V_RDA}, s{S_RD}, v{V_PATA}", V_RDA, V_PATA)

    mf_idx = [0]

    def consume_mfma(d, b, c):
        i = mf_idx[0]
        assert i < fs.issued
        e.wait_lds(("fr", i))
        e.mfma(d, fs.buf(i), b, c)
        mf_idx[0] += 1
        fs.issue_next()
        if dq:
            dq_state["cnt"] += 1
            if dq_state["cnt"] >= dq_state["sp"]:
                dq_state["cnt"] = 0
                dq.pop(0)()

    def p1_step(G, xi, issue, push_next):
        for e2 in range(2):
            ks = 2 * G + e2
            e.wait_lds(("x", ks))
            for ct in range(8):
                consume_mfma(V_O + 16 * ct, V_X + 4 * (xi + e2), V_O + 16 * ct)
                if e2 == 0 and ct == 7:
                    if G + 1 <= 13:
                        e.wait_vm(("X", G + 1))
                    e.wait_vm(("D", G + 1))
                    e.salu("s_barrier")
                    if G + 1 <= 13:
                        xread(2 - xi, G + 1)
                    pieces = []
                    if G + 2 <= 13:
                        pieces.append(lambda: xdma(("X", G + 2)))
                    pieces += issue()
                    defer(pieces, SP1)
                    push_next()

    p1_frags(0)
    for _ in range(DPF):
        fs.issue_next()

    def push_p1(G):
        def f():
            fs.push(("pre", next_rd_a))
            p1_frags(G)
        return f

    def p1_body(i):
        G = 2 * i
        p1_step(G, 0, lambda: dma_wq_pair(e, ("D", G + 3)), push_p1(G + 1))
        p1_step(G + 1, 2, lambda: dma_wq_pair(e, ("D", G + 4)), push_p1(G + 2))

    e.loop("L_p1", 5, p1_body, f"s{S_CNT}")

    def kv_setup():
        e.salu(f"s_mul_i32 s{S_WM0A}, s{S_W}, {2 * 1056}")
        e.salu(f"s_mul_i32 s{S_WM0B}, s{S_W}, {2 * 1088}")
        e.salu(f"s_add_u32 s{S_WM0B}, s{S_WM0B}, {TILE}")
        e.salu(f"s_lshr_b32 s{S_OFFA}, s2, 4")
        e.salu(f"s_xor_b32 s{S_OFFA}, s{S_OFFA}, s2")
        e.salu(f"s_and_b32 s{S_OFFA}, s{S_OFFA}, {ROTMASK}")
        e.salu(f"s_lshl_b32 s{S_OFFA}, s{S_OFFA}, 14")
        e.salu(f"s_lshl_b32 s{S_OFFB}, s{S_W}, 11")
        e.salu(f"s_add_u32 s{S_OFFA}, s{S_OFFA}, s{S_OFFB}")
        e.salu(f"s_mov_b32 s{S_OFFB}, s{S_OFFA}")

    p1_step(10, 0, lambda: dma_wq_pair(e, ("D", 13)), push_p1(11))

    def iss14():
        kv_setup()
        return dma_kv_pair(e, ("D", 14), k=True, v=False)
    p1_step(11, 2, iss14, push_p1(12))
    p1_step(12, 0, lambda: dma_kv_pair(e, ("D", 15)), push_p1(13))

    def kv_patterns():
        a, b2, c2 = V_T2, V_T3, V_TMP
        V(f"v_and_b32 v{a}, 7, v{L}", a, L)
        V(f"v_bfe_u32 v{b2}, v{L}, 4, 1", b2, L)
        V(f"v_lshl_add_u32 v{a}, v{b2}, 3, v{a}", a, b2, a)
        V(f"v_mul_u32_u24 v{a}, 1056, v{a}", a, a)
        V(f"v_bfe_u32 v{b2}, v{L}, 3, 1", b2, L)
        V(f"v_lshl_add_u32 v{a}, v{b2}, 9, v{a}", a, b2, a)
        V(f"v_lshrrev_b32 v{c2}, 5, v{L}", c2, L)
        V(f"v_xor_b32 v{b2}, v{b2}, v{c2}", b2, b2, c2)
        V(f"v_lshl_add_u32 v{V_PATA}, v{b2}, 4, v{a}", V_PATA, b2, a)
        V(f"v_bfe_u32 v{a}, v{L}, 2, 2", a, L)
        V(f"v_lshl_add_u32 v{a}, v{c2}, 2, v{a}", a, c2, a)
        V(f"v_mul_u32_u24 v{a}, 1088, v{a}", a, a)
        V(f"v_bfe_u32 v{b2}, v{L}, 4, 1", b2, L)
        V(f"v_lshl_add_u32 v{a}, v{b2}, 5, v{a}", a, b2, a)
        V(f"v_and_b32 v{b2}, 1, v{L}", b2, L)
        V(f"v_lshl_add_u32 v{a}, v{b2}, 4, v{a}", a, b2, a)
        V(f"v_bfe_u32 v{b2}, v{L}, 1, 1", b2, L)
        V(f"v_lshl_add_u32 v{a}, v{b2}, 3, v{a}", a, b2, a)
        V(f"v_add_u32 v{V_PATB}, {TILE}, v{a}", V_PATB, a)

    def k_frags():
        for ks in range(16):
            fs.push(rd_128(e, V_RDA, ks * 32))

    def v_frags(jmajor=False):
        order = [(ks2, j) for j in range(8) for ks2 in range(2)] if jmajor else \
                [(ks2, j) for ks2 in range(2) for j in range(8)]
        for ks2, j in order:
            off = ks2 * 8 * 1088 + j * 64
            fs.push(rd_tr(e, V_RDB, off, off + 512))

    def next_rd_kv():
        adv_slot(e, S_RD)
        V(f"v_add_u32 v{V_RDA}, s{S_RD}, v{V_PATA}", V_RDA, V_PATA)
        V(f"v_add_u32 v{V_RDB}, s{S_RD}, v{V_PATB}", V_RDB, V_PATB)

    def push_k0():
        def pre():
            kv_patterns()
            next_rd_kv()
        fs.push(("pre", pre))
        k_frags()

    p1_step(13, 2, lambda: dma_kv_pair(e, ("D", 16)), push_k0)

    stamp(e, 2)
    for i in range(64):
        e.valu(f"v_cvt_pk_bf16_f32 v{V_Q + i}, v{2 * i}, v{2 * i + 1}", dst=[V_Q + i], src=[2 * i, 2 * i + 1])
    V(f"v_mov_b32 v{V_LSUM}, 0", V_LSUM)

    def qk_stage(sn, fillers, mid=None):
        nf = len(fillers)
        k = 0
        for ks in range(16):
            consume_mfma(sn, V_Q + 4 * ks, sn if ks else None)
            tgt = (nf * (ks + 1) + 15) // 16
            while k < tgt:
                fillers[k]()
                k += 1
            if mid is not None and ks == mid[0]:
                mid[1]()

    def exp_fillers(sc):
        fl = []
        for p in range(8):
            a, b = sc + 2 * p, sc + 2 * p + 1
            fl.append(lambda a=a: e.valu(f"v_fma_f32 v{a}, v{a}, s{S_C}, v{V_NEGM}", dst=[a], src=[a, V_NEGM]))
            fl.append(lambda b=b: e.valu(f"v_fma_f32 v{b}, v{b}, s{S_C}, v{V_NEGM}", dst=[b], src=[b, V_NEGM]))
            fl.append(lambda a=a: e.valu(f"v_exp_f32 v{a}, v{a}", dst=[a], src=[a], trans=True))
            fl.append(lambda b=b: e.valu(f"v_exp_f32 v{b}, v{b}", dst=[b], src=[b], trans=True))
            fl.append(lambda a=a: e.valu(f"v_add_f32 v{V_LSUM}, v{V_LSUM}, v{a}", dst=[V_LSUM], src=[V_LSUM, a]))
            fl.append(lambda b=b: e.valu(f"v_add_f32 v{V_LSUM}, v{V_LSUM}, v{b}", dst=[V_LSUM], src=[V_LSUM, b]))
            fl.append(lambda a=a, b=b, p=p: e.valu(f"v_cvt_pk_bf16_f32 v{sc + p}, v{a}, v{b}", dst=[sc + p], src=[a, b]))
        return fl

    def max_fillers(sn):
        fl = []
        fl.append(lambda: e.valu(f"v_max3_f32 v{V_TMAX}, v{sn}, v{sn + 1}, v{sn + 2}", dst=[V_TMAX], src=[sn, sn + 1, sn + 2]))
        for i in range(3, 15, 2):
            fl.append(lambda i=i: e.valu(f"v_max3_f32 v{V_TMAX}, v{V_TMAX}, v{sn + i}, v{sn + i + 1}",
                                         dst=[V_TMAX], src=[V_TMAX, sn + i, sn + i + 1]))
        fl.append(lambda: e.valu(f"v_max_f32 v{V_TMAX}, v{V_TMAX}, v{sn + 15}", dst=[V_TMAX], src=[V_TMAX, sn + 15]))
        return fl

    def cross_half(op, reg, tmp):
        V(f"v_mov_b32 v{tmp}, v{reg}", tmp, reg)
        e.nop(2)
        e.valu(f"v_permlane32_swap_b32 v{reg}, v{tmp}", dst=[reg, tmp], src=[reg, tmp])
        V(f"{op} v{reg}, v{reg}, v{tmp}", reg, reg, tmp)

    def mid14():
        e.wait_vm(("D", 15))
        e.salu("s_barrier")
        defer(dma_kv_pair(e, ("D", 17)), SP2)
        fs.push(("pre", next_rd_kv))
        k_frags()
        v_frags()
    zf = [(lambda i=i: V(f"v_mov_b32 v{V_O + i}, 0", V_O + i)) for i in range(128)]
    qk_stage(V_S0, zf, mid=(3, mid14))
    for f in max_fillers(V_S0):
        f()
    cross_half("v_max_f32", V_TMAX, V_TMP)
    V(f"v_mul_f32 v{V_NEGM}, s{S_NC}, v{V_TMAX}", V_NEGM, V_TMAX)

    rare = []

    def p2_step(t, issue, push_next=None, tagname=""):
        G = 15 + t
        sc = V_S0 if t % 2 == 0 else V_S1
        sn = V_S1 if t % 2 == 0 else V_S0
        fl = exp_fillers(sc)
        qk_stage(sn, fl)
        mx = max_fillers(sn)
        k = 0
        for idx in range(16):
            ks2, j = idx >> 3, idx & 7
            consume_mfma(V_O + 16 * j, sc + 4 * ks2, V_O + 16 * j)
            if idx == 3:
                e.wait_vm(("D", G + 1))
                e.salu("s_barrier")
                defer(issue(), SP2)
                push_next()
            if idx >= 5 and k < len(mx):
                mx[k]()
                k += 1
                if k < len(mx):
                    mx[k]()
                    k += 1
        assert k == len(mx)
        e.valu(f"v_fma_f32 v{V_TMP}, v{V_TMAX}, s{S_C}, v{V_NEGM}", dst=[V_TMP], src=[V_TMAX, V_NEGM])
        e.valu(f"v_cmp_lt_f32 vcc, s{S_THR}, v{V_TMP}", dst=[], src=[V_TMP])
        e.salu("s_nop 3")
        e.salu(f"s_cbranch_vccnz L_rare_{tagname}")
        e.label(f"L_back_{tagname}")
        rare.append(tagname)

    def push_kv():
        fs.push(("pre", next_rd_kv))
        k_frags()
        v_frags()

    def p2_body(i):
        t = 2 * i
        p2_step(t, lambda: dma_kv_pair(e, ("D", 15 + t + 3)), push_next=push_kv, tagname="a")
        p2_step(t + 1, lambda: dma_kv_pair(e, ("D", 15 + t + 4)), push_next=push_kv, tagname="b")

    e.loop("L_p2", 6, p2_body, f"s{S_CNT}")
    rare[:] = ["a", "b"]

    p2_step(12, lambda: dma_kv_pair(e, ("D", 30), k=False, v=True), push_next=push_kv, tagname="c")

    V_DWO = V_XOFF

    def wo_setup():
        a, b2 = V_T3, V_T2
        V(f"v_bfe_u32 v{a}, v{L}, 4, 1", a, L)
        V(f"v_lshlrev_b32 v{a}, 2, v{a}", a, a)
        V(f"v_and_b32 v{b2}, 7, v{L}", b2, L)
        V(f"v_xor_b32 v{a}, v{a}, v{b2}", a, a, b2)
        V(f"v_lshlrev_b32 v{a}, 4, v{a}", a, a)
        V(f"v_lshrrev_b32 v{b2}, 3, v{L}", b2, L)
        V(f"v_mul_u32_u24 v{b2}, 896, v{b2}", b2, b2)
        V(f"v_add_u32 v{V_DWO}, v{a}, v{b2}", V_DWO, a, b2)
        e.salu(f"s_lshl_b32 s{S_WM0C}, s{S_W}, 11")
        e.salu(f"s_mul_i32 s{S_XOFF}, s{S_W}, {16 * 896}")

    def iss_wo0():
        wo_setup()
        return dma_wo_pair(e, ("D", 31), 0, V_DWO)
    p2_step(13, iss_wo0, push_next=push_kv, tagname="d")

    def push_v_only():
        fs.push(("pre", next_rd_kv))
        v_frags(jmajor=True)
    p2_step(14, lambda: dma_wo_pair(e, ("D", 32), 1, V_DWO), push_next=push_v_only, tagname="e")

    V_OF = 128
    ACC = [(V_S0, V_S1), (0, 16)]
    V_R = 32
    V_PK = 48
    V_RDK, V_RDS = V_RDA, V_RDB
    V_EXW = [56, 57, 58, 59]
    V_EXR = [60, 61, 62, 63]
    V_STO = V_DLIN

    def wo_patterns():
        a, b2 = V_T2, V_T3
        V(f"v_lshrrev_b32 v{a}, 5, v{L}", a, L)
        V(f"v_bfe_u32 v{b2}, v{L}, 2, 2", b2, L)
        V(f"v_lshl_add_u32 v{a}, v{a}, 3, v{b2}", a, a, b2)
        V(f"v_lshlrev_b32 v{a}, 7, v{a}", a, a)
        V(f"v_bfe_u32 v{b2}, v{L}, 3, 1", b2, L)
        V(f"v_xor_b32 v{b2}, s{S_HH}, v{b2}", b2, b2)
        V(f"v_lshl_add_u32 v{a}, v{b2}, 6, v{a}", a, b2, a)
        V(f"v_bfe_u32 v{b2}, v{L}, 4, 1", b2, L)
        V(f"v_lshl_add_u32 v{a}, v{b2}, 5, v{a}", a, b2, a)
        V(f"v_and_b32 v{b2}, 1, v{L}", b2, L)
        V(f"v_lshl_add_u32 v{a}, v{b2}, 4, v{a}", a, b2, a)
        V(f"v_bfe_u32 v{b2}, v{L}, 1, 1", b2, L)
        V(f"v_lshl_add_u32 v{a}, v{b2}, 3, v{a}", a, b2, a)
        e.salu(f"s_mul_i32 s{S_T3}, s{S_HH}, {TILE}")
        V(f"v_add_u32 v{V_PATA}, s{S_T3}, v{a}", V_PATA, a)

    def next_rd3():
        adv_slot(e, S_RD)
        V(f"v_add_u32 v{V_RDK}, s{S_RD}, v{V_PATA}", V_RDK, V_PATA)
        V(f"v_xor_b32 v{V_RDS}, 64, v{V_RDK}", V_RDS, V_RDK)

    def p3_frags():
        for kk in range(8):
            for which in (V_RDS, V_RDK):
                off = kk * 2048
                fs.push(rd_tr(e, which, off, off + 512))

    def push_p3_first():
        def pre():
            wo_patterns()
            next_rd3()
        fs.push(("pre", pre))
        p3_frags()

    def push_p3():
        fs.push(("pre", next_rd3))
        p3_frags()

    def norm_fillers(j):
        fl = []
        for i in range(16):
            r = 16 * j + i
            fl.append(lambda r=r: V(f"v_mul_f32 v{r}, v{r}, v{V_LSUM}", r, r, V_LSUM))
        for i in range(8):
            r = 16 * j + 2 * i
            fl.append(lambda r=r, i=i: e.valu(f"v_cvt_pk_bf16_f32 v{V_OF + 8 * j + i}, v{r}, v{r + 1}",
                                              dst=[V_OF + 8 * j + i], src=[r, r + 1]))
        return fl

    sc = V_S1
    for f in exp_fillers(sc):
        f()
    cross_half("v_add_f32", V_LSUM, V_TMP)
    e.valu(f"v_rcp_f32 v{V_LSUM}, v{V_LSUM}", dst=[V_LSUM], src=[V_LSUM], trans=True)
    pend = []
    for idx in range(16):
        j, ks2 = idx >> 1, idx & 1
        consume_mfma(V_O + 16 * j, sc + 4 * ks2, V_O + 16 * j)
        if idx == 3:
            e.wait_vm(("D", 31))
            e.salu("s_barrier")
            defer(dma_wo_pair(e, ("D", 33), 2, V_DWO), SP2)
            push_p3_first()
        if ks2 == 1 and j >= 2:
            pend += norm_fillers(j - 2)
        for _ in range(12):
            if pend:
                pend.pop(0)()
    pend += norm_fillers(6) + norm_fillers(7)
    stamp(e, 3)
    stamp(e, 4)

    V_SPK = 56
    V_EXW1, V_EXR1, V_OUTO, V_FLG, V_AT = V_T2, V_T3, V_TMAX, V_TMP, V_NEGM
    V_LD = 64
    FLAGS = RING + 16384

    def p3_setup():
        e.salu(f"s_lshl_b32 s{S_T0}, s{S_W}, 11")
        e.salu(f"s_add_u32 s{S_T0}, s{S_T0}, {RING}")
        V(f"v_add_u32 v{V_EXW1}, s{S_T0}, v{V_DLIN}", V_EXW1, V_DLIN)
        e.salu(f"s_xor_b32 s{S_T0}, s{S_W}, 4")
        e.salu(f"s_lshl_b32 s{S_T0}, s{S_T0}, 11")
        e.salu(f"s_add_u32 s{S_T0}, s{S_T0}, {RING}")
        V(f"v_add_u32 v{V_EXR1}, s{S_T0}, v{V_DLIN}", V_EXR1, V_DLIN)
        e.salu(f"s_mul_i32 s{S_POFF}, s{S_W}, {7 * 2048}")
        e.salu(f"s_mov_b32 s{S_LOFF}, s{S_POFF}")
        V(f"v_and_b32 v{V_OUTO}, 31, v{L}", V_OUTO, L)
        e.salu(f"s_lshl_b32 s{S_T0}, s{S_QB}, 5")
        V(f"v_add_u32 v{V_OUTO}, s{S_T0}, v{V_OUTO}", V_OUTO, V_OUTO)
        V(f"v_mul_u32_u24 v{V_OUTO}, 1792, v{V_OUTO}", V_OUTO, V_OUTO)
        V(f"v_lshrrev_b32 v{V_FLG}, 5, v{L}", V_FLG, L)
        V(f"v_lshl_add_u32 v{V_OUTO}, v{V_FLG}, 4, v{V_OUTO}", V_OUTO, V_FLG, V_OUTO)
        e.salu(f"s_lshl_b32 s{S_T0}, s{S_HH}, 6")
        V(f"v_add_u32 v{V_OUTO}, s{S_T0}, v{V_OUTO}", V_OUTO, V_OUTO)
        e.salu(f"s_mov_b32 s{S_C}, 0xffff0000")

    def send_fillers(s_):
        acc_s = ACC[s_ & 1][1]
        fl = []
        for i in range(8):
            fl.append(lambda i=i: e.valu(f"v_cvt_pk_bf16_f32 v{V_SPK + i}, v{acc_s + 2 * i}, v{acc_s + 2 * i + 1}",
                                         dst=[V_SPK + i], src=[acc_s + 2 * i, acc_s + 2 * i + 1]))
        for i in range(2):
            fl.append(lambda i=i: e.ds(f"ds_write_b128 v{V_EXW1}, {vr(V_SPK + 4 * i, 4)} offset:{1024 * i}", ("exw", s_),
                                       src=range(V_SPK + 4 * i, V_SPK + 4 * i + 4)))
        return fl

    def recv_reads(s_):
        for i in range(2):
            e.ds(f"ds_read_b128 {vr(V_PK + 4 * i, 4)}, v{V_EXR1} offset:{1024 * i}", ("exr", s_),
                 dst=range(V_PK + 4 * i, V_PK + 4 * i + 4))

    def fin_fillers(s_):
        acc_k = ACC[s_ & 1][0]
        fl = [lambda: e.wait_lds(("exr", s_))]
        for i in range(8):
            fl.append(lambda i=i: V(f"v_lshlrev_b32 v{V_R + 2 * i}, 16, v{V_PK + i}", V_R + 2 * i, V_PK + i))
            fl.append(lambda i=i: V(f"v_and_b32 v{V_R + 2 * i + 1}, s{S_C}, v{V_PK + i}", V_R + 2 * i + 1, V_PK + i))
        for i in range(16):
            fl.append(lambda i=i: V(f"v_add_f32 v{V_R + i}, v{V_R + i}, v{acc_k + i}", V_R + i, V_R + i, acc_k + i))
        for i in range(8):
            fl.append(lambda i=i: e.valu(f"v_cvt_pk_bf16_f32 v{V_PK + i}, v{V_R + 2 * i}, v{V_R + 2 * i + 1}",
                                         dst=[V_PK + i], src=[V_R + 2 * i, V_R + 2 * i + 1]))

        def st():
            for q4 in range(2):
                rg = V_PK + 4 * q4
                e.vmem(f"buffer_store_dwordx4 {vr(rg, 4)}, v{V_STO}, s[{S_P}:{S_P + 3}], s{S_POFF} offen offset:{q4 * 1024} sc1",
                       ("st", s_), src=range(rg, rg + 4))
            e.salu(f"s_add_u32 s{S_POFF}, s{S_POFF}, 2048")
            e.nop(1)
        fl.append(st)
        return fl

    def atomic_issue(s_):
        e.salu(f"s_cmp_lg_u32 s{S_W}, 0")
        e.salu(f"s_cbranch_scc1 L_at_{s_}")
        e.cond_begin()
        e.salu("s_mov_b64 exec, 1")
        V(f"v_mov_b32 v{V_AT}, {1 << (4 * s_)}", V_AT)
        V(f"v_mov_b32 v{V_FLG}, 0", V_FLG)
        e.vmem(f"buffer_atomic_add v{V_AT}, v{V_FLG}, s[{S_DBG}:{S_DBG + 3}], s{S_BB4} offen sc0 sc1", ("at", s_), cond=True)
        e.salu("s_mov_b64 exec, -1")
        e.cond_end()
        e.label(f"L_at_{s_}")

    def flag_write(s_):
        e.salu(f"s_cmp_lg_u32 s{S_W}, 0")
        e.salu(f"s_cbranch_scc1 L_fw_{s_}")
        e.cond_begin()
        e.wait_vm(("at", s_))
        e.salu("s_mov_b64 exec, 1")
        V(f"v_mov_b32 v{V_FLG}, {FLAGS + 4 * s_}", V_FLG)
        e.raw(f"ds_write_b32 v{V_FLG}, v{V_AT}")
        e.salu("s_mov_b64 exec, -1")
        e.raw("s_waitcnt lgkmcnt(0)")
        e.cond_end()
        e.label(f"L_fw_{s_}")

    def flag_read(s_):
        V(f"v_mov_b32 v{V_FLG}, {FLAGS + 4 * s_}", V_FLG)
        e.ds(f"ds_read_b32 v{V_FLG}, v{V_FLG}", ("fl", s_), dst=[V_FLG])

    def red_issue(s_):
        e.wait_lds(("fl", s_))
        e.raw(f"v_readfirstlane_b32 s{S_FL}, v{V_FLG}")
        e.salu("s_nop 3")
        e.salu(f"s_bfe_u32 s{S_FL}, s{S_FL}, {(4 << 16) | (4 * s_)}")
        e.salu(f"s_cmp_lg_u32 s{S_FL}, 7")
        e.salu(f"s_cbranch_scc1 L_ri_{s_}")
        e.cond_begin()
        for h in range(8):
            e.salu(f"s_add_u32 s{S_T0}, s{S_LOFF}, {h * 114688}")
            for p2 in range(2):
                rg = V_LD + 8 * h + 4 * p2
                e.vmem(f"buffer_load_dwordx4 {vr(rg, 4)}, v{V_STO}, s[{S_G}:{S_G + 3}], s{S_T0} offen offset:{1024 * p2} sc1",
                       ("ld", s_, h), dst=range(rg, rg + 4), cond=True)
        e.cond_end()
        e.label(f"L_ri_{s_}")
        e.salu(f"s_add_u32 s{S_LOFF}, s{S_LOFF}, 2048")

    def red_finish(s_):
        e.salu(f"s_cmp_lg_u32 s{S_FL}, 7")
        e.salu(f"s_cbranch_scc1 L_rf_{s_}")
        e.cond_begin()
        for h in range(8):
            e.wait_vm(("ld", s_, h), extra=2 * (7 - h))
            for i in range(8):
                r = V_LD + 8 * h + i
                if h == 0:
                    V(f"v_lshlrev_b32 v{V_R + 2 * i}, 16, v{r}", V_R + 2 * i, r)
                    V(f"v_and_b32 v{V_R + 2 * i + 1}, s{S_C}, v{r}", V_R + 2 * i + 1, r)
                else:
                    V(f"v_lshlrev_b32 v{V_PK}, 16, v{r}", V_PK, r)
                    V(f"v_and_b32 v{V_PK + 1}, s{S_C}, v{r}", V_PK + 1, r)
                    V(f"v_add_f32 v{V_R + 2 * i}, v{V_R + 2 * i}, v{V_PK}", V_R + 2 * i, V_R + 2 * i, V_PK)
                    V(f"v_add_f32 v{V_R + 2 * i + 1}, v{V_R + 2 * i + 1}, v{V_PK + 1}", V_R + 2 * i + 1, V_R + 2 * i + 1, V_PK + 1)
        for i in range(8):
            e.valu(f"v_cvt_pk_bf16_f32 v{V_PK + i}, v{V_R + 2 * i}, v{V_R + 2 * i + 1}",
                   dst=[V_PK + i], src=[V_R + 2 * i, V_R + 2 * i + 1])
        e.salu(f"s_add_u32 s{S_T0}, s{S_OOFF}, {128 * s_}")
        for p2 in range(2):
            rg = V_PK + 4 * p2
            e.vmem(f"buffer_store_dwordx4 {vr(rg, 4)}, v{V_OUTO}, s[{S_OUT}:{S_OUT + 3}], s{S_T0} offen offset:{32 * p2}",
                   ("out", s_), src=range(rg, rg + 4), cond=True)
        e.nop(2)
        e.cond_end()
        e.label(f"L_rf_{s_}")

    def p3_step(p, issue, push, extra=None):
        G = 31 + p
        s_, i = p >> 1, p & 1
        acc_k, acc_s = ACC[s_ & 1]
        ext = list(extra) if extra else []
        pre = []
        post = []
        if i == 0 and s_ >= 1:
            pre += send_fillers(s_ - 1)
        for idx in range(16):
            kk, which = idx >> 1, idx & 1
            acc = acc_s if which == 0 else acc_k
            first = (i == 0 and kk == 0)
            consume_mfma(acc, V_OF + 4 * (8 * i + kk), None if first else acc)
            if idx >= 1:
                for _ in range(6):
                    if pre:
                        pre.pop(0)()
                    elif ext:
                        ext.pop(0)()
                        if ext:
                            ext.pop(0)()
                    elif post and idx > BAR3 + 2:
                        post.pop(0)()
            if idx == 1 and i == 1 and s_ >= 2:
                red_finish(s_ - 2)
            if idx == BAR3:
                assert not pre
                if i == 0 and s_ >= 1:
                    e.wait_lds(("exw", s_ - 1))
                if i == 0 and s_ >= 2:
                    flag_write(s_ - 2)
                if i == 1 and s_ >= 1:
                    e.wait_vm(("st", s_ - 1))
                e.wait_vm(("D", G + 1))
                e.salu("s_barrier")
                if i == 0 and s_ >= 1:
                    recv_reads(s_ - 1)
                    post = fin_fillers(s_ - 1)
                if i == 0 and s_ >= 2:
                    flag_read(s_ - 2)
                    post.append(lambda: red_issue(s_ - 2))
                if i == 1 and s_ >= 1:
                    atomic_issue(s_ - 1)
                defer(issue(), SP3)
                if push:
                    push_p3()
        assert not post and not pre and not ext

    p3_setup()

    def iss3(p):
        return (lambda: dma_wo_pair(e, ("D", 31 + p), p, V_DWO)) if p <= 13 else (lambda: [])

    p3_step(0, iss3(3), True, extra=pend)
    for p in range(1, 13):
        p3_step(p, iss3(p + 3), True)
    p3_step(13, iss3(16), False)
    for f in send_fillers(6):
        f()
    e.wait_lds(("exw", 6))
    flag_write(5)
    e.salu("s_barrier")
    recv_reads(6)
    flag_read(5)
    for f in fin_fillers(6):
        f()
    red_issue(5)
    e.wait_vm(("st", 6))
    e.salu("s_barrier")
    atomic_issue(6)
    red_finish(5)
    flag_write(6)
    e.salu("s_barrier")
    flag_read(6)
    red_issue(6)
    red_finish(6)
    stamp(e, 5)
    stamp_flush(e, 8)
    e.label("L_attn_exit")
    e.salu("s_endpgm")

    for tg in rare:
        e.label(f"L_rare_{tg}")
        e.raw("s_nop 15", 16)
        e.raw(f"v_mov_b32 v{V_TMP}, v{V_TMAX}")
        e.raw("s_nop 1", 2)
        e.raw(f"v_permlane32_swap_b32 v{V_TMAX}, v{V_TMP}")
        e.raw(f"v_max_f32 v{V_TMAX}, v{V_TMAX}, v{V_TMP}")
        e.raw(f"v_mul_f32 v{V_TMAX}, s{S_NC}, v{V_TMAX}")
        e.raw(f"v_min_f32 v{V_TMAX}, v{V_TMAX}, v{V_NEGM}")
        e.raw(f"v_sub_f32 v{V_TMP}, v{V_TMAX}, v{V_NEGM}")
        e.raw(f"v_exp_f32 v{V_TMP}, v{V_TMP}")
        e.raw(f"v_mov_b32 v{V_NEGM}, v{V_TMAX}")
        e.raw("s_nop 0")
        e.raw(f"v_mul_f32 v{V_LSUM}, v{V_LSUM}, v{V_TMP}")
        for i in range(128):
            e.raw(f"v_mul_f32 v{i}, v{i}, v{V_TMP}")
        e.raw("s_nop 1", 2)
        e.raw(f"s_branch L_back_{tg}")


def gen_reduce(e):
    e.label("reduce_kernel")
    e.salu("s_cmp_ge_u32 s2, 896")
    e.salu("s_cbranch_scc1 L_red_exit")
    e.salu("s_load_dwordx2 s[4:5], s[0:1], 80")
    e.salu("s_load_dwordx2 s[6:7], s[0:1], 96")
    e.salu("s_mul_hi_u32 s8, s2, 0x924924a")
    e.salu("s_mul_i32 s9, s8, 28")
    e.salu("s_sub_u32 s9, s2, s9")
    e.salu("s_lshl_b32 s9, s9, 1")
    e.raw("v_and_b32 v1, 63, v0")
    e.raw("v_bfe_u32 v2, v0, 6, 1")
    e.raw("v_lshrrev_b32 v3, 7, v0")
    e.raw("v_add_u32 v3, s9, v3")
    e.raw("v_lshlrev_b32 v4, 11, v3")
    e.raw("v_lshl_add_u32 v4, v2, 10, v4")
    e.raw("v_lshl_add_u32 v4, v1, 4, v4")
    e.salu("s_waitcnt lgkmcnt(0)")
    e.salu("s_mul_i32 s10, s8, 917504")
    e.salu("s_add_u32 s6, s6, s10")
    e.salu("s_addc_u32 s7, s7, 0")
    e.salu("s_mov_b32 s12, s6")
    e.salu("s_and_b32 s13, s7, 0xffff")
    e.salu("s_mov_b32 s14, 917504")
    e.salu("s_mov_b32 s15, 0x00020000")
    e.salu("s_mov_b32 s16, s4")
    e.salu("s_and_b32 s17, s5, 0xffff")
    e.salu("s_mov_b32 s18, 3670016")
    e.salu("s_mov_b32 s19, 0x00020000")
    for h in range(8):
        e.salu(f"s_mov_b32 s20, {h * 114688}")
        e.raw(f"buffer_load_dwordx4 v[{24 + 4 * h}:{27 + 4 * h}], v4, s[12:15], s20 offen{RDPOL}")
    e.raw("v_mul_u32_u24 v5, 37, v3")
    e.raw("v_lshrrev_b32 v5, 8, v5")
    e.raw("v_mul_u32_u24 v6, 7, v5")
    e.raw("v_sub_u32 v6, v3, v6")
    e.raw("v_and_b32 v7, 3, v5")
    e.raw("v_lshrrev_b32 v5, 2, v5")
    e.raw("v_and_b32 v8, 31, v1")
    e.raw("v_lshl_add_u32 v8, v7, 5, v8")
    e.raw("v_lshlrev_b32 v9, 6, v6")
    e.raw("v_lshl_add_u32 v9, v5, 5, v9")
    e.raw("v_lshl_add_u32 v9, v2, 4, v9")
    e.raw("v_lshrrev_b32 v10, 5, v1")
    e.raw("v_lshl_add_u32 v9, v10, 3, v9")
    e.salu("s_and_b32 s21, s8, 15")
    e.salu("s_lshr_b32 s22, s8, 4")
    e.salu("s_mul_i32 s21, s21, 229376")
    e.salu("s_mul_i32 s22, s22, 896")
    e.salu("s_add_u32 s21, s21, s22")
    e.salu("s_mov_b32 s23, 0xffff0000")
    e.raw("v_mul_u32_u24 v8, 1792, v8")
    e.raw("v_lshl_add_u32 v8, v9, 1, v8")
    for h in range(8):
        e.salu(f"s_waitcnt vmcnt({7 - h})")
        for i in range(4):
            r = 24 + 4 * h + i
            if h == 0:
                e.raw(f"v_lshlrev_b32 v{16 + 2 * i}, 16, v{r}")
                e.raw(f"v_and_b32 v{17 + 2 * i}, s23, v{r}")
            else:
                e.raw(f"v_lshlrev_b32 v11, 16, v{r}")
                e.raw(f"v_and_b32 v12, s23, v{r}")
                e.raw(f"v_add_f32 v{16 + 2 * i}, v{16 + 2 * i}, v11")
                e.raw(f"v_add_f32 v{17 + 2 * i}, v{17 + 2 * i}, v12")
    for i in range(4):
        e.raw(f"v_cvt_pk_bf16_f32 v{12 + i}, v{16 + 2 * i}, v{17 + 2 * i}")
    e.raw("buffer_store_dwordx4 v[12:15], v8, s[16:19], s21 offen")
    e.label("L_red_exit")
    e.salu("s_endpgm")


def main():
    ref = open(OUT + ".ref").read().splitlines()
    head = [l for l in ref if l.startswith(";") and "@launch" not in l]
    out = list(head)
    K = NAME + "_kernel"
    out.append(f"; @launch grid=(256,1,1) block=(512,1,1) lds={LDS_BYTES}")
    out.append('.amdgcn_target "amdgcn-amd-amdhsa--gfx950"')
    out.append(".text")
    e = Em()
    out += [f".globl {K}", ".p2align 8", f".type {K},@function"]
    gen_attn(e)
    out += [l.replace("attn_kernel:", K + ":") for l in e.lines]
    out.append('.section .rodata,"a"')
    out += [".p2align 6", f".amdhsa_kernel {K}",
            "  .amdhsa_next_free_vgpr 256",
            "  .amdhsa_next_free_sgpr 102",
            "  .amdhsa_accum_offset 256",
            "  .amdhsa_group_segment_fixed_size 0",
            "  .amdhsa_kernarg_size 104",
            "  .amdhsa_user_sgpr_count 2",
            "  .amdhsa_user_sgpr_kernarg_segment_ptr 1",
            "  .amdhsa_system_sgpr_workgroup_id_x 1",
            ".end_amdhsa_kernel"]
    open(OUTFILE, "w").write("\n".join(out) + "\n")
    print("wrote", OUTFILE, len(out), "lines")


if __name__ == "__main__":
    main()
```

```python
import math
import sys
import os

NAME = "concat_heads__gqa_block_cached__gqa_block_cached__near_ridge"
OUT = f"cdna_kernels/{NAME}.s"
OUTFILE = sys.argv[1] if len(sys.argv) > 1 else OUT

STAMPS = os.environ.get("STAMPS", "0") == "1"
X_NOVM = os.environ.get("NOVM", "0") == "1"
X_NOBAR = os.environ.get("NOBAR", "0") == "1"
X_NODMA = os.environ.get("NODMA", "0") == "1"

ROTMASK = int(os.environ.get("ROTMASK", "15"))
TILE = 17408
PAIR = 2 * TILE
RING = 4 * PAIR
LDS_BYTES = 160 * 1024


class Em:
    def __init__(self):
        self.lines = []
        self.pos = 0
        self.mfma_w = {}
        self.mfma_c = {}
        self.valu_w = {}
        self.trans_w = {}
        self.lds_q = []
        self.vm_q = []
        self.capture = None

    def raw(self, s, slots=1):
        (self.capture if self.capture is not None else self.lines).append("    " + s)
        self.pos += slots

    def label(self, s):
        (self.capture if self.capture is not None else self.lines).append(s + ":")

    def comment(self, s):
        (self.capture if self.capture is not None else self.lines).append("    ; " + s)

    def nop(self, n):
        while n > 0:
            k = min(n, 16)
            self.raw(f"s_nop {k - 1}", k)
            n -= k

    def _need(self, table, regs, dist):
        need = 0
        for r in regs:
            p = table.get(r)
            if p is not None:
                have = self.pos - p - 1
                need = max(need, dist - have)
        return need

    def salu(self, s):
        if X_NOBAR and s == "s_barrier":
            s = "s_nop 0"
        self.raw(s)

    def valu(self, s, dst=(), src=(), trans=False):
        n = self._need(self.mfma_w, list(dst) + list(src), 12)
        n = max(n, self._need(self.mfma_c, dst, 7))
        if not trans:
            n = max(n, self._need(self.trans_w, src, 1))
        if n > 0:
            self.nop(n)
        p = self.pos
        self.raw(s)
        for r in dst:
            self.valu_w[r] = p
            if trans:
                self.trans_w[r] = p
            else:
                self.trans_w.pop(r, None)

    def mfma(self, d, a, b, c):
        D = list(range(d, d + 16))
        A = list(range(a, a + 4))
        B = list(range(b, b + 4))
        C = list(range(c, c + 16)) if c is not None else []
        n = self._need(self.valu_w, A + B + C, 2)
        n = max(n, self._need(self.mfma_w, A + B, 12))
        if c is not None and c != d:
            n = max(n, self._need(self.mfma_w, C, 10))
        if c is None:
            pass
        if n > 0:
            self.nop(n)
        p = self.pos
        cs = f"v[{c}:{c + 15}]" if c is not None else "0"
        self.raw(f"v_mfma_f32_32x32x16_bf16 v[{d}:{d + 15}], v[{a}:{a + 3}], v[{b}:{b + 3}], {cs}")
        for r in D:
            self.mfma_w[r] = p
        for r in C:
            self.mfma_c[r] = p

    def ds(self, s, tag, dst=(), src=()):
        n = self._need(self.mfma_w, list(dst) + list(src), 12)
        if n > 0:
            self.nop(n)
        self.raw(s)
        self.lds_q.append(tag)
        assert len(self.lds_q) <= 15, "too many LDS ops outstanding"

    def vmem(self, s, tag, dst=(), src=(), cond=False):
        n = self._need(self.mfma_w, list(dst) + list(src), 12)
        if n > 0:
            self.nop(n)
        self.raw(s)
        self.vm_q.append((tag, cond))
        assert len(self.vm_q) <= 63

    def wait_lds(self, tag):
        idx = max((i for i, t in enumerate(self.lds_q) if t == tag), default=-1)
        if idx < 0:
            return
        n = len(self.lds_q) - 1 - idx
        self.raw(f"s_waitcnt lgkmcnt({n})")
        self.lds_q = self.lds_q[idx + 1:]

    def wait_lds_all(self):
        if self.lds_q:
            self.raw("s_waitcnt lgkmcnt(0)")
            self.lds_q = []

    def wait_vm(self, tag, extra=0):
        idx = max((i for i, t in enumerate(self.vm_q) if t[0] == tag), default=-1)
        if idx < 0:
            return
        n = sum(1 for t in self.vm_q[idx + 1:] if not t[1]) + extra
        if X_NOVM and tag[0] == "D":
            self.raw("s_nop 0")
        else:
            self.raw(f"s_waitcnt vmcnt({n})")
        if self.vm_q[idx][1]:
            self.vm_q = [t for t in self.vm_q if t[0] != tag]
        else:
            self.vm_q = self.vm_q[idx + 1:]

    def wait_vm_all(self):
        if self.vm_q:
            self.raw("s_waitcnt vmcnt(0)")
            self.vm_q = []

    def cond_begin(self):
        self._cpos = self.pos

    def cond_end(self):
        p0 = self._cpos
        for tb in (self.mfma_w, self.mfma_c, self.valu_w, self.trans_w):
            for r, p in tb.items():
                if p >= p0:
                    tb[r] = p0 - 1
        self.pos = p0

    def loop(self, name, n, body, counter):
        assert self.capture is None
        self.salu(f"s_mov_b32 {counter}, {n}")
        texts = []
        for i in range(n):
            self.capture = []
            body(i)
            self.salu(f"s_sub_u32 {counter}, {counter}, 1")
            self.salu(f"s_cmp_lg_u32 {counter}, 0")
            self.salu(f"s_cbranch_scc1 {name}")
            texts.append(self.capture)
            self.capture = None
        for i in range(1, n):
            if texts[i] != texts[0]:
                for a, b in zip(texts[0], texts[i]):
                    if a != b:
                        print("LOOP MISMATCH", name, i, a, "|", b)
                        break
                raise SystemExit(f"loop {name}: iteration {i} differs from iteration 0")
        self.label(name)
        self.lines.extend(texts[0])


def vr(base, n):
    return f"v[{base}:{base + n - 1}]"


S_X, S_K, S_V, S_WQ, S_WO, S_P = 8, 12, 16, 20, 24, 28
S_W = 32
S_HH = 33
S_QB = 34
S_RD = 35
S_DM = 36
S_T0, S_T1, S_T2, S_T3 = 37, 38, 39, 40
S_CNT = 41
S_C = 42
S_NC = 43
S_THR = 44
S_OFFA = 45
S_OFFB = 46
S_XOFF = 47
S_WM0A = 48
S_WM0B = 49
S_POFF = 50
S_EXW = 51
S_EXR = 52
S_D0, S_D1 = 53, 54
S_WM0C = 55
S_KA = 56
S_G, S_OUT, S_DBG = 60, 64, 68
S_BB4, S_OOFF, S_FL, S_LOFF = 72, 73, 74, 75

V_O = 0
V_Q = 128
V_X = 128
V_S0, V_S1 = 192, 208
V_FR = 224
V_M = 240
V_PATA, V_PATB, V_RDA, V_RDB = 240, 241, 242, 243
V_DLIN, V_DK = 244, 245
V_NEGM, V_LSUM, V_TMAX, V_TMP = 246, 247, 248, 249
V_XOFF = 250
V_LANE = 251
V_T2 = 252
V_T3 = 253

import os

S_ST = 88


def stamp(e, i):
    if not STAMPS:
        return
    e.raw("s_memtime s[96:97]")
    e.raw("s_waitcnt lgkmcnt(0)")
    e.lds_q = []
    e.salu(f"s_mov_b32 s{S_ST + i}, s96")
    if i in (0, 5):
        e.raw("s_memrealtime s[96:97]")
        e.raw("s_waitcnt lgkmcnt(0)")
        e.salu(f"s_mov_b32 s{S_ST + 6 + (i == 5)}, s96")


def stamp_flush(e, n):
    if not STAMPS:
        return
    e.salu("s_load_dwordx2 s[96:97], s[0:1], 96")
    e.salu("s_waitcnt lgkmcnt(0)")
    e.salu("s_add_u32 s96, s96, 0x8000000")
    e.salu("s_addc_u32 s97, s97, 0")
    e.salu("s_mov_b32 s8, s96")
    e.salu("s_and_b32 s9, s97, 0xffff")
    e.salu("s_mov_b32 s10, 0x100000")
    e.salu("s_mov_b32 s11, 0x00020000")
    e.salu(f"s_lshl_b32 s96, s2, 3")
    e.salu(f"s_add_u32 s96, s96, s{S_W}")
    e.salu(f"s_lshl_b32 s96, s96, 6")
    e.raw("s_nop 15", 16)
    e.raw("v_mov_b32 v1, 0")
    for i in range(n):
        e.raw(f"v_mov_b32 v0, s{S_ST + i}")
        e.raw(f"buffer_store_dword v0, v1, s[8:11], s96 offen offset:{4 * i}")
        e.raw("s_waitcnt vmcnt(0)")


SP1 = int(os.environ.get("SP1", "1"))
SP2 = int(os.environ.get("SP2", "3"))
SP3 = int(os.environ.get("SP3", "2"))
BAR3 = int(os.environ.get("BAR3", "5"))
NPOLL = int(os.environ.get("NPOLL", "4000"))
NB = 4
DPF = 3


def srd(e, dst, lo, hi, size):
    e.salu(f"s_mov_b32 s{dst}, s{lo}")
    e.salu(f"s_and_b32 s{dst + 1}, s{hi}, 0xffff")
    e.salu(f"s_mov_b32 s{dst + 2}, {size}")
    e.salu(f"s_mov_b32 s{dst + 3}, 0x00020000")


def adv_slot(e, s):
    e.salu(f"s_add_u32 s{s}, s{s}, {PAIR}")
    e.salu(f"s_cmp_ge_u32 s{s}, {RING}")
    e.salu(f"s_cselect_b32 s{S_T3}, {RING}, 0")
    e.salu(f"s_sub_u32 s{s}, s{s}, s{S_T3}")


KVPOL = os.environ.get("KVPOL", "nt")
STPOL = os.environ.get("STPOL", "")
STPOL = (" " + STPOL) if STPOL else ""
RDPOL = os.environ.get("RDPOL", "nt")
RDPOL = (" " + RDPOL) if RDPOL else ""


def dma(e, voff, sr, soff, m0expr, tag, off=0):
    sg, imm = m0expr
    e.salu(f"s_add_u32 m0, s{sg}, {imm}")
    e.salu("s_nop 0")
    o = f" offset:{off}" if off else ""
    if X_NODMA:
        e.salu("s_nop 0")
        return
    pol = (" " + KVPOL) if (sr in (S_K, S_V) and KVPOL) else ""
    e.vmem(f"buffer_load_dwordx4 v{voff}, s[{sr}:{sr + 3}], s{soff} offen{o}{pol} lds", tag)


def dma_wq_pair(e, tag):
    e.salu(f"s_add_u32 s{S_D0}, s{S_DM}, s{S_WM0A}")
    adv_slot(e, S_DM)
    out = []
    for e2 in range(2):
        for ee in range(2):
            def f(e2=e2, ee=ee):
                e.salu(f"s_add_u32 s{S_T1}, s{S_OFFA}, {(16 * e2 + ee) * 8192}")
                dma(e, V_DLIN, S_WQ, S_T1, (S_D0, e2 * TILE + ee * 1088), tag)
                if e2 == 1 and ee == 1:
                    e.salu(f"s_add_u32 s{S_OFFA}, s{S_OFFA}, {32 * 8192}")
            out.append(f)
    return out


def dma_kv_pair(e, tag, k=True, v=True):
    e.salu(f"s_add_u32 s{S_D0}, s{S_DM}, s{S_WM0A}")
    e.salu(f"s_add_u32 s{S_D1}, s{S_DM}, s{S_WM0B}")
    adv_slot(e, S_DM)
    out = []
    if k:
        out.append(lambda: dma(e, V_DK, S_K, S_OFFA, (S_D0, 0), tag))

        def k2():
            dma(e, V_DK, S_K, S_OFFA, (S_D0, 32), tag, off=1024)
            e.salu(f"s_add_u32 s{S_OFFA}, s{S_OFFA}, 16384")
            e.salu(f"s_and_b32 s{S_OFFA}, s{S_OFFA}, 0x3ffff")
        out.append(k2)
    if v:
        out.append(lambda: dma(e, V_DLIN, S_V, S_OFFB, (S_D1, 0), tag))

        def v2():
            dma(e, V_DLIN, S_V, S_OFFB, (S_D1, 64), tag, off=1024)
            e.salu(f"s_add_u32 s{S_OFFB}, s{S_OFFB}, 16384")
            e.salu(f"s_and_b32 s{S_OFFB}, s{S_OFFB}, 0x3ffff")
        out.append(v2)
    return out


def dma_wo_pair(e, tag, p, vdwo):
    e.salu(f"s_add_u32 s{S_D0}, s{S_DM}, s{S_WM0C}")
    adv_slot(e, S_DM)
    out = []
    i = p & 1
    for hd in range(2):
        for ee in range(2):
            def f(hd=hd, ee=ee):
                e.salu(f"s_add_u32 s{S_T1}, s{S_XOFF}, {(256 * hd + 128 * i + 8 * ee) * 896}")
                dma(e, vdwo, S_WO, S_T1, (S_D0, hd * TILE + ee * 1024), tag)
                if hd == 1 and ee == 1 and i == 1:
                    e.salu(f"s_add_u32 s{S_XOFF}, s{S_XOFF}, 128")
            out.append(f)
    return out


class FragStream:
    def __init__(self, e, base=V_FR, nb=NB):
        self.e = e
        self.base = base
        self.nb = nb
        self.issued = 0
        self.queue = []

    def buf(self, i):
        return self.base + 4 * (i % self.nb)

    def push(self, fn):
        self.queue.append(fn)

    def issue_next(self):
        while self.queue:
            fn = self.queue.pop(0)
            if fn[0] == "pre":
                fn[1]()
                continue
            i = self.issued
            fn[1](self.buf(i), ("fr", i))
            self.issued += 1
            return True
        return False


def rd_tr(e, areg, off0, off1):
    def f(dst, tag):
        e.ds(f"ds_read_b64_tr_b16 {vr(dst, 2)}, v{areg} offset:{off0}", tag, dst=range(dst, dst + 2))
        e.ds(f"ds_read_b64_tr_b16 {vr(dst + 2, 2)}, v{areg} offset:{off1}", tag, dst=range(dst + 2, dst + 4))
    return ("rd", f)


def rd_128(e, areg, off):
    def f(dst, tag):
        e.ds(f"ds_read_b128 {vr(dst, 4)}, v{areg} offset:{off}", tag, dst=range(dst, dst + 4))
    return ("rd", f)


def gen_attn(e):
    e.label("attn_kernel")
    e.salu("s_cmp_ge_u32 s2, 256")
    e.salu("s_cbranch_scc1 L_attn_exit")
    e.salu(f"s_load_dwordx16 s[{S_KA}:{S_KA + 15}], s[0:1], 0")
    e.salu(f"s_load_dwordx4 s[{S_KA + 16}:{S_KA + 19}], s[0:1], 64")
    e.salu(f"s_load_dwordx2 s[{S_KA + 20}:{S_KA + 21}], s[0:1], 96")
    e.salu(f"s_load_dwordx4 s[80:83], s[0:1], 80")
    e.salu(f"s_and_b32 s{S_T0}, s2, 7")
    e.salu(f"s_lshr_b32 s{S_T1}, s2, 3")
    e.salu(f"s_and_b32 s{S_T2}, s{S_T1}, 15")
    e.valu(f"v_lshrrev_b32 v1, 6, v0", dst=[1], src=[0])
    e.valu(f"v_and_b32 v{V_LANE}, 63, v0", dst=[V_LANE], src=[0])
    e.salu("s_nop 0")
    e.raw(f"v_readfirstlane_b32 s{S_W}, v1")
    e.salu("s_nop 3")
    e.salu(f"s_lshr_b32 s{S_HH}, s{S_W}, 2")
    e.salu(f"s_and_b32 s{S_QB}, s{S_W}, 3")
    e.salu("s_waitcnt lgkmcnt(0)")
    e.salu(f"s_cmp_ge_u32 s{S_T1}, 16")
    for i in range(10):
        e.salu(f"s_cselect_b32 s{S_KA + i}, s{S_KA + 10 + i}, s{S_KA + i}")
    e.salu(f"s_mul_i32 s{S_T3}, s{S_T2}, 114688")
    e.salu(f"s_add_u32 s{S_KA}, s{S_KA}, s{S_T3}")
    e.salu(f"s_addc_u32 s{S_KA + 1}, s{S_KA + 1}, 0")
    srd(e, S_X, S_KA, S_KA + 1, 114688)
    e.salu(f"s_lshl_b32 s{S_T3}, s{S_T2}, 3")
    e.salu(f"s_add_u32 s{S_T3}, s{S_T3}, s{S_T0}")
    e.salu(f"s_lshl_b32 s{S_T3}, s{S_T3}, 18")
    e.salu(f"s_add_u32 s{S_KA + 2}, s{S_KA + 2}, s{S_T3}")
    e.salu(f"s_addc_u32 s{S_KA + 3}, s{S_KA + 3}, 0")
    srd(e, S_K, S_KA + 2, S_KA + 3, 262144)
    e.salu(f"s_add_u32 s{S_KA + 4}, s{S_KA + 4}, s{S_T3}")
    e.salu(f"s_addc_u32 s{S_KA + 5}, s{S_KA + 5}, 0")
    srd(e, S_V, S_KA + 4, S_KA + 5, 262144)
    e.salu(f"s_lshl_b32 s{S_T3}, s{S_T0}, 10")
    e.salu(f"s_add_u32 s{S_KA + 6}, s{S_KA + 6}, s{S_T3}")
    e.salu(f"s_addc_u32 s{S_KA + 7}, s{S_KA + 7}, 0")
    srd(e, S_WQ, S_KA + 6, S_KA + 7, 448 * 8192)
    e.salu(f"s_sub_u32 s{S_WQ + 2}, s{S_WQ + 2}, s{S_T3}")
    e.salu(f"s_mul_i32 s{S_T3}, s{S_T0}, 458752")
    e.salu(f"s_add_u32 s{S_KA + 8}, s{S_KA + 8}, s{S_T3}")
    e.salu(f"s_addc_u32 s{S_KA + 9}, s{S_KA + 9}, 0")
    srd(e, S_WO, S_KA + 8, S_KA + 9, 458752)
    e.salu(f"s_mul_i32 s{S_T3}, s{S_T1}, 917504")
    e.salu(f"s_add_u32 s84, s{S_KA + 20}, s{S_T3}")
    e.salu(f"s_addc_u32 s85, s{S_KA + 21}, 0")
    srd(e, S_G, 84, 85, 917504)
    srd(e, S_OUT, 80, 81, 3670016)
    srd(e, S_DBG, 82, 83, 256)
    e.salu(f"s_lshl_b32 s{S_BB4}, s{S_T1}, 2")
    e.salu(f"s_mul_i32 s{S_OOFF}, s{S_T2}, 229376")
    e.salu(f"s_lshr_b32 s{S_T3}, s{S_T1}, 4")
    e.salu(f"s_mul_i32 s{S_T3}, s{S_T3}, 896")
    e.salu(f"s_add_u32 s{S_OOFF}, s{S_OOFF}, s{S_T3}")
    e.salu(f"s_mul_i32 s{S_T3}, s2, 114688")
    e.salu(f"s_add_u32 s{S_KA + 20}, s{S_KA + 20}, s{S_T3}")
    e.salu(f"s_addc_u32 s{S_KA + 21}, s{S_KA + 21}, 0")
    srd(e, S_P, S_KA + 20, S_KA + 21, 114688)
    c = math.log2(math.e) / 16.0
    import struct
    cbits = struct.unpack("<I", struct.pack("<f", c))[0]
    ncbits = struct.unpack("<I", struct.pack("<f", -c))[0]
    e.salu(f"s_mov_b32 s{S_C}, {cbits:#x}")
    e.salu(f"s_mov_b32 s{S_NC}, {ncbits:#x}")
    e.salu(f"s_mov_b32 s{S_THR}, 0x41000000")

    stamp(e, 0)
    L = V_LANE
    t1, t2, t3, t4 = 1, 2, 3, 4

    def V(s, d, *src):
        e.valu(s, dst=[d], src=list(src))

    V(f"v_bfe_u32 v{t1}, v{L}, 4, 1", t1, L)
    V(f"v_lshlrev_b32 v5, 5, v{t1}", 5, t1)
    V(f"v_and_b32 v{t1}, 1, v{L}", t1, L)
    V(f"v_lshlrev_b32 v{t1}, 4, v{t1}", t1, t1)
    V(f"v_add_u32 v5, v5, v{t1}", 5, 5, t1)
    V(f"v_bfe_u32 v{t1}, v{L}, 1, 1", t1, L)
    V(f"v_lshlrev_b32 v{t1}, 3, v{t1}", t1, t1)
    V(f"v_add_u32 v5, v5, v{t1}", 5, 5, t1)
    V(f"v_lshrrev_b32 v6, 5, v{L}", 6, L)
    V(f"v_bfe_u32 v7, v{L}, 2, 2", 7, L)
    V(f"v_lshlrev_b32 v{V_DLIN}, 4, v{L}", V_DLIN, L)
    V(f"v_and_b32 v{t1}, 31, v{L}", t1, L)
    V(f"v_xor_b32 v{t1}, v{t1}, v6", t1, t1, 6)
    V(f"v_lshlrev_b32 v{t1}, 4, v{t1}", t1, t1)
    V(f"v_lshl_add_u32 v{V_DK}, v6, 9, v{t1}", V_DK, 6, t1)
    V(f"v_lshl_add_u32 v{t1}, v6, 3, v7", t1, 6, 7)
    V(f"v_mul_u32_u24 v{t1}, 1088, v{t1}", t1, t1)
    V(f"v_add_u32 v{t1}, v{t1}, v5", t1, t1, 5)
    e.salu(f"s_lshl_b32 s{S_T3}, s{S_HH}, 9")
    V(f"v_add_u32 v{V_PATA}, s{S_T3}, v{t1}", V_PATA, t1)
    V(f"v_bfe_u32 v{t1}, v{L}, 4, 2", t1, L)
    V(f"v_and_b32 v{t2}, 3, v{L}", t2, L)
    V(f"v_xor_b32 v{t1}, v{t1}, v{t2}", t1, t1, t2)
    V(f"v_lshlrev_b32 v{t1}, 4, v{t1}", t1, t1)
    V(f"v_lshrrev_b32 v{t2}, 2, v{L}", t2, L)
    V(f"v_mul_u32_u24 v{t2}, 896, v{t2}", t2, t2)
    V(f"v_add_u32 v{V_XOFF}, v{t1}, v{t2}", V_XOFF, t1, t2)
    V(f"v_and_b32 v{t1}, 31, v{L}", t1, L)
    e.salu(f"s_lshl_b32 s{S_T3}, s{S_QB}, 5")
    V(f"v_add_u32 v{t1}, s{S_T3}, v{t1}", t1, t1)
    V(f"v_lshlrev_b32 v{t1}, 6, v{t1}", t1, t1)
    V(f"v_bfe_u32 v{t2}, v{L}, 2, 2", t2, L)
    V(f"v_xor_b32 v{t2}, v{t2}, v6", t2, t2, 6)
    V(f"v_lshl_add_u32 v{t1}, v{t2}, 4, v{t1}", t1, t2, t1)
    V(f"v_add_u32 v{V_PATB}, {RING}, v{t1}", V_PATB, t1)

    e.salu(f"s_mul_i32 s{S_WM0A}, s{S_W}, {2 * 1088}")
    e.salu(f"s_lshl_b32 s{S_OFFA}, s{S_W}, 14")
    e.salu(f"s_mov_b32 s{S_DM}, 0")
    e.salu(f"s_mov_b32 s{S_RD}, 0")
    e.salu(f"s_mul_i32 s{S_XOFF}, s{S_W}, {16 * 896}")
    e.salu(f"s_lshl_b32 s{S_EXW}, s{S_W}, 10")
    e.salu(f"s_add_u32 s{S_EXW}, s{S_EXW}, {RING}")
    e.salu(f"s_mov_b32 s{S_EXR}, 0")
    e.salu(f"s_mov_b32 s{S_POFF}, 0")

    def adv_x(sr):
        e.salu(f"s_add_u32 s{sr}, s{sr}, 8192")
        e.salu(f"s_cmp_ge_u32 s{sr}, 24576")
        e.salu(f"s_cselect_b32 s{sr}, 0, s{sr}")

    def xdma(tag):
        e.salu(f"s_add_u32 s{S_T0}, s{S_EXW}, s{S_POFF}")
        dma(e, V_XOFF, S_X, S_XOFF, (S_T0, 0), tag)
        e.salu(f"s_add_u32 s{S_XOFF}, s{S_XOFF}, 64")
        adv_x(S_POFF)

    def xread(xi, G):
        V(f"v_add_u32 v{V_RDB}, s{S_EXR}, v{V_PATB}", V_RDB, V_PATB)
        e.ds(f"ds_read_b128 {vr(V_X + 4 * xi, 4)}, v{V_RDB}", ("x", 2 * G), dst=range(V_X + 4 * xi, V_X + 4 * xi + 4))
        V(f"v_xor_b32 v{V_RDB}, 32, v{V_RDB}", V_RDB, V_RDB)
        e.ds(f"ds_read_b128 {vr(V_X + 4 * xi + 4, 4)}, v{V_RDB}", ("x", 2 * G + 1),
             dst=range(V_X + 4 * xi + 4, V_X + 4 * xi + 8))
        adv_x(S_EXR)

    def run(lst):
        for f in lst:
            f()
    run(dma_wq_pair(e, ("D", 0)))
    xdma(("X", 0))
    run(dma_wq_pair(e, ("D", 1)))
    xdma(("X", 1))
    run(dma_wq_pair(e, ("D", 2)))
    for i in range(128):
        V(f"v_mov_b32 v{V_O + i}, 0", V_O + i)
    V(f"v_add_u32 v{V_RDA}, s{S_RD}, v{V_PATA}", V_RDA, V_PATA)
    e.wait_vm(("X", 0))
    e.salu("s_barrier")

    stamp(e, 1)
    xread(0, 0)
    e.wait_lds(("x", 1))
    fs = FragStream(e)
    dq = []
    dq_state = {"sp": 2, "cnt": 0}

    def defer(lst, sp):
        assert not dq, "previous DMA pieces still pending"
        dq.extend(lst)
        dq_state["sp"] = sp
        dq_state["cnt"] = 0

    def p1_frags(G):
        for e2 in range(2):
            for ct in range(8):
                off = e2 * TILE + ct * 64
                fs.push(rd_tr(e, V_RDA, off, off + 4 * 1088))

    def next_rd_a():
        adv_slot(e, S_RD)
        V(f"v_add_u32 v{V_RDA}, s{S_RD}, v{V_PATA}", V_RDA, V_PATA)

    mf_idx = [0]

    def consume_mfma(d, b, c):
        i = mf_idx[0]
        assert i < fs.issued
        e.wait_lds(("fr", i))
        e.mfma(d, fs.buf(i), b, c)
        mf_idx[0] += 1
        fs.issue_next()
        if dq:
            dq_state["cnt"] += 1
            if dq_state["cnt"] >= dq_state["sp"]:
                dq_state["cnt"] = 0
                dq.pop(0)()

    def p1_step(G, xi, issue, push_next):
        for e2 in range(2):
            ks = 2 * G + e2
            e.wait_lds(("x", ks))
            for ct in range(8):
                consume_mfma(V_O + 16 * ct, V_X + 4 * (xi + e2), V_O + 16 * ct)
                if e2 == 0 and ct == 7:
                    if G + 1 <= 13:
                        e.wait_vm(("X", G + 1))
                    e.wait_vm(("D", G + 1))
                    e.salu("s_barrier")
                    if G + 1 <= 13:
                        xread(2 - xi, G + 1)
                    pieces = []
                    if G + 2 <= 13:
                        pieces.append(lambda: xdma(("X", G + 2)))
                    pieces += issue()
                    defer(pieces, SP1)
                    push_next()

    p1_frags(0)
    for _ in range(DPF):
        fs.issue_next()

    def push_p1(G):
        def f():
            fs.push(("pre", next_rd_a))
            p1_frags(G)
        return f

    def p1_body(i):
        G = 2 * i
        p1_step(G, 0, lambda: dma_wq_pair(e, ("D", G + 3)), push_p1(G + 1))
        p1_step(G + 1, 2, lambda: dma_wq_pair(e, ("D", G + 4)), push_p1(G + 2))

    e.loop("L_p1", 5, p1_body, f"s{S_CNT}")

    def kv_setup():
        e.salu(f"s_mul_i32 s{S_WM0A}, s{S_W}, {2 * 1056}")
        e.salu(f"s_mul_i32 s{S_WM0B}, s{S_W}, {2 * 1088}")
        e.salu(f"s_add_u32 s{S_WM0B}, s{S_WM0B}, {TILE}")
        e.salu(f"s_lshr_b32 s{S_OFFA}, s2, 4")
        e.salu(f"s_xor_b32 s{S_OFFA}, s{S_OFFA}, s2")
        e.salu(f"s_and_b32 s{S_OFFA}, s{S_OFFA}, {ROTMASK}")
        e.salu(f"s_lshl_b32 s{S_OFFA}, s{S_OFFA}, 14")
        e.salu(f"s_lshl_b32 s{S_OFFB}, s{S_W}, 11")
        e.salu(f"s_add_u32 s{S_OFFA}, s{S_OFFA}, s{S_OFFB}")
        e.salu(f"s_mov_b32 s{S_OFFB}, s{S_OFFA}")

    p1_step(10, 0, lambda: dma_wq_pair(e, ("D", 13)), push_p1(11))

    def iss14():
        kv_setup()
        return dma_kv_pair(e, ("D", 14), k=True, v=False)
    p1_step(11, 2, iss14, push_p1(12))
    p1_step(12, 0, lambda: dma_kv_pair(e, ("D", 15)), push_p1(13))

    def kv_patterns():
        a, b2, c2 = V_T2, V_T3, V_TMP
        V(f"v_and_b32 v{a}, 7, v{L}", a, L)
        V(f"v_bfe_u32 v{b2}, v{L}, 4, 1", b2, L)
        V(f"v_lshl_add_u32 v{a}, v{b2}, 3, v{a}", a, b2, a)
        V(f"v_mul_u32_u24 v{a}, 1056, v{a}", a, a)
        V(f"v_bfe_u32 v{b2}, v{L}, 3, 1", b2, L)
        V(f"v_lshl_add_u32 v{a}, v{b2}, 9, v{a}", a, b2, a)
        V(f"v_lshrrev_b32 v{c2}, 5, v{L}", c2, L)
        V(f"v_xor_b32 v{b2}, v{b2}, v{c2}", b2, b2, c2)
        V(f"v_lshl_add_u32 v{V_PATA}, v{b2}, 4, v{a}", V_PATA, b2, a)
        V(f"v_bfe_u32 v{a}, v{L}, 2, 2", a, L)
        V(f"v_lshl_add_u32 v{a}, v{c2}, 2, v{a}", a, c2, a)
        V(f"v_mul_u32_u24 v{a}, 1088, v{a}", a, a)
        V(f"v_bfe_u32 v{b2}, v{L}, 4, 1", b2, L)
        V(f"v_lshl_add_u32 v{a}, v{b2}, 5, v{a}", a, b2, a)
        V(f"v_and_b32 v{b2}, 1, v{L}", b2, L)
        V(f"v_lshl_add_u32 v{a}, v{b2}, 4, v{a}", a, b2, a)
        V(f"v_bfe_u32 v{b2}, v{L}, 1, 1", b2, L)
        V(f"v_lshl_add_u32 v{a}, v{b2}, 3, v{a}", a, b2, a)
        V(f"v_add_u32 v{V_PATB}, {TILE}, v{a}", V_PATB, a)

    def k_frags():
        for ks in range(16):
            fs.push(rd_128(e, V_RDA, ks * 32))

    def v_frags(jmajor=False):
        order = [(ks2, j) for j in range(8) for ks2 in range(2)] if jmajor else \
                [(ks2, j) for ks2 in range(2) for j in range(8)]
        for ks2, j in order:
            off = ks2 * 8 * 1088 + j * 64
            fs.push(rd_tr(e, V_RDB, off, off + 512))

    def next_rd_kv():
        adv_slot(e, S_RD)
        V(f"v_add_u32 v{V_RDA}, s{S_RD}, v{V_PATA}", V_RDA, V_PATA)
        V(f"v_add_u32 v{V_RDB}, s{S_RD}, v{V_PATB}", V_RDB, V_PATB)

    def push_k0():
        def pre():
            kv_patterns()
            next_rd_kv()
        fs.push(("pre", pre))
        k_frags()

    p1_step(13, 2, lambda: dma_kv_pair(e, ("D", 16)), push_k0)

    stamp(e, 2)
    for i in range(64):
        e.valu(f"v_cvt_pk_bf16_f32 v{V_Q + i}, v{2 * i}, v{2 * i + 1}", dst=[V_Q + i], src=[2 * i, 2 * i + 1])
    V(f"v_mov_b32 v{V_LSUM}, 0", V_LSUM)

    def qk_stage(sn, fillers, mid=None):
        nf = len(fillers)
        k = 0
        for ks in range(16):
            consume_mfma(sn, V_Q + 4 * ks, sn if ks else None)
            tgt = (nf * (ks + 1) + 15) // 16
            while k < tgt:
                fillers[k]()
                k += 1
            if mid is not None and ks == mid[0]:
                mid[1]()

    def exp_fillers(sc):
        fl = []
        for p in range(8):
            a, b = sc + 2 * p, sc + 2 * p + 1
            fl.append(lambda a=a: e.valu(f"v_fma_f32 v{a}, v{a}, s{S_C}, v{V_NEGM}", dst=[a], src=[a, V_NEGM]))
            fl.append(lambda b=b: e.valu(f"v_fma_f32 v{b}, v{b}, s{S_C}, v{V_NEGM}", dst=[b], src=[b, V_NEGM]))
            fl.append(lambda a=a: e.valu(f"v_exp_f32 v{a}, v{a}", dst=[a], src=[a], trans=True))
            fl.append(lambda b=b: e.valu(f"v_exp_f32 v{b}, v{b}", dst=[b], src=[b], trans=True))
            fl.append(lambda a=a: e.valu(f"v_add_f32 v{V_LSUM}, v{V_LSUM}, v{a}", dst=[V_LSUM], src=[V_LSUM, a]))
            fl.append(lambda b=b: e.valu(f"v_add_f32 v{V_LSUM}, v{V_LSUM}, v{b}", dst=[V_LSUM], src=[V_LSUM, b]))
            fl.append(lambda a=a, b=b, p=p: e.valu(f"v_cvt_pk_bf16_f32 v{sc + p}, v{a}, v{b}", dst=[sc + p], src=[a, b]))
        return fl

    def max_fillers(sn):
        fl = []
        fl.append(lambda: e.valu(f"v_max3_f32 v{V_TMAX}, v{sn}, v{sn + 1}, v{sn + 2}", dst=[V_TMAX], src=[sn, sn + 1, sn + 2]))
        for i in range(3, 15, 2):
            fl.append(lambda i=i: e.valu(f"v_max3_f32 v{V_TMAX}, v{V_TMAX}, v{sn + i}, v{sn + i + 1}",
                                         dst=[V_TMAX], src=[V_TMAX, sn + i, sn + i + 1]))
        fl.append(lambda: e.valu(f"v_max_f32 v{V_TMAX}, v{V_TMAX}, v{sn + 15}", dst=[V_TMAX], src=[V_TMAX, sn + 15]))
        return fl

    def cross_half(op, reg, tmp):
        V(f"v_mov_b32 v{tmp}, v{reg}", tmp, reg)
        e.nop(2)
        e.valu(f"v_permlane32_swap_b32 v{reg}, v{tmp}", dst=[reg, tmp], src=[reg, tmp])
        V(f"{op} v{reg}, v{reg}, v{tmp}", reg, reg, tmp)

    def mid14():
        e.wait_vm(("D", 15))
        e.salu("s_barrier")
        defer(dma_kv_pair(e, ("D", 17)), SP2)
        fs.push(("pre", next_rd_kv))
        k_frags()
        v_frags()
    zf = [(lambda i=i: V(f"v_mov_b32 v{V_O + i}, 0", V_O + i)) for i in range(128)]
    qk_stage(V_S0, zf, mid=(3, mid14))
    for f in max_fillers(V_S0):
        f()
    cross_half("v_max_f32", V_TMAX, V_TMP)
    V(f"v_mul_f32 v{V_NEGM}, s{S_NC}, v{V_TMAX}", V_NEGM, V_TMAX)

    rare = []

    def p2_step(t, issue, push_next=None, tagname=""):
        G = 15 + t
        sc = V_S0 if t % 2 == 0 else V_S1
        sn = V_S1 if t % 2 == 0 else V_S0
        fl = exp_fillers(sc)
        qk_stage(sn, fl)
        mx = max_fillers(sn)
        k = 0
        for idx in range(16):
            ks2, j = idx >> 3, idx & 7
            consume_mfma(V_O + 16 * j, sc + 4 * ks2, V_O + 16 * j)
            if idx == 3:
                e.wait_vm(("D", G + 1))
                e.salu("s_barrier")
                defer(issue(), SP2)
                push_next()
            if idx >= 5 and k < len(mx):
                mx[k]()
                k += 1
                if k < len(mx):
                    mx[k]()
                    k += 1
        assert k == len(mx)
        e.valu(f"v_fma_f32 v{V_TMP}, v{V_TMAX}, s{S_C}, v{V_NEGM}", dst=[V_TMP], src=[V_TMAX, V_NEGM])
        e.valu(f"v_cmp_lt_f32 vcc, s{S_THR}, v{V_TMP}", dst=[], src=[V_TMP])
        e.salu("s_nop 3")
        e.salu(f"s_cbranch_vccnz L_rare_{tagname}")
        e.label(f"L_back_{tagname}")
        rare.append(tagname)

    def push_kv():
        fs.push(("pre", next_rd_kv))
        k_frags()
        v_frags()

    def p2_body(i):
        t = 2 * i
        p2_step(t, lambda: dma_kv_pair(e, ("D", 15 + t + 3)), push_next=push_kv, tagname="a")
        p2_step(t + 1, lambda: dma_kv_pair(e, ("D", 15 + t + 4)), push_next=push_kv, tagname="b")

    e.loop("L_p2", 6, p2_body, f"s{S_CNT}")
    rare[:] = ["a", "b"]

    p2_step(12, lambda: dma_kv_pair(e, ("D", 30), k=False, v=True), push_next=push_kv, tagname="c")

    V_DWO = V_XOFF

    def wo_setup():
        a, b2 = V_T3, V_T2
        V(f"v_bfe_u32 v{a}, v{L}, 4, 1", a, L)
        V(f"v_lshlrev_b32 v{a}, 2, v{a}", a, a)
        V(f"v_and_b32 v{b2}, 7, v{L}", b2, L)
        V(f"v_xor_b32 v{a}, v{a}, v{b2}", a, a, b2)
        V(f"v_lshlrev_b32 v{a}, 4, v{a}", a, a)
        V(f"v_lshrrev_b32 v{b2}, 3, v{L}", b2, L)
        V(f"v_mul_u32_u24 v{b2}, 896, v{b2}", b2, b2)
        V(f"v_add_u32 v{V_DWO}, v{a}, v{b2}", V_DWO, a, b2)
        e.salu(f"s_lshl_b32 s{S_WM0C}, s{S_W}, 11")
        e.salu(f"s_mul_i32 s{S_XOFF}, s{S_W}, {16 * 896}")

    def iss_wo0():
        wo_setup()
        return dma_wo_pair(e, ("D", 31), 0, V_DWO)
    p2_step(13, iss_wo0, push_next=push_kv, tagname="d")

    def push_v_only():
        fs.push(("pre", next_rd_kv))
        v_frags(jmajor=True)
    p2_step(14, lambda: dma_wo_pair(e, ("D", 32), 1, V_DWO), push_next=push_v_only, tagname="e")

    V_OF = 128
    ACC = [(V_S0, V_S1), (0, 16)]
    V_R = 32
    V_PK = 48
    V_RDK, V_RDS = V_RDA, V_RDB
    V_EXW = [56, 57, 58, 59]
    V_EXR = [60, 61, 62, 63]
    V_STO = V_DLIN

    def wo_patterns():
        a, b2 = V_T2, V_T3
        V(f"v_lshrrev_b32 v{a}, 5, v{L}", a, L)
        V(f"v_bfe_u32 v{b2}, v{L}, 2, 2", b2, L)
        V(f"v_lshl_add_u32 v{a}, v{a}, 3, v{b2}", a, a, b2)
        V(f"v_lshlrev_b32 v{a}, 7, v{a}", a, a)
        V(f"v_bfe_u32 v{b2}, v{L}, 3, 1", b2, L)
        V(f"v_xor_b32 v{b2}, s{S_HH}, v{b2}", b2, b2)
        V(f"v_lshl_add_u32 v{a}, v{b2}, 6, v{a}", a, b2, a)
        V(f"v_bfe_u32 v{b2}, v{L}, 4, 1", b2, L)
        V(f"v_lshl_add_u32 v{a}, v{b2}, 5, v{a}", a, b2, a)
        V(f"v_and_b32 v{b2}, 1, v{L}", b2, L)
        V(f"v_lshl_add_u32 v{a}, v{b2}, 4, v{a}", a, b2, a)
        V(f"v_bfe_u32 v{b2}, v{L}, 1, 1", b2, L)
        V(f"v_lshl_add_u32 v{a}, v{b2}, 3, v{a}", a, b2, a)
        e.salu(f"s_mul_i32 s{S_T3}, s{S_HH}, {TILE}")
        V(f"v_add_u32 v{V_PATA}, s{S_T3}, v{a}", V_PATA, a)

    def next_rd3():
        adv_slot(e, S_RD)
        V(f"v_add_u32 v{V_RDK}, s{S_RD}, v{V_PATA}", V_RDK, V_PATA)
        V(f"v_xor_b32 v{V_RDS}, 64, v{V_RDK}", V_RDS, V_RDK)

    def p3_frags():
        for kk in range(8):
            for which in (V_RDS, V_RDK):
                off = kk * 2048
                fs.push(rd_tr(e, which, off, off + 512))

    def push_p3_first():
        def pre():
            wo_patterns()
            next_rd3()
        fs.push(("pre", pre))
        p3_frags()

    def push_p3():
        fs.push(("pre", next_rd3))
        p3_frags()

    def norm_fillers(j):
        fl = []
        for i in range(16):
            r = 16 * j + i
            fl.append(lambda r=r: V(f"v_mul_f32 v{r}, v{r}, v{V_LSUM}", r, r, V_LSUM))
        for i in range(8):
            r = 16 * j + 2 * i
            fl.append(lambda r=r, i=i: e.valu(f"v_cvt_pk_bf16_f32 v{V_OF + 8 * j + i}, v{r}, v{r + 1}",
                                              dst=[V_OF + 8 * j + i], src=[r, r + 1]))
        return fl

    sc = V_S1
    for f in exp_fillers(sc):
        f()
    cross_half("v_add_f32", V_LSUM, V_TMP)
    e.valu(f"v_rcp_f32 v{V_LSUM}, v{V_LSUM}", dst=[V_LSUM], src=[V_LSUM], trans=True)
    pend = []
    for idx in range(16):
        j, ks2 = idx >> 1, idx & 1
        consume_mfma(V_O + 16 * j, sc + 4 * ks2, V_O + 16 * j)
        if idx == 3:
            e.wait_vm(("D", 31))
            e.salu("s_barrier")
            defer(dma_wo_pair(e, ("D", 33), 2, V_DWO), SP2)
            push_p3_first()
        if ks2 == 1 and j >= 2:
            pend += norm_fillers(j - 2)
        for _ in range(12):
            if pend:
                pend.pop(0)()
    pend += norm_fillers(6) + norm_fillers(7)
    stamp(e, 3)

    V_SPK = 56
    V_EXW1, V_EXR1, V_OUTO, V_FLG, V_AT = V_T2, V_T3, V_TMAX, V_TMP, V_NEGM
    V_LD = 64
    FLAGS = RING + 16384

    def p3_setup():
        e.salu(f"s_lshl_b32 s{S_T0}, s{S_W}, 11")
        e.salu(f"s_add_u32 s{S_T0}, s{S_T0}, {RING}")
        V(f"v_add_u32 v{V_EXW1}, s{S_T0}, v{V_DLIN}", V_EXW1, V_DLIN)
        e.salu(f"s_xor_b32 s{S_T0}, s{S_W}, 4")
        e.salu(f"s_lshl_b32 s{S_T0}, s{S_T0}, 11")
        e.salu(f"s_add_u32 s{S_T0}, s{S_T0}, {RING}")
        V(f"v_add_u32 v{V_EXR1}, s{S_T0}, v{V_DLIN}", V_EXR1, V_DLIN)
        e.salu(f"s_mul_i32 s{S_POFF}, s{S_W}, {7 * 2048}")
        e.salu(f"s_mov_b32 s{S_LOFF}, s{S_POFF}")
        V(f"v_and_b32 v{V_OUTO}, 31, v{L}", V_OUTO, L)
        V(f"v_mul_u32_u24 v{V_OUTO}, 1792, v{V_OUTO}", V_OUTO, V_OUTO)
        V(f"v_lshrrev_b32 v{V_FLG}, 5, v{L}", V_FLG, L)
        V(f"v_lshl_add_u32 v{V_OUTO}, v{V_FLG}, 4, v{V_OUTO}", V_OUTO, V_FLG, V_OUTO)
        e.salu(f"s_mov_b32 s{S_C}, 0xffff0000")

    def send_fillers(s_):
        acc_s = ACC[s_ & 1][1]
        fl = []
        for i in range(8):
            fl.append(lambda i=i: e.valu(f"v_cvt_pk_bf16_f32 v{V_SPK + i}, v{acc_s + 2 * i}, v{acc_s + 2 * i + 1}",
                                         dst=[V_SPK + i], src=[acc_s + 2 * i, acc_s + 2 * i + 1]))
        for i in range(2):
            fl.append(lambda i=i: e.ds(f"ds_write_b128 v{V_EXW1}, {vr(V_SPK + 4 * i, 4)} offset:{1024 * i}", ("exw", s_),
                                       src=range(V_SPK + 4 * i, V_SPK + 4 * i + 4)))
        return fl

    def recv_reads(s_):
        for i in range(2):
            e.ds(f"ds_read_b128 {vr(V_PK + 4 * i, 4)}, v{V_EXR1} offset:{1024 * i}", ("exr", s_),
                 dst=range(V_PK + 4 * i, V_PK + 4 * i + 4))

    def fin_fillers(s_):
        acc_k = ACC[s_ & 1][0]
        fl = [lambda: e.wait_lds(("exr", s_))]
        for i in range(8):
            fl.append(lambda i=i: V(f"v_lshlrev_b32 v{V_R + 2 * i}, 16, v{V_PK + i}", V_R + 2 * i, V_PK + i))
            fl.append(lambda i=i: V(f"v_and_b32 v{V_R + 2 * i + 1}, s{S_C}, v{V_PK + i}", V_R + 2 * i + 1, V_PK + i))
        for i in range(16):
            fl.append(lambda i=i: V(f"v_add_f32 v{V_R + i}, v{V_R + i}, v{acc_k + i}", V_R + i, V_R + i, acc_k + i))
        for i in range(8):
            fl.append(lambda i=i: e.valu(f"v_cvt_pk_bf16_f32 v{V_PK + i}, v{V_R + 2 * i}, v{V_R + 2 * i + 1}",
                                         dst=[V_PK + i], src=[V_R + 2 * i, V_R + 2 * i + 1]))

        def st():
            for q4 in range(2):
                rg = V_PK + 4 * q4
                e.vmem(f"buffer_store_dwordx4 {vr(rg, 4)}, v{V_STO}, s[{S_P}:{S_P + 3}], s{S_POFF} offen offset:{q4 * 1024} sc1",
                       ("st", s_), src=range(rg, rg + 4))
            e.salu(f"s_add_u32 s{S_POFF}, s{S_POFF}, 2048")
            e.nop(1)
        fl.append(st)
        return fl

    def p3_step(p, issue, push, extra=None):
        G = 31 + p
        s_, i = p >> 1, p & 1
        acc_k, acc_s = ACC[s_ & 1]
        ext = list(extra) if extra else []
        pre = []
        post = []
        if i == 0 and s_ >= 1:
            pre += send_fillers(s_ - 1)
        for idx in range(16):
            kk, which = idx >> 1, idx & 1
            acc = acc_s if which == 0 else acc_k
            first = (i == 0 and kk == 0)
            consume_mfma(acc, V_OF + 4 * (8 * i + kk), None if first else acc)
            if idx >= 1:
                for _ in range(6):
                    if pre:
                        pre.pop(0)()
                    elif ext:
                        ext.pop(0)()
                        if ext:
                            ext.pop(0)()
                    elif post and idx > BAR3 + 2:
                        post.pop(0)()
            if idx == BAR3:
                assert not pre
                if i == 0 and s_ >= 1:
                    e.wait_lds(("exw", s_ - 1))
                e.wait_vm(("D", G + 1))
                e.salu("s_barrier")
                if i == 0 and s_ >= 1:
                    recv_reads(s_ - 1)
                    post = fin_fillers(s_ - 1)
                defer(issue(), SP3)
                if push:
                    push_p3()
        assert not post and not pre and not ext

    p3_setup()

    def iss3(p):
        return (lambda: dma_wo_pair(e, ("D", 31 + p), p, V_DWO)) if p <= 13 else (lambda: [])

    p3_step(0, iss3(3), True, extra=pend)
    for p in range(1, 13):
        p3_step(p, iss3(p + 3), True)
    p3_step(13, iss3(16), False)
    for f in send_fillers(6):
        f()
    e.wait_lds(("exw", 6))
    e.salu("s_barrier")
    recv_reads(6)
    for f in fin_fillers(6):
        f()
    stamp(e, 4)
    e.raw("s_waitcnt vmcnt(0)")
    e.vm_q = []
    e.salu("s_barrier")
    e.salu(f"s_and_b32 s{S_T2}, s2, 7")
    e.salu(f"s_cmp_lg_u32 s{S_W}, 0")
    e.salu("s_cbranch_scc1 L_rd_wait")
    e.salu("s_mov_b64 exec, 1")
    e.raw(f"v_mov_b32 v{V_AT}, 1")
    e.raw(f"v_mov_b32 v{V_FLG}, 0")
    e.raw(f"buffer_atomic_add v{V_AT}, v{V_FLG}, s[{S_DBG}:{S_DBG + 3}], s{S_BB4} offen sc0 sc1")
    e.raw("s_waitcnt vmcnt(0)")
    e.raw(f"v_readfirstlane_b32 s{S_T0}, v{V_AT}")
    e.salu("s_nop 3")
    e.salu(f"s_lshl_b32 s{S_FL}, 1, s{S_T2}")
    e.salu(f"s_and_b32 s{S_T1}, s{S_T0}, 15")
    e.salu(f"s_cmp_eq_u32 s{S_T1}, 7")
    e.salu("s_cbranch_scc0 L_rd_poll0")
    e.salu(f"s_bfe_u32 s{S_T1}, s{S_T0}, {(8 << 16) | 8}")
    e.salu(f"s_or_b32 s{S_FL}, s{S_FL}, s{S_T1}")
    e.salu("s_branch L_rd_pub")
    e.label("L_rd_poll0")
    e.salu(f"s_mov_b32 s{S_CNT}, {NPOLL}")
    e.label("L_rd_poll")
    e.raw(f"buffer_load_dword v{V_AT}, v{V_FLG}, s[{S_DBG}:{S_DBG + 3}], s{S_BB4} offen sc1")
    e.raw("s_waitcnt vmcnt(0)")
    e.raw(f"v_readfirstlane_b32 s{S_T0}, v{V_AT}")
    e.salu("s_nop 3")
    e.salu(f"s_and_b32 s{S_T1}, s{S_T0}, 15")
    e.salu(f"s_cmp_eq_u32 s{S_T1}, 8")
    e.salu("s_cbranch_scc1 L_rd_pub")
    e.salu("s_sleep 2")
    e.salu(f"s_sub_u32 s{S_CNT}, s{S_CNT}, 1")
    e.salu(f"s_cmp_lg_u32 s{S_CNT}, 0")
    e.salu("s_cbranch_scc1 L_rd_poll")
    e.salu(f"s_lshl_b32 s{S_T1}, s{S_FL}, 8")
    e.raw(f"v_mov_b32 v{V_AT}, s{S_T1}")
    e.raw(f"buffer_atomic_add v{V_AT}, v{V_FLG}, s[{S_DBG}:{S_DBG + 3}], s{S_BB4} offen sc0 sc1")
    e.raw("s_waitcnt vmcnt(0)")
    e.raw(f"v_readfirstlane_b32 s{S_T0}, v{V_AT}")
    e.salu("s_nop 3")
    e.salu(f"s_and_b32 s{S_T1}, s{S_T0}, 15")
    e.salu(f"s_cmp_eq_u32 s{S_T1}, 8")
    e.salu(f"s_cselect_b32 s{S_FL}, s{S_FL}, 0")
    e.label("L_rd_pub")
    e.raw(f"v_mov_b32 v{V_AT}, s{S_FL}")
    e.raw(f"v_mov_b32 v{V_FLG}, {FLAGS}")
    e.raw(f"ds_write_b32 v{V_FLG}, v{V_AT}")
    e.salu("s_mov_b64 exec, -1")
    e.raw("s_waitcnt lgkmcnt(0)")
    e.label("L_rd_wait")
    e.salu("s_barrier")
    e.raw(f"v_mov_b32 v{V_FLG}, {FLAGS}")
    e.raw(f"ds_read_b32 v{V_FLG}, v{V_FLG}")
    e.raw("s_waitcnt lgkmcnt(0)")
    e.raw(f"v_readfirstlane_b32 s{S_FL}, v{V_FLG}")
    e.salu("s_nop 3")
    e.salu(f"s_cmp_eq_u32 s{S_W}, 7")
    e.salu(f"s_cselect_b32 s{S_FL}, 0, s{S_FL}")
    e.label("L_rd_loop")
    e.salu(f"s_cmp_eq_u32 s{S_FL}, 0")
    e.salu("s_cbranch_scc1 L_rd_done")
    e.salu(f"s_ff1_i32_b32 s{S_T2}, s{S_FL}")
    e.salu(f"s_bitset0_b32 s{S_FL}, s{S_T2}")
    e.salu(f"s_mul_i32 s{S_T0}, s{S_T2}, 7")
    e.salu(f"s_add_u32 s{S_T0}, s{S_T0}, s{S_W}")
    e.salu(f"s_lshl_b32 s{S_T0}, s{S_T0}, 11")
    for h in range(8):
        for p2 in range(2):
            rg = V_LD + 8 * h + 4 * p2
            e.raw(f"buffer_load_dwordx4 {vr(rg, 4)}, v{V_STO}, s[{S_G}:{S_G + 3}], s{S_T0} offen offset:{1024 * p2} sc1")
        if h < 7:
            e.salu(f"s_add_u32 s{S_T0}, s{S_T0}, 114688")
    e.salu(f"s_and_b32 s{S_T1}, s{S_T2}, 3")
    e.salu(f"s_mul_i32 s{S_T1}, s{S_T1}, {32 * 1792}")
    e.salu(f"s_add_u32 s{S_T1}, s{S_T1}, s{S_OOFF}")
    e.salu(f"s_lshr_b32 s{S_T3}, s{S_T2}, 2")
    e.salu(f"s_lshl_b32 s{S_T3}, s{S_T3}, 6")
    e.salu(f"s_add_u32 s{S_T1}, s{S_T1}, s{S_T3}")
    e.salu(f"s_lshl_b32 s{S_T3}, s{S_W}, 7")
    e.salu(f"s_add_u32 s{S_T1}, s{S_T1}, s{S_T3}")
    for h in range(8):
        e.raw(f"s_waitcnt vmcnt({2 * (7 - h)})")
        for i in range(8):
            r = V_LD + 8 * h + i
            if h == 0:
                e.raw(f"v_lshlrev_b32 v{V_R + 2 * i}, 16, v{r}")
                e.raw(f"v_and_b32 v{V_R + 2 * i + 1}, s{S_C}, v{r}")
            else:
                e.raw(f"v_lshlrev_b32 v{V_PK}, 16, v{r}")
                e.raw(f"v_and_b32 v{V_PK + 1}, s{S_C}, v{r}")
                e.raw(f"v_add_f32 v{V_R + 2 * i}, v{V_R + 2 * i}, v{V_PK}")
                e.raw(f"v_add_f32 v{V_R + 2 * i + 1}, v{V_R + 2 * i + 1}, v{V_PK + 1}")
    for i in range(8):
        e.raw(f"v_cvt_pk_bf16_f32 v{V_PK + i}, v{V_R + 2 * i}, v{V_R + 2 * i + 1}")
    for p2 in range(2):
        rg = V_PK + 4 * p2
        e.raw(f"buffer_store_dwordx4 {vr(rg, 4)}, v{V_OUTO}, s[{S_OUT}:{S_OUT + 3}], s{S_T1} offen offset:{32 * p2}")
    e.raw("s_waitcnt vmcnt(0)")
    e.salu("s_branch L_rd_loop")
    e.label("L_rd_done")
    stamp(e, 5)
    stamp_flush(e, 8)
    e.label("L_attn_exit")
    e.salu("s_endpgm")

    for tg in rare:
        e.label(f"L_rare_{tg}")
        e.raw("s_nop 15", 16)
        e.raw(f"v_mov_b32 v{V_TMP}, v{V_TMAX}")
        e.raw("s_nop 1", 2)
        e.raw(f"v_permlane32_swap_b32 v{V_TMAX}, v{V_TMP}")
        e.raw(f"v_max_f32 v{V_TMAX}, v{V_TMAX}, v{V_TMP}")
        e.raw(f"v_mul_f32 v{V_TMAX}, s{S_NC}, v{V_TMAX}")
        e.raw(f"v_min_f32 v{V_TMAX}, v{V_TMAX}, v{V_NEGM}")
        e.raw(f"v_sub_f32 v{V_TMP}, v{V_TMAX}, v{V_NEGM}")
        e.raw(f"v_exp_f32 v{V_TMP}, v{V_TMP}")
        e.raw(f"v_mov_b32 v{V_NEGM}, v{V_TMAX}")
        e.raw("s_nop 0")
        e.raw(f"v_mul_f32 v{V_LSUM}, v{V_LSUM}, v{V_TMP}")
        for i in range(128):
            e.raw(f"v_mul_f32 v{i}, v{i}, v{V_TMP}")
        e.raw("s_nop 1", 2)
        e.raw(f"s_branch L_back_{tg}")


def gen_reduce(e):
    e.label("reduce_kernel")
    e.salu("s_cmp_ge_u32 s2, 896")
    e.salu("s_cbranch_scc1 L_red_exit")
    e.salu("s_load_dwordx2 s[4:5], s[0:1], 80")
    e.salu("s_load_dwordx2 s[6:7], s[0:1], 96")
    e.salu("s_mul_hi_u32 s8, s2, 0x924924a")
    e.salu("s_mul_i32 s9, s8, 28")
    e.salu("s_sub_u32 s9, s2, s9")
    e.salu("s_lshl_b32 s9, s9, 1")
    e.raw("v_and_b32 v1, 63, v0")
    e.raw("v_bfe_u32 v2, v0, 6, 1")
    e.raw("v_lshrrev_b32 v3, 7, v0")
    e.raw("v_add_u32 v3, s9, v3")
    e.raw("v_lshlrev_b32 v4, 11, v3")
    e.raw("v_lshl_add_u32 v4, v2, 10, v4")
    e.raw("v_lshl_add_u32 v4, v1, 4, v4")
    e.salu("s_waitcnt lgkmcnt(0)")
    e.salu("s_mul_i32 s10, s8, 917504")
    e.salu("s_add_u32 s6, s6, s10")
    e.salu("s_addc_u32 s7, s7, 0")
    e.salu("s_mov_b32 s12, s6")
    e.salu("s_and_b32 s13, s7, 0xffff")
    e.salu("s_mov_b32 s14, 917504")
    e.salu("s_mov_b32 s15, 0x00020000")
    e.salu("s_mov_b32 s16, s4")
    e.salu("s_and_b32 s17, s5, 0xffff")
    e.salu("s_mov_b32 s18, 3670016")
    e.salu("s_mov_b32 s19, 0x00020000")
    for h in range(8):
        e.salu(f"s_mov_b32 s20, {h * 114688}")
        e.raw(f"buffer_load_dwordx4 v[{24 + 4 * h}:{27 + 4 * h}], v4, s[12:15], s20 offen{RDPOL}")
    e.raw("v_mul_u32_u24 v5, 37, v3")
    e.raw("v_lshrrev_b32 v5, 8, v5")
    e.raw("v_mul_u32_u24 v6, 7, v5")
    e.raw("v_sub_u32 v6, v3, v6")
    e.raw("v_and_b32 v7, 3, v5")
    e.raw("v_lshrrev_b32 v5, 2, v5")
    e.raw("v_and_b32 v8, 31, v1")
    e.raw("v_lshl_add_u32 v8, v7, 5, v8")
    e.raw("v_lshlrev_b32 v9, 6, v6")
    e.raw("v_lshl_add_u32 v9, v5, 5, v9")
    e.raw("v_lshl_add_u32 v9, v2, 4, v9")
    e.raw("v_lshrrev_b32 v10, 5, v1")
    e.raw("v_lshl_add_u32 v9, v10, 3, v9")
    e.salu("s_and_b32 s21, s8, 15")
    e.salu("s_lshr_b32 s22, s8, 4")
    e.salu("s_mul_i32 s21, s21, 229376")
    e.salu("s_mul_i32 s22, s22, 896")
    e.salu("s_add_u32 s21, s21, s22")
    e.salu("s_mov_b32 s23, 0xffff0000")
    e.raw("v_mul_u32_u24 v8, 1792, v8")
    e.raw("v_lshl_add_u32 v8, v9, 1, v8")
    for h in range(8):
        e.salu(f"s_waitcnt vmcnt({7 - h})")
        for i in range(4):
            r = 24 + 4 * h + i
            if h == 0:
                e.raw(f"v_lshlrev_b32 v{16 + 2 * i}, 16, v{r}")
                e.raw(f"v_and_b32 v{17 + 2 * i}, s23, v{r}")
            else:
                e.raw(f"v_lshlrev_b32 v11, 16, v{r}")
                e.raw(f"v_and_b32 v12, s23, v{r}")
                e.raw(f"v_add_f32 v{16 + 2 * i}, v{16 + 2 * i}, v11")
                e.raw(f"v_add_f32 v{17 + 2 * i}, v{17 + 2 * i}, v12")
    for i in range(4):
        e.raw(f"v_cvt_pk_bf16_f32 v{12 + i}, v{16 + 2 * i}, v{17 + 2 * i}")
    e.raw("buffer_store_dwordx4 v[12:15], v8, s[16:19], s21 offen")
    e.label("L_red_exit")
    e.salu("s_endpgm")


def main():
    ref = open(OUT + ".ref").read().splitlines()
    head = [l for l in ref if l.startswith(";") and "@launch" not in l]
    out = list(head)
    K = NAME + "_kernel"
    out.append(f"; @launch grid=(256,1,1) block=(512,1,1) lds={LDS_BYTES}")
    out.append('.amdgcn_target "amdgcn-amd-amdhsa--gfx950"')
    out.append(".text")
    e = Em()
    out += [f".globl {K}", ".p2align 8", f".type {K},@function"]
    gen_attn(e)
    out += [l.replace("attn_kernel:", K + ":") for l in e.lines]
    out.append('.section .rodata,"a"')
    out += [".p2align 6", f".amdhsa_kernel {K}",
            "  .amdhsa_next_free_vgpr 256",
            "  .amdhsa_next_free_sgpr 102",
            "  .amdhsa_accum_offset 256",
            "  .amdhsa_group_segment_fixed_size 0",
            "  .amdhsa_kernarg_size 104",
            "  .amdhsa_user_sgpr_count 2",
            "  .amdhsa_user_sgpr_kernarg_segment_ptr 1",
            "  .amdhsa_system_sgpr_workgroup_id_x 1",
            ".end_amdhsa_kernel"]
    open(OUTFILE, "w").write("\n".join(out) + "\n")
    print("wrote", OUTFILE, len(out), "lines")


if __name__ == "__main__":
    main()
```

```python
import math
import sys
import os

NAME = "concat_heads__gqa_block_cached__gqa_block_cached__near_ridge"
OUT = f"cdna_kernels/{NAME}.s"
OUTFILE = sys.argv[1] if len(sys.argv) > 1 else OUT

STAMPS = os.environ.get("STAMPS", "0") == "1"
X_NOVM = os.environ.get("NOVM", "0") == "1"
X_NOBAR = os.environ.get("NOBAR", "0") == "1"
X_NODMA = os.environ.get("NODMA", "0") == "1"

ROTMASK = int(os.environ.get("ROTMASK", "15"))
TILE = 17408
PAIR = 2 * TILE
RING = 4 * PAIR
LDS_BYTES = 160 * 1024


class Em:
    def __init__(self):
        self.lines = []
        self.pos = 0
        self.mfma_w = {}
        self.mfma_c = {}
        self.valu_w = {}
        self.trans_w = {}
        self.lds_q = []
        self.vm_q = []
        self.capture = None

    def raw(self, s, slots=1):
        (self.capture if self.capture is not None else self.lines).append("    " + s)
        self.pos += slots

    def label(self, s):
        (self.capture if self.capture is not None else self.lines).append(s + ":")

    def comment(self, s):
        (self.capture if self.capture is not None else self.lines).append("    ; " + s)

    def nop(self, n):
        while n > 0:
            k = min(n, 16)
            self.raw(f"s_nop {k - 1}", k)
            n -= k

    def _need(self, table, regs, dist):
        need = 0
        for r in regs:
            p = table.get(r)
            if p is not None:
                have = self.pos - p - 1
                need = max(need, dist - have)
        return need

    def salu(self, s):
        if X_NOBAR and s == "s_barrier":
            s = "s_nop 0"
        self.raw(s)

    def valu(self, s, dst=(), src=(), trans=False):
        n = self._need(self.mfma_w, list(dst) + list(src), 12)
        n = max(n, self._need(self.mfma_c, dst, 7))
        if not trans:
            n = max(n, self._need(self.trans_w, src, 1))
        if n > 0:
            self.nop(n)
        p = self.pos
        self.raw(s)
        for r in dst:
            self.valu_w[r] = p
            if trans:
                self.trans_w[r] = p
            else:
                self.trans_w.pop(r, None)

    def mfma(self, d, a, b, c):
        D = list(range(d, d + 16))
        A = list(range(a, a + 4))
        B = list(range(b, b + 4))
        C = list(range(c, c + 16)) if c is not None else []
        n = self._need(self.valu_w, A + B + C, 2)
        n = max(n, self._need(self.mfma_w, A + B, 12))
        if c is not None and c != d:
            n = max(n, self._need(self.mfma_w, C, 10))
        if c is None:
            pass
        if n > 0:
            self.nop(n)
        p = self.pos
        cs = f"v[{c}:{c + 15}]" if c is not None else "0"
        self.raw(f"v_mfma_f32_32x32x16_bf16 v[{d}:{d + 15}], v[{a}:{a + 3}], v[{b}:{b + 3}], {cs}")
        for r in D:
            self.mfma_w[r] = p
        for r in C:
            self.mfma_c[r] = p

    def ds(self, s, tag, dst=(), src=()):
        n = self._need(self.mfma_w, list(dst) + list(src), 12)
        if n > 0:
            self.nop(n)
        self.raw(s)
        self.lds_q.append(tag)
        assert len(self.lds_q) <= 15, "too many LDS ops outstanding"

    def vmem(self, s, tag, dst=(), src=()):
        n = self._need(self.mfma_w, list(dst) + list(src), 12)
        if n > 0:
            self.nop(n)
        self.raw(s)
        self.vm_q.append(tag)
        assert len(self.vm_q) <= 63

    def wait_lds(self, tag):
        idx = max((i for i, t in enumerate(self.lds_q) if t == tag), default=-1)
        if idx < 0:
            return
        n = len(self.lds_q) - 1 - idx
        self.raw(f"s_waitcnt lgkmcnt({n})")
        self.lds_q = self.lds_q[idx + 1:]

    def wait_lds_all(self):
        if self.lds_q:
            self.raw("s_waitcnt lgkmcnt(0)")
            self.lds_q = []

    def wait_vm(self, tag):
        idx = max((i for i, t in enumerate(self.vm_q) if t == tag), default=-1)
        if idx < 0:
            return
        n = len(self.vm_q) - 1 - idx
        if X_NOVM and tag[0] == "D":
            self.raw("s_nop 0")
        else:
            self.raw(f"s_waitcnt vmcnt({n})")
        self.vm_q = self.vm_q[idx + 1:]

    def wait_vm_all(self):
        if self.vm_q:
            self.raw("s_waitcnt vmcnt(0)")
            self.vm_q = []

    def loop(self, name, n, body, counter):
        assert self.capture is None
        self.salu(f"s_mov_b32 {counter}, {n}")
        texts = []
        for i in range(n):
            self.capture = []
            body(i)
            self.salu(f"s_sub_u32 {counter}, {counter}, 1")
            self.salu(f"s_cmp_lg_u32 {counter}, 0")
            self.salu(f"s_cbranch_scc1 {name}")
            texts.append(self.capture)
            self.capture = None
        for i in range(1, n):
            if texts[i] != texts[0]:
                for a, b in zip(texts[0], texts[i]):
                    if a != b:
                        print("LOOP MISMATCH", name, i, a, "|", b)
                        break
                raise SystemExit(f"loop {name}: iteration {i} differs from iteration 0")
        self.label(name)
        self.lines.extend(texts[0])


def vr(base, n):
    return f"v[{base}:{base + n - 1}]"


S_X, S_K, S_V, S_WQ, S_WO, S_P = 8, 12, 16, 20, 24, 28
S_W = 32
S_HH = 33
S_QB = 34
S_RD = 35
S_DM = 36
S_T0, S_T1, S_T2, S_T3 = 37, 38, 39, 40
S_CNT = 41
S_C = 42
S_NC = 43
S_THR = 44
S_OFFA = 45
S_OFFB = 46
S_XOFF = 47
S_WM0A = 48
S_WM0B = 49
S_POFF = 50
S_EXW = 51
S_EXR = 52
S_D0, S_D1 = 53, 54
S_B = 78
S_WM0C = 55
S_KA = 56

V_O = 0
V_Q = 128
V_X = 128
V_S0, V_S1 = 192, 208
V_FR = 224
V_M = 240
V_PATA, V_PATB, V_RDA, V_RDB = 240, 241, 242, 243
V_DLIN, V_DK = 244, 245
V_NEGM, V_LSUM, V_TMAX, V_TMP = 246, 247, 248, 249
V_XOFF = 250
V_LANE = 251
V_T2 = 252
V_T3 = 253

import os

S_ST = 80


def stamp(e, i):
    if not STAMPS:
        return
    e.raw("s_memtime s[90:91]")
    e.raw("s_waitcnt lgkmcnt(0)")
    e.lds_q = []
    e.salu(f"s_mov_b32 s{S_ST + i}, s90")
    if i in (0, 5):
        e.raw("s_memrealtime s[90:91]")
        e.raw("s_waitcnt lgkmcnt(0)")
        e.salu(f"s_mov_b32 s{S_ST + 6 + (i == 5)}, s90")


def stamp_flush(e, n):
    if not STAMPS:
        return
    e.salu("s_load_dwordx2 s[90:91], s[0:1], 96")
    e.salu("s_waitcnt lgkmcnt(0)")
    e.salu("s_add_u32 s90, s90, 0x8000000")
    e.salu("s_addc_u32 s91, s91, 0")
    e.salu("s_mov_b32 s92, s90")
    e.salu("s_and_b32 s93, s91, 0xffff")
    e.salu("s_mov_b32 s94, 0x100000")
    e.salu("s_mov_b32 s95, 0x00020000")
    e.salu(f"s_lshl_b32 s90, s2, 3")
    e.salu(f"s_add_u32 s90, s90, s{S_W}")
    e.salu(f"s_lshl_b32 s90, s90, 6")
    e.raw("s_nop 15", 16)
    e.raw("v_mov_b32 v1, 0")
    for i in range(n):
        e.raw(f"v_mov_b32 v0, s{S_ST + i}")
        e.raw(f"buffer_store_dword v0, v1, s[92:95], s90 offen offset:{4 * i}")
        e.raw("s_waitcnt vmcnt(0)")


SP1 = int(os.environ.get("SP1", "1"))
SP2 = int(os.environ.get("SP2", "3"))
SP3 = int(os.environ.get("SP3", "2"))
BAR3 = int(os.environ.get("BAR3", "5"))
PF_WQ = os.environ.get("PF_WQ", "1") == "1"
PF_WO = os.environ.get("PF_WO", "1") == "1"
NB = 4
DPF = 3


def srd(e, dst, lo, hi, size):
    e.salu(f"s_mov_b32 s{dst}, s{lo}")
    e.salu(f"s_and_b32 s{dst + 1}, s{hi}, 0xffff")
    e.salu(f"s_mov_b32 s{dst + 2}, {size}")
    e.salu(f"s_mov_b32 s{dst + 3}, 0x00020000")


def adv_slot(e, s):
    e.salu(f"s_add_u32 s{s}, s{s}, {PAIR}")
    e.salu(f"s_cmp_ge_u32 s{s}, {RING}")
    e.salu(f"s_cselect_b32 s{S_T3}, {RING}, 0")
    e.salu(f"s_sub_u32 s{s}, s{s}, s{S_T3}")


KVPOL = os.environ.get("KVPOL", "nt")
STPOL = os.environ.get("STPOL", "sc1")
STPOL = (" " + STPOL) if STPOL else ""
RDPOL = os.environ.get("RDPOL", "")
RDPOL = (" " + RDPOL) if RDPOL else ""


def dma(e, voff, sr, soff, m0expr, tag, off=0):
    sg, imm = m0expr
    e.salu(f"s_add_u32 m0, s{sg}, {imm}")
    e.salu("s_nop 0")
    o = f" offset:{off}" if off else ""
    if X_NODMA:
        e.salu("s_nop 0")
        return
    pol = (" " + KVPOL) if (sr in (S_K, S_V) and KVPOL) else ""
    e.vmem(f"buffer_load_dwordx4 v{voff}, s[{sr}:{sr + 3}], s{soff} offen{o}{pol} lds", tag)


def dma_wq_pair(e, tag):
    e.salu(f"s_add_u32 s{S_D0}, s{S_DM}, s{S_WM0A}")
    adv_slot(e, S_DM)
    out = []
    for e2 in range(2):
        for ee in range(2):
            def f(e2=e2, ee=ee):
                e.salu(f"s_add_u32 s{S_T1}, s{S_OFFA}, {(16 * e2 + ee) * 8192}")
                dma(e, V_DLIN, S_WQ, S_T1, (S_D0, e2 * TILE + ee * 1088), tag)
                if e2 == 1 and ee == 1:
                    e.salu(f"s_add_u32 s{S_OFFA}, s{S_OFFA}, {32 * 8192}")
            out.append(f)
    return out


def dma_kv_pair(e, tag, k=True, v=True):
    e.salu(f"s_add_u32 s{S_D0}, s{S_DM}, s{S_WM0A}")
    e.salu(f"s_add_u32 s{S_D1}, s{S_DM}, s{S_WM0B}")
    adv_slot(e, S_DM)
    out = []
    if k:
        out.append(lambda: dma(e, V_DK, S_K, S_OFFA, (S_D0, 0), tag))

        def k2():
            dma(e, V_DK, S_K, S_OFFA, (S_D0, 32), tag, off=1024)
            e.salu(f"s_add_u32 s{S_OFFA}, s{S_OFFA}, 16384")
            e.salu(f"s_and_b32 s{S_OFFA}, s{S_OFFA}, 0x3ffff")
        out.append(k2)
    if v:
        out.append(lambda: dma(e, V_DLIN, S_V, S_OFFB, (S_D1, 0), tag))

        def v2():
            dma(e, V_DLIN, S_V, S_OFFB, (S_D1, 64), tag, off=1024)
            e.salu(f"s_add_u32 s{S_OFFB}, s{S_OFFB}, 16384")
            e.salu(f"s_and_b32 s{S_OFFB}, s{S_OFFB}, 0x3ffff")
        out.append(v2)
    return out


def dma_wo_pair(e, tag, p, vdwo):
    e.salu(f"s_add_u32 s{S_D0}, s{S_DM}, s{S_WM0C}")
    adv_slot(e, S_DM)
    out = []
    i = p & 1
    for hd in range(2):
        for ee in range(2):
            def f(hd=hd, ee=ee):
                e.salu(f"s_add_u32 s{S_T1}, s{S_XOFF}, {(256 * hd + 128 * i + 8 * ee) * 896}")
                dma(e, vdwo, S_WO, S_T1, (S_D0, hd * TILE + ee * 1024), tag)
                if hd == 1 and ee == 1 and i == 1:
                    e.salu(f"s_add_u32 s{S_XOFF}, s{S_XOFF}, 128")
            out.append(f)
    return out


class FragStream:
    def __init__(self, e, base=V_FR, nb=NB):
        self.e = e
        self.base = base
        self.nb = nb
        self.issued = 0
        self.queue = []

    def buf(self, i):
        return self.base + 4 * (i % self.nb)

    def push(self, fn):
        self.queue.append(fn)

    def issue_next(self):
        while self.queue:
            fn = self.queue.pop(0)
            if fn[0] == "pre":
                fn[1]()
                continue
            i = self.issued
            fn[1](self.buf(i), ("fr", i))
            self.issued += 1
            return True
        return False


def rd_tr(e, areg, off0, off1):
    def f(dst, tag):
        e.ds(f"ds_read_b64_tr_b16 {vr(dst, 2)}, v{areg} offset:{off0}", tag, dst=range(dst, dst + 2))
        e.ds(f"ds_read_b64_tr_b16 {vr(dst + 2, 2)}, v{areg} offset:{off1}", tag, dst=range(dst + 2, dst + 4))
    return ("rd", f)


def rd_128(e, areg, off):
    def f(dst, tag):
        e.ds(f"ds_read_b128 {vr(dst, 4)}, v{areg} offset:{off}", tag, dst=range(dst, dst + 4))
    return ("rd", f)


def gen_attn(e):
    e.label("attn_kernel")
    e.salu("s_cmp_ge_u32 s2, 256")
    e.salu("s_cbranch_scc1 L_attn_exit")
    e.salu(f"s_load_dwordx16 s[{S_KA}:{S_KA + 15}], s[0:1], 0")
    e.salu(f"s_load_dwordx4 s[{S_KA + 16}:{S_KA + 19}], s[0:1], 64")
    e.salu(f"s_load_dwordx2 s[{S_KA + 20}:{S_KA + 21}], s[0:1], 96")
    e.salu(f"s_and_b32 s{S_T0}, s2, 7")
    e.salu(f"s_lshr_b32 s{S_T1}, s2, 3")
    e.salu(f"s_and_b32 s{S_T2}, s{S_T1}, 15")
    e.salu(f"s_mov_b32 s{S_B}, s{S_T2}")
    e.valu(f"v_lshrrev_b32 v1, 6, v0", dst=[1], src=[0])
    e.valu(f"v_and_b32 v{V_LANE}, 63, v0", dst=[V_LANE], src=[0])
    e.salu("s_nop 0")
    e.raw(f"v_readfirstlane_b32 s{S_W}, v1")
    e.salu("s_nop 3")
    e.salu(f"s_lshr_b32 s{S_HH}, s{S_W}, 2")
    e.salu(f"s_and_b32 s{S_QB}, s{S_W}, 3")
    e.salu("s_waitcnt lgkmcnt(0)")
    e.salu(f"s_cmp_ge_u32 s{S_T1}, 16")
    for i in range(10):
        e.salu(f"s_cselect_b32 s{S_KA + i}, s{S_KA + 10 + i}, s{S_KA + i}")
    e.salu(f"s_mul_i32 s{S_T3}, s{S_T2}, 114688")
    e.salu(f"s_add_u32 s{S_KA}, s{S_KA}, s{S_T3}")
    e.salu(f"s_addc_u32 s{S_KA + 1}, s{S_KA + 1}, 0")
    srd(e, S_X, S_KA, S_KA + 1, 114688)
    e.salu(f"s_lshl_b32 s{S_T3}, s{S_T2}, 3")
    e.salu(f"s_add_u32 s{S_T3}, s{S_T3}, s{S_T0}")
    e.salu(f"s_lshl_b32 s{S_T3}, s{S_T3}, 18")
    e.salu(f"s_add_u32 s{S_KA + 2}, s{S_KA + 2}, s{S_T3}")
    e.salu(f"s_addc_u32 s{S_KA + 3}, s{S_KA + 3}, 0")
    srd(e, S_K, S_KA + 2, S_KA + 3, 262144)
    e.salu(f"s_add_u32 s{S_KA + 4}, s{S_KA + 4}, s{S_T3}")
    e.salu(f"s_addc_u32 s{S_KA + 5}, s{S_KA + 5}, 0")
    srd(e, S_V, S_KA + 4, S_KA + 5, 262144)
    e.salu(f"s_lshl_b32 s{S_T3}, s{S_T0}, 10")
    e.salu(f"s_add_u32 s{S_KA + 6}, s{S_KA + 6}, s{S_T3}")
    e.salu(f"s_addc_u32 s{S_KA + 7}, s{S_KA + 7}, 0")
    srd(e, S_WQ, S_KA + 6, S_KA + 7, 448 * 8192)
    e.salu(f"s_sub_u32 s{S_WQ + 2}, s{S_WQ + 2}, s{S_T3}")
    e.salu(f"s_mul_i32 s{S_T3}, s{S_T0}, 458752")
    e.salu(f"s_add_u32 s{S_KA + 8}, s{S_KA + 8}, s{S_T3}")
    e.salu(f"s_addc_u32 s{S_KA + 9}, s{S_KA + 9}, 0")
    srd(e, S_WO, S_KA + 8, S_KA + 9, 458752)
    e.salu(f"s_mul_i32 s{S_T3}, s2, 114688")
    e.salu(f"s_add_u32 s{S_KA + 20}, s{S_KA + 20}, s{S_T3}")
    e.salu(f"s_addc_u32 s{S_KA + 21}, s{S_KA + 21}, 0")
    srd(e, S_P, S_KA + 20, S_KA + 21, 114688)
    c = math.log2(math.e) / 16.0
    import struct
    cbits = struct.unpack("<I", struct.pack("<f", c))[0]
    ncbits = struct.unpack("<I", struct.pack("<f", -c))[0]
    e.salu(f"s_mov_b32 s{S_C}, {cbits:#x}")
    e.salu(f"s_mov_b32 s{S_NC}, {ncbits:#x}")
    e.salu(f"s_mov_b32 s{S_THR}, 0x41000000")

    stamp(e, 0)
    L = V_LANE
    t1, t2, t3, t4 = 1, 2, 3, 4

    def V(s, d, *src):
        e.valu(s, dst=[d], src=list(src))

    V(f"v_bfe_u32 v{t1}, v{L}, 4, 1", t1, L)
    V(f"v_lshlrev_b32 v5, 5, v{t1}", 5, t1)
    V(f"v_and_b32 v{t1}, 1, v{L}", t1, L)
    V(f"v_lshlrev_b32 v{t1}, 4, v{t1}", t1, t1)
    V(f"v_add_u32 v5, v5, v{t1}", 5, 5, t1)
    V(f"v_bfe_u32 v{t1}, v{L}, 1, 1", t1, L)
    V(f"v_lshlrev_b32 v{t1}, 3, v{t1}", t1, t1)
    V(f"v_add_u32 v5, v5, v{t1}", 5, 5, t1)
    V(f"v_lshrrev_b32 v6, 5, v{L}", 6, L)
    V(f"v_bfe_u32 v7, v{L}, 2, 2", 7, L)
    V(f"v_lshlrev_b32 v{V_DLIN}, 4, v{L}", V_DLIN, L)
    V(f"v_and_b32 v{t1}, 31, v{L}", t1, L)
    V(f"v_xor_b32 v{t1}, v{t1}, v6", t1, t1, 6)
    V(f"v_lshlrev_b32 v{t1}, 4, v{t1}", t1, t1)
    V(f"v_lshl_add_u32 v{V_DK}, v6, 9, v{t1}", V_DK, 6, t1)
    V(f"v_lshl_add_u32 v{t1}, v6, 3, v7", t1, 6, 7)
    V(f"v_mul_u32_u24 v{t1}, 1088, v{t1}", t1, t1)
    V(f"v_add_u32 v{t1}, v{t1}, v5", t1, t1, 5)
    e.salu(f"s_lshl_b32 s{S_T3}, s{S_HH}, 9")
    V(f"v_add_u32 v{V_PATA}, s{S_T3}, v{t1}", V_PATA, t1)
    V(f"v_bfe_u32 v{t1}, v{L}, 4, 2", t1, L)
    V(f"v_and_b32 v{t2}, 3, v{L}", t2, L)
    V(f"v_xor_b32 v{t1}, v{t1}, v{t2}", t1, t1, t2)
    V(f"v_lshlrev_b32 v{t1}, 4, v{t1}", t1, t1)
    V(f"v_lshrrev_b32 v{t2}, 2, v{L}", t2, L)
    V(f"v_mul_u32_u24 v{t2}, 896, v{t2}", t2, t2)
    V(f"v_add_u32 v{V_XOFF}, v{t1}, v{t2}", V_XOFF, t1, t2)
    V(f"v_and_b32 v{t1}, 31, v{L}", t1, L)
    e.salu(f"s_lshl_b32 s{S_T3}, s{S_QB}, 5")
    V(f"v_add_u32 v{t1}, s{S_T3}, v{t1}", t1, t1)
    V(f"v_lshlrev_b32 v{t1}, 6, v{t1}", t1, t1)
    V(f"v_bfe_u32 v{t2}, v{L}, 2, 2", t2, L)
    V(f"v_xor_b32 v{t2}, v{t2}, v6", t2, t2, 6)
    V(f"v_lshl_add_u32 v{t1}, v{t2}, 4, v{t1}", t1, t2, t1)
    V(f"v_add_u32 v{V_PATB}, {RING}, v{t1}", V_PATB, t1)

    e.salu(f"s_mul_i32 s{S_WM0A}, s{S_W}, {2 * 1088}")
    e.salu(f"s_lshl_b32 s{S_OFFA}, s{S_W}, 14")
    e.salu(f"s_mov_b32 s{S_DM}, 0")
    e.salu(f"s_mov_b32 s{S_RD}, 0")
    e.salu(f"s_mul_i32 s{S_XOFF}, s{S_W}, {16 * 896}")
    e.salu(f"s_lshl_b32 s{S_EXW}, s{S_W}, 10")
    e.salu(f"s_add_u32 s{S_EXW}, s{S_EXW}, {RING}")
    e.salu(f"s_mov_b32 s{S_EXR}, 0")
    e.salu(f"s_mov_b32 s{S_POFF}, 0")

    def adv_x(sr):
        e.salu(f"s_add_u32 s{sr}, s{sr}, 8192")
        e.salu(f"s_cmp_ge_u32 s{sr}, 24576")
        e.salu(f"s_cselect_b32 s{sr}, 0, s{sr}")

    def xdma(tag):
        e.salu(f"s_add_u32 s{S_T0}, s{S_EXW}, s{S_POFF}")
        dma(e, V_XOFF, S_X, S_XOFF, (S_T0, 0), tag)
        e.salu(f"s_add_u32 s{S_XOFF}, s{S_XOFF}, 64")
        adv_x(S_POFF)

    def xread(xi, G):
        V(f"v_add_u32 v{V_RDB}, s{S_EXR}, v{V_PATB}", V_RDB, V_PATB)
        e.ds(f"ds_read_b128 {vr(V_X + 4 * xi, 4)}, v{V_RDB}", ("x", 2 * G), dst=range(V_X + 4 * xi, V_X + 4 * xi + 4))
        V(f"v_xor_b32 v{V_RDB}, 32, v{V_RDB}", V_RDB, V_RDB)
        e.ds(f"ds_read_b128 {vr(V_X + 4 * xi + 4, 4)}, v{V_RDB}", ("x", 2 * G + 1),
             dst=range(V_X + 4 * xi + 4, V_X + 4 * xi + 8))
        adv_x(S_EXR)

    def run(lst):
        for f in lst:
            f()
    run(dma_wq_pair(e, ("D", 0)))
    xdma(("X", 0))
    run(dma_wq_pair(e, ("D", 1)))
    xdma(("X", 1))
    run(dma_wq_pair(e, ("D", 2)))
    if PF_WQ:
        V(f"v_lshrrev_b32 v{t1}, 4, v{L}", t1, L)
        V(f"v_lshlrev_b32 v{t1}, 13, v{t1}", t1, t1)
        V(f"v_and_b32 v{t2}, 15, v{L}", t2, L)
        V(f"v_lshl_add_u32 v{t1}, v{t2}, 6, v{t1}", t1, t2, t1)
        e.salu(f"s_mul_i32 s{S_T0}, s{S_B}, 28")
        e.salu(f"s_lshl_b32 s{S_T1}, s{S_W}, 2")
        e.salu(f"s_add_u32 s{S_T0}, s{S_T0}, s{S_T1}")
        e.salu(f"s_lshl_b32 s{S_T0}, s{S_T0}, 13")
        e.raw(f"buffer_load_dword v254, v{t1}, s[{S_WQ}:{S_WQ + 3}], s{S_T0} offen")
    for i in range(128):
        V(f"v_mov_b32 v{V_O + i}, 0", V_O + i)
    V(f"v_add_u32 v{V_RDA}, s{S_RD}, v{V_PATA}", V_RDA, V_PATA)
    e.wait_vm(("X", 0))
    e.salu("s_barrier")

    stamp(e, 1)
    xread(0, 0)
    e.wait_lds(("x", 1))
    fs = FragStream(e)
    dq = []
    dq_state = {"sp": 2, "cnt": 0}

    def defer(lst, sp):
        assert not dq, "previous DMA pieces still pending"
        dq.extend(lst)
        dq_state["sp"] = sp
        dq_state["cnt"] = 0

    def p1_frags(G):
        for e2 in range(2):
            for ct in range(8):
                off = e2 * TILE + ct * 64
                fs.push(rd_tr(e, V_RDA, off, off + 4 * 1088))

    def next_rd_a():
        adv_slot(e, S_RD)
        V(f"v_add_u32 v{V_RDA}, s{S_RD}, v{V_PATA}", V_RDA, V_PATA)

    mf_idx = [0]

    def consume_mfma(d, b, c):
        i = mf_idx[0]
        assert i < fs.issued
        e.wait_lds(("fr", i))
        e.mfma(d, fs.buf(i), b, c)
        mf_idx[0] += 1
        fs.issue_next()
        if dq:
            dq_state["cnt"] += 1
            if dq_state["cnt"] >= dq_state["sp"]:
                dq_state["cnt"] = 0
                dq.pop(0)()

    def p1_step(G, xi, issue, push_next):
        for e2 in range(2):
            ks = 2 * G + e2
            e.wait_lds(("x", ks))
            for ct in range(8):
                consume_mfma(V_O + 16 * ct, V_X + 4 * (xi + e2), V_O + 16 * ct)
                if e2 == 0 and ct == 7:
                    if G + 1 <= 13:
                        e.wait_vm(("X", G + 1))
                    e.wait_vm(("D", G + 1))
                    e.salu("s_barrier")
                    if G + 1 <= 13:
                        xread(2 - xi, G + 1)
                    pieces = []
                    if G + 2 <= 13:
                        pieces.append(lambda: xdma(("X", G + 2)))
                    pieces += issue()
                    defer(pieces, SP1)
                    push_next()

    p1_frags(0)
    for _ in range(DPF):
        fs.issue_next()

    def push_p1(G):
        def f():
            fs.push(("pre", next_rd_a))
            p1_frags(G)
        return f

    def p1_body(i):
        G = 2 * i
        p1_step(G, 0, lambda: dma_wq_pair(e, ("D", G + 3)), push_p1(G + 1))
        p1_step(G + 1, 2, lambda: dma_wq_pair(e, ("D", G + 4)), push_p1(G + 2))

    e.loop("L_p1", 5, p1_body, f"s{S_CNT}")

    def kv_setup():
        e.salu(f"s_mul_i32 s{S_WM0A}, s{S_W}, {2 * 1056}")
        e.salu(f"s_mul_i32 s{S_WM0B}, s{S_W}, {2 * 1088}")
        e.salu(f"s_add_u32 s{S_WM0B}, s{S_WM0B}, {TILE}")
        e.salu(f"s_lshr_b32 s{S_OFFA}, s2, 4")
        e.salu(f"s_xor_b32 s{S_OFFA}, s{S_OFFA}, s2")
        e.salu(f"s_and_b32 s{S_OFFA}, s{S_OFFA}, {ROTMASK}")
        e.salu(f"s_lshl_b32 s{S_OFFA}, s{S_OFFA}, 14")
        e.salu(f"s_lshl_b32 s{S_OFFB}, s{S_W}, 11")
        e.salu(f"s_add_u32 s{S_OFFA}, s{S_OFFA}, s{S_OFFB}")
        e.salu(f"s_mov_b32 s{S_OFFB}, s{S_OFFA}")

    p1_step(10, 0, lambda: dma_wq_pair(e, ("D", 13)), push_p1(11))

    def iss14():
        kv_setup()
        return dma_kv_pair(e, ("D", 14), k=True, v=False)
    p1_step(11, 2, iss14, push_p1(12))
    p1_step(12, 0, lambda: dma_kv_pair(e, ("D", 15)), push_p1(13))

    def kv_patterns():
        a, b2, c2 = V_T2, V_T3, V_TMP
        V(f"v_and_b32 v{a}, 7, v{L}", a, L)
        V(f"v_bfe_u32 v{b2}, v{L}, 4, 1", b2, L)
        V(f"v_lshl_add_u32 v{a}, v{b2}, 3, v{a}", a, b2, a)
        V(f"v_mul_u32_u24 v{a}, 1056, v{a}", a, a)
        V(f"v_bfe_u32 v{b2}, v{L}, 3, 1", b2, L)
        V(f"v_lshl_add_u32 v{a}, v{b2}, 9, v{a}", a, b2, a)
        V(f"v_lshrrev_b32 v{c2}, 5, v{L}", c2, L)
        V(f"v_xor_b32 v{b2}, v{b2}, v{c2}", b2, b2, c2)
        V(f"v_lshl_add_u32 v{V_PATA}, v{b2}, 4, v{a}", V_PATA, b2, a)
        V(f"v_bfe_u32 v{a}, v{L}, 2, 2", a, L)
        V(f"v_lshl_add_u32 v{a}, v{c2}, 2, v{a}", a, c2, a)
        V(f"v_mul_u32_u24 v{a}, 1088, v{a}", a, a)
        V(f"v_bfe_u32 v{b2}, v{L}, 4, 1", b2, L)
        V(f"v_lshl_add_u32 v{a}, v{b2}, 5, v{a}", a, b2, a)
        V(f"v_and_b32 v{b2}, 1, v{L}", b2, L)
        V(f"v_lshl_add_u32 v{a}, v{b2}, 4, v{a}", a, b2, a)
        V(f"v_bfe_u32 v{b2}, v{L}, 1, 1", b2, L)
        V(f"v_lshl_add_u32 v{a}, v{b2}, 3, v{a}", a, b2, a)
        V(f"v_add_u32 v{V_PATB}, {TILE}, v{a}", V_PATB, a)

    def k_frags():
        for ks in range(16):
            fs.push(rd_128(e, V_RDA, ks * 32))

    def v_frags(jmajor=False):
        order = [(ks2, j) for j in range(8) for ks2 in range(2)] if jmajor else \
                [(ks2, j) for ks2 in range(2) for j in range(8)]
        for ks2, j in order:
            off = ks2 * 8 * 1088 + j * 64
            fs.push(rd_tr(e, V_RDB, off, off + 512))

    def next_rd_kv():
        adv_slot(e, S_RD)
        V(f"v_add_u32 v{V_RDA}, s{S_RD}, v{V_PATA}", V_RDA, V_PATA)
        V(f"v_add_u32 v{V_RDB}, s{S_RD}, v{V_PATB}", V_RDB, V_PATB)

    def push_k0():
        def pre():
            kv_patterns()
            next_rd_kv()
        fs.push(("pre", pre))
        k_frags()

    p1_step(13, 2, lambda: dma_kv_pair(e, ("D", 16)), push_k0)

    stamp(e, 2)
    for i in range(64):
        e.valu(f"v_cvt_pk_bf16_f32 v{V_Q + i}, v{2 * i}, v{2 * i + 1}", dst=[V_Q + i], src=[2 * i, 2 * i + 1])
    V(f"v_mov_b32 v{V_LSUM}, 0", V_LSUM)

    def qk_stage(sn, fillers, mid=None):
        nf = len(fillers)
        k = 0
        for ks in range(16):
            consume_mfma(sn, V_Q + 4 * ks, sn if ks else None)
            tgt = (nf * (ks + 1) + 15) // 16
            while k < tgt:
                fillers[k]()
                k += 1
            if mid is not None and ks == mid[0]:
                mid[1]()

    def exp_fillers(sc):
        fl = []
        for p in range(8):
            a, b = sc + 2 * p, sc + 2 * p + 1
            fl.append(lambda a=a: e.valu(f"v_fma_f32 v{a}, v{a}, s{S_C}, v{V_NEGM}", dst=[a], src=[a, V_NEGM]))
            fl.append(lambda b=b: e.valu(f"v_fma_f32 v{b}, v{b}, s{S_C}, v{V_NEGM}", dst=[b], src=[b, V_NEGM]))
            fl.append(lambda a=a: e.valu(f"v_exp_f32 v{a}, v{a}", dst=[a], src=[a], trans=True))
            fl.append(lambda b=b: e.valu(f"v_exp_f32 v{b}, v{b}", dst=[b], src=[b], trans=True))
            fl.append(lambda a=a: e.valu(f"v_add_f32 v{V_LSUM}, v{V_LSUM}, v{a}", dst=[V_LSUM], src=[V_LSUM, a]))
            fl.append(lambda b=b: e.valu(f"v_add_f32 v{V_LSUM}, v{V_LSUM}, v{b}", dst=[V_LSUM], src=[V_LSUM, b]))
            fl.append(lambda a=a, b=b, p=p: e.valu(f"v_cvt_pk_bf16_f32 v{sc + p}, v{a}, v{b}", dst=[sc + p], src=[a, b]))
        return fl

    def max_fillers(sn):
        fl = []
        fl.append(lambda: e.valu(f"v_max3_f32 v{V_TMAX}, v{sn}, v{sn + 1}, v{sn + 2}", dst=[V_TMAX], src=[sn, sn + 1, sn + 2]))
        for i in range(3, 15, 2):
            fl.append(lambda i=i: e.valu(f"v_max3_f32 v{V_TMAX}, v{V_TMAX}, v{sn + i}, v{sn + i + 1}",
                                         dst=[V_TMAX], src=[V_TMAX, sn + i, sn + i + 1]))
        fl.append(lambda: e.valu(f"v_max_f32 v{V_TMAX}, v{V_TMAX}, v{sn + 15}", dst=[V_TMAX], src=[V_TMAX, sn + 15]))
        return fl

    def cross_half(op, reg, tmp):
        V(f"v_mov_b32 v{tmp}, v{reg}", tmp, reg)
        e.nop(2)
        e.valu(f"v_permlane32_swap_b32 v{reg}, v{tmp}", dst=[reg, tmp], src=[reg, tmp])
        V(f"{op} v{reg}, v{reg}, v{tmp}", reg, reg, tmp)

    def mid14():
        e.wait_vm(("D", 15))
        e.salu("s_barrier")
        defer(dma_kv_pair(e, ("D", 17)), SP2)
        fs.push(("pre", next_rd_kv))
        k_frags()
        v_frags()
    zf = [(lambda i=i: V(f"v_mov_b32 v{V_O + i}, 0", V_O + i)) for i in range(128)]
    qk_stage(V_S0, zf, mid=(3, mid14))
    if PF_WO:
        V(f"v_lshlrev_b32 v255, 6, v{L}", 255, L)
        e.salu(f"s_mul_i32 s{S_T0}, s{S_B}, 28672")
        e.salu(f"s_lshl_b32 s{S_T1}, s{S_W}, 12")
        e.salu(f"s_add_u32 s{S_T0}, s{S_T0}, s{S_T1}")
        e.raw(f"buffer_load_dword v254, v255, s[{S_WO}:{S_WO + 3}], s{S_T0} offen")
    for f in max_fillers(V_S0):
        f()
    cross_half("v_max_f32", V_TMAX, V_TMP)
    V(f"v_mul_f32 v{V_NEGM}, s{S_NC}, v{V_TMAX}", V_NEGM, V_TMAX)

    rare = []

    def p2_step(t, issue, push_next=None, tagname=""):
        G = 15 + t
        sc = V_S0 if t % 2 == 0 else V_S1
        sn = V_S1 if t % 2 == 0 else V_S0
        fl = exp_fillers(sc)
        qk_stage(sn, fl)
        mx = max_fillers(sn)
        k = 0
        for idx in range(16):
            ks2, j = idx >> 3, idx & 7
            consume_mfma(V_O + 16 * j, sc + 4 * ks2, V_O + 16 * j)
            if idx == 3:
                e.wait_vm(("D", G + 1))
                e.salu("s_barrier")
                defer(issue(), SP2)
                push_next()
            if idx >= 5 and k < len(mx):
                mx[k]()
                k += 1
                if k < len(mx):
                    mx[k]()
                    k += 1
        assert k == len(mx)
        e.valu(f"v_fma_f32 v{V_TMP}, v{V_TMAX}, s{S_C}, v{V_NEGM}", dst=[V_TMP], src=[V_TMAX, V_NEGM])
        e.valu(f"v_cmp_lt_f32 vcc, s{S_THR}, v{V_TMP}", dst=[], src=[V_TMP])
        e.salu("s_nop 3")
        e.salu(f"s_cbranch_vccnz L_rare_{tagname}")
        e.label(f"L_back_{tagname}")
        rare.append(tagname)

    def push_kv():
        fs.push(("pre", next_rd_kv))
        k_frags()
        v_frags()

    def p2_body(i):
        t = 2 * i
        p2_step(t, lambda: dma_kv_pair(e, ("D", 15 + t + 3)), push_next=push_kv, tagname="a")
        p2_step(t + 1, lambda: dma_kv_pair(e, ("D", 15 + t + 4)), push_next=push_kv, tagname="b")

    e.loop("L_p2", 6, p2_body, f"s{S_CNT}")
    rare[:] = ["a", "b"]

    p2_step(12, lambda: dma_kv_pair(e, ("D", 30), k=False, v=True), push_next=push_kv, tagname="c")

    V_DWO = V_XOFF

    def wo_setup():
        a, b2 = V_T3, V_T2
        V(f"v_bfe_u32 v{a}, v{L}, 4, 1", a, L)
        V(f"v_lshlrev_b32 v{a}, 2, v{a}", a, a)
        V(f"v_and_b32 v{b2}, 7, v{L}", b2, L)
        V(f"v_xor_b32 v{a}, v{a}, v{b2}", a, a, b2)
        V(f"v_lshlrev_b32 v{a}, 4, v{a}", a, a)
        V(f"v_lshrrev_b32 v{b2}, 3, v{L}", b2, L)
        V(f"v_mul_u32_u24 v{b2}, 896, v{b2}", b2, b2)
        V(f"v_add_u32 v{V_DWO}, v{a}, v{b2}", V_DWO, a, b2)
        e.salu(f"s_lshl_b32 s{S_WM0C}, s{S_W}, 11")
        e.salu(f"s_mul_i32 s{S_XOFF}, s{S_W}, {16 * 896}")

    def iss_wo0():
        wo_setup()
        return dma_wo_pair(e, ("D", 31), 0, V_DWO)
    p2_step(13, iss_wo0, push_next=push_kv, tagname="d")

    def push_v_only():
        fs.push(("pre", next_rd_kv))
        v_frags(jmajor=True)
    p2_step(14, lambda: dma_wo_pair(e, ("D", 32), 1, V_DWO), push_next=push_v_only, tagname="e")

    V_OF = 128
    ACC = [(V_S0, V_S1), (0, 16)]
    V_R = 32
    V_PK = 48
    V_RDK, V_RDS = V_RDA, V_RDB
    V_EXW = [56, 57, 58, 59]
    V_EXR = [60, 61, 62, 63]
    V_STO = V_DLIN

    def wo_patterns():
        a, b2 = V_T2, V_T3
        V(f"v_lshrrev_b32 v{a}, 5, v{L}", a, L)
        V(f"v_bfe_u32 v{b2}, v{L}, 2, 2", b2, L)
        V(f"v_lshl_add_u32 v{a}, v{a}, 3, v{b2}", a, a, b2)
        V(f"v_lshlrev_b32 v{a}, 7, v{a}", a, a)
        V(f"v_bfe_u32 v{b2}, v{L}, 3, 1", b2, L)
        V(f"v_xor_b32 v{b2}, s{S_HH}, v{b2}", b2, b2)
        V(f"v_lshl_add_u32 v{a}, v{b2}, 6, v{a}", a, b2, a)
        V(f"v_bfe_u32 v{b2}, v{L}, 4, 1", b2, L)
        V(f"v_lshl_add_u32 v{a}, v{b2}, 5, v{a}", a, b2, a)
        V(f"v_and_b32 v{b2}, 1, v{L}", b2, L)
        V(f"v_lshl_add_u32 v{a}, v{b2}, 4, v{a}", a, b2, a)
        V(f"v_bfe_u32 v{b2}, v{L}, 1, 1", b2, L)
        V(f"v_lshl_add_u32 v{a}, v{b2}, 3, v{a}", a, b2, a)
        e.salu(f"s_mul_i32 s{S_T3}, s{S_HH}, {TILE}")
        V(f"v_add_u32 v{V_PATA}, s{S_T3}, v{a}", V_PATA, a)

    def next_rd3():
        adv_slot(e, S_RD)
        V(f"v_add_u32 v{V_RDK}, s{S_RD}, v{V_PATA}", V_RDK, V_PATA)
        V(f"v_xor_b32 v{V_RDS}, 64, v{V_RDK}", V_RDS, V_RDK)

    def p3_frags():
        for kk in range(8):
            for which in (V_RDS, V_RDK):
                off = kk * 2048
                fs.push(rd_tr(e, which, off, off + 512))

    def push_p3_first():
        def pre():
            wo_patterns()
            next_rd3()
        fs.push(("pre", pre))
        p3_frags()

    def push_p3():
        fs.push(("pre", next_rd3))
        p3_frags()

    def norm_fillers(j):
        fl = []
        for i in range(16):
            r = 16 * j + i
            fl.append(lambda r=r: V(f"v_mul_f32 v{r}, v{r}, v{V_LSUM}", r, r, V_LSUM))
        for i in range(8):
            r = 16 * j + 2 * i
            fl.append(lambda r=r, i=i: e.valu(f"v_cvt_pk_bf16_f32 v{V_OF + 8 * j + i}, v{r}, v{r + 1}",
                                              dst=[V_OF + 8 * j + i], src=[r, r + 1]))
        return fl

    sc = V_S1
    for f in exp_fillers(sc):
        f()
    cross_half("v_add_f32", V_LSUM, V_TMP)
    e.valu(f"v_rcp_f32 v{V_LSUM}, v{V_LSUM}", dst=[V_LSUM], src=[V_LSUM], trans=True)
    pend = []
    for idx in range(16):
        j, ks2 = idx >> 1, idx & 1
        consume_mfma(V_O + 16 * j, sc + 4 * ks2, V_O + 16 * j)
        if idx == 3:
            e.wait_vm(("D", 31))
            e.salu("s_barrier")
            defer(dma_wo_pair(e, ("D", 33), 2, V_DWO), SP2)
            push_p3_first()
        if ks2 == 1 and j >= 2:
            pend += norm_fillers(j - 2)
        for _ in range(12):
            if pend:
                pend.pop(0)()
    pend += norm_fillers(6) + norm_fillers(7)
    stamp(e, 3)
    stamp(e, 4)

    def ex_addr(dst, wreg):
        e.salu(f"s_lshl_b32 s{S_T0}, s{wreg}, 12")
        e.salu(f"s_add_u32 s{S_T0}, s{S_T0}, {RING}")
        e.salu(f"s_sub_u32 s{S_T1}, s{wreg}, 6")
        e.salu(f"s_mul_i32 s{S_T1}, s{S_T1}, {4 * TILE}")
        e.salu(f"s_add_u32 s{S_T1}, s{S_T1}, 16384")
        e.salu(f"s_cmp_ge_u32 s{wreg}, 6")
        e.salu(f"s_cselect_b32 s{S_T0}, s{S_T1}, s{S_T0}")
        e.salu(f"s_mov_b32 s{S_T1}, 1024")
        e.salu(f"s_cselect_b32 s{S_T1}, {TILE}, s{S_T1}")
        for i in range(4):
            V(f"v_add_u32 v{dst[i]}, s{S_T0}, v{V_DLIN}", dst[i], V_DLIN)
            if i < 3:
                e.salu(f"s_add_u32 s{S_T0}, s{S_T0}, s{S_T1}")

    def p3_setup():
        ex_addr(V_EXW, S_W)
        e.salu(f"s_xor_b32 s{S_EXR}, s{S_W}, 4")
        ex_addr(V_EXR, S_EXR)
        e.salu(f"s_mul_i32 s{S_POFF}, s{S_W}, {7 * 2048}")

    def send_fillers(s_):
        acc_s = ACC[s_ & 1][1]
        return [(lambda i=i: e.ds(f"ds_write_b128 v{V_EXW[i]}, {vr(acc_s + 4 * i, 4)}", ("exw", s_),
                                  src=range(acc_s + 4 * i, acc_s + 4 * i + 4))) for i in range(4)]

    def recv_reads(s_):
        for i in range(4):
            e.ds(f"ds_read_b128 {vr(V_R + 4 * i, 4)}, v{V_EXR[i]}", ("exr", s_), dst=range(V_R + 4 * i, V_R + 4 * i + 4))

    def fin_fillers(s_):
        acc_k = ACC[s_ & 1][0]
        fl = [lambda: e.wait_lds(("exr", s_))]
        for i in range(16):
            fl.append(lambda i=i: V(f"v_add_f32 v{V_R + i}, v{V_R + i}, v{acc_k + i}", V_R + i, V_R + i, acc_k + i))
        for i in range(8):
            fl.append(lambda i=i: e.valu(f"v_cvt_pk_bf16_f32 v{V_PK + i}, v{V_R + 2 * i}, v{V_R + 2 * i + 1}",
                                         dst=[V_PK + i], src=[V_R + 2 * i, V_R + 2 * i + 1]))

        def st():
            for q4 in range(2):
                rg = V_PK + 4 * q4
                e.vmem(f"buffer_store_dwordx4 {vr(rg, 4)}, v{V_STO}, s[{S_P}:{S_P + 3}], s{S_POFF} offen offset:{q4 * 1024}{STPOL}",
                       ("st", s_), src=range(rg, rg + 4))
            e.salu(f"s_add_u32 s{S_POFF}, s{S_POFF}, 2048")
        fl.append(st)
        return fl

    def p3_step(p, issue, push, extra=None):
        G = 31 + p
        s_, i = p >> 1, p & 1
        acc_k, acc_s = ACC[s_ & 1]
        ext = list(extra) if extra else []
        pre = []
        post = []
        if i == 0 and s_ >= 1:
            pre += send_fillers(s_ - 1)
        for idx in range(16):
            kk, which = idx >> 1, idx & 1
            acc = acc_s if which == 0 else acc_k
            first = (i == 0 and kk == 0)
            consume_mfma(acc, V_OF + 4 * (8 * i + kk), None if first else acc)
            if idx >= 1:
                for _ in range(4):
                    if pre:
                        pre.pop(0)()
                    elif ext:
                        ext.pop(0)()
                        if ext:
                            ext.pop(0)()
                    elif post and idx > BAR3 + 2:
                        post.pop(0)()
            if idx == BAR3:
                assert not pre
                if i == 0 and s_ >= 1:
                    e.wait_lds(("exw", s_ - 1))
                e.wait_vm(("D", G + 1))
                e.salu("s_barrier")
                if i == 0 and s_ >= 1:
                    recv_reads(s_ - 1)
                    post = fin_fillers(s_ - 1)
                defer(issue(), SP3)
                if push:
                    push_p3()
        assert not post and not pre and not ext

    p3_setup()

    def iss3(p):
        return (lambda: dma_wo_pair(e, ("D", 31 + p), p, V_DWO)) if p <= 13 else (lambda: [])

    p3_step(0, iss3(3), True, extra=pend)
    p3_step(1, iss3(4), True)
    p3_step(2, iss3(5), True)
    p3_step(3, iss3(6), True)

    def p3_body(it):
        p = 4 + 4 * it
        for d in range(4):
            p3_step(p + d, iss3(p + d + 3), True)

    e.loop("L_p3", 2, p3_body, f"s{S_CNT}") if False else [p3_body(0), p3_body(1)]
    p3_step(12, iss3(15), True)
    p3_step(13, iss3(16), False)
    for f in send_fillers(6):
        f()
    e.wait_lds(("exw", 6))
    e.salu("s_barrier")
    recv_reads(6)
    for f in fin_fillers(6):
        f()
    stamp(e, 5)
    stamp_flush(e, 8)
    e.label("L_attn_exit")
    e.salu("s_endpgm")

    for tg in rare:
        e.label(f"L_rare_{tg}")
        e.raw("s_nop 15", 16)
        e.raw(f"v_mov_b32 v{V_TMP}, v{V_TMAX}")
        e.raw("s_nop 1", 2)
        e.raw(f"v_permlane32_swap_b32 v{V_TMAX}, v{V_TMP}")
        e.raw(f"v_max_f32 v{V_TMAX}, v{V_TMAX}, v{V_TMP}")
        e.raw(f"v_mul_f32 v{V_TMAX}, s{S_NC}, v{V_TMAX}")
        e.raw(f"v_min_f32 v{V_TMAX}, v{V_TMAX}, v{V_NEGM}")
        e.raw(f"v_sub_f32 v{V_TMP}, v{V_TMAX}, v{V_NEGM}")
        e.raw(f"v_exp_f32 v{V_TMP}, v{V_TMP}")
        e.raw(f"v_mov_b32 v{V_NEGM}, v{V_TMAX}")
        e.raw("s_nop 0")
        e.raw(f"v_mul_f32 v{V_LSUM}, v{V_LSUM}, v{V_TMP}")
        for i in range(128):
            e.raw(f"v_mul_f32 v{i}, v{i}, v{V_TMP}")
        e.raw("s_nop 1", 2)
        e.raw(f"s_branch L_back_{tg}")


def gen_reduce(e):
    e.label("reduce_kernel")
    e.salu("s_cmp_ge_u32 s2, 896")
    e.salu("s_cbranch_scc1 L_red_exit")
    e.salu("s_load_dwordx2 s[4:5], s[0:1], 80")
    e.salu("s_load_dwordx2 s[6:7], s[0:1], 96")
    e.salu("s_mul_hi_u32 s8, s2, 0x924924a")
    e.salu("s_mul_i32 s9, s8, 28")
    e.salu("s_sub_u32 s9, s2, s9")
    e.salu("s_lshl_b32 s9, s9, 1")
    e.raw("v_and_b32 v1, 63, v0")
    e.raw("v_bfe_u32 v2, v0, 6, 1")
    e.raw("v_lshrrev_b32 v3, 7, v0")
    e.raw("v_add_u32 v3, s9, v3")
    e.raw("v_lshlrev_b32 v4, 11, v3")
    e.raw("v_lshl_add_u32 v4, v2, 10, v4")
    e.raw("v_lshl_add_u32 v4, v1, 4, v4")
    e.salu("s_waitcnt lgkmcnt(0)")
    e.salu("s_mul_i32 s10, s8, 917504")
    e.salu("s_add_u32 s6, s6, s10")
    e.salu("s_addc_u32 s7, s7, 0")
    e.salu("s_mov_b32 s12, s6")
    e.salu("s_and_b32 s13, s7, 0xffff")
    e.salu("s_mov_b32 s14, 917504")
    e.salu("s_mov_b32 s15, 0x00020000")
    e.salu("s_mov_b32 s16, s4")
    e.salu("s_and_b32 s17, s5, 0xffff")
    e.salu("s_mov_b32 s18, 3670016")
    e.salu("s_mov_b32 s19, 0x00020000")
    for h in range(8):
        e.salu(f"s_mov_b32 s20, {h * 114688}")
        e.raw(f"buffer_load_dwordx4 v[{24 + 4 * h}:{27 + 4 * h}], v4, s[12:15], s20 offen{RDPOL}")
    e.raw("v_mul_u32_u24 v5, 37, v3")
    e.raw("v_lshrrev_b32 v5, 8, v5")
    e.raw("v_mul_u32_u24 v6, 7, v5")
    e.raw("v_sub_u32 v6, v3, v6")
    e.raw("v_and_b32 v7, 3, v5")
    e.raw("v_lshrrev_b32 v5, 2, v5")
    e.raw("v_and_b32 v8, 31, v1")
    e.raw("v_lshl_add_u32 v8, v7, 5, v8")
    e.raw("v_lshlrev_b32 v9, 6, v6")
    e.raw("v_lshl_add_u32 v9, v5, 5, v9")
    e.raw("v_lshl_add_u32 v9, v2, 4, v9")
    e.raw("v_lshrrev_b32 v10, 5, v1")
    e.raw("v_lshl_add_u32 v9, v10, 3, v9")
    e.salu("s_and_b32 s21, s8, 15")
    e.salu("s_lshr_b32 s22, s8, 4")
    e.salu("s_mul_i32 s21, s21, 229376")
    e.salu("s_mul_i32 s22, s22, 896")
    e.salu("s_add_u32 s21, s21, s22")
    e.salu("s_mov_b32 s23, 0xffff0000")
    e.raw("v_mul_u32_u24 v8, 1792, v8")
    e.raw("v_lshl_add_u32 v8, v9, 1, v8")
    for h in range(8):
        e.salu(f"s_waitcnt vmcnt({7 - h})")
        for i in range(4):
            r = 24 + 4 * h + i
            if h == 0:
                e.raw(f"v_lshlrev_b32 v{16 + 2 * i}, 16, v{r}")
                e.raw(f"v_and_b32 v{17 + 2 * i}, s23, v{r}")
            else:
                e.raw(f"v_lshlrev_b32 v11, 16, v{r}")
                e.raw(f"v_and_b32 v12, s23, v{r}")
                e.raw(f"v_add_f32 v{16 + 2 * i}, v{16 + 2 * i}, v11")
                e.raw(f"v_add_f32 v{17 + 2 * i}, v{17 + 2 * i}, v12")
    for i in range(4):
        e.raw(f"v_cvt_pk_bf16_f32 v{12 + i}, v{16 + 2 * i}, v{17 + 2 * i}")
    e.raw("buffer_store_dwordx4 v[12:15], v8, s[16:19], s21 offen")
    e.label("L_red_exit")
    e.salu("s_endpgm")


def main():
    ref = open(OUT + ".ref").read().splitlines()
    head = [l for l in ref if l.startswith(";") and "@launch" not in l]
    out = list(head)
    out.append(f"; @launch kernel=attn_kernel grid=(256,1,1) block=(512,1,1) lds={LDS_BYTES}")
    out.append("; @launch kernel=reduce_kernel grid=(896,1,1) block=(256,1,1) lds=0")
    out.append('.amdgcn_target "amdgcn-amd-amdhsa--gfx950"')
    out.append(".text")
    e = Em()
    out += [".globl attn_kernel", ".p2align 8", ".type attn_kernel,@function"]
    gen_attn(e)
    out += e.lines
    e2 = Em()
    out += [".globl reduce_kernel", ".p2align 8", ".type reduce_kernel,@function"]
    gen_reduce(e2)
    out += e2.lines
    out.append('.section .rodata,"a"')
    for k, vg, sg in (("attn_kernel", 256, 96), ("reduce_kernel", 56, 32)):
        out += [".p2align 6", f".amdhsa_kernel {k}",
                f"  .amdhsa_next_free_vgpr {vg}",
                f"  .amdhsa_next_free_sgpr {sg}",
                f"  .amdhsa_accum_offset {vg}",
                "  .amdhsa_group_segment_fixed_size 0",
                "  .amdhsa_kernarg_size 104",
                "  .amdhsa_user_sgpr_count 2",
                "  .amdhsa_user_sgpr_kernarg_segment_ptr 1",
                "  .amdhsa_system_sgpr_workgroup_id_x 1",
                ".end_amdhsa_kernel"]
    open(OUTFILE, "w").write("\n".join(out) + "\n")
    print("wrote", OUTFILE, len(out), "lines")


if __name__ == "__main__":
    main()
```

```python
import math
import os
import struct
import sys

NAME = "concat_heads__gqa_block_cached__gqa_block_cached__near_ridge"
OUT = f"cdna_kernels/{NAME}.s"
OUTFILE = sys.argv[1] if len(sys.argv) > 1 else OUT

STAMPS = os.environ.get("STAMPS", "0") == "1"
TILE = 17408
PAIR = 2 * TILE
RING = 4 * PAIR
LDS_BYTES = 160 * 1024
NB = 4
DPF = int(os.environ.get("DPF", "3"))
SP1 = int(os.environ.get("SP1", "3"))
SP2 = int(os.environ.get("SP2", "5"))
SP3 = int(os.environ.get("SP3", "4"))
BAR1 = int(os.environ.get("BAR1", "15"))
BAR2 = int(os.environ.get("BAR2", "7"))
BAR3 = int(os.environ.get("BAR3", "11"))
AG = 256


def rn(r, n=1):
    if r >= AG:
        r -= AG
        return f"a{r}" if n == 1 else f"a[{r}:{r + n - 1}]"
    return f"v{r}" if n == 1 else f"v[{r}:{r + n - 1}]"


class Em:
    def __init__(self):
        self.lines = []
        self.pos = 0
        self.mfma_w = {}
        self.mfma_c = {}
        self.valu_w = {}
        self.trans_w = {}
        self.lds_q = []
        self.vm_q = []
        self.capture = None

    def raw(self, s, slots=1):
        (self.capture if self.capture is not None else self.lines).append("    " + s)
        self.pos += slots

    def label(self, s):
        (self.capture if self.capture is not None else self.lines).append(s + ":")

    def nop(self, n):
        while n > 0:
            k = min(n, 16)
            self.raw(f"s_nop {k - 1}", k)
            n -= k

    def _need(self, table, regs, dist):
        need = 0
        for r in regs:
            p = table.get(r)
            if p is not None:
                need = max(need, dist - (self.pos - p - 1))
        return need

    def salu(self, s):
        self.raw(s)

    def valu(self, s, dst=(), src=(), trans=False):
        n = self._need(self.mfma_w, list(dst) + list(src), 8)
        n = max(n, self._need(self.mfma_c, dst, 3))
        if not trans:
            n = max(n, self._need(self.trans_w, src, 1))
        if n > 0:
            self.nop(n)
        p = self.pos
        self.raw(s)
        for r in dst:
            self.valu_w[r] = p
            if trans:
                self.trans_w[r] = p
            else:
                self.trans_w.pop(r, None)

    def mfma(self, d, a, b, c):
        D = list(range(d, d + 4))
        A = list(range(a, a + 4))
        B = list(range(b, b + 4))
        C = list(range(c, c + 4)) if c is not None else []
        n = self._need(self.valu_w, A + B + C, 2)
        n = max(n, self._need(self.mfma_w, A + B, 8))
        assert c is None or c == d
        if n > 0:
            self.nop(n)
        p = self.pos
        cs = rn(c, 4) if c is not None else "0"
        self.raw(f"v_mfma_f32_16x16x32_bf16 {rn(d, 4)}, {rn(a, 4)}, {rn(b, 4)}, {cs}")
        for r in D:
            self.mfma_w[r] = p
        for r in C:
            self.mfma_c[r] = p

    def ds(self, s, tag, dst=(), src=()):
        n = self._need(self.mfma_w, list(dst) + list(src), 8)
        if n > 0:
            self.nop(n)
        self.raw(s)
        self.lds_q.append(tag)
        assert len(self.lds_q) <= 15, "too many LDS ops outstanding"

    def vmem(self, s, tag, dst=(), src=()):
        n = self._need(self.mfma_w, list(dst) + list(src), 8)
        if n > 0:
            self.nop(n)
        self.raw(s)
        self.vm_q.append(tag)
        assert len(self.vm_q) <= 63

    def wait_lds(self, tag):
        idx = max((i for i, t in enumerate(self.lds_q) if t == tag), default=-1)
        if idx < 0:
            return
        self.raw(f"s_waitcnt lgkmcnt({len(self.lds_q) - 1 - idx})")
        self.lds_q = self.lds_q[idx + 1:]

    def wait_vm(self, tag):
        idx = max((i for i, t in enumerate(self.vm_q) if t == tag), default=-1)
        if idx < 0:
            return
        self.raw(f"s_waitcnt vmcnt({len(self.vm_q) - 1 - idx})")
        self.vm_q = self.vm_q[idx + 1:]

    def loop(self, name, n, body, counter):
        assert self.capture is None
        self.salu(f"s_mov_b32 {counter}, {n}")
        texts = []
        for i in range(n):
            self.capture = []
            body(i)
            self.salu(f"s_sub_u32 {counter}, {counter}, 1")
            self.salu(f"s_cmp_lg_u32 {counter}, 0")
            self.salu(f"s_cbranch_scc1 {name}")
            texts.append(self.capture)
            self.capture = None
        for i in range(1, n):
            if texts[i] != texts[0]:
                for a, b in zip(texts[0], texts[i]):
                    if a != b:
                        print("LOOP MISMATCH", name, i, a, "|", b)
                        break
                raise SystemExit(f"loop {name}: iteration {i} differs from iteration 0")
        self.label(name)
        self.lines.extend(texts[0])


S_X, S_K, S_V, S_WQ, S_WO, S_P = 8, 12, 16, 20, 24, 28
S_W, S_HH, S_QH, S_RD, S_DM = 32, 33, 34, 35, 36
S_T0, S_T1, S_T2, S_T3 = 37, 38, 39, 40
S_CNT, S_C, S_NC, S_THR = 41, 42, 43, 44
S_OFFA, S_OFFB, S_XOFF = 45, 46, 47
S_WM0A, S_WM0B, S_WM0C = 48, 49, 50
S_POFF, S_XW, S_XR, S_XD = 51, 52, 53, 54
S_D0, S_D1, S_B, S_SK = 55, 78, 79, 90
S_KA = 56
S_ST = 80

V_O = 0
V_Q = 128
V_S0, V_S1 = 192, 208
V_FR = 224
V_PATA, V_PATB, V_RDA, V_RDB, V_RDC = 240, 241, 242, 243, 244
V_RDD = V_PATB
V_DLIN, V_DK, V_DX = 245, 246, 247
V_DWO0, V_DWO1 = V_DX, V_DK
V_NEGM, V_LSUM, V_TM = 248, 250, 252
V_TMP, V_LANE = 254, 255
V_T2, V_T3 = V_TM, V_TM + 1
V_PF = V_TMP
NCB = 2


def stamp(e, i):
    if not STAMPS:
        return
    e.raw("s_memtime s[96:97]")
    e.raw("s_waitcnt lgkmcnt(0)")
    e.lds_q = []
    e.salu(f"s_mov_b32 s{S_ST + i}, s96")
    if i in (0, 5):
        e.raw("s_memrealtime s[96:97]")
        e.raw("s_waitcnt lgkmcnt(0)")
        e.salu(f"s_mov_b32 s{S_ST + 6 + (i == 5)}, s96")


def stamp_flush(e, n):
    if not STAMPS:
        return
    e.salu("s_load_dwordx2 s[96:97], s[0:1], 96")
    e.salu("s_waitcnt lgkmcnt(0)")
    e.salu("s_add_u32 s96, s96, 0x8000000")
    e.salu("s_addc_u32 s97, s97, 0")
    e.salu("s_mov_b32 s8, s96")
    e.salu("s_and_b32 s9, s97, 0xffff")
    e.salu("s_mov_b32 s10, 0x100000")
    e.salu("s_mov_b32 s11, 0x00020000")
    e.salu("s_lshl_b32 s96, s2, 3")
    e.salu(f"s_add_u32 s96, s96, s{S_W}")
    e.salu("s_lshl_b32 s96, s96, 6")
    e.raw("s_nop 15", 16)
    e.raw("v_mov_b32 v1, 0")
    for i in range(n):
        e.raw(f"v_mov_b32 v0, s{S_ST + i}")
        e.raw(f"buffer_store_dword v0, v1, s[8:11], s96 offen offset:{4 * i}")
        e.raw("s_waitcnt vmcnt(0)")


def srd(e, dst, lo, hi, size):
    e.salu(f"s_mov_b32 s{dst}, s{lo}")
    e.salu(f"s_and_b32 s{dst + 1}, s{hi}, 0xffff")
    e.salu(f"s_mov_b32 s{dst + 2}, {size}")
    e.salu(f"s_mov_b32 s{dst + 3}, 0x00020000")


def adv_slot(e, s):
    e.salu(f"s_add_u32 s{s}, s{s}, {PAIR}")
    e.salu(f"s_cmp_ge_u32 s{s}, {RING}")
    e.salu(f"s_cselect_b32 s{S_T3}, {RING}, 0")
    e.salu(f"s_sub_u32 s{s}, s{s}, s{S_T3}")


NODMA = os.environ.get("NODMA", "0") == "1"
NODMA_ON = [False]


def dma(e, voff, sr, soff, m0expr, tag, off=0):
    if NODMA and NODMA_ON[0]:
        return
    sg, imm = m0expr
    e.salu(f"s_add_u32 m0, s{sg}, {imm}")
    e.salu("s_nop 0")
    o = f" offset:{off}" if off else ""
    pol = " nt" if sr in (S_K, S_V) else ""
    e.vmem(f"buffer_load_dwordx4 v{voff}, s[{sr}:{sr + 3}], s{soff} offen{o}{pol} lds", tag)


def dma_wq_pair(e, tag):
    e.salu(f"s_add_u32 s{S_D0}, s{S_DM}, s{S_WM0A}")
    adv_slot(e, S_DM)
    out = []
    for i in range(4):
        def f(i=i):
            e.salu(f"s_add_u32 s{S_T1}, s{S_OFFA}, {i * 8192}")
            dma(e, V_DLIN, S_WQ, S_T1, (S_D0, i * 1088), tag)
            if i == 3:
                e.salu(f"s_add_u32 s{S_OFFA}, s{S_OFFA}, {32 * 8192}")
        out.append(f)
    return out


def dma_kv_pair(e, tag, k=True, v=True):
    e.salu(f"s_add_u32 s{S_D0}, s{S_DM}, s{S_WM0A}")
    e.salu(f"s_add_u32 s{S_D1}, s{S_DM}, s{S_WM0B}")
    adv_slot(e, S_DM)
    out = []
    if k:
        for i in range(2):
            def f(i=i):
                dma(e, V_DK, S_K, S_OFFA, (S_D0, 32 * i), tag, off=1024 * i)
                if i == 1:
                    e.salu(f"s_add_u32 s{S_OFFA}, s{S_OFFA}, 16384")
                    e.salu(f"s_and_b32 s{S_OFFA}, s{S_OFFA}, 0x3ffff")
            out.append(f)
    if v:
        for i in range(2):
            def f(i=i):
                dma(e, V_DLIN, S_V, S_OFFB, (S_D1, 64 * i), tag, off=1024 * i)
                if i == 1:
                    e.salu(f"s_add_u32 s{S_OFFB}, s{S_OFFB}, 16384")
                    e.salu(f"s_and_b32 s{S_OFFB}, s{S_OFFB}, 0x3ffff")
            out.append(f)
    return out


def dma_wo_pair(e, tag, p):
    e.salu(f"s_add_u32 s{S_D0}, s{S_DM}, s{S_WM0C}")
    adv_slot(e, S_DM)
    out = []
    ip = p & 1
    for hd in range(2):
        for i in range(2):
            def f(hd=hd, i=i):
                e.salu(f"s_add_u32 s{S_T1}, s{S_XOFF}, {(256 * hd + 128 * ip + 8 * i) * 896}")
                dma(e, V_DWO1 if i & 1 else V_DWO0, S_WO, S_T1, (S_D0, hd * TILE + i * 1024), tag)
                if hd == 1 and i == 1 and ip == 1:
                    e.salu(f"s_add_u32 s{S_XOFF}, s{S_XOFF}, 128")
            out.append(f)
    return out


class FragStream:
    def __init__(self, e):
        self.e = e
        self.issued = 0
        self.queue = []

    def buf(self, i):
        return V_FR + 4 * (i % NB)

    def push(self, fn):
        self.queue.append(fn)

    def issue_next(self):
        while self.queue:
            fn = self.queue.pop(0)
            if fn[0] == "pre":
                fn[1]()
                continue
            i = self.issued
            fn[1](self.buf(i), ("fr", i))
            self.issued += 1
            return True
        return False


def rd_tr(e, areg, off0, off1):
    def f(dst, tag):
        e.ds(f"ds_read_b64_tr_b16 {rn(dst, 2)}, v{areg} offset:{off0}", tag, dst=range(dst, dst + 2))
        e.ds(f"ds_read_b64_tr_b16 {rn(dst + 2, 2)}, v{areg} offset:{off1}", tag, dst=range(dst + 2, dst + 4))
    return ("rd", f)


def rd_128(e, areg, off):
    def f(dst, tag):
        e.ds(f"ds_read_b128 {rn(dst, 4)}, v{areg} offset:{off}", tag, dst=range(dst, dst + 4))
    return ("rd", f)


def gen_attn(e):
    e.label("attn_kernel")
    e.salu("s_cmp_ge_u32 s2, 256")
    e.salu("s_cbranch_scc1 L_attn_exit")
    e.salu(f"s_load_dwordx16 s[{S_KA}:{S_KA + 15}], s[0:1], 0")
    e.salu(f"s_load_dwordx4 s[{S_KA + 16}:{S_KA + 19}], s[0:1], 64")
    e.salu(f"s_load_dwordx2 s[{S_KA + 20}:{S_KA + 21}], s[0:1], 96")
    e.salu(f"s_and_b32 s{S_T0}, s2, 7")
    e.salu(f"s_lshr_b32 s{S_T1}, s2, 3")
    e.salu(f"s_and_b32 s{S_T2}, s{S_T1}, 15")
    e.salu(f"s_mov_b32 s{S_B}, s{S_T2}")
    L = V_LANE

    def V(s, d, *src):
        e.valu(s, dst=[d], src=list(src))

    V("v_lshrrev_b32 v1, 6, v0", 1, 0)
    V(f"v_and_b32 v{L}, 63, v0", L, 0)
    e.salu("s_nop 0")
    e.raw(f"v_readfirstlane_b32 s{S_W}, v1")
    e.salu("s_nop 3")
    e.salu(f"s_lshr_b32 s{S_HH}, s{S_W}, 2")
    e.salu(f"s_and_b32 s{S_QH}, s{S_W}, 3")
    e.salu(f"s_bfe_u32 s{S_SK}, s{S_W}, {(1 << 16) | 1}")
    e.salu(f"s_lshl_b32 s{S_SK}, s{S_SK}, 3")
    t1, t2, t3 = 1, 2, 3
    V(f"v_lshlrev_b32 v{V_DLIN}, 4, v{L}", V_DLIN, L)
    V(f"v_bfe_u32 v{t1}, v{L}, 4, 2", t1, L)
    V(f"v_sub_u32 v{t1}, 4, v{t1}", t1, t1)
    V(f"v_and_b32 v{t1}, 3, v{t1}", t1, t1)
    V(f"v_and_b32 v{t2}, 3, v{L}", t2, L)
    V(f"v_xor_b32 v{t1}, v{t1}, v{t2}", t1, t1, t2)
    V(f"v_lshlrev_b32 v{t1}, 4, v{t1}", t1, t1)
    V(f"v_lshrrev_b32 v{t2}, 2, v{L}", t2, L)
    V(f"v_mul_u32_u24 v{t2}, 896, v{t2}", t2, t2)
    V(f"v_add_u32 v{V_DX}, v{t1}, v{t2}", V_DX, t1, t2)
    e.salu(f"s_mul_i32 s{S_WM0A}, s{S_W}, {4 * 1088}")
    e.salu(f"s_add_u32 s{S_WM0A}, s{S_WM0A}, s{S_SK}")
    e.salu(f"s_lshl_b32 s{S_OFFA}, s{S_W}, 15")
    e.salu(f"s_mov_b32 s{S_DM}, 0")
    e.salu(f"s_mov_b32 s{S_RD}, 0")
    e.salu(f"s_mul_i32 s{S_XOFF}, s{S_W}, {16 * 896}")
    e.salu(f"s_lshl_b32 s{S_XW}, s{S_W}, 10")
    e.salu(f"s_add_u32 s{S_XW}, s{S_XW}, {RING}")
    e.salu(f"s_mov_b32 s{S_XR}, 0")
    e.salu(f"s_mov_b32 s{S_XD}, 0")
    e.salu("s_waitcnt lgkmcnt(0)")
    e.salu(f"s_cmp_ge_u32 s{S_T1}, 16")
    for i in range(10):
        e.salu(f"s_cselect_b32 s{S_KA + i}, s{S_KA + 10 + i}, s{S_KA + i}")
    e.salu(f"s_lshl_b32 s{S_T3}, s{S_T0}, 10")
    e.salu(f"s_add_u32 s{S_KA + 6}, s{S_KA + 6}, s{S_T3}")
    e.salu(f"s_addc_u32 s{S_KA + 7}, s{S_KA + 7}, 0")
    srd(e, S_WQ, S_KA + 6, S_KA + 7, 448 * 8192)
    e.salu(f"s_sub_u32 s{S_WQ + 2}, s{S_WQ + 2}, s{S_T3}")
    e.salu(f"s_mul_i32 s{S_T3}, s{S_T2}, 114688")
    e.salu(f"s_add_u32 s{S_KA}, s{S_KA}, s{S_T3}")
    e.salu(f"s_addc_u32 s{S_KA + 1}, s{S_KA + 1}, 0")
    srd(e, S_X, S_KA, S_KA + 1, 114688)
    e.salu(f"s_lshl_b32 s{S_T3}, s{S_T2}, 3")
    e.salu(f"s_add_u32 s{S_T3}, s{S_T3}, s{S_T0}")
    e.salu(f"s_lshl_b32 s{S_T3}, s{S_T3}, 18")
    e.salu(f"s_add_u32 s{S_KA + 2}, s{S_KA + 2}, s{S_T3}")
    e.salu(f"s_addc_u32 s{S_KA + 3}, s{S_KA + 3}, 0")
    srd(e, S_K, S_KA + 2, S_KA + 3, 262144)
    e.salu(f"s_add_u32 s{S_KA + 4}, s{S_KA + 4}, s{S_T3}")
    e.salu(f"s_addc_u32 s{S_KA + 5}, s{S_KA + 5}, 0")
    srd(e, S_V, S_KA + 4, S_KA + 5, 262144)
    e.salu(f"s_mul_i32 s{S_T3}, s{S_T0}, 458752")
    e.salu(f"s_add_u32 s{S_KA + 8}, s{S_KA + 8}, s{S_T3}")
    e.salu(f"s_addc_u32 s{S_KA + 9}, s{S_KA + 9}, 0")
    srd(e, S_WO, S_KA + 8, S_KA + 9, 458752)
    e.salu(f"s_mul_i32 s{S_T3}, s2, 114688")
    e.salu(f"s_add_u32 s{S_KA + 20}, s{S_KA + 20}, s{S_T3}")
    e.salu(f"s_addc_u32 s{S_KA + 21}, s{S_KA + 21}, 0")
    srd(e, S_P, S_KA + 20, S_KA + 21, 114688)
    stamp(e, 0)

    def adv_x(sr):
        e.salu(f"s_add_u32 s{sr}, s{sr}, 8192")
        e.salu(f"s_cmp_ge_u32 s{sr}, 24576")
        e.salu(f"s_cselect_b32 s{sr}, 0, s{sr}")

    def xdma(tag):
        def f():
            e.salu(f"s_add_u32 s{S_T0}, s{S_XW}, s{S_XD}")
            dma(e, V_DX, S_X, S_XOFF, (S_T0, 0), tag)
            e.salu(f"s_add_u32 s{S_XOFF}, s{S_XOFF}, 64")
            adv_x(S_XD)
        return [f]

    def run(lst):
        for f in lst:
            f()

    run(dma_wq_pair(e, ("D", 0)))
    run(xdma(("X", 0)))
    run(dma_wq_pair(e, ("D", 1)))
    run(xdma(("X", 1)))
    run(dma_wq_pair(e, ("D", 2)))
    if NODMA:
        run(dma_wq_pair(e, ("D", 99)))
        run(xdma(("X", 99)))
        e.raw("s_waitcnt vmcnt(0)")
        e.vm_q = []
        NODMA_ON[0] = True
    V(f"v_lshrrev_b32 v{t1}, 4, v{L}", t1, L)
    V(f"v_lshlrev_b32 v{t1}, 13, v{t1}", t1, t1)
    V(f"v_and_b32 v{t2}, 15, v{L}", t2, L)
    V(f"v_lshl_add_u32 v{t1}, v{t2}, 6, v{t1}", t1, t2, t1)
    e.salu(f"s_mul_i32 s{S_T0}, s{S_B}, 28")
    e.salu(f"s_lshl_b32 s{S_T1}, s{S_W}, 2")
    e.salu(f"s_add_u32 s{S_T0}, s{S_T0}, s{S_T1}")
    e.salu(f"s_lshl_b32 s{S_T0}, s{S_T0}, 13")
    e.raw(f"buffer_load_dword v{V_PF}, v{t1}, s[{S_WQ}:{S_WQ + 3}], s{S_T0} offen")

    c = math.log2(math.e) / 16.0
    e.salu(f"s_mov_b32 s{S_C}, {struct.unpack('<I', struct.pack('<f', c))[0]:#x}")
    e.salu(f"s_mov_b32 s{S_NC}, {struct.unpack('<I', struct.pack('<f', -c))[0]:#x}")
    e.salu(f"s_mov_b32 s{S_THR}, 0x41000000")
    V(f"v_lshrrev_b32 v{t1}, 4, v{L}", t1, L)
    V(f"v_bfe_u32 v{t2}, v{L}, 2, 2", t2, L)
    V(f"v_lshl_add_u32 v{t2}, v{t1}, 3, v{t2}", t2, t1, t2)
    V(f"v_mul_u32_u24 v{t2}, 1088, v{t2}", t2, t2)
    V(f"v_and_b32 v{t1}, 1, v{t1}", t1, t1)
    V(f"v_lshl_add_u32 v{t2}, v{t1}, 3, v{t2}", t2, t1, t2)
    V(f"v_and_b32 v{t1}, 3, v{L}", t1, L)
    V(f"v_lshl_add_u32 v{t2}, v{t1}, 4, v{t2}", t2, t1, t2)
    e.salu(f"s_lshl_b32 s{S_T3}, s{S_HH}, 9")
    V(f"v_add_u32 v{V_PATA}, s{S_T3}, v{t2}", V_PATA, t2)
    V(f"v_bfe_u32 v{t1}, v{L}, 2, 2", t1, L)
    V(f"v_sub_u32 v{t1}, 4, v{t1}", t1, t1)
    V(f"v_and_b32 v{t1}, 3, v{t1}", t1, t1)
    V(f"v_lshrrev_b32 v{t2}, 4, v{L}", t2, L)
    V(f"v_xor_b32 v{t1}, v{t1}, v{t2}", t1, t1, t2)
    V(f"v_lshlrev_b32 v{t1}, 4, v{t1}", t1, t1)
    V(f"v_and_b32 v{t2}, 15, v{L}", t2, L)
    V(f"v_lshl_add_u32 v{t1}, v{t2}, 6, v{t1}", t1, t2, t1)
    e.salu(f"s_lshl_b32 s{S_T3}, s{S_QH}, 11")
    e.salu(f"s_add_u32 s{S_T3}, s{S_T3}, {RING}")
    V(f"v_add_u32 v{V_PATB}, s{S_T3}, v{t1}", V_PATB, t1)
    V(f"v_lshrrev_b32 v{t2}, 5, v{L}", t2, L)
    V(f"v_and_b32 v{t1}, 31, v{L}", t1, L)
    V(f"v_xor_b32 v{t1}, v{t1}, v{t2}", t1, t1, t2)
    V(f"v_lshlrev_b32 v{t1}, 4, v{t1}", t1, t1)
    V(f"v_lshl_add_u32 v{V_DK}, v{t2}, 9, v{t1}", V_DK, t2, t1)
    V(f"v_add_u32 v{V_RDA}, s{S_RD}, v{V_PATA}", V_RDA, V_PATA)

    def xread(xs, G):
        V(f"v_add_u32 v{V_RDB}, s{S_XR}, v{V_PATB}", V_RDB, V_PATB)
        for cb in range(NCB):
            e.ds(f"ds_read_b128 {rn(xs + 4 * cb, 4)}, v{V_RDB} offset:{1024 * cb}", ("x", G), dst=range(xs + 4 * cb, xs + 4 * cb + 4))
        adv_x(S_XR)

    e.wait_vm(("X", 0))
    e.salu("s_barrier")
    stamp(e, 1)
    xread(V_S0, 0)
    e.wait_lds(("x", 0))

    fs = FragStream(e)
    dq = []
    dqs = {"sp": 4, "cnt": 0}

    def defer(lst, sp):
        assert not dq, "previous DMA pieces still pending"
        dq.extend(lst)
        dqs["sp"] = sp
        dqs["cnt"] = 0

    fidx = [0]

    def tick():
        if dq:
            dqs["cnt"] += 1
            if dqs["cnt"] >= dqs["sp"]:
                dqs["cnt"] = 0
                dq.pop(0)()

    def frag_begin():
        i = fidx[0]
        assert i < fs.issued
        e.wait_lds(("fr", i))
        return fs.buf(i)

    def frag_end():
        fidx[0] += 1

    def group(dsts, bs, zero, hooks):
        a = frag_begin()
        for k in range(NCB):
            e.mfma(dsts[k], a, bs[k], None if zero else dsts[k])
            if k == 0:
                fs.issue_next()
            tick()
            hooks(k)
        frag_end()

    def p1_frags():
        for ct in range(16):
            off = 64 * (ct >> 1) + 8 * (ct & 1)
            fs.push(rd_tr(e, V_RDA, off, off + 4 * 1088))

    def next_rd_a():
        adv_slot(e, S_RD)
        V(f"v_add_u32 v{V_RDA}, s{S_RD}, v{V_PATA}", V_RDA, V_PATA)

    def p1_step(G, issue, push_next):
        xs = V_S0 if G % 2 == 0 else V_S1
        xn = V_S1 if G % 2 == 0 else V_S0
        e.wait_lds(("x", G))
        for ct in range(16):
            def hooks(k, ct=ct):
                if NCB * ct + k == BAR1:
                    if G + 1 <= 13:
                        e.wait_vm(("X", G + 1))
                    e.wait_vm(("D", G + 1))
                    e.salu("s_barrier")
                    if G + 1 <= 13:
                        xread(xn, G + 1)
                    pieces = xdma(("X", G + 2)) if G + 2 <= 13 else []
                    pieces += issue()
                    defer(pieces, SP1)
                    push_next()
            group([V_O + 8 * ct + 4 * cb for cb in range(NCB)], [xs + 4 * cb for cb in range(NCB)], G == 0, hooks)

    p1_frags()
    for _ in range(DPF):
        fs.issue_next()

    def push_p1():
        fs.push(("pre", next_rd_a))
        p1_frags()

    p1_step(0, lambda: dma_wq_pair(e, ("D", 3)), push_p1)

    def p1_body(i):
        G = 1 + 2 * i
        p1_step(G, lambda: dma_wq_pair(e, ("D", G + 3)), push_p1)
        p1_step(G + 1, lambda: dma_wq_pair(e, ("D", G + 4)), push_p1)

    e.loop("L_p1", 5, p1_body, f"s{S_CNT}")

    def kv_setup():
        e.salu(f"s_mul_i32 s{S_WM0A}, s{S_W}, {2 * 1056}")
        e.salu(f"s_mul_i32 s{S_WM0B}, s{S_W}, {2 * 1088}")
        e.salu(f"s_add_u32 s{S_WM0B}, s{S_WM0B}, s{S_SK}")
        e.salu(f"s_add_u32 s{S_WM0B}, s{S_WM0B}, {TILE}")
        e.salu(f"s_lshr_b32 s{S_OFFA}, s2, 4")
        e.salu(f"s_xor_b32 s{S_OFFA}, s{S_OFFA}, s2")
        e.salu(f"s_and_b32 s{S_OFFA}, s{S_OFFA}, 15")
        e.salu(f"s_lshl_b32 s{S_OFFA}, s{S_OFFA}, 14")
        e.salu(f"s_lshl_b32 s{S_OFFB}, s{S_W}, 11")
        e.salu(f"s_add_u32 s{S_OFFA}, s{S_OFFA}, s{S_OFFB}")
        e.salu(f"s_mov_b32 s{S_OFFB}, s{S_OFFA}")

    def iss14():
        kv_setup()
        return dma_kv_pair(e, ("D", 14), k=True, v=False)
    p1_step(11, iss14, push_p1)
    p1_step(12, lambda: dma_kv_pair(e, ("D", 15)), push_p1)

    def kv_patterns():
        a, b2 = V_T2, V_T3
        V(f"v_and_b32 v{a}, 15, v{L}", a, L)
        V(f"v_mul_u32_u24 v{a}, 1056, v{a}", a, a)
        V(f"v_lshrrev_b32 v{b2}, 4, v{L}", b2, L)
        V(f"v_lshl_add_u32 v{V_PATA}, v{b2}, 4, v{a}", V_PATA, b2, a)
        V(f"v_bfe_u32 v{a}, v{L}, 2, 2", a, L)
        V(f"v_lshl_add_u32 v{a}, v{b2}, 2, v{a}", a, b2, a)
        V(f"v_mul_u32_u24 v{a}, 1088, v{a}", a, a)
        V(f"v_and_b32 v{b2}, 1, v{b2}", b2, b2)
        V(f"v_lshl_add_u32 v{a}, v{b2}, 3, v{a}", a, b2, a)
        V(f"v_and_b32 v{b2}, 3, v{L}", b2, L)
        V(f"v_lshl_add_u32 v{a}, v{b2}, 4, v{a}", a, b2, a)
        V(f"v_add_u32 v{V_PATB}, {TILE}, v{a}", V_PATB, a)

    def k_frags():
        for ks in range(8):
            for t in range(2):
                fs.push(rd_128(e, V_RDA if t == 0 else V_RDC, ks * 64 + 512 * t))

    def v_frags():
        for dt in range(16):
            off = 64 * (dt >> 1) + 8 * (dt & 1)
            fs.push(rd_tr(e, V_RDB, off, off + 512))

    def next_rd_kv():
        adv_slot(e, S_RD)
        V(f"v_add_u32 v{V_RDA}, s{S_RD}, v{V_PATA}", V_RDA, V_PATA)
        V(f"v_xor_b32 v{V_RDC}, 16, v{V_RDA}", V_RDC, V_RDA)
        V(f"v_add_u32 v{V_RDB}, s{S_RD}, v{V_PATB}", V_RDB, V_PATB)

    def push_k0():
        def pre():
            kv_patterns()
            next_rd_kv()
        fs.push(("pre", pre))
        k_frags()

    p1_step(13, lambda: dma_kv_pair(e, ("D", 16)), push_k0)
    stamp(e, 2)

    def pack_pair(T, cb, scale=False):
        fl = []
        for tp in range(2):
            src = V_O + 8 * (2 * T + tp) + 4 * cb
            if scale:
                for i in range(4):
                    fl.append(lambda i=i, src=src: V(f"v_mul_f32 v{src + i}, v{src + i}, v{V_LSUM + cb}",
                                                     src + i, src + i, V_LSUM + cb))
            for h2 in range(2):
                d = V_Q + 32 * cb + 4 * T + 2 * tp + h2
                fl.append(lambda d=d, src=src, h2=h2: e.valu(
                    f"v_cvt_pk_bf16_f32 v{d}, v{src + 2 * h2}, v{src + 2 * h2 + 1}",
                    dst=[d], src=[src + 2 * h2, src + 2 * h2 + 1]))
        return fl

    for T in range(8):
        for cb in range(NCB):
            run(pack_pair(T, cb))
    for cb in range(NCB):
        V(f"v_mov_b32 v{V_LSUM + cb}, 0", V_LSUM + cb)

    def spread(fl, nslots):
        st = {"k": 0}

        def f(slot):
            tgt = (len(fl) * (slot + 1) + nslots - 1) // nslots
            while st["k"] < min(tgt, len(fl)):
                fl[st["k"]]()
                st["k"] += 1
        return f

    def qk_stage(sn, fl, mid=None):
        sp = spread(fl, 31)
        for ks in range(8):
            for t in range(2):
                def hooks(k, ks=ks, t=t):
                    slot = 4 * ks + 2 * t + k
                    sp(slot)
                    if mid is not None and slot == mid[0]:
                        mid[1]()
                group([sn + 8 * cb + 4 * t for cb in range(NCB)], [V_Q + 32 * cb + 4 * ks for cb in range(NCB)], ks == 0, hooks)

    def exp_fillers(sc):
        fl = []
        for cb in range(NCB):
            for p in range(4):
                a, b = sc + 8 * cb + 2 * p, sc + 8 * cb + 2 * p + 1
                nm, ls = V_NEGM + cb, V_LSUM + cb
                fl.append(lambda a=a, nm=nm: e.valu(f"v_fma_f32 v{a}, v{a}, s{S_C}, v{nm}", dst=[a], src=[a, nm]))
                fl.append(lambda b=b, nm=nm: e.valu(f"v_fma_f32 v{b}, v{b}, s{S_C}, v{nm}", dst=[b], src=[b, nm]))
                fl.append(lambda a=a: e.valu(f"v_exp_f32 v{a}, v{a}", dst=[a], src=[a], trans=True))
                fl.append(lambda b=b: e.valu(f"v_exp_f32 v{b}, v{b}", dst=[b], src=[b], trans=True))
                fl.append(lambda a=a, ls=ls: e.valu(f"v_add_f32 v{ls}, v{ls}, v{a}", dst=[ls], src=[ls, a]))
                fl.append(lambda b=b, ls=ls: e.valu(f"v_add_f32 v{ls}, v{ls}, v{b}", dst=[ls], src=[ls, b]))
                d = sc + 8 * cb + p
                fl.append(lambda a=a, b=b, d=d: e.valu(f"v_cvt_pk_bf16_f32 v{d}, v{a}, v{b}", dst=[d], src=[a, b]))
        return fl

    def max_fillers(sn):
        fl = []
        for cb in range(NCB):
            s0 = sn + 8 * cb
            tm = V_TM + cb
            fl.append(lambda s0=s0, tm=tm: e.valu(f"v_max3_f32 v{tm}, v{s0}, v{s0 + 1}, v{s0 + 2}", dst=[tm], src=[s0, s0 + 1, s0 + 2]))
            fl.append(lambda s0=s0, tm=tm: e.valu(f"v_max3_f32 v{tm}, v{tm}, v{s0 + 3}, v{s0 + 4}", dst=[tm], src=[tm, s0 + 3, s0 + 4]))
            fl.append(lambda s0=s0, tm=tm: e.valu(f"v_max3_f32 v{tm}, v{tm}, v{s0 + 5}, v{s0 + 6}", dst=[tm], src=[tm, s0 + 5, s0 + 6]))
            fl.append(lambda s0=s0, tm=tm: e.valu(f"v_max_f32 v{tm}, v{tm}, v{s0 + 7}", dst=[tm], src=[tm, s0 + 7]))
        return fl

    def check_fillers():
        fl = []
        fl.append(lambda: e.valu(f"v_fma_f32 v{V_TMP}, v{V_TM}, s{S_C}, v{V_NEGM}", dst=[V_TMP], src=[V_TM, V_NEGM]))
        fl.append(lambda: e.valu(f"v_cmp_lt_f32 s[{S_T0 + 55}:{S_T0 + 56}], s{S_THR}, v{V_TMP}", dst=[], src=[V_TMP]))
        fl.append(lambda: e.valu(f"v_fma_f32 v{V_TMP}, v{V_TM + 1}, s{S_C}, v{V_NEGM + 1}", dst=[V_TMP], src=[V_TM + 1, V_NEGM + 1]))
        fl.append(lambda: e.valu(f"v_cmp_lt_f32 vcc, s{S_THR}, v{V_TMP}", dst=[], src=[V_TMP]))
        return fl

    def cross_g(op, reg, tmp):
        for sw in ("v_permlane16_swap_b32", "v_permlane32_swap_b32"):
            V(f"v_mov_b32 v{tmp}, v{reg}", tmp, reg)
            e.nop(2)
            e.valu(f"{sw} v{reg}, v{tmp}", dst=[reg, tmp], src=[reg, tmp])
            V(f"{op} v{reg}, v{reg}, v{tmp}", reg, reg, tmp)

    def push_kv():
        fs.push(("pre", next_rd_kv))
        k_frags()
        v_frags()

    def mid14():
        e.wait_vm(("D", 15))
        e.salu("s_barrier")
        defer(dma_kv_pair(e, ("D", 17)), SP2)
        push_kv()
    qk_stage(V_S0, [], mid=(BAR2, mid14))
    V(f"v_lshlrev_b32 v{V_T2}, 6, v{L}", V_T2, L)
    e.salu(f"s_mul_i32 s{S_T0}, s{S_B}, 28672")
    e.salu(f"s_lshl_b32 s{S_T1}, s{S_W}, 12")
    e.salu(f"s_add_u32 s{S_T0}, s{S_T0}, s{S_T1}")
    e.salu(f"s_lshl_b32 s{S_T1}, s{S_W}, 8")
    e.salu(f"s_add_u32 m0, s{S_T1}, {RING}")
    e.salu("s_nop 0")
    e.raw(f"buffer_load_dword v{V_T2}, s[{S_WO}:{S_WO + 3}], s{S_T0} offen lds")
    run(max_fillers(V_S0))
    for cb in range(NCB):
        cross_g("v_max_f32", V_TM + cb, V_TMP)
        V(f"v_mul_f32 v{V_NEGM + cb}, s{S_NC}, v{V_TM + cb}", V_NEGM + cb, V_TM + cb)

    rare = []

    def p2_step(t, issue, push_next, tagname):
        G = 15 + t
        sc = V_S0 if t % 2 == 0 else V_S1
        sn = V_S1 if t % 2 == 0 else V_S0
        qk_stage(sn, exp_fillers(sc))
        mx = max_fillers(sn) + check_fillers()
        sp = spread(mx, 16)
        for dt in range(16):
            def hooks(k, dt=dt):
                slot = 2 * dt + k
                if slot == BAR2:
                    e.wait_vm(("D", G + 1))
                    e.salu("s_barrier")
                    defer(issue(), SP2)
                    push_next()
                if slot >= 10:
                    sp(slot - 10)
            group([V_O + 8 * dt + 4 * cb for cb in range(NCB)], [sc + 8 * cb for cb in range(NCB)], t == 0, hooks)
        e.salu(f"s_or_b64 vcc, vcc, s[{S_T0 + 55}:{S_T0 + 56}]")
        e.salu(f"s_cbranch_scc1 L_rare_{tagname}")
        e.label(f"L_back_{tagname}")
        rare.append(tagname)

    p2_step(0, lambda: dma_kv_pair(e, ("D", 18)), push_kv, "z")
    p2_step(1, lambda: dma_kv_pair(e, ("D", 19)), push_kv, "y")

    def p2_body(i):
        t = 2 + 2 * i
        p2_step(t, lambda: dma_kv_pair(e, ("D", 15 + t + 3)), push_kv, "a")
        p2_step(t + 1, lambda: dma_kv_pair(e, ("D", 15 + t + 4)), push_kv, "b")

    e.loop("L_p2", 5, p2_body, f"s{S_CNT}")
    rare[:] = ["z", "y", "a", "b"]
    p2_step(12, lambda: dma_kv_pair(e, ("D", 30), k=False, v=True), push_kv, "c")

    def wo_setup():
        a, b2 = V_T3, V_T2
        V(f"v_bfe_u32 v{a}, v{L}, 4, 1", a, L)
        V(f"v_lshlrev_b32 v{a}, 1, v{a}", a, a)
        V(f"v_and_b32 v{b2}, 7, v{L}", b2, L)
        V(f"v_xor_b32 v{a}, v{a}, v{b2}", a, a, b2)
        V(f"v_lshlrev_b32 v{a}, 4, v{a}", a, a)
        V(f"v_lshrrev_b32 v{b2}, 3, v{L}", b2, L)
        V(f"v_mul_u32_u24 v{b2}, 896, v{b2}", b2, b2)
        V(f"v_add_u32 v{V_DWO0}, v{a}, v{b2}", V_DWO0, a, b2)
        V(f"v_xor_b32 v{a}, 64, v{a}", a, a)
        V(f"v_add_u32 v{V_DWO1}, v{a}, v{b2}", V_DWO1, a, b2)
        e.salu(f"s_lshl_b32 s{S_WM0C}, s{S_W}, 11")
        e.salu(f"s_mul_i32 s{S_XOFF}, s{S_W}, {16 * 896}")

    def iss_wo0():
        wo_setup()
        return dma_wo_pair(e, ("D", 31), 0)
    p2_step(13, iss_wo0, push_kv, "d")

    def push_v_only():
        fs.push(("pre", next_rd_kv))
        v_frags()
    p2_step(14, lambda: dma_wo_pair(e, ("D", 32), 1), push_v_only, "e")

    RD3 = [V_RDA, V_RDB, V_RDC, V_RDD]

    def wo_patterns():
        a, b2 = V_T2, V_T3
        V(f"v_lshrrev_b32 v{a}, 4, v{L}", a, L)
        V(f"v_bfe_u32 v{b2}, v{L}, 2, 2", b2, L)
        V(f"v_lshl_add_u32 v{a}, v{a}, 3, v{b2}", a, a, b2)
        V(f"v_lshlrev_b32 v{a}, 7, v{a}", a, a)
        V(f"v_bfe_u32 v{b2}, v{L}, 3, 2", b2, L)
        e.salu(f"s_lshl_b32 s{S_T3}, s{S_HH}, 1")
        V(f"v_xor_b32 v{b2}, s{S_T3}, v{b2}", b2, b2)
        V(f"v_lshl_add_u32 v{a}, v{b2}, 5, v{a}", a, b2, a)
        V(f"v_and_b32 v{b2}, 3, v{L}", b2, L)
        V(f"v_lshl_add_u32 v{a}, v{b2}, 3, v{a}", a, b2, a)
        e.salu(f"s_mul_i32 s{S_T3}, s{S_HH}, {TILE}")
        V(f"v_add_u32 v{V_PATA}, s{S_T3}, v{a}", V_PATA, a)

    def next_rd3():
        adv_slot(e, S_RD)
        V(f"v_add_u32 v{RD3[0]}, s{S_RD}, v{V_PATA}", RD3[0], V_PATA)
        for u in range(1, 4):
            V(f"v_xor_b32 v{RD3[u]}, {32 * u}, v{RD3[0]}", RD3[u], RD3[0])

    ULORD = (2, 3, 0, 1)

    def p3_frags():
        for kk in range(4):
            for ul in ULORD:
                off = kk * 4096
                fs.push(rd_tr(e, RD3[ul], off, off + 512))

    def push_p3_first():
        def pre():
            wo_patterns()
            next_rd3()
        fs.push(("pre", pre))
        p3_frags()

    def push_p3():
        fs.push(("pre", next_rd3))
        p3_frags()

    sc = V_S1
    run(exp_fillers(sc))
    for cb in range(NCB):
        cross_g("v_add_f32", V_LSUM + cb, V_TMP)
        e.valu(f"v_rcp_f32 v{V_LSUM + cb}, v{V_LSUM + cb}", dst=[V_LSUM + cb], src=[V_LSUM + cb], trans=True)

    pend = []
    for dt in range(16):
        def hooks(k, dt=dt):
            slot = 2 * dt + k
            if slot == BAR2:
                e.wait_vm(("D", 31))
                e.salu("s_barrier")
                defer(dma_wo_pair(e, ("D", 33), 2), SP2)
                push_p3_first()
            if k == 1 and dt % 2 == 1 and dt >= 3:
                T = (dt - 3) // 2
                for cb in range(NCB):
                    pend.extend(pack_pair(T, cb, scale=True))
            for _ in range(6):
                if pend:
                    pend.pop(0)()
        group([V_O + 8 * dt + 4 * cb for cb in range(NCB)], [sc + 8 * cb for cb in range(NCB)], False, hooks)
    for cb in range(NCB):
        pend.extend(pack_pair(7, cb, scale=True))
    stamp(e, 3)
    stamp(e, 4)

    ACC = [V_S0, 0]
    V_R = 32
    V_PK = 48
    V_EXW = [56, 57, 58, 59]
    V_EXR = [60, 61, 62, 63]

    def ex_addr(dst, wreg):
        e.salu(f"s_lshl_b32 s{S_T0}, s{wreg}, 12")
        e.salu(f"s_add_u32 s{S_T0}, s{S_T0}, {RING}")
        e.salu(f"s_sub_u32 s{S_T1}, s{wreg}, 6")
        e.salu(f"s_mul_i32 s{S_T1}, s{S_T1}, {4 * TILE}")
        e.salu(f"s_add_u32 s{S_T1}, s{S_T1}, 16384")
        e.salu(f"s_cmp_ge_u32 s{wreg}, 6")
        e.salu(f"s_cselect_b32 s{S_T0}, s{S_T1}, s{S_T0}")
        e.salu(f"s_mov_b32 s{S_T1}, 1024")
        e.salu(f"s_cselect_b32 s{S_T1}, {TILE}, s{S_T1}")
        for i in range(4):
            V(f"v_add_u32 v{dst[i]}, s{S_T0}, v{V_DLIN}", dst[i], V_DLIN)
            if i < 3:
                e.salu(f"s_add_u32 s{S_T0}, s{S_T0}, s{S_T1}")

    def p3_setup():
        ex_addr(V_EXW, S_W)
        e.salu(f"s_xor_b32 s{S_XR}, s{S_W}, 4")
        ex_addr(V_EXR, S_XR)
        e.salu(f"s_mul_i32 s{S_POFF}, s{S_W}, {7 * 2048}")

    def send_fillers(s_):
        acc = ACC[s_ & 1] + 16
        return [(lambda i=i: e.ds(f"ds_write_b128 v{V_EXW[i]}, {rn(acc + 4 * i, 4)}", ("exw", s_),
                                  src=range(acc + 4 * i, acc + 4 * i + 4))) for i in range(4)]

    def recv_fillers(s_):
        return [(lambda i=i: e.ds(f"ds_read_b128 {rn(V_R + 4 * i, 4)}, v{V_EXR[i]}", ("exr", s_),
                                  dst=range(V_R + 4 * i, V_R + 4 * i + 4))) for i in range(4)]

    def fin_fillers(s_):
        acc = ACC[s_ & 1]
        fl = [lambda: None] * 6 + [lambda: e.wait_lds(("exr", s_))]
        for j in range(16):
            fl.append(lambda j=j: V(f"v_add_f32 v{V_R + j}, v{V_R + j}, v{acc + j}", V_R + j, V_R + j, acc + j))
        for ul in range(2):
            for cb in range(NCB):
                tb = V_R + 8 * ul + 4 * cb
                for h2 in range(2):
                    d = V_PK + 4 * cb + 2 * ul + h2
                    fl.append(lambda d=d, tb=tb, h2=h2: e.valu(f"v_cvt_pk_bf16_f32 v{d}, v{tb + 2 * h2}, v{tb + 2 * h2 + 1}",
                                                               dst=[d], src=[tb + 2 * h2, tb + 2 * h2 + 1]))

        def st():
            for cb in range(NCB):
                rg = V_PK + 4 * cb
                e.raw(f"buffer_store_dwordx4 {rn(rg, 4)}, v{V_DLIN}, s[{S_P}:{S_P + 3}], s{S_POFF} offen offset:{cb * 1024} sc1")
            e.salu(f"s_add_u32 s{S_POFF}, s{S_POFF}, 2048")
            e.nop(1)
        fl.append(st)
        return fl

    def p3_step(p, issue, push, extra=None):
        G = 31 + p
        s_, ip = p >> 1, p & 1
        acc = ACC[s_ & 1]
        ext = list(extra) if extra else []
        pre = send_fillers(s_ - 1) if (ip == 0 and s_ >= 1) else []
        post = []
        slot = [0]
        for kk in range(4):
            for ul in ULORD:
                def hooks(k):
                    sl = slot[0]
                    slot[0] += 1
                    if sl >= 2:
                        for _ in range(3):
                            if pre:
                                pre.pop(0)()
                            elif ext:
                                ext.pop(0)()
                                if ext:
                                    ext.pop(0)()
                            elif post:
                                post.pop(0)()
                    if sl == BAR3:
                        assert not pre
                        if ip == 0 and s_ >= 1:
                            e.wait_lds(("exw", s_ - 1))
                        e.wait_vm(("D", G + 1))
                        e.salu("s_barrier")
                        if ip == 0 and s_ >= 1:
                            post.extend(recv_fillers(s_ - 1) + fin_fillers(s_ - 1))
                        defer(issue(), SP3)
                        if push:
                            push_p3()
                group([acc + 8 * ul + 4 * cb for cb in range(NCB)],
                      [V_Q + 32 * cb + 4 * (4 * ip + kk) for cb in range(NCB)], ip == 0 and kk == 0, hooks)
        assert not post and not pre and not ext, (len(post), len(pre), len(ext))

    p3_setup()

    def iss3(p):
        return (lambda: dma_wo_pair(e, ("D", 31 + p), p)) if p <= 13 else (lambda: [])

    p3_step(0, iss3(3), True, extra=pend)
    p3_step(1, iss3(4), True)

    def p3_body(i):
        p = 2 + 4 * i
        for d in range(4):
            p3_step(p + d, iss3(p + d + 3), True)

    e.loop("L_p3", 2, p3_body, f"s{S_CNT}")
    p3_step(10, iss3(13), True)
    p3_step(11, iss3(14), True)
    p3_step(12, iss3(15), True)
    p3_step(13, iss3(16), False)
    run(send_fillers(6))
    e.wait_lds(("exw", 6))
    e.salu("s_barrier")
    run(recv_fillers(6))
    run(fin_fillers(6))
    stamp(e, 5)
    stamp_flush(e, 8)
    e.label("L_attn_exit")
    e.salu("s_endpgm")

    for tg in rare:
        e.label(f"L_rare_{tg}")
        e.raw("s_nop 15", 16)
        for cb in range(NCB):
            tm, nm, ls = V_TM + cb, V_NEGM + cb, V_LSUM + cb
            for sw in ("v_permlane16_swap_b32", "v_permlane32_swap_b32"):
                e.raw(f"v_mov_b32 v{V_TMP}, v{tm}")
                e.raw("s_nop 1", 2)
                e.raw(f"{sw} v{tm}, v{V_TMP}")
                e.raw(f"v_max_f32 v{tm}, v{tm}, v{V_TMP}")
            e.raw(f"v_mul_f32 v{tm}, s{S_NC}, v{tm}")
            e.raw(f"v_min_f32 v{V_TMP}, v{tm}, v{nm}")
            e.raw(f"v_sub_f32 v{tm}, v{V_TMP}, v{nm}")
            e.raw(f"v_exp_f32 v{tm}, v{tm}")
            e.raw(f"v_mov_b32 v{nm}, v{V_TMP}")
            e.raw("s_nop 0")
            e.raw(f"v_mul_f32 v{ls}, v{ls}, v{tm}")
        for dt in range(16):
            for cb in range(NCB):
                for i in range(4):
                    a = V_O + 8 * dt + 4 * cb + i
                    e.raw(f"v_mul_f32 v{a}, v{a}, v{V_TM + cb}")
        e.raw("s_nop 1", 2)
        e.raw(f"s_branch L_back_{tg}")


def gen_reduce(e):
    e.label("reduce_kernel")
    e.salu("s_cmp_ge_u32 s2, 896")
    e.salu("s_cbranch_scc1 L_red_exit")
    e.salu("s_load_dwordx2 s[4:5], s[0:1], 80")
    e.salu("s_load_dwordx2 s[6:7], s[0:1], 96")
    e.salu("s_mul_hi_u32 s8, s2, 0x924924a")
    e.salu("s_mul_i32 s9, s8, 28")
    e.salu("s_sub_u32 s9, s2, s9")
    e.raw("v_lshlrev_b32 v4, 4, v0")
    e.salu("s_lshl_b32 s26, s9, 12")
    e.salu("s_lshl_b32 s9, s9, 1")
    e.raw("v_lshrrev_b32 v3, 7, v0")
    e.raw("v_add_u32 v3, s9, v3")
    e.salu("s_waitcnt lgkmcnt(0)")
    e.salu("s_mul_i32 s10, s8, 917504")
    e.salu("s_add_u32 s6, s6, s10")
    e.salu("s_addc_u32 s7, s7, 0")
    e.salu("s_mov_b32 s12, s6")
    e.salu("s_and_b32 s13, s7, 0xffff")
    e.salu("s_mov_b32 s14, 917504")
    e.salu("s_mov_b32 s15, 0x00020000")
    e.salu("s_mov_b32 s16, s4")
    e.salu("s_and_b32 s17, s5, 0xffff")
    e.salu("s_mov_b32 s18, 3670016")
    e.salu("s_mov_b32 s19, 0x00020000")
    for h in range(8):
        e.salu(f"s_add_u32 s20, s26, {h * 114688}")
        e.raw(f"buffer_load_dwordx4 v[{24 + 4 * h}:{27 + 4 * h}], v4, s[12:15], s20 offen")
    e.raw("v_mul_u32_u24 v5, 37, v3")
    e.raw("v_lshrrev_b32 v5, 8, v5")
    e.raw("v_mul_u32_u24 v6, 7, v5")
    e.raw("v_sub_u32 v6, v3, v6")
    e.raw("v_and_b32 v8, 15, v0")
    e.raw("v_bfe_u32 v9, v0, 6, 1")
    e.raw("v_lshl_add_u32 v8, v9, 4, v8")
    e.raw("v_and_b32 v9, 3, v5")
    e.raw("v_lshl_add_u32 v8, v9, 5, v8")
    e.raw("v_mul_u32_u24 v8, 1792, v8")
    e.raw("v_bfe_u32 v9, v0, 4, 2")
    e.raw("v_lshl_add_u32 v8, v9, 3, v8")
    e.raw("v_lshrrev_b32 v9, 2, v5")
    e.raw("v_lshl_add_u32 v8, v9, 6, v8")
    e.raw("v_lshl_add_u32 v8, v6, 7, v8")
    e.salu("s_and_b32 s21, s8, 15")
    e.salu("s_lshr_b32 s22, s8, 4")
    e.salu("s_mul_i32 s21, s21, 229376")
    e.salu("s_mul_i32 s22, s22, 896")
    e.salu("s_add_u32 s21, s21, s22")
    e.salu("s_mov_b32 s23, 0xffff0000")
    for h in range(8):
        e.salu(f"s_waitcnt vmcnt({7 - h})")
        for i in range(4):
            r = 24 + 4 * h + i
            if h == 0:
                e.raw(f"v_lshlrev_b32 v{16 + 2 * i}, 16, v{r}")
                e.raw(f"v_and_b32 v{17 + 2 * i}, s23, v{r}")
            else:
                e.raw(f"v_lshlrev_b32 v11, 16, v{r}")
                e.raw(f"v_and_b32 v12, s23, v{r}")
                e.raw(f"v_add_f32 v{16 + 2 * i}, v{16 + 2 * i}, v11")
                e.raw(f"v_add_f32 v{17 + 2 * i}, v{17 + 2 * i}, v12")
    for i in range(4):
        e.raw(f"v_cvt_pk_bf16_f32 v{12 + i}, v{16 + 2 * i}, v{17 + 2 * i}")
    e.raw("buffer_store_dwordx2 v[12:13], v8, s[16:19], s21 offen")
    e.raw("buffer_store_dwordx2 v[14:15], v8, s[16:19], s21 offen offset:32")
    e.label("L_red_exit")
    e.salu("s_endpgm")


def main():
    ref = open(OUT + ".ref").read().splitlines()
    out = [l for l in ref if l.startswith(";") and "@launch" not in l]
    out.append(f"; @launch kernel=attn_kernel grid=(256,1,1) block=(512,1,1) lds={LDS_BYTES}")
    out.append("; @launch kernel=reduce_kernel grid=(896,1,1) block=(256,1,1) lds=0")
    out.append('.amdgcn_target "amdgcn-amd-amdhsa--gfx950"')
    out.append(".text")
    e = Em()
    out += [".globl attn_kernel", ".p2align 8", ".type attn_kernel,@function"]
    gen_attn(e)
    out += e.lines
    e2 = Em()
    out += [".globl reduce_kernel", ".p2align 8", ".type reduce_kernel,@function"]
    gen_reduce(e2)
    out += e2.lines
    out.append('.section .rodata,"a"')
    for k, vg, ao, sg in (("attn_kernel", 256, 256, 102), ("reduce_kernel", 56, 56, 32)):
        out += [".p2align 6", f".amdhsa_kernel {k}",
                f"  .amdhsa_next_free_vgpr {vg}",
                f"  .amdhsa_next_free_sgpr {sg}",
                f"  .amdhsa_accum_offset {ao}",
                "  .amdhsa_group_segment_fixed_size 0",
                "  .amdhsa_kernarg_size 104",
                "  .amdhsa_user_sgpr_count 2",
                "  .amdhsa_user_sgpr_kernarg_segment_ptr 1",
                "  .amdhsa_system_sgpr_workgroup_id_x 1",
                ".end_amdhsa_kernel"]
    open(OUTFILE, "w").write("\n".join(out) + "\n")
    print("wrote", OUTFILE, len(out), "lines")


if __name__ == "__main__":
    main()
```

```python
import math
import os
import struct
import sys

NAME = "concat_heads__gqa_block_cached__gqa_block_cached__near_ridge"
OUT = f"cdna_kernels/{NAME}.s"
OUTFILE = sys.argv[1] if len(sys.argv) > 1 else OUT

STAMPS = os.environ.get("STAMPS", "0") == "1"
TILE = 17408
PAIR = 2 * TILE
RING = 4 * PAIR
LDS_BYTES = 160 * 1024
NB = 4
PK_FMA = os.environ.get("PK_FMA", "0") == "1"
PAIRW = os.environ.get("PAIRW", "0") == "1"
DPF = int(os.environ.get("DPF", "3"))
SP1 = int(os.environ.get("SP1", "3"))
SP2 = int(os.environ.get("SP2", "5"))
SP3 = int(os.environ.get("SP3", "4"))
BAR1 = int(os.environ.get("BAR1", "15"))
BAR2 = int(os.environ.get("BAR2", "7"))
BAR3 = int(os.environ.get("BAR3", "11"))
AG = 256


def rn(r, n=1):
    if r >= AG:
        r -= AG
        return f"a{r}" if n == 1 else f"a[{r}:{r + n - 1}]"
    return f"v{r}" if n == 1 else f"v[{r}:{r + n - 1}]"


class Em:
    def __init__(self):
        self.lines = []
        self.pos = 0
        self.mfma_w = {}
        self.mfma_c = {}
        self.valu_w = {}
        self.trans_w = {}
        self.lds_q = []
        self.vm_q = []
        self.capture = None

    def raw(self, s, slots=1):
        (self.capture if self.capture is not None else self.lines).append("    " + s)
        self.pos += slots

    def label(self, s):
        (self.capture if self.capture is not None else self.lines).append(s + ":")

    def nop(self, n):
        while n > 0:
            k = min(n, 16)
            self.raw(f"s_nop {k - 1}", k)
            n -= k

    def _need(self, table, regs, dist):
        need = 0
        for r in regs:
            p = table.get(r)
            if p is not None:
                need = max(need, dist - (self.pos - p - 1))
        return need

    def salu(self, s):
        self.raw(s)

    def valu(self, s, dst=(), src=(), trans=False):
        n = self._need(self.mfma_w, list(dst) + list(src), 8)
        n = max(n, self._need(self.mfma_c, dst, 3))
        if not trans:
            n = max(n, self._need(self.trans_w, src, 1))
        if n > 0:
            self.nop(n)
        p = self.pos
        self.raw(s)
        for r in dst:
            self.valu_w[r] = p
            if trans:
                self.trans_w[r] = p
            else:
                self.trans_w.pop(r, None)

    def mfma(self, d, a, b, c):
        D = list(range(d, d + 4))
        A = list(range(a, a + 4))
        B = list(range(b, b + 4))
        C = list(range(c, c + 4)) if c is not None else []
        n = self._need(self.valu_w, A + B + C, 2)
        n = max(n, self._need(self.mfma_w, A + B, 8))
        assert c is None or c == d
        if n > 0:
            self.nop(n)
        p = self.pos
        cs = rn(c, 4) if c is not None else "0"
        self.raw(f"v_mfma_f32_16x16x32_bf16 {rn(d, 4)}, {rn(a, 4)}, {rn(b, 4)}, {cs}")
        for r in D:
            self.mfma_w[r] = p
        for r in C:
            self.mfma_c[r] = p

    def ds(self, s, tag, dst=(), src=()):
        n = self._need(self.mfma_w, list(dst) + list(src), 8)
        if n > 0:
            self.nop(n)
        self.raw(s)
        self.lds_q.append(tag)
        assert len(self.lds_q) <= 15, "too many LDS ops outstanding"

    def vmem(self, s, tag, dst=(), src=()):
        n = self._need(self.mfma_w, list(dst) + list(src), 8)
        if n > 0:
            self.nop(n)
        self.raw(s)
        self.vm_q.append(tag)
        assert len(self.vm_q) <= 63

    def wait_lds(self, tag):
        idx = max((i for i, t in enumerate(self.lds_q) if t == tag), default=-1)
        if idx < 0:
            return
        self.raw(f"s_waitcnt lgkmcnt({len(self.lds_q) - 1 - idx})")
        self.lds_q = self.lds_q[idx + 1:]

    def wait_vm(self, tag):
        idx = max((i for i, t in enumerate(self.vm_q) if t == tag), default=-1)
        if idx < 0:
            return
        self.raw(f"s_waitcnt vmcnt({len(self.vm_q) - 1 - idx})")
        self.vm_q = self.vm_q[idx + 1:]

    def loop(self, name, n, body, counter):
        assert self.capture is None
        self.salu(f"s_mov_b32 {counter}, {n}")
        texts = []
        for i in range(n):
            self.capture = []
            body(i)
            self.salu(f"s_sub_u32 {counter}, {counter}, 1")
            self.salu(f"s_cmp_lg_u32 {counter}, 0")
            self.salu(f"s_cbranch_scc1 {name}")
            texts.append(self.capture)
            self.capture = None
        for i in range(1, n):
            if texts[i] != texts[0]:
                for a, b in zip(texts[0], texts[i]):
                    if a != b:
                        print("LOOP MISMATCH", name, i, a, "|", b)
                        break
                raise SystemExit(f"loop {name}: iteration {i} differs from iteration 0")
        self.label(name)
        self.lines.extend(texts[0])


S_X, S_K, S_V, S_WQ, S_WO, S_P = 8, 12, 16, 20, 24, 28
S_W, S_HH, S_QH, S_RD, S_DM = 32, 33, 34, 35, 36
S_T0, S_T1, S_T2, S_T3 = 37, 38, 39, 40
S_CNT, S_C, S_NC, S_THR = 41, 42, 43, 44
S_OFFA, S_OFFB, S_XOFF = 45, 46, 47
S_WM0A, S_WM0B, S_WM0C = 48, 49, 50
S_POFF, S_XW, S_XR, S_XD = 51, 52, 53, 54
S_D0, S_D1, S_B, S_SK = 55, 78, 79, 90
S_KA = 56
S_ST = 80

V_O = 0
V_Q = 128
V_S0, V_S1 = 192, 208
V_FR = 224
V_PATA, V_PATB, V_RDA, V_RDB, V_RDC = 240, 241, 242, 243, 244
V_RDD = V_PATB
V_DLIN, V_DK, V_DX = 245, 246, 247
V_DWO0, V_DWO1 = V_DX, V_DK
V_NEGM, V_LSUM, V_TM = 248, 250, 252
V_TMP, V_LANE = 254, 255
V_T2, V_T3 = V_TM, V_TM + 1
V_PF = V_TMP
NCB = 2


def stamp(e, i):
    if not STAMPS:
        return
    e.raw("s_memtime s[96:97]")
    e.raw("s_waitcnt lgkmcnt(0)")
    e.lds_q = []
    e.salu(f"s_mov_b32 s{S_ST + i}, s96")
    if i in (0, 5):
        e.raw("s_memrealtime s[96:97]")
        e.raw("s_waitcnt lgkmcnt(0)")
        e.salu(f"s_mov_b32 s{S_ST + 6 + (i == 5)}, s96")


def stamp_flush(e, n):
    if not STAMPS:
        return
    e.salu("s_load_dwordx2 s[96:97], s[0:1], 96")
    e.salu("s_waitcnt lgkmcnt(0)")
    e.salu("s_add_u32 s96, s96, 0x8000000")
    e.salu("s_addc_u32 s97, s97, 0")
    e.salu("s_mov_b32 s8, s96")
    e.salu("s_and_b32 s9, s97, 0xffff")
    e.salu("s_mov_b32 s10, 0x100000")
    e.salu("s_mov_b32 s11, 0x00020000")
    e.salu("s_lshl_b32 s96, s2, 3")
    e.salu(f"s_add_u32 s96, s96, s{S_W}")
    e.salu("s_lshl_b32 s96, s96, 6")
    e.raw("s_nop 15", 16)
    e.raw("v_mov_b32 v1, 0")
    for i in range(n):
        e.raw(f"v_mov_b32 v0, s{S_ST + i}")
        e.raw(f"buffer_store_dword v0, v1, s[8:11], s96 offen offset:{4 * i}")
        e.raw("s_waitcnt vmcnt(0)")


def srd(e, dst, lo, hi, size):
    e.salu(f"s_mov_b32 s{dst}, s{lo}")
    e.salu(f"s_and_b32 s{dst + 1}, s{hi}, 0xffff")
    e.salu(f"s_mov_b32 s{dst + 2}, {size}")
    e.salu(f"s_mov_b32 s{dst + 3}, 0x00020000")


def adv_slot(e, s):
    e.salu(f"s_add_u32 s{s}, s{s}, {PAIR}")
    e.salu(f"s_cmp_ge_u32 s{s}, {RING}")
    e.salu(f"s_cselect_b32 s{S_T3}, {RING}, 0")
    e.salu(f"s_sub_u32 s{s}, s{s}, s{S_T3}")


NODMA = os.environ.get("NODMA", "0") == "1"
NODMA_ON = [False]


def dma(e, voff, sr, soff, m0expr, tag, off=0):
    if NODMA and NODMA_ON[0]:
        return
    sg, imm = m0expr
    e.salu(f"s_add_u32 m0, s{sg}, {imm}")
    e.salu("s_nop 0")
    o = f" offset:{off}" if off else ""
    pol = " nt" if sr in (S_K, S_V) else ""
    e.vmem(f"buffer_load_dwordx4 v{voff}, s[{sr}:{sr + 3}], s{soff} offen{o}{pol} lds", tag)


def dma_wq_pair(e, tag):
    e.salu(f"s_add_u32 s{S_D0}, s{S_DM}, s{S_WM0A}")
    adv_slot(e, S_DM)
    out = []
    for i in range(4):
        def f(i=i):
            e.salu(f"s_add_u32 s{S_T1}, s{S_OFFA}, {i * 8192}")
            dma(e, V_DLIN, S_WQ, S_T1, (S_D0, i * 1088), tag)
            if i == 3:
                e.salu(f"s_add_u32 s{S_OFFA}, s{S_OFFA}, {32 * 8192}")
        out.append(f)
    return out


def dma_kv_pair(e, tag, k=True, v=True):
    e.salu(f"s_add_u32 s{S_D0}, s{S_DM}, s{S_WM0A}")
    e.salu(f"s_add_u32 s{S_D1}, s{S_DM}, s{S_WM0B}")
    adv_slot(e, S_DM)
    out = []
    if k:
        for i in range(2):
            def f(i=i):
                dma(e, V_DK, S_K, S_OFFA, (S_D0, 32 * i), tag, off=1024 * i)
                if i == 1:
                    e.salu(f"s_add_u32 s{S_OFFA}, s{S_OFFA}, 16384")
                    e.salu(f"s_and_b32 s{S_OFFA}, s{S_OFFA}, 0x3ffff")
            out.append(f)
    if v:
        for i in range(2):
            def f(i=i):
                dma(e, V_DLIN, S_V, S_OFFB, (S_D1, 64 * i), tag, off=1024 * i)
                if i == 1:
                    e.salu(f"s_add_u32 s{S_OFFB}, s{S_OFFB}, 16384")
                    e.salu(f"s_and_b32 s{S_OFFB}, s{S_OFFB}, 0x3ffff")
            out.append(f)
    return out


def dma_wo_pair(e, tag, p):
    e.salu(f"s_add_u32 s{S_D0}, s{S_DM}, s{S_WM0C}")
    adv_slot(e, S_DM)
    out = []
    ip = p & 1
    for hd in range(2):
        for i in range(2):
            def f(hd=hd, i=i):
                e.salu(f"s_add_u32 s{S_T1}, s{S_XOFF}, {(256 * hd + 128 * ip + 8 * i) * 896}")
                dma(e, V_DWO1 if i & 1 else V_DWO0, S_WO, S_T1, (S_D0, hd * TILE + i * 1024), tag)
                if hd == 1 and i == 1 and ip == 1:
                    e.salu(f"s_add_u32 s{S_XOFF}, s{S_XOFF}, 128")
            out.append(f)
    return out


class FragStream:
    def __init__(self, e):
        self.e = e
        self.issued = 0
        self.queue = []

    def buf(self, i):
        return V_FR + 4 * (i % NB)

    def push(self, fn):
        self.queue.append(fn)

    def issue_next(self):
        while self.queue:
            fn = self.queue.pop(0)
            if fn[0] == "pre":
                fn[1]()
                continue
            i = self.issued
            fn[1](self.buf(i), ("fr", i))
            self.issued += 1
            return True
        return False


def rd_tr(e, areg, off0, off1):
    def f(dst, tag):
        e.ds(f"ds_read_b64_tr_b16 {rn(dst, 2)}, v{areg} offset:{off0}", tag, dst=range(dst, dst + 2))
        e.ds(f"ds_read_b64_tr_b16 {rn(dst + 2, 2)}, v{areg} offset:{off1}", tag, dst=range(dst + 2, dst + 4))
    return ("rd", f)


def rd_128(e, areg, off):
    def f(dst, tag):
        e.ds(f"ds_read_b128 {rn(dst, 4)}, v{areg} offset:{off}", tag, dst=range(dst, dst + 4))
    return ("rd", f)


def gen_attn(e):
    e.label("attn_kernel")
    e.salu("s_cmp_ge_u32 s2, 256")
    e.salu("s_cbranch_scc1 L_attn_exit")
    e.salu(f"s_load_dwordx16 s[{S_KA}:{S_KA + 15}], s[0:1], 0")
    e.salu(f"s_load_dwordx4 s[{S_KA + 16}:{S_KA + 19}], s[0:1], 64")
    e.salu(f"s_load_dwordx2 s[{S_KA + 20}:{S_KA + 21}], s[0:1], 96")
    e.salu(f"s_and_b32 s{S_T0}, s2, 7")
    e.salu(f"s_lshr_b32 s{S_T1}, s2, 3")
    e.salu(f"s_and_b32 s{S_T2}, s{S_T1}, 15")
    e.salu(f"s_mov_b32 s{S_B}, s{S_T2}")
    L = V_LANE

    def V(s, d, *src):
        e.valu(s, dst=[d], src=list(src))

    V("v_lshrrev_b32 v1, 6, v0", 1, 0)
    V(f"v_and_b32 v{L}, 63, v0", L, 0)
    e.salu("s_nop 0")
    e.raw(f"v_readfirstlane_b32 s{S_W}, v1")
    e.salu("s_nop 3")
    e.salu(f"s_lshr_b32 s{S_HH}, s{S_W}, 2")
    e.salu(f"s_and_b32 s{S_QH}, s{S_W}, 3")
    e.salu(f"s_bfe_u32 s{S_SK}, s{S_W}, {(1 << 16) | 1}")
    e.salu(f"s_lshl_b32 s{S_SK}, s{S_SK}, 3")
    t1, t2, t3 = 1, 2, 3
    V(f"v_lshlrev_b32 v{V_DLIN}, 4, v{L}", V_DLIN, L)
    V(f"v_bfe_u32 v{t1}, v{L}, 4, 2", t1, L)
    V(f"v_sub_u32 v{t1}, 4, v{t1}", t1, t1)
    V(f"v_and_b32 v{t1}, 3, v{t1}", t1, t1)
    V(f"v_and_b32 v{t2}, 3, v{L}", t2, L)
    V(f"v_xor_b32 v{t1}, v{t1}, v{t2}", t1, t1, t2)
    V(f"v_lshlrev_b32 v{t1}, 4, v{t1}", t1, t1)
    V(f"v_lshrrev_b32 v{t2}, 2, v{L}", t2, L)
    V(f"v_mul_u32_u24 v{t2}, 896, v{t2}", t2, t2)
    V(f"v_add_u32 v{V_DX}, v{t1}, v{t2}", V_DX, t1, t2)
    e.salu(f"s_mul_i32 s{S_WM0A}, s{S_W}, {4 * 1088}")
    e.salu(f"s_add_u32 s{S_WM0A}, s{S_WM0A}, s{S_SK}")
    e.salu(f"s_lshl_b32 s{S_OFFA}, s{S_W}, 15")
    e.salu(f"s_mov_b32 s{S_DM}, 0")
    e.salu(f"s_mov_b32 s{S_RD}, 0")
    e.salu(f"s_mul_i32 s{S_XOFF}, s{S_W}, {16 * 896}")
    e.salu(f"s_lshl_b32 s{S_XW}, s{S_W}, 10")
    e.salu(f"s_add_u32 s{S_XW}, s{S_XW}, {RING}")
    e.salu(f"s_mov_b32 s{S_XR}, 0")
    e.salu(f"s_mov_b32 s{S_XD}, 0")
    e.salu("s_waitcnt lgkmcnt(0)")
    e.salu(f"s_cmp_ge_u32 s{S_T1}, 16")
    for i in range(10):
        e.salu(f"s_cselect_b32 s{S_KA + i}, s{S_KA + 10 + i}, s{S_KA + i}")
    e.salu(f"s_lshl_b32 s{S_T3}, s{S_T0}, 10")
    e.salu(f"s_add_u32 s{S_KA + 6}, s{S_KA + 6}, s{S_T3}")
    e.salu(f"s_addc_u32 s{S_KA + 7}, s{S_KA + 7}, 0")
    srd(e, S_WQ, S_KA + 6, S_KA + 7, 448 * 8192)
    e.salu(f"s_sub_u32 s{S_WQ + 2}, s{S_WQ + 2}, s{S_T3}")
    e.salu(f"s_mul_i32 s{S_T3}, s{S_T2}, 114688")
    e.salu(f"s_add_u32 s{S_KA}, s{S_KA}, s{S_T3}")
    e.salu(f"s_addc_u32 s{S_KA + 1}, s{S_KA + 1}, 0")
    srd(e, S_X, S_KA, S_KA + 1, 114688)
    e.salu(f"s_lshl_b32 s{S_T3}, s{S_T2}, 3")
    e.salu(f"s_add_u32 s{S_T3}, s{S_T3}, s{S_T0}")
    e.salu(f"s_lshl_b32 s{S_T3}, s{S_T3}, 18")
    e.salu(f"s_add_u32 s{S_KA + 2}, s{S_KA + 2}, s{S_T3}")
    e.salu(f"s_addc_u32 s{S_KA + 3}, s{S_KA + 3}, 0")
    srd(e, S_K, S_KA + 2, S_KA + 3, 262144)
    e.salu(f"s_add_u32 s{S_KA + 4}, s{S_KA + 4}, s{S_T3}")
    e.salu(f"s_addc_u32 s{S_KA + 5}, s{S_KA + 5}, 0")
    srd(e, S_V, S_KA + 4, S_KA + 5, 262144)
    e.salu(f"s_mul_i32 s{S_T3}, s{S_T0}, 458752")
    e.salu(f"s_add_u32 s{S_KA + 8}, s{S_KA + 8}, s{S_T3}")
    e.salu(f"s_addc_u32 s{S_KA + 9}, s{S_KA + 9}, 0")
    srd(e, S_WO, S_KA + 8, S_KA + 9, 458752)
    e.salu(f"s_mul_i32 s{S_T3}, s2, 114688")
    e.salu(f"s_add_u32 s{S_KA + 20}, s{S_KA + 20}, s{S_T3}")
    e.salu(f"s_addc_u32 s{S_KA + 21}, s{S_KA + 21}, 0")
    srd(e, S_P, S_KA + 20, S_KA + 21, 114688)
    stamp(e, 0)

    def adv_x(sr):
        e.salu(f"s_add_u32 s{sr}, s{sr}, 8192")
        e.salu(f"s_cmp_ge_u32 s{sr}, 24576")
        e.salu(f"s_cselect_b32 s{sr}, 0, s{sr}")

    def xdma(tag):
        def f():
            e.salu(f"s_add_u32 s{S_T0}, s{S_XW}, s{S_XD}")
            dma(e, V_DX, S_X, S_XOFF, (S_T0, 0), tag)
            e.salu(f"s_add_u32 s{S_XOFF}, s{S_XOFF}, 64")
            adv_x(S_XD)
        return [f]

    def run(lst):
        for f in lst:
            f()

    run(dma_wq_pair(e, ("D", 0)))
    run(xdma(("X", 0)))
    run(dma_wq_pair(e, ("D", 1)))
    run(xdma(("X", 1)))
    run(dma_wq_pair(e, ("D", 2)))
    if NODMA:
        run(dma_wq_pair(e, ("D", 99)))
        run(xdma(("X", 99)))
        e.raw("s_waitcnt vmcnt(0)")
        e.vm_q = []
        NODMA_ON[0] = True
    V(f"v_lshrrev_b32 v{t1}, 4, v{L}", t1, L)
    V(f"v_lshlrev_b32 v{t1}, 13, v{t1}", t1, t1)
    V(f"v_and_b32 v{t2}, 15, v{L}", t2, L)
    V(f"v_lshl_add_u32 v{t1}, v{t2}, 6, v{t1}", t1, t2, t1)
    e.salu(f"s_mul_i32 s{S_T0}, s{S_B}, 28")
    e.salu(f"s_lshl_b32 s{S_T1}, s{S_W}, 2")
    e.salu(f"s_add_u32 s{S_T0}, s{S_T0}, s{S_T1}")
    e.salu(f"s_lshl_b32 s{S_T0}, s{S_T0}, 13")
    e.raw(f"buffer_load_dword v{V_PF}, v{t1}, s[{S_WQ}:{S_WQ + 3}], s{S_T0} offen")

    c = math.log2(math.e) / 16.0
    e.salu(f"s_mov_b32 s{S_C}, {struct.unpack('<I', struct.pack('<f', c))[0]:#x}")
    e.salu(f"s_mov_b32 s{S_NC}, {struct.unpack('<I', struct.pack('<f', -c))[0]:#x}")
    e.salu(f"s_mov_b32 s{S_THR}, 0x41000000")
    V(f"v_lshrrev_b32 v{t1}, 4, v{L}", t1, L)
    V(f"v_bfe_u32 v{t2}, v{L}, 2, 2", t2, L)
    V(f"v_lshl_add_u32 v{t2}, v{t1}, 3, v{t2}", t2, t1, t2)
    V(f"v_mul_u32_u24 v{t2}, 1088, v{t2}", t2, t2)
    V(f"v_and_b32 v{t1}, 1, v{t1}", t1, t1)
    V(f"v_lshl_add_u32 v{t2}, v{t1}, 3, v{t2}", t2, t1, t2)
    V(f"v_and_b32 v{t1}, 3, v{L}", t1, L)
    V(f"v_lshl_add_u32 v{t2}, v{t1}, 4, v{t2}", t2, t1, t2)
    e.salu(f"s_lshl_b32 s{S_T3}, s{S_HH}, 9")
    V(f"v_add_u32 v{V_PATA}, s{S_T3}, v{t2}", V_PATA, t2)
    V(f"v_bfe_u32 v{t1}, v{L}, 2, 2", t1, L)
    V(f"v_sub_u32 v{t1}, 4, v{t1}", t1, t1)
    V(f"v_and_b32 v{t1}, 3, v{t1}", t1, t1)
    V(f"v_lshrrev_b32 v{t2}, 4, v{L}", t2, L)
    V(f"v_xor_b32 v{t1}, v{t1}, v{t2}", t1, t1, t2)
    V(f"v_lshlrev_b32 v{t1}, 4, v{t1}", t1, t1)
    V(f"v_and_b32 v{t2}, 15, v{L}", t2, L)
    V(f"v_lshl_add_u32 v{t1}, v{t2}, 6, v{t1}", t1, t2, t1)
    e.salu(f"s_lshl_b32 s{S_T3}, s{S_QH}, 11")
    e.salu(f"s_add_u32 s{S_T3}, s{S_T3}, {RING}")
    V(f"v_add_u32 v{V_PATB}, s{S_T3}, v{t1}", V_PATB, t1)
    V(f"v_lshrrev_b32 v{t2}, 5, v{L}", t2, L)
    V(f"v_and_b32 v{t1}, 31, v{L}", t1, L)
    V(f"v_xor_b32 v{t1}, v{t1}, v{t2}", t1, t1, t2)
    V(f"v_lshlrev_b32 v{t1}, 4, v{t1}", t1, t1)
    V(f"v_lshl_add_u32 v{V_DK}, v{t2}, 9, v{t1}", V_DK, t2, t1)
    V(f"v_add_u32 v{V_RDA}, s{S_RD}, v{V_PATA}", V_RDA, V_PATA)

    def xread(xs, G):
        V(f"v_add_u32 v{V_RDB}, s{S_XR}, v{V_PATB}", V_RDB, V_PATB)
        for cb in range(NCB):
            e.ds(f"ds_read_b128 {rn(xs + 4 * cb, 4)}, v{V_RDB} offset:{1024 * cb}", ("x", G), dst=range(xs + 4 * cb, xs + 4 * cb + 4))
        adv_x(S_XR)

    e.wait_vm(("X", 0))
    e.salu("s_barrier")
    stamp(e, 1)
    xread(V_S0, 0)
    e.wait_lds(("x", 0))

    fs = FragStream(e)
    dq = []
    dqs = {"sp": 4, "cnt": 0}

    def defer(lst, sp):
        assert not dq, "previous DMA pieces still pending"
        dq.extend(lst)
        dqs["sp"] = sp
        dqs["cnt"] = 0

    fidx = [0]

    def tick():
        if dq:
            dqs["cnt"] += 1
            if dqs["cnt"] >= dqs["sp"]:
                dqs["cnt"] = 0
                dq.pop(0)()

    def frag_begin():
        i = fidx[0]
        assert i < fs.issued
        if PAIRW:
            if i % 2 == 0:
                e.wait_lds(("fr", i + 1) if i + 1 < fs.issued else ("fr", i))
            else:
                e.wait_lds(("fr", i))
        else:
            e.wait_lds(("fr", i))
        return fs.buf(i)

    def frag_end():
        fidx[0] += 1

    def group(dsts, bs, zero, hooks):
        a = frag_begin()
        for k in range(NCB):
            e.mfma(dsts[k], a, bs[k], None if zero else dsts[k])
            if PAIRW:
                if k == NCB - 1:
                    fs.issue_next()
            elif k == 0:
                fs.issue_next()
            tick()
            hooks(k)
        frag_end()

    def p1_frags():
        for ct in range(16):
            off = 64 * (ct >> 1) + 8 * (ct & 1)
            fs.push(rd_tr(e, V_RDA, off, off + 4 * 1088))

    def next_rd_a():
        adv_slot(e, S_RD)
        V(f"v_add_u32 v{V_RDA}, s{S_RD}, v{V_PATA}", V_RDA, V_PATA)

    def p1_step(G, issue, push_next):
        xs = V_S0 if G % 2 == 0 else V_S1
        xn = V_S1 if G % 2 == 0 else V_S0
        e.wait_lds(("x", G))
        for ct in range(16):
            def hooks(k, ct=ct):
                if NCB * ct + k == BAR1:
                    if G + 1 <= 13:
                        e.wait_vm(("X", G + 1))
                    e.wait_vm(("D", G + 1))
                    e.salu("s_barrier")
                    if G + 1 <= 13:
                        xread(xn, G + 1)
                    pieces = xdma(("X", G + 2)) if G + 2 <= 13 else []
                    pieces += issue()
                    defer(pieces, SP1)
                    push_next()
            group([V_O + 8 * ct + 4 * cb for cb in range(NCB)], [xs + 4 * cb for cb in range(NCB)], G == 0, hooks)

    p1_frags()
    for _ in range(DPF):
        fs.issue_next()

    def push_p1():
        fs.push(("pre", next_rd_a))
        p1_frags()

    p1_step(0, lambda: dma_wq_pair(e, ("D", 3)), push_p1)

    def p1_body(i):
        G = 1 + 2 * i
        p1_step(G, lambda: dma_wq_pair(e, ("D", G + 3)), push_p1)
        p1_step(G + 1, lambda: dma_wq_pair(e, ("D", G + 4)), push_p1)

    e.loop("L_p1", 5, p1_body, f"s{S_CNT}")

    def kv_setup():
        e.salu(f"s_mul_i32 s{S_WM0A}, s{S_W}, {2 * 1056}")
        e.salu(f"s_mul_i32 s{S_WM0B}, s{S_W}, {2 * 1088}")
        e.salu(f"s_add_u32 s{S_WM0B}, s{S_WM0B}, s{S_SK}")
        e.salu(f"s_add_u32 s{S_WM0B}, s{S_WM0B}, {TILE}")
        e.salu(f"s_lshr_b32 s{S_OFFA}, s2, 4")
        e.salu(f"s_xor_b32 s{S_OFFA}, s{S_OFFA}, s2")
        e.salu(f"s_and_b32 s{S_OFFA}, s{S_OFFA}, 15")
        e.salu(f"s_lshl_b32 s{S_OFFA}, s{S_OFFA}, 14")
        e.salu(f"s_lshl_b32 s{S_OFFB}, s{S_W}, 11")
        e.salu(f"s_add_u32 s{S_OFFA}, s{S_OFFA}, s{S_OFFB}")
        e.salu(f"s_mov_b32 s{S_OFFB}, s{S_OFFA}")

    def iss14():
        kv_setup()
        return dma_kv_pair(e, ("D", 14), k=True, v=False)
    p1_step(11, iss14, push_p1)
    p1_step(12, lambda: dma_kv_pair(e, ("D", 15)), push_p1)

    def kv_patterns():
        a, b2 = V_T2, V_T3
        V(f"v_and_b32 v{a}, 15, v{L}", a, L)
        V(f"v_mul_u32_u24 v{a}, 1056, v{a}", a, a)
        V(f"v_lshrrev_b32 v{b2}, 4, v{L}", b2, L)
        V(f"v_lshl_add_u32 v{V_PATA}, v{b2}, 4, v{a}", V_PATA, b2, a)
        V(f"v_bfe_u32 v{a}, v{L}, 2, 2", a, L)
        V(f"v_lshl_add_u32 v{a}, v{b2}, 2, v{a}", a, b2, a)
        V(f"v_mul_u32_u24 v{a}, 1088, v{a}", a, a)
        V(f"v_and_b32 v{b2}, 1, v{b2}", b2, b2)
        V(f"v_lshl_add_u32 v{a}, v{b2}, 3, v{a}", a, b2, a)
        V(f"v_and_b32 v{b2}, 3, v{L}", b2, L)
        V(f"v_lshl_add_u32 v{a}, v{b2}, 4, v{a}", a, b2, a)
        V(f"v_add_u32 v{V_PATB}, {TILE}, v{a}", V_PATB, a)

    def k_frags():
        for ks in range(8):
            for t in range(2):
                fs.push(rd_128(e, V_RDA if t == 0 else V_RDC, ks * 64 + 512 * t))

    def v_frags():
        for dt in range(16):
            off = 64 * (dt >> 1) + 8 * (dt & 1)
            fs.push(rd_tr(e, V_RDB, off, off + 512))

    def next_rd_kv():
        adv_slot(e, S_RD)
        V(f"v_add_u32 v{V_RDA}, s{S_RD}, v{V_PATA}", V_RDA, V_PATA)
        V(f"v_xor_b32 v{V_RDC}, 16, v{V_RDA}", V_RDC, V_RDA)
        V(f"v_add_u32 v{V_RDB}, s{S_RD}, v{V_PATB}", V_RDB, V_PATB)

    def push_k0():
        def pre():
            kv_patterns()
            next_rd_kv()
        fs.push(("pre", pre))
        k_frags()

    p1_step(13, lambda: dma_kv_pair(e, ("D", 16)), push_k0)
    stamp(e, 2)

    def pack_pair(T, cb, scale=False):
        fl = []
        for tp in range(2):
            src = V_O + 8 * (2 * T + tp) + 4 * cb
            if scale:
                for i in range(4):
                    fl.append(lambda i=i, src=src: V(f"v_mul_f32 v{src + i}, v{src + i}, v{V_LSUM + cb}",
                                                     src + i, src + i, V_LSUM + cb))
            for h2 in range(2):
                d = V_Q + 32 * cb + 4 * T + 2 * tp + h2
                fl.append(lambda d=d, src=src, h2=h2: e.valu(
                    f"v_cvt_pk_bf16_f32 v{d}, v{src + 2 * h2}, v{src + 2 * h2 + 1}",
                    dst=[d], src=[src + 2 * h2, src + 2 * h2 + 1]))
        return fl

    for T in range(8):
        for cb in range(NCB):
            run(pack_pair(T, cb))
    for cb in range(NCB):
        V(f"v_mov_b32 v{V_LSUM + cb}, 0", V_LSUM + cb)

    def spread(fl, nslots):
        st = {"k": 0}

        def f(slot):
            tgt = (len(fl) * (slot + 1) + nslots - 1) // nslots
            while st["k"] < min(tgt, len(fl)):
                fl[st["k"]]()
                st["k"] += 1
        return f

    def qk_stage(sn, fl, mid=None):
        sp = spread(fl, 31)
        for ks in range(8):
            for t in range(2):
                def hooks(k, ks=ks, t=t):
                    slot = 4 * ks + 2 * t + k
                    sp(slot)
                    if mid is not None and slot == mid[0]:
                        mid[1]()
                group([sn + 8 * cb + 4 * t for cb in range(NCB)], [V_Q + 32 * cb + 4 * ks for cb in range(NCB)], ks == 0, hooks)

    def exp_fillers(sc):
        fl = []
        for cb in range(NCB):
            for p in range(4):
                a, b = sc + 8 * cb + 2 * p, sc + 8 * cb + 2 * p + 1
                nm, ls = V_NEGM + cb, V_LSUM + cb
                if PK_FMA:
                    sel = "op_sel_hi:[1,0,0]" if cb == 0 else "op_sel:[0,0,1] op_sel_hi:[1,0,1]"
                    fl.append(lambda a=a, sel=sel: e.valu(
                        f"v_pk_fma_f32 v[{a}:{a + 1}], v[{a}:{a + 1}], s[{S_C}:{S_C + 1}], v[{V_NEGM}:{V_NEGM + 1}] {sel}",
                        dst=[a, a + 1], src=[a, a + 1, V_NEGM, V_NEGM + 1]))
                else:
                    fl.append(lambda a=a, nm=nm: e.valu(f"v_fma_f32 v{a}, v{a}, s{S_C}, v{nm}", dst=[a], src=[a, nm]))
                    fl.append(lambda b=b, nm=nm: e.valu(f"v_fma_f32 v{b}, v{b}, s{S_C}, v{nm}", dst=[b], src=[b, nm]))
                fl.append(lambda a=a: e.valu(f"v_exp_f32 v{a}, v{a}", dst=[a], src=[a], trans=True))
                fl.append(lambda b=b: e.valu(f"v_exp_f32 v{b}, v{b}", dst=[b], src=[b], trans=True))
                fl.append(lambda a=a, ls=ls: e.valu(f"v_add_f32 v{ls}, v{ls}, v{a}", dst=[ls], src=[ls, a]))
                fl.append(lambda b=b, ls=ls: e.valu(f"v_add_f32 v{ls}, v{ls}, v{b}", dst=[ls], src=[ls, b]))
                d = sc + 8 * cb + p
                fl.append(lambda a=a, b=b, d=d: e.valu(f"v_cvt_pk_bf16_f32 v{d}, v{a}, v{b}", dst=[d], src=[a, b]))
        return fl

    def max_fillers(sn):
        fl = []
        for cb in range(NCB):
            s0 = sn + 8 * cb
            tm = V_TM + cb
            fl.append(lambda s0=s0, tm=tm: e.valu(f"v_max3_f32 v{tm}, v{s0}, v{s0 + 1}, v{s0 + 2}", dst=[tm], src=[s0, s0 + 1, s0 + 2]))
            fl.append(lambda s0=s0, tm=tm: e.valu(f"v_max3_f32 v{tm}, v{tm}, v{s0 + 3}, v{s0 + 4}", dst=[tm], src=[tm, s0 + 3, s0 + 4]))
            fl.append(lambda s0=s0, tm=tm: e.valu(f"v_max3_f32 v{tm}, v{tm}, v{s0 + 5}, v{s0 + 6}", dst=[tm], src=[tm, s0 + 5, s0 + 6]))
            fl.append(lambda s0=s0, tm=tm: e.valu(f"v_max_f32 v{tm}, v{tm}, v{s0 + 7}", dst=[tm], src=[tm, s0 + 7]))
        return fl

    def check_fillers():
        fl = []
        fl.append(lambda: e.valu(f"v_fma_f32 v{V_TMP}, v{V_TM}, s{S_C}, v{V_NEGM}", dst=[V_TMP], src=[V_TM, V_NEGM]))
        fl.append(lambda: e.valu(f"v_cmp_lt_f32 s[{S_T0 + 55}:{S_T0 + 56}], s{S_THR}, v{V_TMP}", dst=[], src=[V_TMP]))
        fl.append(lambda: e.valu(f"v_fma_f32 v{V_TMP}, v{V_TM + 1}, s{S_C}, v{V_NEGM + 1}", dst=[V_TMP], src=[V_TM + 1, V_NEGM + 1]))
        fl.append(lambda: e.valu(f"v_cmp_lt_f32 vcc, s{S_THR}, v{V_TMP}", dst=[], src=[V_TMP]))
        return fl

    def cross_g(op, reg, tmp):
        for sw in ("v_permlane16_swap_b32", "v_permlane32_swap_b32"):
            V(f"v_mov_b32 v{tmp}, v{reg}", tmp, reg)
            e.nop(2)
            e.valu(f"{sw} v{reg}, v{tmp}", dst=[reg, tmp], src=[reg, tmp])
            V(f"{op} v{reg}, v{reg}, v{tmp}", reg, reg, tmp)

    def push_kv():
        fs.push(("pre", next_rd_kv))
        k_frags()
        v_frags()

    def mid14():
        e.wait_vm(("D", 15))
        e.salu("s_barrier")
        defer(dma_kv_pair(e, ("D", 17)), SP2)
        push_kv()
    qk_stage(V_S0, [], mid=(BAR2, mid14))
    V(f"v_lshlrev_b32 v{V_T2}, 6, v{L}", V_T2, L)
    e.salu(f"s_mul_i32 s{S_T0}, s{S_B}, 28672")
    e.salu(f"s_lshl_b32 s{S_T1}, s{S_W}, 12")
    e.salu(f"s_add_u32 s{S_T0}, s{S_T0}, s{S_T1}")
    e.salu(f"s_lshl_b32 s{S_T1}, s{S_W}, 8")
    e.salu(f"s_add_u32 m0, s{S_T1}, {RING}")
    e.salu("s_nop 0")
    e.raw(f"buffer_load_dword v{V_T2}, s[{S_WO}:{S_WO + 3}], s{S_T0} offen lds")
    run(max_fillers(V_S0))
    for cb in range(NCB):
        cross_g("v_max_f32", V_TM + cb, V_TMP)
        V(f"v_mul_f32 v{V_NEGM + cb}, s{S_NC}, v{V_TM + cb}", V_NEGM + cb, V_TM + cb)

    rare = []

    def p2_step(t, issue, push_next, tagname):
        G = 15 + t
        sc = V_S0 if t % 2 == 0 else V_S1
        sn = V_S1 if t % 2 == 0 else V_S0
        qk_stage(sn, exp_fillers(sc))
        mx = max_fillers(sn) + check_fillers()
        sp = spread(mx, 16)
        for dt in range(16):
            def hooks(k, dt=dt):
                slot = 2 * dt + k
                if slot == BAR2:
                    e.wait_vm(("D", G + 1))
                    e.salu("s_barrier")
                    defer(issue(), SP2)
                    push_next()
                if slot >= 10:
                    sp(slot - 10)
            group([V_O + 8 * dt + 4 * cb for cb in range(NCB)], [sc + 8 * cb for cb in range(NCB)], t == 0, hooks)
        e.salu(f"s_or_b64 vcc, vcc, s[{S_T0 + 55}:{S_T0 + 56}]")
        e.salu(f"s_cbranch_scc1 L_rare_{tagname}")
        e.label(f"L_back_{tagname}")
        rare.append(tagname)

    p2_step(0, lambda: dma_kv_pair(e, ("D", 18)), push_kv, "z")
    p2_step(1, lambda: dma_kv_pair(e, ("D", 19)), push_kv, "y")

    def p2_body(i):
        t = 2 + 2 * i
        p2_step(t, lambda: dma_kv_pair(e, ("D", 15 + t + 3)), push_kv, "a")
        p2_step(t + 1, lambda: dma_kv_pair(e, ("D", 15 + t + 4)), push_kv, "b")

    e.loop("L_p2", 5, p2_body, f"s{S_CNT}")
    rare[:] = ["z", "y", "a", "b"]
    p2_step(12, lambda: dma_kv_pair(e, ("D", 30), k=False, v=True), push_kv, "c")

    def wo_setup():
        a, b2 = V_T3, V_T2
        V(f"v_bfe_u32 v{a}, v{L}, 4, 1", a, L)
        V(f"v_lshlrev_b32 v{a}, 1, v{a}", a, a)
        V(f"v_and_b32 v{b2}, 7, v{L}", b2, L)
        V(f"v_xor_b32 v{a}, v{a}, v{b2}", a, a, b2)
        V(f"v_lshlrev_b32 v{a}, 4, v{a}", a, a)
        V(f"v_lshrrev_b32 v{b2}, 3, v{L}", b2, L)
        V(f"v_mul_u32_u24 v{b2}, 896, v{b2}", b2, b2)
        V(f"v_add_u32 v{V_DWO0}, v{a}, v{b2}", V_DWO0, a, b2)
        V(f"v_xor_b32 v{a}, 64, v{a}", a, a)
        V(f"v_add_u32 v{V_DWO1}, v{a}, v{b2}", V_DWO1, a, b2)
        e.salu(f"s_lshl_b32 s{S_WM0C}, s{S_W}, 11")
        e.salu(f"s_mul_i32 s{S_XOFF}, s{S_W}, {16 * 896}")

    def iss_wo0():
        wo_setup()
        return dma_wo_pair(e, ("D", 31), 0)
    p2_step(13, iss_wo0, push_kv, "d")

    def push_v_only():
        fs.push(("pre", next_rd_kv))
        v_frags()
    p2_step(14, lambda: dma_wo_pair(e, ("D", 32), 1), push_v_only, "e")

    RD3 = [V_RDA, V_RDB, V_RDC, V_RDD]

    def wo_patterns():
        a, b2 = V_T2, V_T3
        V(f"v_lshrrev_b32 v{a}, 4, v{L}", a, L)
        V(f"v_bfe_u32 v{b2}, v{L}, 2, 2", b2, L)
        V(f"v_lshl_add_u32 v{a}, v{a}, 3, v{b2}", a, a, b2)
        V(f"v_lshlrev_b32 v{a}, 7, v{a}", a, a)
        V(f"v_bfe_u32 v{b2}, v{L}, 3, 2", b2, L)
        e.salu(f"s_lshl_b32 s{S_T3}, s{S_HH}, 1")
        V(f"v_xor_b32 v{b2}, s{S_T3}, v{b2}", b2, b2)
        V(f"v_lshl_add_u32 v{a}, v{b2}, 5, v{a}", a, b2, a)
        V(f"v_and_b32 v{b2}, 3, v{L}", b2, L)
        V(f"v_lshl_add_u32 v{a}, v{b2}, 3, v{a}", a, b2, a)
        e.salu(f"s_mul_i32 s{S_T3}, s{S_HH}, {TILE}")
        V(f"v_add_u32 v{V_PATA}, s{S_T3}, v{a}", V_PATA, a)

    def next_rd3():
        adv_slot(e, S_RD)
        V(f"v_add_u32 v{RD3[0]}, s{S_RD}, v{V_PATA}", RD3[0], V_PATA)
        for u in range(1, 4):
            V(f"v_xor_b32 v{RD3[u]}, {32 * u}, v{RD3[0]}", RD3[u], RD3[0])

    ULORD = (2, 3, 0, 1)

    def p3_frags():
        for kk in range(4):
            for ul in ULORD:
                off = kk * 4096
                fs.push(rd_tr(e, RD3[ul], off, off + 512))

    def push_p3_first():
        def pre():
            wo_patterns()
            next_rd3()
        fs.push(("pre", pre))
        p3_frags()

    def push_p3():
        fs.push(("pre", next_rd3))
        p3_frags()

    sc = V_S1
    run(exp_fillers(sc))
    for cb in range(NCB):
        cross_g("v_add_f32", V_LSUM + cb, V_TMP)
        e.valu(f"v_rcp_f32 v{V_LSUM + cb}, v{V_LSUM + cb}", dst=[V_LSUM + cb], src=[V_LSUM + cb], trans=True)

    pend = []
    for dt in range(16):
        def hooks(k, dt=dt):
            slot = 2 * dt + k
            if slot == BAR2:
                e.wait_vm(("D", 31))
                e.salu("s_barrier")
                defer(dma_wo_pair(e, ("D", 33), 2), SP2)
                push_p3_first()
            if k == 1 and dt % 2 == 1 and dt >= 3:
                T = (dt - 3) // 2
                for cb in range(NCB):
                    pend.extend(pack_pair(T, cb, scale=True))
            for _ in range(6):
                if pend:
                    pend.pop(0)()
        group([V_O + 8 * dt + 4 * cb for cb in range(NCB)], [sc + 8 * cb for cb in range(NCB)], False, hooks)
    for cb in range(NCB):
        pend.extend(pack_pair(7, cb, scale=True))
    stamp(e, 3)
    stamp(e, 4)

    ACC = [V_S0, 0]
    V_R = 32
    V_PK = 48
    V_EXW = [56, 57, 58, 59]
    V_EXR = [60, 61, 62, 63]

    def ex_addr(dst, wreg):
        e.salu(f"s_lshl_b32 s{S_T0}, s{wreg}, 12")
        e.salu(f"s_add_u32 s{S_T0}, s{S_T0}, {RING}")
        e.salu(f"s_sub_u32 s{S_T1}, s{wreg}, 6")
        e.salu(f"s_mul_i32 s{S_T1}, s{S_T1}, {4 * TILE}")
        e.salu(f"s_add_u32 s{S_T1}, s{S_T1}, 16384")
        e.salu(f"s_cmp_ge_u32 s{wreg}, 6")
        e.salu(f"s_cselect_b32 s{S_T0}, s{S_T1}, s{S_T0}")
        e.salu(f"s_mov_b32 s{S_T1}, 1024")
        e.salu(f"s_cselect_b32 s{S_T1}, {TILE}, s{S_T1}")
        for i in range(4):
            V(f"v_add_u32 v{dst[i]}, s{S_T0}, v{V_DLIN}", dst[i], V_DLIN)
            if i < 3:
                e.salu(f"s_add_u32 s{S_T0}, s{S_T0}, s{S_T1}")

    def p3_setup():
        ex_addr(V_EXW, S_W)
        e.salu(f"s_xor_b32 s{S_XR}, s{S_W}, 4")
        ex_addr(V_EXR, S_XR)
        e.salu(f"s_mul_i32 s{S_POFF}, s{S_W}, {7 * 2048}")

    def send_fillers(s_):
        acc = ACC[s_ & 1] + 16
        return [(lambda i=i: e.ds(f"ds_write_b128 v{V_EXW[i]}, {rn(acc + 4 * i, 4)}", ("exw", s_),
                                  src=range(acc + 4 * i, acc + 4 * i + 4))) for i in range(4)]

    def recv_fillers(s_):
        return [(lambda i=i: e.ds(f"ds_read_b128 {rn(V_R + 4 * i, 4)}, v{V_EXR[i]}", ("exr", s_),
                                  dst=range(V_R + 4 * i, V_R + 4 * i + 4))) for i in range(4)]

    def fin_fillers(s_):
        acc = ACC[s_ & 1]
        fl = [lambda: None] * 6 + [lambda: e.wait_lds(("exr", s_))]
        for j in range(16):
            fl.append(lambda j=j: V(f"v_add_f32 v{V_R + j}, v{V_R + j}, v{acc + j}", V_R + j, V_R + j, acc + j))
        for ul in range(2):
            for cb in range(NCB):
                tb = V_R + 8 * ul + 4 * cb
                for h2 in range(2):
                    d = V_PK + 4 * cb + 2 * ul + h2
                    fl.append(lambda d=d, tb=tb, h2=h2: e.valu(f"v_cvt_pk_bf16_f32 v{d}, v{tb + 2 * h2}, v{tb + 2 * h2 + 1}",
                                                               dst=[d], src=[tb + 2 * h2, tb + 2 * h2 + 1]))

        def st():
            for cb in range(NCB):
                rg = V_PK + 4 * cb
                e.raw(f"buffer_store_dwordx4 {rn(rg, 4)}, v{V_DLIN}, s[{S_P}:{S_P + 3}], s{S_POFF} offen offset:{cb * 1024} sc1")
            e.salu(f"s_add_u32 s{S_POFF}, s{S_POFF}, 2048")
            e.nop(1)
        fl.append(st)
        return fl

    def p3_step(p, issue, push, extra=None):
        G = 31 + p
        s_, ip = p >> 1, p & 1
        acc = ACC[s_ & 1]
        ext = list(extra) if extra else []
        pre = send_fillers(s_ - 1) if (ip == 0 and s_ >= 1) else []
        post = []
        slot = [0]
        for kk in range(4):
            for ul in ULORD:
                def hooks(k):
                    sl = slot[0]
                    slot[0] += 1
                    if sl >= 2:
                        for _ in range(3):
                            if pre:
                                pre.pop(0)()
                            elif ext:
                                ext.pop(0)()
                                if ext:
                                    ext.pop(0)()
                            elif post:
                                post.pop(0)()
                    if sl == BAR3:
                        assert not pre
                        if ip == 0 and s_ >= 1:
                            e.wait_lds(("exw", s_ - 1))
                        e.wait_vm(("D", G + 1))
                        e.salu("s_barrier")
                        if ip == 0 and s_ >= 1:
                            post.extend(recv_fillers(s_ - 1) + fin_fillers(s_ - 1))
                        defer(issue(), SP3)
                        if push:
                            push_p3()
                group([acc + 8 * ul + 4 * cb for cb in range(NCB)],
                      [V_Q + 32 * cb + 4 * (4 * ip + kk) for cb in range(NCB)], ip == 0 and kk == 0, hooks)
        assert not post and not pre and not ext, (len(post), len(pre), len(ext))

    p3_setup()

    def iss3(p):
        return (lambda: dma_wo_pair(e, ("D", 31 + p), p)) if p <= 13 else (lambda: [])

    p3_step(0, iss3(3), True, extra=pend)
    p3_step(1, iss3(4), True)

    def p3_body(i):
        p = 2 + 4 * i
        for d in range(4):
            p3_step(p + d, iss3(p + d + 3), True)

    e.loop("L_p3", 2, p3_body, f"s{S_CNT}")
    p3_step(10, iss3(13), True)
    p3_step(11, iss3(14), True)
    p3_step(12, iss3(15), True)
    p3_step(13, iss3(16), False)
    run(send_fillers(6))
    e.wait_lds(("exw", 6))
    e.salu("s_barrier")
    run(recv_fillers(6))
    run(fin_fillers(6))
    stamp(e, 5)
    stamp_flush(e, 8)
    e.label("L_attn_exit")
    e.salu("s_endpgm")

    for tg in rare:
        e.label(f"L_rare_{tg}")
        e.raw("s_nop 15", 16)
        for cb in range(NCB):
            tm, nm, ls = V_TM + cb, V_NEGM + cb, V_LSUM + cb
            for sw in ("v_permlane16_swap_b32", "v_permlane32_swap_b32"):
                e.raw(f"v_mov_b32 v{V_TMP}, v{tm}")
                e.raw("s_nop 1", 2)
                e.raw(f"{sw} v{tm}, v{V_TMP}")
                e.raw(f"v_max_f32 v{tm}, v{tm}, v{V_TMP}")
            e.raw(f"v_mul_f32 v{tm}, s{S_NC}, v{tm}")
            e.raw(f"v_min_f32 v{V_TMP}, v{tm}, v{nm}")
            e.raw(f"v_sub_f32 v{tm}, v{V_TMP}, v{nm}")
            e.raw(f"v_exp_f32 v{tm}, v{tm}")
            e.raw(f"v_mov_b32 v{nm}, v{V_TMP}")
            e.raw("s_nop 0")
            e.raw(f"v_mul_f32 v{ls}, v{ls}, v{tm}")
        for dt in range(16):
            for cb in range(NCB):
                for i in range(4):
                    a = V_O + 8 * dt + 4 * cb + i
                    e.raw(f"v_mul_f32 v{a}, v{a}, v{V_TM + cb}")
        e.raw("s_nop 1", 2)
        e.raw(f"s_branch L_back_{tg}")


def gen_reduce(e):
    e.label("reduce_kernel")
    e.salu("s_cmp_ge_u32 s2, 896")
    e.salu("s_cbranch_scc1 L_red_exit")
    e.salu("s_load_dwordx2 s[4:5], s[0:1], 80")
    e.salu("s_load_dwordx2 s[6:7], s[0:1], 96")
    e.salu("s_mul_hi_u32 s8, s2, 0x924924a")
    e.salu("s_mul_i32 s9, s8, 28")
    e.salu("s_sub_u32 s9, s2, s9")
    e.raw("v_lshlrev_b32 v4, 4, v0")
    e.salu("s_lshl_b32 s26, s9, 12")
    e.salu("s_lshl_b32 s9, s9, 1")
    e.raw("v_lshrrev_b32 v3, 7, v0")
    e.raw("v_add_u32 v3, s9, v3")
    e.salu("s_waitcnt lgkmcnt(0)")
    e.salu("s_mul_i32 s10, s8, 917504")
    e.salu("s_add_u32 s6, s6, s10")
    e.salu("s_addc_u32 s7, s7, 0")
    e.salu("s_mov_b32 s12, s6")
    e.salu("s_and_b32 s13, s7, 0xffff")
    e.salu("s_mov_b32 s14, 917504")
    e.salu("s_mov_b32 s15, 0x00020000")
    e.salu("s_mov_b32 s16, s4")
    e.salu("s_and_b32 s17, s5, 0xffff")
    e.salu("s_mov_b32 s18, 3670016")
    e.salu("s_mov_b32 s19, 0x00020000")
    for h in range(8):
        e.salu(f"s_add_u32 s20, s26, {h * 114688}")
        e.raw(f"buffer_load_dwordx4 v[{24 + 4 * h}:{27 + 4 * h}], v4, s[12:15], s20 offen")
    e.raw("v_mul_u32_u24 v5, 37, v3")
    e.raw("v_lshrrev_b32 v5, 8, v5")
    e.raw("v_mul_u32_u24 v6, 7, v5")
    e.raw("v_sub_u32 v6, v3, v6")
    e.raw("v_and_b32 v8, 15, v0")
    e.raw("v_bfe_u32 v9, v0, 6, 1")
    e.raw("v_lshl_add_u32 v8, v9, 4, v8")
    e.raw("v_and_b32 v9, 3, v5")
    e.raw("v_lshl_add_u32 v8, v9, 5, v8")
    e.raw("v_mul_u32_u24 v8, 1792, v8")
    e.raw("v_bfe_u32 v9, v0, 4, 2")
    e.raw("v_lshl_add_u32 v8, v9, 3, v8")
    e.raw("v_lshrrev_b32 v9, 2, v5")
    e.raw("v_lshl_add_u32 v8, v9, 6, v8")
    e.raw("v_lshl_add_u32 v8, v6, 7, v8")
    e.salu("s_and_b32 s21, s8, 15")
    e.salu("s_lshr_b32 s22, s8, 4")
    e.salu("s_mul_i32 s21, s21, 229376")
    e.salu("s_mul_i32 s22, s22, 896")
    e.salu("s_add_u32 s21, s21, s22")
    e.salu("s_mov_b32 s23, 0xffff0000")
    for h in range(8):
        e.salu(f"s_waitcnt vmcnt({7 - h})")
        for i in range(4):
            r = 24 + 4 * h + i
            if h == 0:
                e.raw(f"v_lshlrev_b32 v{16 + 2 * i}, 16, v{r}")
                e.raw(f"v_and_b32 v{17 + 2 * i}, s23, v{r}")
            else:
                e.raw(f"v_lshlrev_b32 v11, 16, v{r}")
                e.raw(f"v_and_b32 v12, s23, v{r}")
                e.raw(f"v_add_f32 v{16 + 2 * i}, v{16 + 2 * i}, v11")
                e.raw(f"v_add_f32 v{17 + 2 * i}, v{17 + 2 * i}, v12")
    for i in range(4):
        e.raw(f"v_cvt_pk_bf16_f32 v{12 + i}, v{16 + 2 * i}, v{17 + 2 * i}")
    e.raw("buffer_store_dwordx2 v[12:13], v8, s[16:19], s21 offen")
    e.raw("buffer_store_dwordx2 v[14:15], v8, s[16:19], s21 offen offset:32")
    e.label("L_red_exit")
    e.salu("s_endpgm")


def main():
    ref = open(OUT + ".ref").read().splitlines()
    out = [l for l in ref if l.startswith(";") and "@launch" not in l]
    out.append(f"; @launch kernel=attn_kernel grid=(256,1,1) block=(512,1,1) lds={LDS_BYTES}")
    out.append("; @launch kernel=reduce_kernel grid=(896,1,1) block=(256,1,1) lds=0")
    out.append('.amdgcn_target "amdgcn-amd-amdhsa--gfx950"')
    out.append(".text")
    e = Em()
    out += [".globl attn_kernel", ".p2align 8", ".type attn_kernel,@function"]
    gen_attn(e)
    out += e.lines
    e2 = Em()
    out += [".globl reduce_kernel", ".p2align 8", ".type reduce_kernel,@function"]
    gen_reduce(e2)
    out += e2.lines
    out.append('.section .rodata,"a"')
    for k, vg, ao, sg in (("attn_kernel", 256, 256, 102), ("reduce_kernel", 56, 56, 32)):
        out += [".p2align 6", f".amdhsa_kernel {k}",
                f"  .amdhsa_next_free_vgpr {vg}",
                f"  .amdhsa_next_free_sgpr {sg}",
                f"  .amdhsa_accum_offset {ao}",
                "  .amdhsa_group_segment_fixed_size 0",
                "  .amdhsa_kernarg_size 104",
                "  .amdhsa_user_sgpr_count 2",
                "  .amdhsa_user_sgpr_kernarg_segment_ptr 1",
                "  .amdhsa_system_sgpr_workgroup_id_x 1",
                ".end_amdhsa_kernel"]
    open(OUTFILE, "w").write("\n".join(out) + "\n")
    print("wrote", OUTFILE, len(out), "lines")


if __name__ == "__main__":
    main()
```

```python
import math
import os
import struct
import sys

NAME = "concat_heads__gqa_block_cached__gqa_block_cached__near_ridge"
OUT = f"cdna_kernels/{NAME}.s"
OUTFILE = sys.argv[1] if len(sys.argv) > 1 else OUT

STAMPS = os.environ.get("STAMPS", "0") == "1"
TILE = 17408
PAIR = 2 * TILE
RING = 4 * PAIR
LDS_BYTES = 160 * 1024
NB = 4
PF_X = os.environ.get("PF_X", "0") == "1"
PK_FMA = os.environ.get("PK_FMA", "0") == "1"
PAIRW = os.environ.get("PAIRW", "0") == "1"
DPF = int(os.environ.get("DPF", "3"))
SP1 = int(os.environ.get("SP1", "3"))
SP2 = int(os.environ.get("SP2", "5"))
SP3 = int(os.environ.get("SP3", "4"))
BAR1 = int(os.environ.get("BAR1", "15"))
BAR2 = int(os.environ.get("BAR2", "7"))
BAR3 = int(os.environ.get("BAR3", "11"))
AG = 256


def rn(r, n=1):
    if r >= AG:
        r -= AG
        return f"a{r}" if n == 1 else f"a[{r}:{r + n - 1}]"
    return f"v{r}" if n == 1 else f"v[{r}:{r + n - 1}]"


class Em:
    def __init__(self):
        self.lines = []
        self.pos = 0
        self.mfma_w = {}
        self.mfma_c = {}
        self.valu_w = {}
        self.trans_w = {}
        self.lds_q = []
        self.vm_q = []
        self.capture = None

    def raw(self, s, slots=1):
        (self.capture if self.capture is not None else self.lines).append("    " + s)
        self.pos += slots

    def label(self, s):
        (self.capture if self.capture is not None else self.lines).append(s + ":")

    def nop(self, n):
        while n > 0:
            k = min(n, 16)
            self.raw(f"s_nop {k - 1}", k)
            n -= k

    def _need(self, table, regs, dist):
        need = 0
        for r in regs:
            p = table.get(r)
            if p is not None:
                need = max(need, dist - (self.pos - p - 1))
        return need

    def salu(self, s):
        self.raw(s)

    def valu(self, s, dst=(), src=(), trans=False):
        n = self._need(self.mfma_w, list(dst) + list(src), 8)
        n = max(n, self._need(self.mfma_c, dst, 3))
        if not trans:
            n = max(n, self._need(self.trans_w, src, 1))
        if n > 0:
            self.nop(n)
        p = self.pos
        self.raw(s)
        for r in dst:
            self.valu_w[r] = p
            if trans:
                self.trans_w[r] = p
            else:
                self.trans_w.pop(r, None)

    def mfma(self, d, a, b, c):
        D = list(range(d, d + 4))
        A = list(range(a, a + 4))
        B = list(range(b, b + 4))
        C = list(range(c, c + 4)) if c is not None else []
        n = self._need(self.valu_w, A + B + C, 2)
        n = max(n, self._need(self.mfma_w, A + B, 8))
        assert c is None or c == d
        if n > 0:
            self.nop(n)
        p = self.pos
        cs = rn(c, 4) if c is not None else "0"
        self.raw(f"v_mfma_f32_16x16x32_bf16 {rn(d, 4)}, {rn(a, 4)}, {rn(b, 4)}, {cs}")
        for r in D:
            self.mfma_w[r] = p
        for r in C:
            self.mfma_c[r] = p

    def ds(self, s, tag, dst=(), src=()):
        n = self._need(self.mfma_w, list(dst) + list(src), 8)
        if n > 0:
            self.nop(n)
        self.raw(s)
        self.lds_q.append(tag)
        assert len(self.lds_q) <= 15, "too many LDS ops outstanding"

    def vmem(self, s, tag, dst=(), src=()):
        n = self._need(self.mfma_w, list(dst) + list(src), 8)
        if n > 0:
            self.nop(n)
        self.raw(s)
        self.vm_q.append(tag)
        assert len(self.vm_q) <= 63

    def wait_lds(self, tag):
        idx = max((i for i, t in enumerate(self.lds_q) if t == tag), default=-1)
        if idx < 0:
            return
        self.raw(f"s_waitcnt lgkmcnt({len(self.lds_q) - 1 - idx})")
        self.lds_q = self.lds_q[idx + 1:]

    def wait_vm(self, tag):
        idx = max((i for i, t in enumerate(self.vm_q) if t == tag), default=-1)
        if idx < 0:
            return
        self.raw(f"s_waitcnt vmcnt({len(self.vm_q) - 1 - idx})")
        self.vm_q = self.vm_q[idx + 1:]

    def loop(self, name, n, body, counter):
        assert self.capture is None
        self.salu(f"s_mov_b32 {counter}, {n}")
        texts = []
        for i in range(n):
            self.capture = []
            body(i)
            self.salu(f"s_sub_u32 {counter}, {counter}, 1")
            self.salu(f"s_cmp_lg_u32 {counter}, 0")
            self.salu(f"s_cbranch_scc1 {name}")
            texts.append(self.capture)
            self.capture = None
        for i in range(1, n):
            if texts[i] != texts[0]:
                for a, b in zip(texts[0], texts[i]):
                    if a != b:
                        print("LOOP MISMATCH", name, i, a, "|", b)
                        break
                raise SystemExit(f"loop {name}: iteration {i} differs from iteration 0")
        self.label(name)
        self.lines.extend(texts[0])


S_X, S_K, S_V, S_WQ, S_WO, S_P = 8, 12, 16, 20, 24, 28
S_W, S_HH, S_QH, S_RD, S_DM = 32, 33, 34, 35, 36
S_T0, S_T1, S_T2, S_T3 = 37, 38, 39, 40
S_CNT, S_C, S_NC, S_THR = 41, 42, 43, 44
S_OFFA, S_OFFB, S_XOFF = 45, 46, 47
S_WM0A, S_WM0B, S_WM0C = 48, 49, 50
S_POFF, S_XW, S_XR, S_XD = 51, 52, 53, 54
S_D0, S_D1, S_B, S_SK = 55, 78, 79, 90
S_KA = 56
S_ST = 80

V_O = 0
V_Q = 128
V_S0, V_S1 = 192, 208
V_FR = 224
V_PATA, V_PATB, V_RDA, V_RDB, V_RDC = 240, 241, 242, 243, 244
V_RDD = V_PATB
V_DLIN, V_DK, V_DX = 245, 246, 247
V_DWO0, V_DWO1 = V_DX, V_DK
V_NEGM, V_LSUM, V_TM = 248, 250, 252
V_TMP, V_LANE = 254, 255
V_T2, V_T3 = V_TM, V_TM + 1
V_PF = V_TMP
NCB = 2


def stamp(e, i):
    if not STAMPS:
        return
    e.raw("s_memtime s[96:97]")
    e.raw("s_waitcnt lgkmcnt(0)")
    e.lds_q = []
    e.salu(f"s_mov_b32 s{S_ST + i}, s96")
    if i in (0, 5):
        e.raw("s_memrealtime s[96:97]")
        e.raw("s_waitcnt lgkmcnt(0)")
        e.salu(f"s_mov_b32 s{S_ST + 6 + (i == 5)}, s96")


def stamp_flush(e, n):
    if not STAMPS:
        return
    e.salu("s_load_dwordx2 s[96:97], s[0:1], 96")
    e.salu("s_waitcnt lgkmcnt(0)")
    e.salu("s_add_u32 s96, s96, 0x8000000")
    e.salu("s_addc_u32 s97, s97, 0")
    e.salu("s_mov_b32 s8, s96")
    e.salu("s_and_b32 s9, s97, 0xffff")
    e.salu("s_mov_b32 s10, 0x100000")
    e.salu("s_mov_b32 s11, 0x00020000")
    e.salu("s_lshl_b32 s96, s2, 3")
    e.salu(f"s_add_u32 s96, s96, s{S_W}")
    e.salu("s_lshl_b32 s96, s96, 6")
    e.raw("s_nop 15", 16)
    e.raw("v_mov_b32 v1, 0")
    for i in range(n):
        e.raw(f"v_mov_b32 v0, s{S_ST + i}")
        e.raw(f"buffer_store_dword v0, v1, s[8:11], s96 offen offset:{4 * i}")
        e.raw("s_waitcnt vmcnt(0)")


def srd(e, dst, lo, hi, size):
    e.salu(f"s_mov_b32 s{dst}, s{lo}")
    e.salu(f"s_and_b32 s{dst + 1}, s{hi}, 0xffff")
    e.salu(f"s_mov_b32 s{dst + 2}, {size}")
    e.salu(f"s_mov_b32 s{dst + 3}, 0x00020000")


def adv_slot(e, s):
    e.salu(f"s_add_u32 s{s}, s{s}, {PAIR}")
    e.salu(f"s_cmp_ge_u32 s{s}, {RING}")
    e.salu(f"s_cselect_b32 s{S_T3}, {RING}, 0")
    e.salu(f"s_sub_u32 s{s}, s{s}, s{S_T3}")


NODMA = os.environ.get("NODMA", "0") == "1"
NODMA_ON = [False]


def dma(e, voff, sr, soff, m0expr, tag, off=0):
    if NODMA and NODMA_ON[0]:
        return
    sg, imm = m0expr
    e.salu(f"s_add_u32 m0, s{sg}, {imm}")
    e.salu("s_nop 0")
    o = f" offset:{off}" if off else ""
    pol = " nt" if sr in (S_K, S_V) else ""
    e.vmem(f"buffer_load_dwordx4 v{voff}, s[{sr}:{sr + 3}], s{soff} offen{o}{pol} lds", tag)


def dma_wq_pair(e, tag):
    e.salu(f"s_add_u32 s{S_D0}, s{S_DM}, s{S_WM0A}")
    adv_slot(e, S_DM)
    out = []
    for i in range(4):
        def f(i=i):
            e.salu(f"s_add_u32 s{S_T1}, s{S_OFFA}, {i * 8192}")
            dma(e, V_DLIN, S_WQ, S_T1, (S_D0, i * 1088), tag)
            if i == 3:
                e.salu(f"s_add_u32 s{S_OFFA}, s{S_OFFA}, {32 * 8192}")
        out.append(f)
    return out


def dma_kv_pair(e, tag, k=True, v=True):
    e.salu(f"s_add_u32 s{S_D0}, s{S_DM}, s{S_WM0A}")
    e.salu(f"s_add_u32 s{S_D1}, s{S_DM}, s{S_WM0B}")
    adv_slot(e, S_DM)
    out = []
    if k:
        for i in range(2):
            def f(i=i):
                dma(e, V_DK, S_K, S_OFFA, (S_D0, 32 * i), tag, off=1024 * i)
                if i == 1:
                    e.salu(f"s_add_u32 s{S_OFFA}, s{S_OFFA}, 16384")
                    e.salu(f"s_and_b32 s{S_OFFA}, s{S_OFFA}, 0x3ffff")
            out.append(f)
    if v:
        for i in range(2):
            def f(i=i):
                dma(e, V_DLIN, S_V, S_OFFB, (S_D1, 64 * i), tag, off=1024 * i)
                if i == 1:
                    e.salu(f"s_add_u32 s{S_OFFB}, s{S_OFFB}, 16384")
                    e.salu(f"s_and_b32 s{S_OFFB}, s{S_OFFB}, 0x3ffff")
            out.append(f)
    return out


def dma_wo_pair(e, tag, p):
    e.salu(f"s_add_u32 s{S_D0}, s{S_DM}, s{S_WM0C}")
    adv_slot(e, S_DM)
    out = []
    ip = p & 1
    for hd in range(2):
        for i in range(2):
            def f(hd=hd, i=i):
                e.salu(f"s_add_u32 s{S_T1}, s{S_XOFF}, {(256 * hd + 128 * ip + 8 * i) * 896}")
                dma(e, V_DWO1 if i & 1 else V_DWO0, S_WO, S_T1, (S_D0, hd * TILE + i * 1024), tag)
                if hd == 1 and i == 1 and ip == 1:
                    e.salu(f"s_add_u32 s{S_XOFF}, s{S_XOFF}, 128")
            out.append(f)
    return out


class FragStream:
    def __init__(self, e):
        self.e = e
        self.issued = 0
        self.queue = []

    def buf(self, i):
        return V_FR + 4 * (i % NB)

    def push(self, fn):
        self.queue.append(fn)

    def issue_next(self):
        while self.queue:
            fn = self.queue.pop(0)
            if fn[0] == "pre":
                fn[1]()
                continue
            i = self.issued
            fn[1](self.buf(i), ("fr", i))
            self.issued += 1
            return True
        return False


def rd_tr(e, areg, off0, off1):
    def f(dst, tag):
        e.ds(f"ds_read_b64_tr_b16 {rn(dst, 2)}, v{areg} offset:{off0}", tag, dst=range(dst, dst + 2))
        e.ds(f"ds_read_b64_tr_b16 {rn(dst + 2, 2)}, v{areg} offset:{off1}", tag, dst=range(dst + 2, dst + 4))
    return ("rd", f)


def rd_128(e, areg, off):
    def f(dst, tag):
        e.ds(f"ds_read_b128 {rn(dst, 4)}, v{areg} offset:{off}", tag, dst=range(dst, dst + 4))
    return ("rd", f)


def gen_attn(e):
    e.label("attn_kernel")
    e.salu("s_cmp_ge_u32 s2, 256")
    e.salu("s_cbranch_scc1 L_attn_exit")
    e.salu(f"s_load_dwordx16 s[{S_KA}:{S_KA + 15}], s[0:1], 0")
    e.salu(f"s_load_dwordx4 s[{S_KA + 16}:{S_KA + 19}], s[0:1], 64")
    e.salu(f"s_load_dwordx2 s[{S_KA + 20}:{S_KA + 21}], s[0:1], 96")
    e.salu(f"s_and_b32 s{S_T0}, s2, 7")
    e.salu(f"s_lshr_b32 s{S_T1}, s2, 3")
    e.salu(f"s_and_b32 s{S_T2}, s{S_T1}, 15")
    e.salu(f"s_mov_b32 s{S_B}, s{S_T2}")
    L = V_LANE

    def V(s, d, *src):
        e.valu(s, dst=[d], src=list(src))

    V("v_lshrrev_b32 v1, 6, v0", 1, 0)
    V(f"v_and_b32 v{L}, 63, v0", L, 0)
    e.salu("s_nop 0")
    e.raw(f"v_readfirstlane_b32 s{S_W}, v1")
    e.salu("s_nop 3")
    e.salu(f"s_lshr_b32 s{S_HH}, s{S_W}, 2")
    e.salu(f"s_and_b32 s{S_QH}, s{S_W}, 3")
    e.salu(f"s_bfe_u32 s{S_SK}, s{S_W}, {(1 << 16) | 1}")
    e.salu(f"s_lshl_b32 s{S_SK}, s{S_SK}, 3")
    t1, t2, t3 = 1, 2, 3
    V(f"v_lshlrev_b32 v{V_DLIN}, 4, v{L}", V_DLIN, L)
    V(f"v_bfe_u32 v{t1}, v{L}, 4, 2", t1, L)
    V(f"v_sub_u32 v{t1}, 4, v{t1}", t1, t1)
    V(f"v_and_b32 v{t1}, 3, v{t1}", t1, t1)
    V(f"v_and_b32 v{t2}, 3, v{L}", t2, L)
    V(f"v_xor_b32 v{t1}, v{t1}, v{t2}", t1, t1, t2)
    V(f"v_lshlrev_b32 v{t1}, 4, v{t1}", t1, t1)
    V(f"v_lshrrev_b32 v{t2}, 2, v{L}", t2, L)
    V(f"v_mul_u32_u24 v{t2}, 896, v{t2}", t2, t2)
    V(f"v_add_u32 v{V_DX}, v{t1}, v{t2}", V_DX, t1, t2)
    e.salu(f"s_mul_i32 s{S_WM0A}, s{S_W}, {4 * 1088}")
    e.salu(f"s_add_u32 s{S_WM0A}, s{S_WM0A}, s{S_SK}")
    e.salu(f"s_lshl_b32 s{S_OFFA}, s{S_W}, 15")
    e.salu(f"s_mov_b32 s{S_DM}, 0")
    e.salu(f"s_mov_b32 s{S_RD}, 0")
    e.salu(f"s_mul_i32 s{S_XOFF}, s{S_W}, {16 * 896}")
    e.salu(f"s_lshl_b32 s{S_XW}, s{S_W}, 10")
    e.salu(f"s_add_u32 s{S_XW}, s{S_XW}, {RING}")
    e.salu(f"s_mov_b32 s{S_XR}, 0")
    e.salu(f"s_mov_b32 s{S_XD}, 0")
    e.salu("s_waitcnt lgkmcnt(0)")
    e.salu(f"s_cmp_ge_u32 s{S_T1}, 16")
    for i in range(10):
        e.salu(f"s_cselect_b32 s{S_KA + i}, s{S_KA + 10 + i}, s{S_KA + i}")
    e.salu(f"s_lshl_b32 s{S_T3}, s{S_T0}, 10")
    e.salu(f"s_add_u32 s{S_KA + 6}, s{S_KA + 6}, s{S_T3}")
    e.salu(f"s_addc_u32 s{S_KA + 7}, s{S_KA + 7}, 0")
    srd(e, S_WQ, S_KA + 6, S_KA + 7, 448 * 8192)
    e.salu(f"s_sub_u32 s{S_WQ + 2}, s{S_WQ + 2}, s{S_T3}")
    e.salu(f"s_mul_i32 s{S_T3}, s{S_T2}, 114688")
    e.salu(f"s_add_u32 s{S_KA}, s{S_KA}, s{S_T3}")
    e.salu(f"s_addc_u32 s{S_KA + 1}, s{S_KA + 1}, 0")
    srd(e, S_X, S_KA, S_KA + 1, 114688)
    e.salu(f"s_lshl_b32 s{S_T3}, s{S_T2}, 3")
    e.salu(f"s_add_u32 s{S_T3}, s{S_T3}, s{S_T0}")
    e.salu(f"s_lshl_b32 s{S_T3}, s{S_T3}, 18")
    e.salu(f"s_add_u32 s{S_KA + 2}, s{S_KA + 2}, s{S_T3}")
    e.salu(f"s_addc_u32 s{S_KA + 3}, s{S_KA + 3}, 0")
    srd(e, S_K, S_KA + 2, S_KA + 3, 262144)
    e.salu(f"s_add_u32 s{S_KA + 4}, s{S_KA + 4}, s{S_T3}")
    e.salu(f"s_addc_u32 s{S_KA + 5}, s{S_KA + 5}, 0")
    srd(e, S_V, S_KA + 4, S_KA + 5, 262144)
    e.salu(f"s_mul_i32 s{S_T3}, s{S_T0}, 458752")
    e.salu(f"s_add_u32 s{S_KA + 8}, s{S_KA + 8}, s{S_T3}")
    e.salu(f"s_addc_u32 s{S_KA + 9}, s{S_KA + 9}, 0")
    srd(e, S_WO, S_KA + 8, S_KA + 9, 458752)
    e.salu(f"s_mul_i32 s{S_T3}, s2, 114688")
    e.salu(f"s_add_u32 s{S_KA + 20}, s{S_KA + 20}, s{S_T3}")
    e.salu(f"s_addc_u32 s{S_KA + 21}, s{S_KA + 21}, 0")
    srd(e, S_P, S_KA + 20, S_KA + 21, 114688)
    stamp(e, 0)

    def adv_x(sr):
        e.salu(f"s_add_u32 s{sr}, s{sr}, 8192")
        e.salu(f"s_cmp_ge_u32 s{sr}, 24576")
        e.salu(f"s_cselect_b32 s{sr}, 0, s{sr}")

    def xdma(tag):
        def f():
            e.salu(f"s_add_u32 s{S_T0}, s{S_XW}, s{S_XD}")
            dma(e, V_DX, S_X, S_XOFF, (S_T0, 0), tag)
            e.salu(f"s_add_u32 s{S_XOFF}, s{S_XOFF}, 64")
            adv_x(S_XD)
        return [f]

    def run(lst):
        for f in lst:
            f()

    run(dma_wq_pair(e, ("D", 0)))
    run(xdma(("X", 0)))
    run(dma_wq_pair(e, ("D", 1)))
    run(xdma(("X", 1)))
    run(dma_wq_pair(e, ("D", 2)))
    if NODMA:
        run(dma_wq_pair(e, ("D", 99)))
        run(xdma(("X", 99)))
        e.raw("s_waitcnt vmcnt(0)")
        e.vm_q = []
        NODMA_ON[0] = True
    V(f"v_lshrrev_b32 v{t1}, 4, v{L}", t1, L)
    V(f"v_lshlrev_b32 v{t1}, 13, v{t1}", t1, t1)
    V(f"v_and_b32 v{t2}, 15, v{L}", t2, L)
    V(f"v_lshl_add_u32 v{t1}, v{t2}, 6, v{t1}", t1, t2, t1)
    e.salu(f"s_mul_i32 s{S_T0}, s{S_B}, 28")
    e.salu(f"s_lshl_b32 s{S_T1}, s{S_W}, 2")
    e.salu(f"s_add_u32 s{S_T0}, s{S_T0}, s{S_T1}")
    e.salu(f"s_lshl_b32 s{S_T0}, s{S_T0}, 13")
    e.raw(f"buffer_load_dword v{V_PF}, v{t1}, s[{S_WQ}:{S_WQ + 3}], s{S_T0} offen")
    if PF_X:
        V(f"v_lshlrev_b32 v{t1}, 6, v{L}", t1, L)
        e.salu(f"s_lshl_b32 s{S_T0}, s{S_W}, 14")
        for i in range(4):
            e.salu(f"s_add_u32 s{S_T1}, s{S_T0}, {4096 * i}")
            e.raw(f"buffer_load_dword v{V_Q + i}, v{t1}, s[{S_X}:{S_X + 3}], s{S_T1} offen")

    c = math.log2(math.e) / 16.0
    e.salu(f"s_mov_b32 s{S_C}, {struct.unpack('<I', struct.pack('<f', c))[0]:#x}")
    e.salu(f"s_mov_b32 s{S_NC}, {struct.unpack('<I', struct.pack('<f', -c))[0]:#x}")
    e.salu(f"s_mov_b32 s{S_THR}, 0x41000000")
    V(f"v_lshrrev_b32 v{t1}, 4, v{L}", t1, L)
    V(f"v_bfe_u32 v{t2}, v{L}, 2, 2", t2, L)
    V(f"v_lshl_add_u32 v{t2}, v{t1}, 3, v{t2}", t2, t1, t2)
    V(f"v_mul_u32_u24 v{t2}, 1088, v{t2}", t2, t2)
    V(f"v_and_b32 v{t1}, 1, v{t1}", t1, t1)
    V(f"v_lshl_add_u32 v{t2}, v{t1}, 3, v{t2}", t2, t1, t2)
    V(f"v_and_b32 v{t1}, 3, v{L}", t1, L)
    V(f"v_lshl_add_u32 v{t2}, v{t1}, 4, v{t2}", t2, t1, t2)
    e.salu(f"s_lshl_b32 s{S_T3}, s{S_HH}, 9")
    V(f"v_add_u32 v{V_PATA}, s{S_T3}, v{t2}", V_PATA, t2)
    V(f"v_bfe_u32 v{t1}, v{L}, 2, 2", t1, L)
    V(f"v_sub_u32 v{t1}, 4, v{t1}", t1, t1)
    V(f"v_and_b32 v{t1}, 3, v{t1}", t1, t1)
    V(f"v_lshrrev_b32 v{t2}, 4, v{L}", t2, L)
    V(f"v_xor_b32 v{t1}, v{t1}, v{t2}", t1, t1, t2)
    V(f"v_lshlrev_b32 v{t1}, 4, v{t1}", t1, t1)
    V(f"v_and_b32 v{t2}, 15, v{L}", t2, L)
    V(f"v_lshl_add_u32 v{t1}, v{t2}, 6, v{t1}", t1, t2, t1)
    e.salu(f"s_lshl_b32 s{S_T3}, s{S_QH}, 11")
    e.salu(f"s_add_u32 s{S_T3}, s{S_T3}, {RING}")
    V(f"v_add_u32 v{V_PATB}, s{S_T3}, v{t1}", V_PATB, t1)
    V(f"v_lshrrev_b32 v{t2}, 5, v{L}", t2, L)
    V(f"v_and_b32 v{t1}, 31, v{L}", t1, L)
    V(f"v_xor_b32 v{t1}, v{t1}, v{t2}", t1, t1, t2)
    V(f"v_lshlrev_b32 v{t1}, 4, v{t1}", t1, t1)
    V(f"v_lshl_add_u32 v{V_DK}, v{t2}, 9, v{t1}", V_DK, t2, t1)
    V(f"v_add_u32 v{V_RDA}, s{S_RD}, v{V_PATA}", V_RDA, V_PATA)

    def xread(xs, G):
        V(f"v_add_u32 v{V_RDB}, s{S_XR}, v{V_PATB}", V_RDB, V_PATB)
        for cb in range(NCB):
            e.ds(f"ds_read_b128 {rn(xs + 4 * cb, 4)}, v{V_RDB} offset:{1024 * cb}", ("x", G), dst=range(xs + 4 * cb, xs + 4 * cb + 4))
        adv_x(S_XR)

    e.wait_vm(("X", 0))
    e.salu("s_barrier")
    stamp(e, 1)
    xread(V_S0, 0)
    e.wait_lds(("x", 0))

    fs = FragStream(e)
    dq = []
    dqs = {"sp": 4, "cnt": 0}

    def defer(lst, sp):
        assert not dq, "previous DMA pieces still pending"
        dq.extend(lst)
        dqs["sp"] = sp
        dqs["cnt"] = 0

    fidx = [0]

    def tick():
        if dq:
            dqs["cnt"] += 1
            if dqs["cnt"] >= dqs["sp"]:
                dqs["cnt"] = 0
                dq.pop(0)()

    def frag_begin():
        i = fidx[0]
        assert i < fs.issued
        if PAIRW:
            if i % 2 == 0:
                e.wait_lds(("fr", i + 1) if i + 1 < fs.issued else ("fr", i))
            else:
                e.wait_lds(("fr", i))
        else:
            e.wait_lds(("fr", i))
        return fs.buf(i)

    def frag_end():
        fidx[0] += 1

    def group(dsts, bs, zero, hooks):
        a = frag_begin()
        for k in range(NCB):
            e.mfma(dsts[k], a, bs[k], None if zero else dsts[k])
            if PAIRW:
                if k == NCB - 1:
                    fs.issue_next()
            elif k == 0:
                fs.issue_next()
            tick()
            hooks(k)
        frag_end()

    def p1_frags():
        for ct in range(16):
            off = 64 * (ct >> 1) + 8 * (ct & 1)
            fs.push(rd_tr(e, V_RDA, off, off + 4 * 1088))

    def next_rd_a():
        adv_slot(e, S_RD)
        V(f"v_add_u32 v{V_RDA}, s{S_RD}, v{V_PATA}", V_RDA, V_PATA)

    def p1_step(G, issue, push_next):
        xs = V_S0 if G % 2 == 0 else V_S1
        xn = V_S1 if G % 2 == 0 else V_S0
        e.wait_lds(("x", G))
        for ct in range(16):
            def hooks(k, ct=ct):
                if NCB * ct + k == BAR1:
                    if G + 1 <= 13:
                        e.wait_vm(("X", G + 1))
                    e.wait_vm(("D", G + 1))
                    e.salu("s_barrier")
                    if G + 1 <= 13:
                        xread(xn, G + 1)
                    pieces = xdma(("X", G + 2)) if G + 2 <= 13 else []
                    pieces += issue()
                    defer(pieces, SP1)
                    push_next()
            group([V_O + 8 * ct + 4 * cb for cb in range(NCB)], [xs + 4 * cb for cb in range(NCB)], G == 0, hooks)

    p1_frags()
    for _ in range(DPF):
        fs.issue_next()

    def push_p1():
        fs.push(("pre", next_rd_a))
        p1_frags()

    p1_step(0, lambda: dma_wq_pair(e, ("D", 3)), push_p1)

    def p1_body(i):
        G = 1 + 2 * i
        p1_step(G, lambda: dma_wq_pair(e, ("D", G + 3)), push_p1)
        p1_step(G + 1, lambda: dma_wq_pair(e, ("D", G + 4)), push_p1)

    e.loop("L_p1", 5, p1_body, f"s{S_CNT}")

    def kv_setup():
        e.salu(f"s_mul_i32 s{S_WM0A}, s{S_W}, {2 * 1056}")
        e.salu(f"s_mul_i32 s{S_WM0B}, s{S_W}, {2 * 1088}")
        e.salu(f"s_add_u32 s{S_WM0B}, s{S_WM0B}, s{S_SK}")
        e.salu(f"s_add_u32 s{S_WM0B}, s{S_WM0B}, {TILE}")
        e.salu(f"s_lshr_b32 s{S_OFFA}, s2, 4")
        e.salu(f"s_xor_b32 s{S_OFFA}, s{S_OFFA}, s2")
        e.salu(f"s_and_b32 s{S_OFFA}, s{S_OFFA}, 15")
        e.salu(f"s_lshl_b32 s{S_OFFA}, s{S_OFFA}, 14")
        e.salu(f"s_lshl_b32 s{S_OFFB}, s{S_W}, 11")
        e.salu(f"s_add_u32 s{S_OFFA}, s{S_OFFA}, s{S_OFFB}")
        e.salu(f"s_mov_b32 s{S_OFFB}, s{S_OFFA}")

    def iss14():
        kv_setup()
        return dma_kv_pair(e, ("D", 14), k=True, v=False)
    p1_step(11, iss14, push_p1)
    p1_step(12, lambda: dma_kv_pair(e, ("D", 15)), push_p1)

    def kv_patterns():
        a, b2 = V_T2, V_T3
        V(f"v_and_b32 v{a}, 15, v{L}", a, L)
        V(f"v_mul_u32_u24 v{a}, 1056, v{a}", a, a)
        V(f"v_lshrrev_b32 v{b2}, 4, v{L}", b2, L)
        V(f"v_lshl_add_u32 v{V_PATA}, v{b2}, 4, v{a}", V_PATA, b2, a)
        V(f"v_bfe_u32 v{a}, v{L}, 2, 2", a, L)
        V(f"v_lshl_add_u32 v{a}, v{b2}, 2, v{a}", a, b2, a)
        V(f"v_mul_u32_u24 v{a}, 1088, v{a}", a, a)
        V(f"v_and_b32 v{b2}, 1, v{b2}", b2, b2)
        V(f"v_lshl_add_u32 v{a}, v{b2}, 3, v{a}", a, b2, a)
        V(f"v_and_b32 v{b2}, 3, v{L}", b2, L)
        V(f"v_lshl_add_u32 v{a}, v{b2}, 4, v{a}", a, b2, a)
        V(f"v_add_u32 v{V_PATB}, {TILE}, v{a}", V_PATB, a)

    def k_frags():
        for ks in range(8):
            for t in range(2):
                fs.push(rd_128(e, V_RDA if t == 0 else V_RDC, ks * 64 + 512 * t))

    def v_frags():
        for dt in range(16):
            off = 64 * (dt >> 1) + 8 * (dt & 1)
            fs.push(rd_tr(e, V_RDB, off, off + 512))

    def next_rd_kv():
        adv_slot(e, S_RD)
        V(f"v_add_u32 v{V_RDA}, s{S_RD}, v{V_PATA}", V_RDA, V_PATA)
        V(f"v_xor_b32 v{V_RDC}, 16, v{V_RDA}", V_RDC, V_RDA)
        V(f"v_add_u32 v{V_RDB}, s{S_RD}, v{V_PATB}", V_RDB, V_PATB)

    def push_k0():
        def pre():
            kv_patterns()
            next_rd_kv()
        fs.push(("pre", pre))
        k_frags()

    p1_step(13, lambda: dma_kv_pair(e, ("D", 16)), push_k0)
    stamp(e, 2)

    def pack_pair(T, cb, scale=False):
        fl = []
        for tp in range(2):
            src = V_O + 8 * (2 * T + tp) + 4 * cb
            if scale:
                for i in range(4):
                    fl.append(lambda i=i, src=src: V(f"v_mul_f32 v{src + i}, v{src + i}, v{V_LSUM + cb}",
                                                     src + i, src + i, V_LSUM + cb))
            for h2 in range(2):
                d = V_Q + 32 * cb + 4 * T + 2 * tp + h2
                fl.append(lambda d=d, src=src, h2=h2: e.valu(
                    f"v_cvt_pk_bf16_f32 v{d}, v{src + 2 * h2}, v{src + 2 * h2 + 1}",
                    dst=[d], src=[src + 2 * h2, src + 2 * h2 + 1]))
        return fl

    for T in range(8):
        for cb in range(NCB):
            run(pack_pair(T, cb))
    for cb in range(NCB):
        V(f"v_mov_b32 v{V_LSUM + cb}, 0", V_LSUM + cb)

    def spread(fl, nslots):
        st = {"k": 0}

        def f(slot):
            tgt = (len(fl) * (slot + 1) + nslots - 1) // nslots
            while st["k"] < min(tgt, len(fl)):
                fl[st["k"]]()
                st["k"] += 1
        return f

    def qk_stage(sn, fl, mid=None):
        sp = spread(fl, 31)
        for ks in range(8):
            for t in range(2):
                def hooks(k, ks=ks, t=t):
                    slot = 4 * ks + 2 * t + k
                    sp(slot)
                    if mid is not None and slot == mid[0]:
                        mid[1]()
                group([sn + 8 * cb + 4 * t for cb in range(NCB)], [V_Q + 32 * cb + 4 * ks for cb in range(NCB)], ks == 0, hooks)

    def exp_fillers(sc):
        fl = []
        for cb in range(NCB):
            for p in range(4):
                a, b = sc + 8 * cb + 2 * p, sc + 8 * cb + 2 * p + 1
                nm, ls = V_NEGM + cb, V_LSUM + cb
                if PK_FMA:
                    sel = "op_sel_hi:[1,0,0]" if cb == 0 else "op_sel:[0,0,1] op_sel_hi:[1,0,1]"
                    fl.append(lambda a=a, sel=sel: e.valu(
                        f"v_pk_fma_f32 v[{a}:{a + 1}], v[{a}:{a + 1}], s[{S_C}:{S_C + 1}], v[{V_NEGM}:{V_NEGM + 1}] {sel}",
                        dst=[a, a + 1], src=[a, a + 1, V_NEGM, V_NEGM + 1]))
                else:
                    fl.append(lambda a=a, nm=nm: e.valu(f"v_fma_f32 v{a}, v{a}, s{S_C}, v{nm}", dst=[a], src=[a, nm]))
                    fl.append(lambda b=b, nm=nm: e.valu(f"v_fma_f32 v{b}, v{b}, s{S_C}, v{nm}", dst=[b], src=[b, nm]))
                fl.append(lambda a=a: e.valu(f"v_exp_f32 v{a}, v{a}", dst=[a], src=[a], trans=True))
                fl.append(lambda b=b: e.valu(f"v_exp_f32 v{b}, v{b}", dst=[b], src=[b], trans=True))
                fl.append(lambda a=a, ls=ls: e.valu(f"v_add_f32 v{ls}, v{ls}, v{a}", dst=[ls], src=[ls, a]))
                fl.append(lambda b=b, ls=ls: e.valu(f"v_add_f32 v{ls}, v{ls}, v{b}", dst=[ls], src=[ls, b]))
                d = sc + 8 * cb + p
                fl.append(lambda a=a, b=b, d=d: e.valu(f"v_cvt_pk_bf16_f32 v{d}, v{a}, v{b}", dst=[d], src=[a, b]))
        return fl

    def max_fillers(sn):
        fl = []
        for cb in range(NCB):
            s0 = sn + 8 * cb
            tm = V_TM + cb
            fl.append(lambda s0=s0, tm=tm: e.valu(f"v_max3_f32 v{tm}, v{s0}, v{s0 + 1}, v{s0 + 2}", dst=[tm], src=[s0, s0 + 1, s0 + 2]))
            fl.append(lambda s0=s0, tm=tm: e.valu(f"v_max3_f32 v{tm}, v{tm}, v{s0 + 3}, v{s0 + 4}", dst=[tm], src=[tm, s0 + 3, s0 + 4]))
            fl.append(lambda s0=s0, tm=tm: e.valu(f"v_max3_f32 v{tm}, v{tm}, v{s0 + 5}, v{s0 + 6}", dst=[tm], src=[tm, s0 + 5, s0 + 6]))
            fl.append(lambda s0=s0, tm=tm: e.valu(f"v_max_f32 v{tm}, v{tm}, v{s0 + 7}", dst=[tm], src=[tm, s0 + 7]))
        return fl

    def check_fillers():
        fl = []
        fl.append(lambda: e.valu(f"v_fma_f32 v{V_TMP}, v{V_TM}, s{S_C}, v{V_NEGM}", dst=[V_TMP], src=[V_TM, V_NEGM]))
        fl.append(lambda: e.valu(f"v_cmp_lt_f32 s[{S_T0 + 55}:{S_T0 + 56}], s{S_THR}, v{V_TMP}", dst=[], src=[V_TMP]))
        fl.append(lambda: e.valu(f"v_fma_f32 v{V_TMP}, v{V_TM + 1}, s{S_C}, v{V_NEGM + 1}", dst=[V_TMP], src=[V_TM + 1, V_NEGM + 1]))
        fl.append(lambda: e.valu(f"v_cmp_lt_f32 vcc, s{S_THR}, v{V_TMP}", dst=[], src=[V_TMP]))
        return fl

    def cross_g(op, reg, tmp):
        for sw in ("v_permlane16_swap_b32", "v_permlane32_swap_b32"):
            V(f"v_mov_b32 v{tmp}, v{reg}", tmp, reg)
            e.nop(2)
            e.valu(f"{sw} v{reg}, v{tmp}", dst=[reg, tmp], src=[reg, tmp])
            V(f"{op} v{reg}, v{reg}, v{tmp}", reg, reg, tmp)

    def push_kv():
        fs.push(("pre", next_rd_kv))
        k_frags()
        v_frags()

    def mid14():
        e.wait_vm(("D", 15))
        e.salu("s_barrier")
        defer(dma_kv_pair(e, ("D", 17)), SP2)
        push_kv()
    qk_stage(V_S0, [], mid=(BAR2, mid14))
    V(f"v_lshlrev_b32 v{V_T2}, 6, v{L}", V_T2, L)
    e.salu(f"s_mul_i32 s{S_T0}, s{S_B}, 28672")
    e.salu(f"s_lshl_b32 s{S_T1}, s{S_W}, 12")
    e.salu(f"s_add_u32 s{S_T0}, s{S_T0}, s{S_T1}")
    e.salu(f"s_lshl_b32 s{S_T1}, s{S_W}, 8")
    e.salu(f"s_add_u32 m0, s{S_T1}, {RING}")
    e.salu("s_nop 0")
    e.raw(f"buffer_load_dword v{V_T2}, s[{S_WO}:{S_WO + 3}], s{S_T0} offen lds")
    run(max_fillers(V_S0))
    for cb in range(NCB):
        cross_g("v_max_f32", V_TM + cb, V_TMP)
        V(f"v_mul_f32 v{V_NEGM + cb}, s{S_NC}, v{V_TM + cb}", V_NEGM + cb, V_TM + cb)

    rare = []

    def p2_step(t, issue, push_next, tagname):
        G = 15 + t
        sc = V_S0 if t % 2 == 0 else V_S1
        sn = V_S1 if t % 2 == 0 else V_S0
        qk_stage(sn, exp_fillers(sc))
        mx = max_fillers(sn) + check_fillers()
        sp = spread(mx, 16)
        for dt in range(16):
            def hooks(k, dt=dt):
                slot = 2 * dt + k
                if slot == BAR2:
                    e.wait_vm(("D", G + 1))
                    e.salu("s_barrier")
                    defer(issue(), SP2)
                    push_next()
                if slot >= 10:
                    sp(slot - 10)
            group([V_O + 8 * dt + 4 * cb for cb in range(NCB)], [sc + 8 * cb for cb in range(NCB)], t == 0, hooks)
        e.salu(f"s_or_b64 vcc, vcc, s[{S_T0 + 55}:{S_T0 + 56}]")
        e.salu(f"s_cbranch_scc1 L_rare_{tagname}")
        e.label(f"L_back_{tagname}")
        rare.append(tagname)

    p2_step(0, lambda: dma_kv_pair(e, ("D", 18)), push_kv, "z")
    p2_step(1, lambda: dma_kv_pair(e, ("D", 19)), push_kv, "y")

    def p2_body(i):
        t = 2 + 2 * i
        p2_step(t, lambda: dma_kv_pair(e, ("D", 15 + t + 3)), push_kv, "a")
        p2_step(t + 1, lambda: dma_kv_pair(e, ("D", 15 + t + 4)), push_kv, "b")

    e.loop("L_p2", 5, p2_body, f"s{S_CNT}")
    rare[:] = ["z", "y", "a", "b"]
    p2_step(12, lambda: dma_kv_pair(e, ("D", 30), k=False, v=True), push_kv, "c")

    def wo_setup():
        a, b2 = V_T3, V_T2
        V(f"v_bfe_u32 v{a}, v{L}, 4, 1", a, L)
        V(f"v_lshlrev_b32 v{a}, 1, v{a}", a, a)
        V(f"v_and_b32 v{b2}, 7, v{L}", b2, L)
        V(f"v_xor_b32 v{a}, v{a}, v{b2}", a, a, b2)
        V(f"v_lshlrev_b32 v{a}, 4, v{a}", a, a)
        V(f"v_lshrrev_b32 v{b2}, 3, v{L}", b2, L)
        V(f"v_mul_u32_u24 v{b2}, 896, v{b2}", b2, b2)
        V(f"v_add_u32 v{V_DWO0}, v{a}, v{b2}", V_DWO0, a, b2)
        V(f"v_xor_b32 v{a}, 64, v{a}", a, a)
        V(f"v_add_u32 v{V_DWO1}, v{a}, v{b2}", V_DWO1, a, b2)
        e.salu(f"s_lshl_b32 s{S_WM0C}, s{S_W}, 11")
        e.salu(f"s_mul_i32 s{S_XOFF}, s{S_W}, {16 * 896}")

    def iss_wo0():
        wo_setup()
        return dma_wo_pair(e, ("D", 31), 0)
    p2_step(13, iss_wo0, push_kv, "d")

    def push_v_only():
        fs.push(("pre", next_rd_kv))
        v_frags()
    p2_step(14, lambda: dma_wo_pair(e, ("D", 32), 1), push_v_only, "e")

    RD3 = [V_RDA, V_RDB, V_RDC, V_RDD]

    def wo_patterns():
        a, b2 = V_T2, V_T3
        V(f"v_lshrrev_b32 v{a}, 4, v{L}", a, L)
        V(f"v_bfe_u32 v{b2}, v{L}, 2, 2", b2, L)
        V(f"v_lshl_add_u32 v{a}, v{a}, 3, v{b2}", a, a, b2)
        V(f"v_lshlrev_b32 v{a}, 7, v{a}", a, a)
        V(f"v_bfe_u32 v{b2}, v{L}, 3, 2", b2, L)
        e.salu(f"s_lshl_b32 s{S_T3}, s{S_HH}, 1")
        V(f"v_xor_b32 v{b2}, s{S_T3}, v{b2}", b2, b2)
        V(f"v_lshl_add_u32 v{a}, v{b2}, 5, v{a}", a, b2, a)
        V(f"v_and_b32 v{b2}, 3, v{L}", b2, L)
        V(f"v_lshl_add_u32 v{a}, v{b2}, 3, v{a}", a, b2, a)
        e.salu(f"s_mul_i32 s{S_T3}, s{S_HH}, {TILE}")
        V(f"v_add_u32 v{V_PATA}, s{S_T3}, v{a}", V_PATA, a)

    def next_rd3():
        adv_slot(e, S_RD)
        V(f"v_add_u32 v{RD3[0]}, s{S_RD}, v{V_PATA}", RD3[0], V_PATA)
        for u in range(1, 4):
            V(f"v_xor_b32 v{RD3[u]}, {32 * u}, v{RD3[0]}", RD3[u], RD3[0])

    ULORD = (2, 3, 0, 1)

    def p3_frags():
        for kk in range(4):
            for ul in ULORD:
                off = kk * 4096
                fs.push(rd_tr(e, RD3[ul], off, off + 512))

    def push_p3_first():
        def pre():
            wo_patterns()
            next_rd3()
        fs.push(("pre", pre))
        p3_frags()

    def push_p3():
        fs.push(("pre", next_rd3))
        p3_frags()

    sc = V_S1
    run(exp_fillers(sc))
    for cb in range(NCB):
        cross_g("v_add_f32", V_LSUM + cb, V_TMP)
        e.valu(f"v_rcp_f32 v{V_LSUM + cb}, v{V_LSUM + cb}", dst=[V_LSUM + cb], src=[V_LSUM + cb], trans=True)

    pend = []
    for dt in range(16):
        def hooks(k, dt=dt):
            slot = 2 * dt + k
            if slot == BAR2:
                e.wait_vm(("D", 31))
                e.salu("s_barrier")
                defer(dma_wo_pair(e, ("D", 33), 2), SP2)
                push_p3_first()
            if k == 1 and dt % 2 == 1 and dt >= 3:
                T = (dt - 3) // 2
                for cb in range(NCB):
                    pend.extend(pack_pair(T, cb, scale=True))
            for _ in range(6):
                if pend:
                    pend.pop(0)()
        group([V_O + 8 * dt + 4 * cb for cb in range(NCB)], [sc + 8 * cb for cb in range(NCB)], False, hooks)
    for cb in range(NCB):
        pend.extend(pack_pair(7, cb, scale=True))
    stamp(e, 3)
    stamp(e, 4)

    ACC = [V_S0, 0]
    V_R = 32
    V_PK = 48
    V_EXW = [56, 57, 58, 59]
    V_EXR = [60, 61, 62, 63]

    def ex_addr(dst, wreg):
        e.salu(f"s_lshl_b32 s{S_T0}, s{wreg}, 12")
        e.salu(f"s_add_u32 s{S_T0}, s{S_T0}, {RING}")
        e.salu(f"s_sub_u32 s{S_T1}, s{wreg}, 6")
        e.salu(f"s_mul_i32 s{S_T1}, s{S_T1}, {4 * TILE}")
        e.salu(f"s_add_u32 s{S_T1}, s{S_T1}, 16384")
        e.salu(f"s_cmp_ge_u32 s{wreg}, 6")
        e.salu(f"s_cselect_b32 s{S_T0}, s{S_T1}, s{S_T0}")
        e.salu(f"s_mov_b32 s{S_T1}, 1024")
        e.salu(f"s_cselect_b32 s{S_T1}, {TILE}, s{S_T1}")
        for i in range(4):
            V(f"v_add_u32 v{dst[i]}, s{S_T0}, v{V_DLIN}", dst[i], V_DLIN)
            if i < 3:
                e.salu(f"s_add_u32 s{S_T0}, s{S_T0}, s{S_T1}")

    def p3_setup():
        ex_addr(V_EXW, S_W)
        e.salu(f"s_xor_b32 s{S_XR}, s{S_W}, 4")
        ex_addr(V_EXR, S_XR)
        e.salu(f"s_mul_i32 s{S_POFF}, s{S_W}, {7 * 2048}")

    def send_fillers(s_):
        acc = ACC[s_ & 1] + 16
        return [(lambda i=i: e.ds(f"ds_write_b128 v{V_EXW[i]}, {rn(acc + 4 * i, 4)}", ("exw", s_),
                                  src=range(acc + 4 * i, acc + 4 * i + 4))) for i in range(4)]

    def recv_fillers(s_):
        return [(lambda i=i: e.ds(f"ds_read_b128 {rn(V_R + 4 * i, 4)}, v{V_EXR[i]}", ("exr", s_),
                                  dst=range(V_R + 4 * i, V_R + 4 * i + 4))) for i in range(4)]

    def fin_fillers(s_):
        acc = ACC[s_ & 1]
        fl = [lambda: None] * 6 + [lambda: e.wait_lds(("exr", s_))]
        for j in range(16):
            fl.append(lambda j=j: V(f"v_add_f32 v{V_R + j}, v{V_R + j}, v{acc + j}", V_R + j, V_R + j, acc + j))
        for ul in range(2):
            for cb in range(NCB):
                tb = V_R + 8 * ul + 4 * cb
                for h2 in range(2):
                    d = V_PK + 4 * cb + 2 * ul + h2
                    fl.append(lambda d=d, tb=tb, h2=h2: e.valu(f"v_cvt_pk_bf16_f32 v{d}, v{tb + 2 * h2}, v{tb + 2 * h2 + 1}",
                                                               dst=[d], src=[tb + 2 * h2, tb + 2 * h2 + 1]))

        def st():
            for cb in range(NCB):
                rg = V_PK + 4 * cb
                e.raw(f"buffer_store_dwordx4 {rn(rg, 4)}, v{V_DLIN}, s[{S_P}:{S_P + 3}], s{S_POFF} offen offset:{cb * 1024} sc1")
            e.salu(f"s_add_u32 s{S_POFF}, s{S_POFF}, 2048")
            e.nop(1)
        fl.append(st)
        return fl

    def p3_step(p, issue, push, extra=None):
        G = 31 + p
        s_, ip = p >> 1, p & 1
        acc = ACC[s_ & 1]
        ext = list(extra) if extra else []
        pre = send_fillers(s_ - 1) if (ip == 0 and s_ >= 1) else []
        post = []
        slot = [0]
        for kk in range(4):
            for ul in ULORD:
                def hooks(k):
                    sl = slot[0]
                    slot[0] += 1
                    if sl >= 2:
                        for _ in range(3):
                            if pre:
                                pre.pop(0)()
                            elif ext:
                                ext.pop(0)()
                                if ext:
                                    ext.pop(0)()
                            elif post:
                                post.pop(0)()
                    if sl == BAR3:
                        assert not pre
                        if ip == 0 and s_ >= 1:
                            e.wait_lds(("exw", s_ - 1))
                        e.wait_vm(("D", G + 1))
                        e.salu("s_barrier")
                        if ip == 0 and s_ >= 1:
                            post.extend(recv_fillers(s_ - 1) + fin_fillers(s_ - 1))
                        defer(issue(), SP3)
                        if push:
                            push_p3()
                group([acc + 8 * ul + 4 * cb for cb in range(NCB)],
                      [V_Q + 32 * cb + 4 * (4 * ip + kk) for cb in range(NCB)], ip == 0 and kk == 0, hooks)
        assert not post and not pre and not ext, (len(post), len(pre), len(ext))

    p3_setup()

    def iss3(p):
        return (lambda: dma_wo_pair(e, ("D", 31 + p), p)) if p <= 13 else (lambda: [])

    p3_step(0, iss3(3), True, extra=pend)
    p3_step(1, iss3(4), True)

    def p3_body(i):
        p = 2 + 4 * i
        for d in range(4):
            p3_step(p + d, iss3(p + d + 3), True)

    e.loop("L_p3", 2, p3_body, f"s{S_CNT}")
    p3_step(10, iss3(13), True)
    p3_step(11, iss3(14), True)
    p3_step(12, iss3(15), True)
    p3_step(13, iss3(16), False)
    run(send_fillers(6))
    e.wait_lds(("exw", 6))
    e.salu("s_barrier")
    run(recv_fillers(6))
    run(fin_fillers(6))
    stamp(e, 5)
    stamp_flush(e, 8)
    e.label("L_attn_exit")
    e.salu("s_endpgm")

    for tg in rare:
        e.label(f"L_rare_{tg}")
        e.raw("s_nop 15", 16)
        for cb in range(NCB):
            tm, nm, ls = V_TM + cb, V_NEGM + cb, V_LSUM + cb
            for sw in ("v_permlane16_swap_b32", "v_permlane32_swap_b32"):
                e.raw(f"v_mov_b32 v{V_TMP}, v{tm}")
                e.raw("s_nop 1", 2)
                e.raw(f"{sw} v{tm}, v{V_TMP}")
                e.raw(f"v_max_f32 v{tm}, v{tm}, v{V_TMP}")
            e.raw(f"v_mul_f32 v{tm}, s{S_NC}, v{tm}")
            e.raw(f"v_min_f32 v{V_TMP}, v{tm}, v{nm}")
            e.raw(f"v_sub_f32 v{tm}, v{V_TMP}, v{nm}")
            e.raw(f"v_exp_f32 v{tm}, v{tm}")
            e.raw(f"v_mov_b32 v{nm}, v{V_TMP}")
            e.raw("s_nop 0")
            e.raw(f"v_mul_f32 v{ls}, v{ls}, v{tm}")
        for dt in range(16):
            for cb in range(NCB):
                for i in range(4):
                    a = V_O + 8 * dt + 4 * cb + i
                    e.raw(f"v_mul_f32 v{a}, v{a}, v{V_TM + cb}")
        e.raw("s_nop 1", 2)
        e.raw(f"s_branch L_back_{tg}")


def gen_reduce(e):
    e.label("reduce_kernel")
    e.salu("s_cmp_ge_u32 s2, 896")
    e.salu("s_cbranch_scc1 L_red_exit")
    e.salu("s_load_dwordx2 s[4:5], s[0:1], 80")
    e.salu("s_load_dwordx2 s[6:7], s[0:1], 96")
    e.salu("s_mul_hi_u32 s8, s2, 0x924924a")
    e.salu("s_mul_i32 s9, s8, 28")
    e.salu("s_sub_u32 s9, s2, s9")
    e.raw("v_lshlrev_b32 v4, 4, v0")
    e.salu("s_lshl_b32 s26, s9, 12")
    e.salu("s_lshl_b32 s9, s9, 1")
    e.raw("v_lshrrev_b32 v3, 7, v0")
    e.raw("v_add_u32 v3, s9, v3")
    e.salu("s_waitcnt lgkmcnt(0)")
    e.salu("s_mul_i32 s10, s8, 917504")
    e.salu("s_add_u32 s6, s6, s10")
    e.salu("s_addc_u32 s7, s7, 0")
    e.salu("s_mov_b32 s12, s6")
    e.salu("s_and_b32 s13, s7, 0xffff")
    e.salu("s_mov_b32 s14, 917504")
    e.salu("s_mov_b32 s15, 0x00020000")
    e.salu("s_mov_b32 s16, s4")
    e.salu("s_and_b32 s17, s5, 0xffff")
    e.salu("s_mov_b32 s18, 3670016")
    e.salu("s_mov_b32 s19, 0x00020000")
    for h in range(8):
        e.salu(f"s_add_u32 s20, s26, {h * 114688}")
        e.raw(f"buffer_load_dwordx4 v[{24 + 4 * h}:{27 + 4 * h}], v4, s[12:15], s20 offen")
    e.raw("v_mul_u32_u24 v5, 37, v3")
    e.raw("v_lshrrev_b32 v5, 8, v5")
    e.raw("v_mul_u32_u24 v6, 7, v5")
    e.raw("v_sub_u32 v6, v3, v6")
    e.raw("v_and_b32 v8, 15, v0")
    e.raw("v_bfe_u32 v9, v0, 6, 1")
    e.raw("v_lshl_add_u32 v8, v9, 4, v8")
    e.raw("v_and_b32 v9, 3, v5")
    e.raw("v_lshl_add_u32 v8, v9, 5, v8")
    e.raw("v_mul_u32_u24 v8, 1792, v8")
    e.raw("v_bfe_u32 v9, v0, 4, 2")
    e.raw("v_lshl_add_u32 v8, v9, 3, v8")
    e.raw("v_lshrrev_b32 v9, 2, v5")
    e.raw("v_lshl_add_u32 v8, v9, 6, v8")
    e.raw("v_lshl_add_u32 v8, v6, 7, v8")
    e.salu("s_and_b32 s21, s8, 15")
    e.salu("s_lshr_b32 s22, s8, 4")
    e.salu("s_mul_i32 s21, s21, 229376")
    e.salu("s_mul_i32 s22, s22, 896")
    e.salu("s_add_u32 s21, s21, s22")
    e.salu("s_mov_b32 s23, 0xffff0000")
    for h in range(8):
        e.salu(f"s_waitcnt vmcnt({7 - h})")
        for i in range(4):
            r = 24 + 4 * h + i
            if h == 0:
                e.raw(f"v_lshlrev_b32 v{16 + 2 * i}, 16, v{r}")
                e.raw(f"v_and_b32 v{17 + 2 * i}, s23, v{r}")
            else:
                e.raw(f"v_lshlrev_b32 v11, 16, v{r}")
                e.raw(f"v_and_b32 v12, s23, v{r}")
                e.raw(f"v_add_f32 v{16 + 2 * i}, v{16 + 2 * i}, v11")
                e.raw(f"v_add_f32 v{17 + 2 * i}, v{17 + 2 * i}, v12")
    for i in range(4):
        e.raw(f"v_cvt_pk_bf16_f32 v{12 + i}, v{16 + 2 * i}, v{17 + 2 * i}")
    e.raw("buffer_store_dwordx2 v[12:13], v8, s[16:19], s21 offen")
    e.raw("buffer_store_dwordx2 v[14:15], v8, s[16:19], s21 offen offset:32")
    e.label("L_red_exit")
    e.salu("s_endpgm")


def main():
    ref = open(OUT + ".ref").read().splitlines()
    out = [l for l in ref if l.startswith(";") and "@launch" not in l]
    out.append(f"; @launch kernel=attn_kernel grid=(256,1,1) block=(512,1,1) lds={LDS_BYTES}")
    out.append("; @launch kernel=reduce_kernel grid=(896,1,1) block=(256,1,1) lds=0")
    out.append('.amdgcn_target "amdgcn-amd-amdhsa--gfx950"')
    out.append(".text")
    e = Em()
    out += [".globl attn_kernel", ".p2align 8", ".type attn_kernel,@function"]
    gen_attn(e)
    out += e.lines
    e2 = Em()
    out += [".globl reduce_kernel", ".p2align 8", ".type reduce_kernel,@function"]
    gen_reduce(e2)
    out += e2.lines
    out.append('.section .rodata,"a"')
    for k, vg, ao, sg in (("attn_kernel", 256, 256, 102), ("reduce_kernel", 56, 56, 32)):
        out += [".p2align 6", f".amdhsa_kernel {k}",
                f"  .amdhsa_next_free_vgpr {vg}",
                f"  .amdhsa_next_free_sgpr {sg}",
                f"  .amdhsa_accum_offset {ao}",
                "  .amdhsa_group_segment_fixed_size 0",
                "  .amdhsa_kernarg_size 104",
                "  .amdhsa_user_sgpr_count 2",
                "  .amdhsa_user_sgpr_kernarg_segment_ptr 1",
                "  .amdhsa_system_sgpr_workgroup_id_x 1",
                ".end_amdhsa_kernel"]
    open(OUTFILE, "w").write("\n".join(out) + "\n")
    print("wrote", OUTFILE, len(out), "lines")


if __name__ == "__main__":
    main()
```

```python
import math
import os
import struct
import sys

NAME = "concat_heads__gqa_block_cached__gqa_block_cached__near_ridge"
OUT = f"cdna_kernels/{NAME}.s"
OUTFILE = sys.argv[1] if len(sys.argv) > 1 else OUT

STAMPS = os.environ.get("STAMPS", "0") in ("1", "2")
STAMPS_DBG = os.environ.get("STAMPS", "0") == "2"
TILE = 17408
PAIR = 2 * TILE
RING = 4 * PAIR
LDS_BYTES = 160 * 1024
NB = 4
PF_WQ = os.environ.get("PF_WQ", "1") == "1"
PF_WO = os.environ.get("PF_WO", "1") == "1"
PF_X = os.environ.get("PF_X", "0") == "1"
PK_FMA = os.environ.get("PK_FMA", "0") == "1"
PAIRW = os.environ.get("PAIRW", "0") == "1"
DPF = int(os.environ.get("DPF", "3"))
SP1 = int(os.environ.get("SP1", "3"))
SP2 = int(os.environ.get("SP2", "5"))
SP3 = int(os.environ.get("SP3", "4"))
BAR1 = int(os.environ.get("BAR1", "15"))
BAR2 = int(os.environ.get("BAR2", "7"))
BAR3 = int(os.environ.get("BAR3", "11"))
AG = 256


def rn(r, n=1):
    if r >= AG:
        r -= AG
        return f"a{r}" if n == 1 else f"a[{r}:{r + n - 1}]"
    return f"v{r}" if n == 1 else f"v[{r}:{r + n - 1}]"


class Em:
    def __init__(self):
        self.lines = []
        self.pos = 0
        self.mfma_w = {}
        self.mfma_c = {}
        self.valu_w = {}
        self.trans_w = {}
        self.lds_q = []
        self.vm_q = []
        self.capture = None

    def raw(self, s, slots=1):
        (self.capture if self.capture is not None else self.lines).append("    " + s)
        self.pos += slots

    def label(self, s):
        (self.capture if self.capture is not None else self.lines).append(s + ":")

    def nop(self, n):
        while n > 0:
            k = min(n, 16)
            self.raw(f"s_nop {k - 1}", k)
            n -= k

    def _need(self, table, regs, dist):
        need = 0
        for r in regs:
            p = table.get(r)
            if p is not None:
                need = max(need, dist - (self.pos - p - 1))
        return need

    def salu(self, s):
        self.raw(s)

    def valu(self, s, dst=(), src=(), trans=False):
        n = self._need(self.mfma_w, list(dst) + list(src), 8)
        n = max(n, self._need(self.mfma_c, dst, 3))
        if not trans:
            n = max(n, self._need(self.trans_w, src, 1))
        if n > 0:
            self.nop(n)
        p = self.pos
        self.raw(s)
        for r in dst:
            self.valu_w[r] = p
            if trans:
                self.trans_w[r] = p
            else:
                self.trans_w.pop(r, None)

    def mfma(self, d, a, b, c):
        D = list(range(d, d + 4))
        A = list(range(a, a + 4))
        B = list(range(b, b + 4))
        C = list(range(c, c + 4)) if c is not None else []
        n = self._need(self.valu_w, A + B + C, 2)
        n = max(n, self._need(self.mfma_w, A + B, 8))
        assert c is None or c == d
        if n > 0:
            self.nop(n)
        p = self.pos
        cs = rn(c, 4) if c is not None else "0"
        self.raw(f"v_mfma_f32_16x16x32_bf16 {rn(d, 4)}, {rn(a, 4)}, {rn(b, 4)}, {cs}")
        for r in D:
            self.mfma_w[r] = p
        for r in C:
            self.mfma_c[r] = p

    def ds(self, s, tag, dst=(), src=()):
        n = self._need(self.mfma_w, list(dst) + list(src), 8)
        if n > 0:
            self.nop(n)
        self.raw(s)
        self.lds_q.append(tag)
        assert len(self.lds_q) <= 15, "too many LDS ops outstanding"

    def vmem(self, s, tag, dst=(), src=()):
        n = self._need(self.mfma_w, list(dst) + list(src), 8)
        if n > 0:
            self.nop(n)
        self.raw(s)
        self.vm_q.append(tag)
        assert len(self.vm_q) <= 63

    def wait_lds(self, tag):
        idx = max((i for i, t in enumerate(self.lds_q) if t == tag), default=-1)
        if idx < 0:
            return
        self.raw(f"s_waitcnt lgkmcnt({len(self.lds_q) - 1 - idx})")
        self.lds_q = self.lds_q[idx + 1:]

    def wait_vm(self, tag):
        idx = max((i for i, t in enumerate(self.vm_q) if t == tag), default=-1)
        if idx < 0:
            return
        self.raw(f"s_waitcnt vmcnt({len(self.vm_q) - 1 - idx})")
        self.vm_q = self.vm_q[idx + 1:]

    def loop(self, name, n, body, counter):
        assert self.capture is None
        self.salu(f"s_mov_b32 {counter}, {n}")
        texts = []
        for i in range(n):
            self.capture = []
            body(i)
            self.salu(f"s_sub_u32 {counter}, {counter}, 1")
            self.salu(f"s_cmp_lg_u32 {counter}, 0")
            self.salu(f"s_cbranch_scc1 {name}")
            texts.append(self.capture)
            self.capture = None
        for i in range(1, n):
            if texts[i] != texts[0]:
                for a, b in zip(texts[0], texts[i]):
                    if a != b:
                        print("LOOP MISMATCH", name, i, a, "|", b)
                        break
                raise SystemExit(f"loop {name}: iteration {i} differs from iteration 0")
        self.label(name)
        self.lines.extend(texts[0])


S_X, S_K, S_V, S_WQ, S_WO, S_P = 8, 12, 16, 20, 24, 28
S_W, S_HH, S_QH, S_RD, S_DM = 32, 33, 34, 35, 36
S_T0, S_T1, S_T2, S_T3 = 37, 38, 39, 40
S_CNT, S_C, S_NC, S_THR = 41, 42, 43, 44
S_OFFA, S_OFFB, S_XOFF = 45, 46, 47
S_WM0A, S_WM0B, S_WM0C = 48, 49, 50
S_POFF, S_XW, S_XR, S_XD = 51, 52, 53, 54
S_D0, S_D1, S_B, S_SK = 55, 78, 79, 90
S_KA = 56
S_ST = 80

V_O = 0
V_Q = 128
V_S0, V_S1 = 192, 208
V_FR = 224
V_PATA, V_PATB, V_RDA, V_RDB, V_RDC = 240, 241, 242, 243, 244
V_RDD = V_PATB
V_DLIN, V_DK, V_DX = 245, 246, 247
V_DWO0, V_DWO1 = V_DX, V_DK
V_NEGM, V_LSUM, V_TM = 248, 250, 252
V_TMP, V_LANE = 254, 255
V_T2, V_T3 = V_TM, V_TM + 1
V_PF = V_TMP
NCB = 2


def stamp(e, i):
    if not STAMPS:
        return
    e.raw("s_memtime s[96:97]")
    e.raw("s_waitcnt lgkmcnt(0)")
    e.lds_q = []
    e.salu(f"s_mov_b32 s{S_ST + i}, s96")
    if i in (0, 5):
        e.raw("s_memrealtime s[96:97]")
        e.raw("s_waitcnt lgkmcnt(0)")
        e.salu(f"s_mov_b32 s{S_ST + 6 + (i == 5)}, s96")


def stamp_flush(e, n):
    if not STAMPS:
        return
    if STAMPS_DBG:
        e.salu(f"s_cmp_lg_u32 s{S_W}, 0")
        e.salu("s_cbranch_scc1 L_attn_exit")
        e.salu("s_cmp_eq_u32 s2, 0")
        e.salu("s_cselect_b32 s94, 0, 32")
        e.salu("s_cbranch_scc1 L_st_go")
        e.salu("s_cmp_lg_u32 s2, 133")
        e.salu("s_cbranch_scc1 L_attn_exit")
        e.label("L_st_go")
        e.salu("s_load_dwordx2 s[96:97], s[0:1], 88")
        e.salu("s_waitcnt lgkmcnt(0)")
        e.salu("s_mov_b32 s8, s96")
        e.salu("s_and_b32 s9, s97, 0xffff")
        e.salu("s_mov_b32 s10, 256")
        e.salu("s_mov_b32 s11, 0x00020000")
        e.raw("s_nop 15", 16)
        e.raw("v_mov_b32 v1, 0")
        for i in range(6):
            a, b = (S_ST + i, S_ST + i + 1) if i < 5 else (S_ST + 6, S_ST + 7)
            e.salu(f"s_sub_u32 s95, s{b}, s{a}")
            e.raw("v_mov_b32 v0, s95")
            e.raw(f"buffer_store_dword v0, v1, s[8:11], s94 offen offset:{4 * i}")
            e.raw("s_waitcnt vmcnt(0)")
        return
    e.salu("s_load_dwordx2 s[96:97], s[0:1], 96")
    e.salu("s_waitcnt lgkmcnt(0)")
    e.salu("s_add_u32 s96, s96, 0x8000000")
    e.salu("s_addc_u32 s97, s97, 0")
    e.salu("s_mov_b32 s8, s96")
    e.salu("s_and_b32 s9, s97, 0xffff")
    e.salu("s_mov_b32 s10, 0x100000")
    e.salu("s_mov_b32 s11, 0x00020000")
    e.salu("s_lshl_b32 s96, s2, 3")
    e.salu(f"s_add_u32 s96, s96, s{S_W}")
    e.salu("s_lshl_b32 s96, s96, 6")
    e.raw("s_nop 15", 16)
    e.raw("v_mov_b32 v1, 0")
    for i in range(n):
        e.raw(f"v_mov_b32 v0, s{S_ST + i}")
        e.raw(f"buffer_store_dword v0, v1, s[8:11], s96 offen offset:{4 * i}")
        e.raw("s_waitcnt vmcnt(0)")


def srd(e, dst, lo, hi, size):
    e.salu(f"s_mov_b32 s{dst}, s{lo}")
    e.salu(f"s_and_b32 s{dst + 1}, s{hi}, 0xffff")
    e.salu(f"s_mov_b32 s{dst + 2}, {size}")
    e.salu(f"s_mov_b32 s{dst + 3}, 0x00020000")


def adv_slot(e, s):
    e.salu(f"s_add_u32 s{s}, s{s}, {PAIR}")
    e.salu(f"s_cmp_ge_u32 s{s}, {RING}")
    e.salu(f"s_cselect_b32 s{S_T3}, {RING}, 0")
    e.salu(f"s_sub_u32 s{s}, s{s}, s{S_T3}")


NODMA = os.environ.get("NODMA", "0") == "1"
NODMA_ON = [False]


def dma(e, voff, sr, soff, m0expr, tag, off=0):
    if NODMA and NODMA_ON[0]:
        return
    sg, imm = m0expr
    e.salu(f"s_add_u32 m0, s{sg}, {imm}")
    e.salu("s_nop 0")
    o = f" offset:{off}" if off else ""
    pol = " nt" if sr in (S_K, S_V) else ""
    e.vmem(f"buffer_load_dwordx4 v{voff}, s[{sr}:{sr + 3}], s{soff} offen{o}{pol} lds", tag)


def dma_wq_pair(e, tag):
    e.salu(f"s_add_u32 s{S_D0}, s{S_DM}, s{S_WM0A}")
    adv_slot(e, S_DM)
    out = []
    for i in range(4):
        def f(i=i):
            e.salu(f"s_add_u32 s{S_T1}, s{S_OFFA}, {i * 8192}")
            dma(e, V_DLIN, S_WQ, S_T1, (S_D0, i * 1088), tag)
            if i == 3:
                e.salu(f"s_add_u32 s{S_OFFA}, s{S_OFFA}, {32 * 8192}")
        out.append(f)
    return out


def dma_kv_pair(e, tag, k=True, v=True):
    e.salu(f"s_add_u32 s{S_D0}, s{S_DM}, s{S_WM0A}")
    e.salu(f"s_add_u32 s{S_D1}, s{S_DM}, s{S_WM0B}")
    adv_slot(e, S_DM)
    out = []
    if k:
        for i in range(2):
            def f(i=i):
                dma(e, V_DK, S_K, S_OFFA, (S_D0, 32 * i), tag, off=1024 * i)
                if i == 1:
                    e.salu(f"s_add_u32 s{S_OFFA}, s{S_OFFA}, 16384")
                    e.salu(f"s_and_b32 s{S_OFFA}, s{S_OFFA}, 0x3ffff")
            out.append(f)
    if v:
        for i in range(2):
            def f(i=i):
                dma(e, V_DLIN, S_V, S_OFFB, (S_D1, 64 * i), tag, off=1024 * i)
                if i == 1:
                    e.salu(f"s_add_u32 s{S_OFFB}, s{S_OFFB}, 16384")
                    e.salu(f"s_and_b32 s{S_OFFB}, s{S_OFFB}, 0x3ffff")
            out.append(f)
    return out


def dma_wo_pair(e, tag, p):
    e.salu(f"s_add_u32 s{S_D0}, s{S_DM}, s{S_WM0C}")
    adv_slot(e, S_DM)
    out = []
    ip = p & 1
    for hd in range(2):
        for i in range(2):
            def f(hd=hd, i=i):
                e.salu(f"s_add_u32 s{S_T1}, s{S_XOFF}, {(256 * hd + 128 * ip + 8 * i) * 896}")
                dma(e, V_DWO1 if i & 1 else V_DWO0, S_WO, S_T1, (S_D0, hd * TILE + i * 1024), tag)
                if hd == 1 and i == 1 and ip == 1:
                    e.salu(f"s_add_u32 s{S_XOFF}, s{S_XOFF}, 128")
            out.append(f)
    return out


class FragStream:
    def __init__(self, e):
        self.e = e
        self.issued = 0
        self.queue = []

    def buf(self, i):
        return V_FR + 4 * (i % NB)

    def push(self, fn):
        self.queue.append(fn)

    def issue_next(self):
        while self.queue:
            fn = self.queue.pop(0)
            if fn[0] == "pre":
                fn[1]()
                continue
            i = self.issued
            fn[1](self.buf(i), ("fr", i))
            self.issued += 1
            return True
        return False


def rd_tr(e, areg, off0, off1):
    def f(dst, tag):
        e.ds(f"ds_read_b64_tr_b16 {rn(dst, 2)}, v{areg} offset:{off0}", tag, dst=range(dst, dst + 2))
        e.ds(f"ds_read_b64_tr_b16 {rn(dst + 2, 2)}, v{areg} offset:{off1}", tag, dst=range(dst + 2, dst + 4))
    return ("rd", f)


def rd_128(e, areg, off):
    def f(dst, tag):
        e.ds(f"ds_read_b128 {rn(dst, 4)}, v{areg} offset:{off}", tag, dst=range(dst, dst + 4))
    return ("rd", f)


def gen_attn(e):
    e.label("attn_kernel")
    e.salu("s_cmp_ge_u32 s2, 256")
    e.salu("s_cbranch_scc1 L_attn_exit")
    e.salu(f"s_load_dwordx16 s[{S_KA}:{S_KA + 15}], s[0:1], 0")
    e.salu(f"s_load_dwordx4 s[{S_KA + 16}:{S_KA + 19}], s[0:1], 64")
    e.salu(f"s_load_dwordx2 s[{S_KA + 20}:{S_KA + 21}], s[0:1], 96")
    e.salu(f"s_and_b32 s{S_T0}, s2, 7")
    e.salu(f"s_lshr_b32 s{S_T1}, s2, 3")
    e.salu(f"s_and_b32 s{S_T2}, s{S_T1}, 15")
    e.salu(f"s_mov_b32 s{S_B}, s{S_T2}")
    L = V_LANE

    def V(s, d, *src):
        e.valu(s, dst=[d], src=list(src))

    V("v_lshrrev_b32 v1, 6, v0", 1, 0)
    V(f"v_and_b32 v{L}, 63, v0", L, 0)
    e.salu("s_nop 0")
    e.raw(f"v_readfirstlane_b32 s{S_W}, v1")
    e.salu("s_nop 3")
    e.salu(f"s_lshr_b32 s{S_HH}, s{S_W}, 2")
    e.salu(f"s_and_b32 s{S_QH}, s{S_W}, 3")
    e.salu(f"s_bfe_u32 s{S_SK}, s{S_W}, {(1 << 16) | 1}")
    e.salu(f"s_lshl_b32 s{S_SK}, s{S_SK}, 3")
    t1, t2, t3 = 1, 2, 3
    V(f"v_lshlrev_b32 v{V_DLIN}, 4, v{L}", V_DLIN, L)
    V(f"v_bfe_u32 v{t1}, v{L}, 4, 2", t1, L)
    V(f"v_sub_u32 v{t1}, 4, v{t1}", t1, t1)
    V(f"v_and_b32 v{t1}, 3, v{t1}", t1, t1)
    V(f"v_and_b32 v{t2}, 3, v{L}", t2, L)
    V(f"v_xor_b32 v{t1}, v{t1}, v{t2}", t1, t1, t2)
    V(f"v_lshlrev_b32 v{t1}, 4, v{t1}", t1, t1)
    V(f"v_lshrrev_b32 v{t2}, 2, v{L}", t2, L)
    V(f"v_mul_u32_u24 v{t2}, 896, v{t2}", t2, t2)
    V(f"v_add_u32 v{V_DX}, v{t1}, v{t2}", V_DX, t1, t2)
    e.salu(f"s_mul_i32 s{S_WM0A}, s{S_W}, {4 * 1088}")
    e.salu(f"s_add_u32 s{S_WM0A}, s{S_WM0A}, s{S_SK}")
    e.salu(f"s_lshl_b32 s{S_OFFA}, s{S_W}, 15")
    e.salu(f"s_mov_b32 s{S_DM}, 0")
    e.salu(f"s_mov_b32 s{S_RD}, 0")
    e.salu(f"s_mul_i32 s{S_XOFF}, s{S_W}, {16 * 896}")
    e.salu(f"s_lshl_b32 s{S_XW}, s{S_W}, 10")
    e.salu(f"s_add_u32 s{S_XW}, s{S_XW}, {RING}")
    e.salu(f"s_mov_b32 s{S_XR}, 0")
    e.salu(f"s_mov_b32 s{S_XD}, 0")
    e.salu("s_waitcnt lgkmcnt(0)")
    e.salu(f"s_cmp_ge_u32 s{S_T1}, 16")
    for i in range(10):
        e.salu(f"s_cselect_b32 s{S_KA + i}, s{S_KA + 10 + i}, s{S_KA + i}")
    e.salu(f"s_lshl_b32 s{S_T3}, s{S_T0}, 10")
    e.salu(f"s_add_u32 s{S_KA + 6}, s{S_KA + 6}, s{S_T3}")
    e.salu(f"s_addc_u32 s{S_KA + 7}, s{S_KA + 7}, 0")
    srd(e, S_WQ, S_KA + 6, S_KA + 7, 448 * 8192)
    e.salu(f"s_sub_u32 s{S_WQ + 2}, s{S_WQ + 2}, s{S_T3}")
    e.salu(f"s_mul_i32 s{S_T3}, s{S_T2}, 114688")
    e.salu(f"s_add_u32 s{S_KA}, s{S_KA}, s{S_T3}")
    e.salu(f"s_addc_u32 s{S_KA + 1}, s{S_KA + 1}, 0")
    srd(e, S_X, S_KA, S_KA + 1, 114688)
    e.salu(f"s_lshl_b32 s{S_T3}, s{S_T2}, 3")
    e.salu(f"s_add_u32 s{S_T3}, s{S_T3}, s{S_T0}")
    e.salu(f"s_lshl_b32 s{S_T3}, s{S_T3}, 18")
    e.salu(f"s_add_u32 s{S_KA + 2}, s{S_KA + 2}, s{S_T3}")
    e.salu(f"s_addc_u32 s{S_KA + 3}, s{S_KA + 3}, 0")
    srd(e, S_K, S_KA + 2, S_KA + 3, 262144)
    e.salu(f"s_add_u32 s{S_KA + 4}, s{S_KA + 4}, s{S_T3}")
    e.salu(f"s_addc_u32 s{S_KA + 5}, s{S_KA + 5}, 0")
    srd(e, S_V, S_KA + 4, S_KA + 5, 262144)
    e.salu(f"s_mul_i32 s{S_T3}, s{S_T0}, 458752")
    e.salu(f"s_add_u32 s{S_KA + 8}, s{S_KA + 8}, s{S_T3}")
    e.salu(f"s_addc_u32 s{S_KA + 9}, s{S_KA + 9}, 0")
    srd(e, S_WO, S_KA + 8, S_KA + 9, 458752)
    e.salu(f"s_mul_i32 s{S_T3}, s2, 114688")
    e.salu(f"s_add_u32 s{S_KA + 20}, s{S_KA + 20}, s{S_T3}")
    e.salu(f"s_addc_u32 s{S_KA + 21}, s{S_KA + 21}, 0")
    srd(e, S_P, S_KA + 20, S_KA + 21, 114688)
    stamp(e, 0)

    def adv_x(sr):
        e.salu(f"s_add_u32 s{sr}, s{sr}, 8192")
        e.salu(f"s_cmp_ge_u32 s{sr}, 24576")
        e.salu(f"s_cselect_b32 s{sr}, 0, s{sr}")

    def xdma(tag):
        def f():
            e.salu(f"s_add_u32 s{S_T0}, s{S_XW}, s{S_XD}")
            dma(e, V_DX, S_X, S_XOFF, (S_T0, 0), tag)
            e.salu(f"s_add_u32 s{S_XOFF}, s{S_XOFF}, 64")
            adv_x(S_XD)
        return [f]

    def run(lst):
        for f in lst:
            f()

    run(dma_wq_pair(e, ("D", 0)))
    run(xdma(("X", 0)))
    run(dma_wq_pair(e, ("D", 1)))
    run(xdma(("X", 1)))
    run(dma_wq_pair(e, ("D", 2)))
    if NODMA:
        run(dma_wq_pair(e, ("D", 99)))
        run(xdma(("X", 99)))
        e.raw("s_waitcnt vmcnt(0)")
        e.vm_q = []
        NODMA_ON[0] = True
    V(f"v_lshrrev_b32 v{t1}, 4, v{L}", t1, L)
    V(f"v_lshlrev_b32 v{t1}, 13, v{t1}", t1, t1)
    V(f"v_and_b32 v{t2}, 15, v{L}", t2, L)
    V(f"v_lshl_add_u32 v{t1}, v{t2}, 6, v{t1}", t1, t2, t1)
    e.salu(f"s_mul_i32 s{S_T0}, s{S_B}, 28")
    e.salu(f"s_lshl_b32 s{S_T1}, s{S_W}, 2")
    e.salu(f"s_add_u32 s{S_T0}, s{S_T0}, s{S_T1}")
    e.salu(f"s_lshl_b32 s{S_T0}, s{S_T0}, 13")
    if PF_WQ:
        e.raw(f"buffer_load_dword v{V_PF}, v{t1}, s[{S_WQ}:{S_WQ + 3}], s{S_T0} offen")
    if PF_X:
        V(f"v_lshlrev_b32 v{t1}, 5, v{L}", t1, L)
        e.salu(f"s_and_b32 s{S_T0}, s2, 7")
        e.salu(f"s_mul_i32 s{S_T0}, s{S_T0}, 14336")
        e.salu(f"s_mul_i32 s{S_T1}, s{S_W}, 1792")
        e.salu(f"s_add_u32 s{S_T0}, s{S_T0}, s{S_T1}")
        e.raw(f"buffer_load_dword v{V_Q}, v{t1}, s[{S_X}:{S_X + 3}], s{S_T0} offen")

    c = math.log2(math.e) / 16.0
    e.salu(f"s_mov_b32 s{S_C}, {struct.unpack('<I', struct.pack('<f', c))[0]:#x}")
    e.salu(f"s_mov_b32 s{S_NC}, {struct.unpack('<I', struct.pack('<f', -c))[0]:#x}")
    e.salu(f"s_mov_b32 s{S_THR}, 0x41000000")
    V(f"v_lshrrev_b32 v{t1}, 4, v{L}", t1, L)
    V(f"v_bfe_u32 v{t2}, v{L}, 2, 2", t2, L)
    V(f"v_lshl_add_u32 v{t2}, v{t1}, 3, v{t2}", t2, t1, t2)
    V(f"v_mul_u32_u24 v{t2}, 1088, v{t2}", t2, t2)
    V(f"v_and_b32 v{t1}, 1, v{t1}", t1, t1)
    V(f"v_lshl_add_u32 v{t2}, v{t1}, 3, v{t2}", t2, t1, t2)
    V(f"v_and_b32 v{t1}, 3, v{L}", t1, L)
    V(f"v_lshl_add_u32 v{t2}, v{t1}, 4, v{t2}", t2, t1, t2)
    e.salu(f"s_lshl_b32 s{S_T3}, s{S_HH}, 9")
    V(f"v_add_u32 v{V_PATA}, s{S_T3}, v{t2}", V_PATA, t2)
    V(f"v_bfe_u32 v{t1}, v{L}, 2, 2", t1, L)
    V(f"v_sub_u32 v{t1}, 4, v{t1}", t1, t1)
    V(f"v_and_b32 v{t1}, 3, v{t1}", t1, t1)
    V(f"v_lshrrev_b32 v{t2}, 4, v{L}", t2, L)
    V(f"v_xor_b32 v{t1}, v{t1}, v{t2}", t1, t1, t2)
    V(f"v_lshlrev_b32 v{t1}, 4, v{t1}", t1, t1)
    V(f"v_and_b32 v{t2}, 15, v{L}", t2, L)
    V(f"v_lshl_add_u32 v{t1}, v{t2}, 6, v{t1}", t1, t2, t1)
    e.salu(f"s_lshl_b32 s{S_T3}, s{S_QH}, 11")
    e.salu(f"s_add_u32 s{S_T3}, s{S_T3}, {RING}")
    V(f"v_add_u32 v{V_PATB}, s{S_T3}, v{t1}", V_PATB, t1)
    V(f"v_lshrrev_b32 v{t2}, 5, v{L}", t2, L)
    V(f"v_and_b32 v{t1}, 31, v{L}", t1, L)
    V(f"v_xor_b32 v{t1}, v{t1}, v{t2}", t1, t1, t2)
    V(f"v_lshlrev_b32 v{t1}, 4, v{t1}", t1, t1)
    V(f"v_lshl_add_u32 v{V_DK}, v{t2}, 9, v{t1}", V_DK, t2, t1)
    V(f"v_add_u32 v{V_RDA}, s{S_RD}, v{V_PATA}", V_RDA, V_PATA)

    def xread(xs, G):
        V(f"v_add_u32 v{V_RDB}, s{S_XR}, v{V_PATB}", V_RDB, V_PATB)
        for cb in range(NCB):
            e.ds(f"ds_read_b128 {rn(xs + 4 * cb, 4)}, v{V_RDB} offset:{1024 * cb}", ("x", G), dst=range(xs + 4 * cb, xs + 4 * cb + 4))
        adv_x(S_XR)

    e.wait_vm(("X", 0))
    e.salu("s_barrier")
    stamp(e, 1)
    xread(V_S0, 0)
    e.wait_lds(("x", 0))

    fs = FragStream(e)
    dq = []
    dqs = {"sp": 4, "cnt": 0}

    def defer(lst, sp):
        assert not dq, "previous DMA pieces still pending"
        dq.extend(lst)
        dqs["sp"] = sp
        dqs["cnt"] = 0

    fidx = [0]

    def tick():
        if dq:
            dqs["cnt"] += 1
            if dqs["cnt"] >= dqs["sp"]:
                dqs["cnt"] = 0
                dq.pop(0)()

    def frag_begin():
        i = fidx[0]
        assert i < fs.issued
        if PAIRW:
            if i % 2 == 0:
                e.wait_lds(("fr", i + 1) if i + 1 < fs.issued else ("fr", i))
            else:
                e.wait_lds(("fr", i))
        else:
            e.wait_lds(("fr", i))
        return fs.buf(i)

    def frag_end():
        fidx[0] += 1

    def group(dsts, bs, zero, hooks):
        a = frag_begin()
        for k in range(NCB):
            e.mfma(dsts[k], a, bs[k], None if zero else dsts[k])
            if PAIRW:
                if k == NCB - 1:
                    fs.issue_next()
            elif k == 0:
                fs.issue_next()
            tick()
            hooks(k)
        frag_end()

    def p1_frags():
        for ct in range(16):
            off = 64 * (ct >> 1) + 8 * (ct & 1)
            fs.push(rd_tr(e, V_RDA, off, off + 4 * 1088))

    def next_rd_a():
        adv_slot(e, S_RD)
        V(f"v_add_u32 v{V_RDA}, s{S_RD}, v{V_PATA}", V_RDA, V_PATA)

    def p1_step(G, issue, push_next):
        xs = V_S0 if G % 2 == 0 else V_S1
        xn = V_S1 if G % 2 == 0 else V_S0
        e.wait_lds(("x", G))
        for ct in range(16):
            def hooks(k, ct=ct):
                if NCB * ct + k == BAR1:
                    if G + 1 <= 13:
                        e.wait_vm(("X", G + 1))
                    e.wait_vm(("D", G + 1))
                    e.salu("s_barrier")
                    if G + 1 <= 13:
                        xread(xn, G + 1)
                    pieces = xdma(("X", G + 2)) if G + 2 <= 13 else []
                    pieces += issue()
                    defer(pieces, SP1)
                    push_next()
            group([V_O + 8 * ct + 4 * cb for cb in range(NCB)], [xs + 4 * cb for cb in range(NCB)], G == 0, hooks)

    p1_frags()
    for _ in range(DPF):
        fs.issue_next()

    def push_p1():
        fs.push(("pre", next_rd_a))
        p1_frags()

    p1_step(0, lambda: dma_wq_pair(e, ("D", 3)), push_p1)

    def p1_body(i):
        G = 1 + 2 * i
        p1_step(G, lambda: dma_wq_pair(e, ("D", G + 3)), push_p1)
        p1_step(G + 1, lambda: dma_wq_pair(e, ("D", G + 4)), push_p1)

    e.loop("L_p1", 5, p1_body, f"s{S_CNT}")

    def kv_setup():
        e.salu(f"s_mul_i32 s{S_WM0A}, s{S_W}, {2 * 1056}")
        e.salu(f"s_mul_i32 s{S_WM0B}, s{S_W}, {2 * 1088}")
        e.salu(f"s_add_u32 s{S_WM0B}, s{S_WM0B}, s{S_SK}")
        e.salu(f"s_add_u32 s{S_WM0B}, s{S_WM0B}, {TILE}")
        e.salu(f"s_lshr_b32 s{S_OFFA}, s2, 4")
        e.salu(f"s_xor_b32 s{S_OFFA}, s{S_OFFA}, s2")
        e.salu(f"s_and_b32 s{S_OFFA}, s{S_OFFA}, 15")
        e.salu(f"s_lshl_b32 s{S_OFFA}, s{S_OFFA}, 14")
        e.salu(f"s_lshl_b32 s{S_OFFB}, s{S_W}, 11")
        e.salu(f"s_add_u32 s{S_OFFA}, s{S_OFFA}, s{S_OFFB}")
        e.salu(f"s_mov_b32 s{S_OFFB}, s{S_OFFA}")

    def iss14():
        kv_setup()
        return dma_kv_pair(e, ("D", 14), k=True, v=False)
    p1_step(11, iss14, push_p1)
    p1_step(12, lambda: dma_kv_pair(e, ("D", 15)), push_p1)

    def kv_patterns():
        a, b2 = V_T2, V_T3
        V(f"v_and_b32 v{a}, 15, v{L}", a, L)
        V(f"v_mul_u32_u24 v{a}, 1056, v{a}", a, a)
        V(f"v_lshrrev_b32 v{b2}, 4, v{L}", b2, L)
        V(f"v_lshl_add_u32 v{V_PATA}, v{b2}, 4, v{a}", V_PATA, b2, a)
        V(f"v_bfe_u32 v{a}, v{L}, 2, 2", a, L)
        V(f"v_lshl_add_u32 v{a}, v{b2}, 2, v{a}", a, b2, a)
        V(f"v_mul_u32_u24 v{a}, 1088, v{a}", a, a)
        V(f"v_and_b32 v{b2}, 1, v{b2}", b2, b2)
        V(f"v_lshl_add_u32 v{a}, v{b2}, 3, v{a}", a, b2, a)
        V(f"v_and_b32 v{b2}, 3, v{L}", b2, L)
        V(f"v_lshl_add_u32 v{a}, v{b2}, 4, v{a}", a, b2, a)
        V(f"v_add_u32 v{V_PATB}, {TILE}, v{a}", V_PATB, a)

    def k_frags():
        for ks in range(8):
            for t in range(2):
                fs.push(rd_128(e, V_RDA if t == 0 else V_RDC, ks * 64 + 512 * t))

    def v_frags():
        for dt in range(16):
            off = 64 * (dt >> 1) + 8 * (dt & 1)
            fs.push(rd_tr(e, V_RDB, off, off + 512))

    def next_rd_kv():
        adv_slot(e, S_RD)
        V(f"v_add_u32 v{V_RDA}, s{S_RD}, v{V_PATA}", V_RDA, V_PATA)
        V(f"v_xor_b32 v{V_RDC}, 16, v{V_RDA}", V_RDC, V_RDA)
        V(f"v_add_u32 v{V_RDB}, s{S_RD}, v{V_PATB}", V_RDB, V_PATB)

    def push_k0():
        def pre():
            kv_patterns()
            next_rd_kv()
        fs.push(("pre", pre))
        k_frags()

    p1_step(13, lambda: dma_kv_pair(e, ("D", 16)), push_k0)
    stamp(e, 2)

    def pack_pair(T, cb, scale=False):
        fl = []
        for tp in range(2):
            src = V_O + 8 * (2 * T + tp) + 4 * cb
            if scale:
                for i in range(4):
                    fl.append(lambda i=i, src=src: V(f"v_mul_f32 v{src + i}, v{src + i}, v{V_LSUM + cb}",
                                                     src + i, src + i, V_LSUM + cb))
            for h2 in range(2):
                d = V_Q + 32 * cb + 4 * T + 2 * tp + h2
                fl.append(lambda d=d, src=src, h2=h2: e.valu(
                    f"v_cvt_pk_bf16_f32 v{d}, v{src + 2 * h2}, v{src + 2 * h2 + 1}",
                    dst=[d], src=[src + 2 * h2, src + 2 * h2 + 1]))
        return fl

    for T in range(8):
        for cb in range(NCB):
            run(pack_pair(T, cb))
    for cb in range(NCB):
        V(f"v_mov_b32 v{V_LSUM + cb}, 0", V_LSUM + cb)

    def spread(fl, nslots):
        st = {"k": 0}

        def f(slot):
            tgt = (len(fl) * (slot + 1) + nslots - 1) // nslots
            while st["k"] < min(tgt, len(fl)):
                fl[st["k"]]()
                st["k"] += 1
        return f

    def qk_stage(sn, fl, mid=None):
        sp = spread(fl, 31)
        for ks in range(8):
            for t in range(2):
                def hooks(k, ks=ks, t=t):
                    slot = 4 * ks + 2 * t + k
                    sp(slot)
                    if mid is not None and slot == mid[0]:
                        mid[1]()
                group([sn + 8 * cb + 4 * t for cb in range(NCB)], [V_Q + 32 * cb + 4 * ks for cb in range(NCB)], ks == 0, hooks)

    def exp_fillers(sc):
        fl = []
        for cb in range(NCB):
            for p in range(4):
                a, b = sc + 8 * cb + 2 * p, sc + 8 * cb + 2 * p + 1
                nm, ls = V_NEGM + cb, V_LSUM + cb
                if PK_FMA:
                    sel = "op_sel_hi:[1,0,0]" if cb == 0 else "op_sel:[0,0,1] op_sel_hi:[1,0,1]"
                    fl.append(lambda a=a, sel=sel: e.valu(
                        f"v_pk_fma_f32 v[{a}:{a + 1}], v[{a}:{a + 1}], s[{S_C}:{S_C + 1}], v[{V_NEGM}:{V_NEGM + 1}] {sel}",
                        dst=[a, a + 1], src=[a, a + 1, V_NEGM, V_NEGM + 1]))
                else:
                    fl.append(lambda a=a, nm=nm: e.valu(f"v_fma_f32 v{a}, v{a}, s{S_C}, v{nm}", dst=[a], src=[a, nm]))
                    fl.append(lambda b=b, nm=nm: e.valu(f"v_fma_f32 v{b}, v{b}, s{S_C}, v{nm}", dst=[b], src=[b, nm]))
                fl.append(lambda a=a: e.valu(f"v_exp_f32 v{a}, v{a}", dst=[a], src=[a], trans=True))
                fl.append(lambda b=b: e.valu(f"v_exp_f32 v{b}, v{b}", dst=[b], src=[b], trans=True))
                fl.append(lambda a=a, ls=ls: e.valu(f"v_add_f32 v{ls}, v{ls}, v{a}", dst=[ls], src=[ls, a]))
                fl.append(lambda b=b, ls=ls: e.valu(f"v_add_f32 v{ls}, v{ls}, v{b}", dst=[ls], src=[ls, b]))
                d = sc + 8 * cb + p
                fl.append(lambda a=a, b=b, d=d: e.valu(f"v_cvt_pk_bf16_f32 v{d}, v{a}, v{b}", dst=[d], src=[a, b]))
        return fl

    def max_fillers(sn):
        fl = []
        for cb in range(NCB):
            s0 = sn + 8 * cb
            tm = V_TM + cb
            fl.append(lambda s0=s0, tm=tm: e.valu(f"v_max3_f32 v{tm}, v{s0}, v{s0 + 1}, v{s0 + 2}", dst=[tm], src=[s0, s0 + 1, s0 + 2]))
            fl.append(lambda s0=s0, tm=tm: e.valu(f"v_max3_f32 v{tm}, v{tm}, v{s0 + 3}, v{s0 + 4}", dst=[tm], src=[tm, s0 + 3, s0 + 4]))
            fl.append(lambda s0=s0, tm=tm: e.valu(f"v_max3_f32 v{tm}, v{tm}, v{s0 + 5}, v{s0 + 6}", dst=[tm], src=[tm, s0 + 5, s0 + 6]))
            fl.append(lambda s0=s0, tm=tm: e.valu(f"v_max_f32 v{tm}, v{tm}, v{s0 + 7}", dst=[tm], src=[tm, s0 + 7]))
        return fl

    def check_fillers():
        fl = []
        fl.append(lambda: e.valu(f"v_fma_f32 v{V_TMP}, v{V_TM}, s{S_C}, v{V_NEGM}", dst=[V_TMP], src=[V_TM, V_NEGM]))
        fl.append(lambda: e.valu(f"v_cmp_lt_f32 s[{S_T0 + 55}:{S_T0 + 56}], s{S_THR}, v{V_TMP}", dst=[], src=[V_TMP]))
        fl.append(lambda: e.valu(f"v_fma_f32 v{V_TMP}, v{V_TM + 1}, s{S_C}, v{V_NEGM + 1}", dst=[V_TMP], src=[V_TM + 1, V_NEGM + 1]))
        fl.append(lambda: e.valu(f"v_cmp_lt_f32 vcc, s{S_THR}, v{V_TMP}", dst=[], src=[V_TMP]))
        return fl

    def cross_g(op, reg, tmp):
        for sw in ("v_permlane16_swap_b32", "v_permlane32_swap_b32"):
            V(f"v_mov_b32 v{tmp}, v{reg}", tmp, reg)
            e.nop(2)
            e.valu(f"{sw} v{reg}, v{tmp}", dst=[reg, tmp], src=[reg, tmp])
            V(f"{op} v{reg}, v{reg}, v{tmp}", reg, reg, tmp)

    def push_kv():
        fs.push(("pre", next_rd_kv))
        k_frags()
        v_frags()

    def mid14():
        e.wait_vm(("D", 15))
        e.salu("s_barrier")
        defer(dma_kv_pair(e, ("D", 17)), SP2)
        push_kv()
    qk_stage(V_S0, [], mid=(BAR2, mid14))
    V(f"v_lshlrev_b32 v{V_T2}, 6, v{L}", V_T2, L)
    e.salu(f"s_mul_i32 s{S_T0}, s{S_B}, 28672")
    e.salu(f"s_lshl_b32 s{S_T1}, s{S_W}, 12")
    e.salu(f"s_add_u32 s{S_T0}, s{S_T0}, s{S_T1}")
    e.salu(f"s_lshl_b32 s{S_T1}, s{S_W}, 8")
    e.salu(f"s_add_u32 m0, s{S_T1}, {RING}")
    e.salu("s_nop 0")
    if PF_WO:
        e.raw(f"buffer_load_dword v{V_T2}, s[{S_WO}:{S_WO + 3}], s{S_T0} offen lds")
    run(max_fillers(V_S0))
    for cb in range(NCB):
        cross_g("v_max_f32", V_TM + cb, V_TMP)
        V(f"v_mul_f32 v{V_NEGM + cb}, s{S_NC}, v{V_TM + cb}", V_NEGM + cb, V_TM + cb)

    rare = []

    def p2_step(t, issue, push_next, tagname):
        G = 15 + t
        sc = V_S0 if t % 2 == 0 else V_S1
        sn = V_S1 if t % 2 == 0 else V_S0
        qk_stage(sn, exp_fillers(sc))
        mx = max_fillers(sn) + check_fillers()
        sp = spread(mx, 16)
        for dt in range(16):
            def hooks(k, dt=dt):
                slot = 2 * dt + k
                if slot == BAR2:
                    e.wait_vm(("D", G + 1))
                    e.salu("s_barrier")
                    defer(issue(), SP2)
                    push_next()
                if slot >= 10:
                    sp(slot - 10)
            group([V_O + 8 * dt + 4 * cb for cb in range(NCB)], [sc + 8 * cb for cb in range(NCB)], t == 0, hooks)
        e.salu(f"s_or_b64 vcc, vcc, s[{S_T0 + 55}:{S_T0 + 56}]")
        e.salu(f"s_cbranch_scc1 L_rare_{tagname}")
        e.label(f"L_back_{tagname}")
        rare.append(tagname)

    p2_step(0, lambda: dma_kv_pair(e, ("D", 18)), push_kv, "z")
    p2_step(1, lambda: dma_kv_pair(e, ("D", 19)), push_kv, "y")

    def p2_body(i):
        t = 2 + 2 * i
        p2_step(t, lambda: dma_kv_pair(e, ("D", 15 + t + 3)), push_kv, "a")
        p2_step(t + 1, lambda: dma_kv_pair(e, ("D", 15 + t + 4)), push_kv, "b")

    e.loop("L_p2", 5, p2_body, f"s{S_CNT}")
    rare[:] = ["z", "y", "a", "b"]
    p2_step(12, lambda: dma_kv_pair(e, ("D", 30), k=False, v=True), push_kv, "c")

    def wo_setup():
        a, b2 = V_T3, V_T2
        V(f"v_bfe_u32 v{a}, v{L}, 4, 1", a, L)
        V(f"v_lshlrev_b32 v{a}, 1, v{a}", a, a)
        V(f"v_and_b32 v{b2}, 7, v{L}", b2, L)
        V(f"v_xor_b32 v{a}, v{a}, v{b2}", a, a, b2)
        V(f"v_lshlrev_b32 v{a}, 4, v{a}", a, a)
        V(f"v_lshrrev_b32 v{b2}, 3, v{L}", b2, L)
        V(f"v_mul_u32_u24 v{b2}, 896, v{b2}", b2, b2)
        V(f"v_add_u32 v{V_DWO0}, v{a}, v{b2}", V_DWO0, a, b2)
        V(f"v_xor_b32 v{a}, 64, v{a}", a, a)
        V(f"v_add_u32 v{V_DWO1}, v{a}, v{b2}", V_DWO1, a, b2)
        e.salu(f"s_lshl_b32 s{S_WM0C}, s{S_W}, 11")
        e.salu(f"s_mul_i32 s{S_XOFF}, s{S_W}, {16 * 896}")

    def iss_wo0():
        wo_setup()
        return dma_wo_pair(e, ("D", 31), 0)
    p2_step(13, iss_wo0, push_kv, "d")

    def push_v_only():
        fs.push(("pre", next_rd_kv))
        v_frags()
    p2_step(14, lambda: dma_wo_pair(e, ("D", 32), 1), push_v_only, "e")

    RD3 = [V_RDA, V_RDB, V_RDC, V_RDD]

    def wo_patterns():
        a, b2 = V_T2, V_T3
        V(f"v_lshrrev_b32 v{a}, 4, v{L}", a, L)
        V(f"v_bfe_u32 v{b2}, v{L}, 2, 2", b2, L)
        V(f"v_lshl_add_u32 v{a}, v{a}, 3, v{b2}", a, a, b2)
        V(f"v_lshlrev_b32 v{a}, 7, v{a}", a, a)
        V(f"v_bfe_u32 v{b2}, v{L}, 3, 2", b2, L)
        e.salu(f"s_lshl_b32 s{S_T3}, s{S_HH}, 1")
        V(f"v_xor_b32 v{b2}, s{S_T3}, v{b2}", b2, b2)
        V(f"v_lshl_add_u32 v{a}, v{b2}, 5, v{a}", a, b2, a)
        V(f"v_and_b32 v{b2}, 3, v{L}", b2, L)
        V(f"v_lshl_add_u32 v{a}, v{b2}, 3, v{a}", a, b2, a)
        e.salu(f"s_mul_i32 s{S_T3}, s{S_HH}, {TILE}")
        V(f"v_add_u32 v{V_PATA}, s{S_T3}, v{a}", V_PATA, a)

    def next_rd3():
        adv_slot(e, S_RD)
        V(f"v_add_u32 v{RD3[0]}, s{S_RD}, v{V_PATA}", RD3[0], V_PATA)
        for u in range(1, 4):
            V(f"v_xor_b32 v{RD3[u]}, {32 * u}, v{RD3[0]}", RD3[u], RD3[0])

    ULORD = (2, 3, 0, 1)

    def p3_frags():
        for kk in range(4):
            for ul in ULORD:
                off = kk * 4096
                fs.push(rd_tr(e, RD3[ul], off, off + 512))

    def push_p3_first():
        def pre():
            wo_patterns()
            next_rd3()
        fs.push(("pre", pre))
        p3_frags()

    def push_p3():
        fs.push(("pre", next_rd3))
        p3_frags()

    sc = V_S1
    run(exp_fillers(sc))
    for cb in range(NCB):
        cross_g("v_add_f32", V_LSUM + cb, V_TMP)
        e.valu(f"v_rcp_f32 v{V_LSUM + cb}, v{V_LSUM + cb}", dst=[V_LSUM + cb], src=[V_LSUM + cb], trans=True)

    pend = []
    for dt in range(16):
        def hooks(k, dt=dt):
            slot = 2 * dt + k
            if slot == BAR2:
                e.wait_vm(("D", 31))
                e.salu("s_barrier")
                defer(dma_wo_pair(e, ("D", 33), 2), SP2)
                push_p3_first()
            if k == 1 and dt % 2 == 1 and dt >= 3:
                T = (dt - 3) // 2
                for cb in range(NCB):
                    pend.extend(pack_pair(T, cb, scale=True))
            for _ in range(6):
                if pend:
                    pend.pop(0)()
        group([V_O + 8 * dt + 4 * cb for cb in range(NCB)], [sc + 8 * cb for cb in range(NCB)], False, hooks)
    for cb in range(NCB):
        pend.extend(pack_pair(7, cb, scale=True))
    stamp(e, 3)
    stamp(e, 4)

    ACC = [V_S0, 0]
    V_R = 32
    V_PK = 48
    V_EXW = [56, 57, 58, 59]
    V_EXR = [60, 61, 62, 63]

    def ex_addr(dst, wreg):
        e.salu(f"s_lshl_b32 s{S_T0}, s{wreg}, 12")
        e.salu(f"s_add_u32 s{S_T0}, s{S_T0}, {RING}")
        e.salu(f"s_sub_u32 s{S_T1}, s{wreg}, 6")
        e.salu(f"s_mul_i32 s{S_T1}, s{S_T1}, {4 * TILE}")
        e.salu(f"s_add_u32 s{S_T1}, s{S_T1}, 16384")
        e.salu(f"s_cmp_ge_u32 s{wreg}, 6")
        e.salu(f"s_cselect_b32 s{S_T0}, s{S_T1}, s{S_T0}")
        e.salu(f"s_mov_b32 s{S_T1}, 1024")
        e.salu(f"s_cselect_b32 s{S_T1}, {TILE}, s{S_T1}")
        for i in range(4):
            V(f"v_add_u32 v{dst[i]}, s{S_T0}, v{V_DLIN}", dst[i], V_DLIN)
            if i < 3:
                e.salu(f"s_add_u32 s{S_T0}, s{S_T0}, s{S_T1}")

    def p3_setup():
        ex_addr(V_EXW, S_W)
        e.salu(f"s_xor_b32 s{S_XR}, s{S_W}, 4")
        ex_addr(V_EXR, S_XR)
        e.salu(f"s_mul_i32 s{S_POFF}, s{S_W}, {7 * 2048}")

    def send_fillers(s_):
        acc = ACC[s_ & 1] + 16
        return [(lambda i=i: e.ds(f"ds_write_b128 v{V_EXW[i]}, {rn(acc + 4 * i, 4)}", ("exw", s_),
                                  src=range(acc + 4 * i, acc + 4 * i + 4))) for i in range(4)]

    def recv_fillers(s_):
        return [(lambda i=i: e.ds(f"ds_read_b128 {rn(V_R + 4 * i, 4)}, v{V_EXR[i]}", ("exr", s_),
                                  dst=range(V_R + 4 * i, V_R + 4 * i + 4))) for i in range(4)]

    def fin_fillers(s_):
        acc = ACC[s_ & 1]
        fl = [lambda: None] * 6 + [lambda: e.wait_lds(("exr", s_))]
        for j in range(16):
            fl.append(lambda j=j: V(f"v_add_f32 v{V_R + j}, v{V_R + j}, v{acc + j}", V_R + j, V_R + j, acc + j))
        for ul in range(2):
            for cb in range(NCB):
                tb = V_R + 8 * ul + 4 * cb
                for h2 in range(2):
                    d = V_PK + 4 * cb + 2 * ul + h2
                    fl.append(lambda d=d, tb=tb, h2=h2: e.valu(f"v_cvt_pk_bf16_f32 v{d}, v{tb + 2 * h2}, v{tb + 2 * h2 + 1}",
                                                               dst=[d], src=[tb + 2 * h2, tb + 2 * h2 + 1]))

        def st():
            for cb in range(NCB):
                rg = V_PK + 4 * cb
                e.raw(f"buffer_store_dwordx4 {rn(rg, 4)}, v{V_DLIN}, s[{S_P}:{S_P + 3}], s{S_POFF} offen offset:{cb * 1024} sc1")
            e.salu(f"s_add_u32 s{S_POFF}, s{S_POFF}, 2048")
            e.nop(1)
        fl.append(st)
        return fl

    def p3_step(p, issue, push, extra=None):
        G = 31 + p
        s_, ip = p >> 1, p & 1
        acc = ACC[s_ & 1]
        ext = list(extra) if extra else []
        pre = send_fillers(s_ - 1) if (ip == 0 and s_ >= 1) else []
        post = []
        slot = [0]
        for kk in range(4):
            for ul in ULORD:
                def hooks(k):
                    sl = slot[0]
                    slot[0] += 1
                    if sl >= 2:
                        for _ in range(3):
                            if pre:
                                pre.pop(0)()
                            elif ext:
                                ext.pop(0)()
                                if ext:
                                    ext.pop(0)()
                            elif post:
                                post.pop(0)()
                    if sl == BAR3:
                        assert not pre
                        if ip == 0 and s_ >= 1:
                            e.wait_lds(("exw", s_ - 1))
                        e.wait_vm(("D", G + 1))
                        e.salu("s_barrier")
                        if ip == 0 and s_ >= 1:
                            post.extend(recv_fillers(s_ - 1) + fin_fillers(s_ - 1))
                        defer(issue(), SP3)
                        if push:
                            push_p3()
                group([acc + 8 * ul + 4 * cb for cb in range(NCB)],
                      [V_Q + 32 * cb + 4 * (4 * ip + kk) for cb in range(NCB)], ip == 0 and kk == 0, hooks)
        assert not post and not pre and not ext, (len(post), len(pre), len(ext))

    p3_setup()

    def iss3(p):
        return (lambda: dma_wo_pair(e, ("D", 31 + p), p)) if p <= 13 else (lambda: [])

    p3_step(0, iss3(3), True, extra=pend)
    p3_step(1, iss3(4), True)

    def p3_body(i):
        p = 2 + 4 * i
        for d in range(4):
            p3_step(p + d, iss3(p + d + 3), True)

    e.loop("L_p3", 2, p3_body, f"s{S_CNT}")
    p3_step(10, iss3(13), True)
    p3_step(11, iss3(14), True)
    p3_step(12, iss3(15), True)
    p3_step(13, iss3(16), False)
    run(send_fillers(6))
    e.wait_lds(("exw", 6))
    e.salu("s_barrier")
    run(recv_fillers(6))
    run(fin_fillers(6))
    stamp(e, 5)
    stamp_flush(e, 8)
    e.label("L_attn_exit")
    e.salu("s_endpgm")

    for tg in rare:
        e.label(f"L_rare_{tg}")
        e.raw("s_nop 15", 16)
        for cb in range(NCB):
            tm, nm, ls = V_TM + cb, V_NEGM + cb, V_LSUM + cb
            for sw in ("v_permlane16_swap_b32", "v_permlane32_swap_b32"):
                e.raw(f"v_mov_b32 v{V_TMP}, v{tm}")
                e.raw("s_nop 1", 2)
                e.raw(f"{sw} v{tm}, v{V_TMP}")
                e.raw(f"v_max_f32 v{tm}, v{tm}, v{V_TMP}")
            e.raw(f"v_mul_f32 v{tm}, s{S_NC}, v{tm}")
            e.raw(f"v_min_f32 v{V_TMP}, v{tm}, v{nm}")
            e.raw(f"v_sub_f32 v{tm}, v{V_TMP}, v{nm}")
            e.raw(f"v_exp_f32 v{tm}, v{tm}")
            e.raw(f"v_mov_b32 v{nm}, v{V_TMP}")
            e.raw("s_nop 0")
            e.raw(f"v_mul_f32 v{ls}, v{ls}, v{tm}")
        for dt in range(16):
            for cb in range(NCB):
                for i in range(4):
                    a = V_O + 8 * dt + 4 * cb + i
                    e.raw(f"v_mul_f32 v{a}, v{a}, v{V_TM + cb}")
        e.raw("s_nop 1", 2)
        e.raw(f"s_branch L_back_{tg}")


def gen_reduce(e):
    e.label("reduce_kernel")
    e.salu("s_cmp_ge_u32 s2, 896")
    e.salu("s_cbranch_scc1 L_red_exit")
    e.salu("s_load_dwordx2 s[4:5], s[0:1], 80")
    e.salu("s_load_dwordx2 s[6:7], s[0:1], 96")
    e.salu("s_mul_hi_u32 s8, s2, 0x924924a")
    e.salu("s_mul_i32 s9, s8, 28")
    e.salu("s_sub_u32 s9, s2, s9")
    e.raw("v_lshlrev_b32 v4, 4, v0")
    e.salu("s_lshl_b32 s26, s9, 12")
    e.salu("s_lshl_b32 s9, s9, 1")
    e.raw("v_lshrrev_b32 v3, 7, v0")
    e.raw("v_add_u32 v3, s9, v3")
    e.salu("s_waitcnt lgkmcnt(0)")
    e.salu("s_mul_i32 s10, s8, 917504")
    e.salu("s_add_u32 s6, s6, s10")
    e.salu("s_addc_u32 s7, s7, 0")
    e.salu("s_mov_b32 s12, s6")
    e.salu("s_and_b32 s13, s7, 0xffff")
    e.salu("s_mov_b32 s14, 917504")
    e.salu("s_mov_b32 s15, 0x00020000")
    e.salu("s_mov_b32 s16, s4")
    e.salu("s_and_b32 s17, s5, 0xffff")
    e.salu("s_mov_b32 s18, 3670016")
    e.salu("s_mov_b32 s19, 0x00020000")
    for h in range(8):
        e.salu(f"s_add_u32 s20, s26, {h * 114688}")
        e.raw(f"buffer_load_dwordx4 v[{24 + 4 * h}:{27 + 4 * h}], v4, s[12:15], s20 offen")
    e.raw("v_mul_u32_u24 v5, 37, v3")
    e.raw("v_lshrrev_b32 v5, 8, v5")
    e.raw("v_mul_u32_u24 v6, 7, v5")
    e.raw("v_sub_u32 v6, v3, v6")
    e.raw("v_and_b32 v8, 15, v0")
    e.raw("v_bfe_u32 v9, v0, 6, 1")
    e.raw("v_lshl_add_u32 v8, v9, 4, v8")
    e.raw("v_and_b32 v9, 3, v5")
    e.raw("v_lshl_add_u32 v8, v9, 5, v8")
    e.raw("v_mul_u32_u24 v8, 1792, v8")
    e.raw("v_bfe_u32 v9, v0, 4, 2")
    e.raw("v_lshl_add_u32 v8, v9, 3, v8")
    e.raw("v_lshrrev_b32 v9, 2, v5")
    e.raw("v_lshl_add_u32 v8, v9, 6, v8")
    e.raw("v_lshl_add_u32 v8, v6, 7, v8")
    e.salu("s_and_b32 s21, s8, 15")
    e.salu("s_lshr_b32 s22, s8, 4")
    e.salu("s_mul_i32 s21, s21, 229376")
    e.salu("s_mul_i32 s22, s22, 896")
    e.salu("s_add_u32 s21, s21, s22")
    e.salu("s_mov_b32 s23, 0xffff0000")
    for h in range(8):
        e.salu(f"s_waitcnt vmcnt({7 - h})")
        for i in range(4):
            r = 24 + 4 * h + i
            if h == 0:
                e.raw(f"v_lshlrev_b32 v{16 + 2 * i}, 16, v{r}")
                e.raw(f"v_and_b32 v{17 + 2 * i}, s23, v{r}")
            else:
                e.raw(f"v_lshlrev_b32 v11, 16, v{r}")
                e.raw(f"v_and_b32 v12, s23, v{r}")
                e.raw(f"v_add_f32 v{16 + 2 * i}, v{16 + 2 * i}, v11")
                e.raw(f"v_add_f32 v{17 + 2 * i}, v{17 + 2 * i}, v12")
    for i in range(4):
        e.raw(f"v_cvt_pk_bf16_f32 v{12 + i}, v{16 + 2 * i}, v{17 + 2 * i}")
    e.raw("buffer_store_dwordx2 v[12:13], v8, s[16:19], s21 offen")
    e.raw("buffer_store_dwordx2 v[14:15], v8, s[16:19], s21 offen offset:32")
    e.label("L_red_exit")
    e.salu("s_endpgm")


def main():
    ref = open(OUT + ".ref").read().splitlines()
    out = [l for l in ref if l.startswith(";") and "@launch" not in l]
    out.append(f"; @launch kernel=attn_kernel grid=(256,1,1) block=(512,1,1) lds={LDS_BYTES}")
    out.append("; @launch kernel=reduce_kernel grid=(896,1,1) block=(256,1,1) lds=0")
    out.append('.amdgcn_target "amdgcn-amd-amdhsa--gfx950"')
    out.append(".text")
    e = Em()
    out += [".globl attn_kernel", ".p2align 8", ".type attn_kernel,@function"]
    gen_attn(e)
    out += e.lines
    e2 = Em()
    out += [".globl reduce_kernel", ".p2align 8", ".type reduce_kernel,@function"]
    gen_reduce(e2)
    out += e2.lines
    out.append('.section .rodata,"a"')
    for k, vg, ao, sg in (("attn_kernel", 256, 256, 102), ("reduce_kernel", 56, 56, 32)):
        out += [".p2align 6", f".amdhsa_kernel {k}",
                f"  .amdhsa_next_free_vgpr {vg}",
                f"  .amdhsa_next_free_sgpr {sg}",
                f"  .amdhsa_accum_offset {ao}",
                "  .amdhsa_group_segment_fixed_size 0",
                "  .amdhsa_kernarg_size 104",
                "  .amdhsa_user_sgpr_count 2",
                "  .amdhsa_user_sgpr_kernarg_segment_ptr 1",
                "  .amdhsa_system_sgpr_workgroup_id_x 1",
                ".end_amdhsa_kernel"]
    open(OUTFILE, "w").write("\n".join(out) + "\n")
    print("wrote", OUTFILE, len(out), "lines")


if __name__ == "__main__":
    main()
```

```python
import math
import os
import struct
import sys

NAME = "concat_heads__gqa_block_cached__gqa_block_cached__near_ridge"
OUT = f"cdna_kernels/{NAME}.s"
OUTFILE = sys.argv[1] if len(sys.argv) > 1 else OUT

STAMPS = os.environ.get("STAMPS", "0") in ("1", "2")
STAMPS_DBG = os.environ.get("STAMPS", "0") == "2"
TILE = 17408
PAIR = 2 * TILE
RING = 4 * PAIR
LDS_BYTES = 160 * 1024
NB = 4
PF_WQ = os.environ.get("PF_WQ", "1") == "1"
PF_WO = os.environ.get("PF_WO", "1") == "1"
PF_X = os.environ.get("PF_X", "0") == "1"
PK_FMA = os.environ.get("PK_FMA", "0") == "1"
PAIRW = os.environ.get("PAIRW", "0") == "1"
DPF = int(os.environ.get("DPF", "3"))
SP1 = int(os.environ.get("SP1", "3"))
SP2 = int(os.environ.get("SP2", "5"))
SP3 = int(os.environ.get("SP3", "4"))
BAR1 = int(os.environ.get("BAR1", "15"))
BAR2 = int(os.environ.get("BAR2", "7"))
BAR3 = int(os.environ.get("BAR3", "11"))
AG = 256


def rn(r, n=1):
    if r >= AG:
        r -= AG
        return f"a{r}" if n == 1 else f"a[{r}:{r + n - 1}]"
    return f"v{r}" if n == 1 else f"v[{r}:{r + n - 1}]"


class Em:
    def __init__(self):
        self.lines = []
        self.pos = 0
        self.mfma_w = {}
        self.mfma_c = {}
        self.valu_w = {}
        self.trans_w = {}
        self.lds_q = []
        self.vm_q = []
        self.capture = None

    def raw(self, s, slots=1):
        (self.capture if self.capture is not None else self.lines).append("    " + s)
        self.pos += slots

    def label(self, s):
        (self.capture if self.capture is not None else self.lines).append(s + ":")

    def nop(self, n):
        while n > 0:
            k = min(n, 16)
            self.raw(f"s_nop {k - 1}", k)
            n -= k

    def _need(self, table, regs, dist):
        need = 0
        for r in regs:
            p = table.get(r)
            if p is not None:
                need = max(need, dist - (self.pos - p - 1))
        return need

    def salu(self, s):
        self.raw(s)

    def valu(self, s, dst=(), src=(), trans=False):
        n = self._need(self.mfma_w, list(dst) + list(src), 8)
        n = max(n, self._need(self.mfma_c, dst, 3))
        if not trans:
            n = max(n, self._need(self.trans_w, src, 1))
        if n > 0:
            self.nop(n)
        p = self.pos
        self.raw(s)
        for r in dst:
            self.valu_w[r] = p
            if trans:
                self.trans_w[r] = p
            else:
                self.trans_w.pop(r, None)

    def mfma(self, d, a, b, c):
        D = list(range(d, d + 4))
        A = list(range(a, a + 4))
        B = list(range(b, b + 4))
        C = list(range(c, c + 4)) if c is not None else []
        n = self._need(self.valu_w, A + B + C, 2)
        n = max(n, self._need(self.mfma_w, A + B, 8))
        assert c is None or c == d
        if n > 0:
            self.nop(n)
        p = self.pos
        cs = rn(c, 4) if c is not None else "0"
        self.raw(f"v_mfma_f32_16x16x32_bf16 {rn(d, 4)}, {rn(a, 4)}, {rn(b, 4)}, {cs}")
        for r in D:
            self.mfma_w[r] = p
        for r in C:
            self.mfma_c[r] = p

    def ds(self, s, tag, dst=(), src=()):
        n = self._need(self.mfma_w, list(dst) + list(src), 8)
        if n > 0:
            self.nop(n)
        self.raw(s)
        self.lds_q.append(tag)
        assert len(self.lds_q) <= 15, "too many LDS ops outstanding"

    def vmem(self, s, tag, dst=(), src=()):
        n = self._need(self.mfma_w, list(dst) + list(src), 8)
        if n > 0:
            self.nop(n)
        self.raw(s)
        self.vm_q.append(tag)
        assert len(self.vm_q) <= 63

    def wait_lds(self, tag):
        idx = max((i for i, t in enumerate(self.lds_q) if t == tag), default=-1)
        if idx < 0:
            return
        self.raw(f"s_waitcnt lgkmcnt({len(self.lds_q) - 1 - idx})")
        self.lds_q = self.lds_q[idx + 1:]

    def wait_vm(self, tag):
        idx = max((i for i, t in enumerate(self.vm_q) if t == tag), default=-1)
        if idx < 0:
            return
        self.raw(f"s_waitcnt vmcnt({len(self.vm_q) - 1 - idx})")
        self.vm_q = self.vm_q[idx + 1:]

    def loop(self, name, n, body, counter):
        assert self.capture is None
        self.salu(f"s_mov_b32 {counter}, {n}")
        texts = []
        for i in range(n):
            self.capture = []
            body(i)
            self.salu(f"s_sub_u32 {counter}, {counter}, 1")
            self.salu(f"s_cmp_lg_u32 {counter}, 0")
            self.salu(f"s_cbranch_scc1 {name}")
            texts.append(self.capture)
            self.capture = None
        for i in range(1, n):
            if texts[i] != texts[0]:
                for a, b in zip(texts[0], texts[i]):
                    if a != b:
                        print("LOOP MISMATCH", name, i, a, "|", b)
                        break
                raise SystemExit(f"loop {name}: iteration {i} differs from iteration 0")
        self.label(name)
        self.lines.extend(texts[0])


S_X, S_K, S_V, S_WQ, S_WO, S_P = 8, 12, 16, 20, 24, 28
S_W, S_HH, S_QH, S_RD, S_DM = 32, 33, 34, 35, 36
S_T0, S_T1, S_T2, S_T3 = 37, 38, 39, 40
S_CNT, S_C, S_NC, S_THR = 41, 42, 43, 44
S_OFFA, S_OFFB, S_XOFF = 45, 46, 47
S_WM0A, S_WM0B, S_WM0C = 48, 49, 50
S_POFF, S_XW, S_XR, S_XD = 51, 52, 53, 54
S_D0, S_D1, S_B, S_SK = 55, 78, 79, 90
S_KA = 56
S_ST = 80

V_O = 0
V_Q = 128
V_S0, V_S1 = 192, 208
V_FR = 224
V_PATA, V_PATB, V_RDA, V_RDB, V_RDC = 240, 241, 242, 243, 244
V_RDD = V_PATB
V_DLIN, V_DK, V_DX = 245, 246, 247
V_DWO0, V_DWO1 = V_DX, V_DK
V_NEGM, V_LSUM, V_TM = 248, 250, 252
V_TMP, V_LANE = 254, 255
V_T2, V_T3 = V_TM, V_TM + 1
V_PF = V_TMP
NCB = 2


def stamp(e, i):
    if not STAMPS:
        return
    e.raw("s_memtime s[96:97]")
    e.raw("s_waitcnt lgkmcnt(0)")
    e.lds_q = []
    e.salu(f"s_mov_b32 s{S_ST + i}, s96")
    if i in (0, 5):
        e.raw("s_memrealtime s[96:97]")
        e.raw("s_waitcnt lgkmcnt(0)")
        e.salu(f"s_mov_b32 s{S_ST + 6 + (i == 5)}, s96")


def stamp_flush(e, n):
    if not STAMPS:
        return
    if STAMPS_DBG:
        e.salu(f"s_cmp_lg_u32 s{S_W}, 0")
        e.salu("s_cbranch_scc1 L_attn_exit")
        e.salu("s_cmp_eq_u32 s2, 0")
        e.salu("s_cselect_b32 s94, 0, 32")
        e.salu("s_cbranch_scc1 L_st_go")
        e.salu("s_cmp_lg_u32 s2, 133")
        e.salu("s_cbranch_scc1 L_attn_exit")
        e.label("L_st_go")
        e.salu("s_load_dwordx2 s[96:97], s[0:1], 96")
        e.salu("s_waitcnt lgkmcnt(0)")
        e.salu("s_add_u32 s96, s96, 0x8000000")
        e.salu("s_addc_u32 s97, s97, 0")
        e.salu("s_mov_b32 s8, s96")
        e.salu("s_and_b32 s9, s97, 0xffff")
        e.salu("s_mov_b32 s10, 256")
        e.salu("s_mov_b32 s11, 0x00020000")
        e.raw("s_nop 15", 16)
        e.raw("v_mov_b32 v1, 0")
        for i in range(6):
            a, b = (S_ST + i, S_ST + i + 1) if i < 5 else (S_ST + 6, S_ST + 7)
            e.salu(f"s_sub_u32 s95, s{b}, s{a}")
            e.raw("v_mov_b32 v0, s95")
            e.raw(f"buffer_store_dword v0, v1, s[8:11], s94 offen offset:{4 * i}")
            e.raw("s_waitcnt vmcnt(0)")
        return
    e.salu("s_load_dwordx2 s[96:97], s[0:1], 96")
    e.salu("s_waitcnt lgkmcnt(0)")
    e.salu("s_add_u32 s96, s96, 0x8000000")
    e.salu("s_addc_u32 s97, s97, 0")
    e.salu("s_mov_b32 s8, s96")
    e.salu("s_and_b32 s9, s97, 0xffff")
    e.salu("s_mov_b32 s10, 0x100000")
    e.salu("s_mov_b32 s11, 0x00020000")
    e.salu("s_lshl_b32 s96, s2, 3")
    e.salu(f"s_add_u32 s96, s96, s{S_W}")
    e.salu("s_lshl_b32 s96, s96, 6")
    e.raw("s_nop 15", 16)
    e.raw("v_mov_b32 v1, 0")
    for i in range(n):
        e.raw(f"v_mov_b32 v0, s{S_ST + i}")
        e.raw(f"buffer_store_dword v0, v1, s[8:11], s96 offen offset:{4 * i}")
        e.raw("s_waitcnt vmcnt(0)")


def srd(e, dst, lo, hi, size):
    e.salu(f"s_mov_b32 s{dst}, s{lo}")
    e.salu(f"s_and_b32 s{dst + 1}, s{hi}, 0xffff")
    e.salu(f"s_mov_b32 s{dst + 2}, {size}")
    e.salu(f"s_mov_b32 s{dst + 3}, 0x00020000")


def adv_slot(e, s):
    e.salu(f"s_add_u32 s{s}, s{s}, {PAIR}")
    e.salu(f"s_cmp_ge_u32 s{s}, {RING}")
    e.salu(f"s_cselect_b32 s{S_T3}, {RING}, 0")
    e.salu(f"s_sub_u32 s{s}, s{s}, s{S_T3}")


NODMA = os.environ.get("NODMA", "0") == "1"
NODMA_ON = [False]


def dma(e, voff, sr, soff, m0expr, tag, off=0):
    if NODMA and NODMA_ON[0]:
        return
    sg, imm = m0expr
    e.salu(f"s_add_u32 m0, s{sg}, {imm}")
    e.salu("s_nop 0")
    o = f" offset:{off}" if off else ""
    pol = " nt" if sr in (S_K, S_V) else ""
    e.vmem(f"buffer_load_dwordx4 v{voff}, s[{sr}:{sr + 3}], s{soff} offen{o}{pol} lds", tag)


def dma_wq_pair(e, tag):
    e.salu(f"s_add_u32 s{S_D0}, s{S_DM}, s{S_WM0A}")
    adv_slot(e, S_DM)
    out = []
    for i in range(4):
        def f(i=i):
            e.salu(f"s_add_u32 s{S_T1}, s{S_OFFA}, {i * 8192}")
            dma(e, V_DLIN, S_WQ, S_T1, (S_D0, i * 1088), tag)
            if i == 3:
                e.salu(f"s_add_u32 s{S_OFFA}, s{S_OFFA}, {32 * 8192}")
        out.append(f)
    return out


def dma_kv_pair(e, tag, k=True, v=True):
    e.salu(f"s_add_u32 s{S_D0}, s{S_DM}, s{S_WM0A}")
    e.salu(f"s_add_u32 s{S_D1}, s{S_DM}, s{S_WM0B}")
    adv_slot(e, S_DM)
    out = []
    if k:
        for i in range(2):
            def f(i=i):
                dma(e, V_DK, S_K, S_OFFA, (S_D0, 32 * i), tag, off=1024 * i)
                if i == 1:
                    e.salu(f"s_add_u32 s{S_OFFA}, s{S_OFFA}, 16384")
                    e.salu(f"s_and_b32 s{S_OFFA}, s{S_OFFA}, 0x3ffff")
            out.append(f)
    if v:
        for i in range(2):
            def f(i=i):
                dma(e, V_DLIN, S_V, S_OFFB, (S_D1, 64 * i), tag, off=1024 * i)
                if i == 1:
                    e.salu(f"s_add_u32 s{S_OFFB}, s{S_OFFB}, 16384")
                    e.salu(f"s_and_b32 s{S_OFFB}, s{S_OFFB}, 0x3ffff")
            out.append(f)
    return out


def dma_wo_pair(e, tag, p):
    e.salu(f"s_add_u32 s{S_D0}, s{S_DM}, s{S_WM0C}")
    adv_slot(e, S_DM)
    out = []
    ip = p & 1
    for hd in range(2):
        for i in range(2):
            def f(hd=hd, i=i):
                e.salu(f"s_add_u32 s{S_T1}, s{S_XOFF}, {(256 * hd + 128 * ip + 8 * i) * 896}")
                dma(e, V_DWO1 if i & 1 else V_DWO0, S_WO, S_T1, (S_D0, hd * TILE + i * 1024), tag)
                if hd == 1 and i == 1 and ip == 1:
                    e.salu(f"s_add_u32 s{S_XOFF}, s{S_XOFF}, 128")
            out.append(f)
    return out


class FragStream:
    def __init__(self, e):
        self.e = e
        self.issued = 0
        self.queue = []

    def buf(self, i):
        return V_FR + 4 * (i % NB)

    def push(self, fn):
        self.queue.append(fn)

    def issue_next(self):
        while self.queue:
            fn = self.queue.pop(0)
            if fn[0] == "pre":
                fn[1]()
                continue
            i = self.issued
            fn[1](self.buf(i), ("fr", i))
            self.issued += 1
            return True
        return False


def rd_tr(e, areg, off0, off1):
    def f(dst, tag):
        e.ds(f"ds_read_b64_tr_b16 {rn(dst, 2)}, v{areg} offset:{off0}", tag, dst=range(dst, dst + 2))
        e.ds(f"ds_read_b64_tr_b16 {rn(dst + 2, 2)}, v{areg} offset:{off1}", tag, dst=range(dst + 2, dst + 4))
    return ("rd", f)


def rd_128(e, areg, off):
    def f(dst, tag):
        e.ds(f"ds_read_b128 {rn(dst, 4)}, v{areg} offset:{off}", tag, dst=range(dst, dst + 4))
    return ("rd", f)


def gen_attn(e):
    e.label("attn_kernel")
    e.salu("s_cmp_ge_u32 s2, 256")
    e.salu("s_cbranch_scc1 L_attn_exit")
    e.salu(f"s_load_dwordx16 s[{S_KA}:{S_KA + 15}], s[0:1], 0")
    e.salu(f"s_load_dwordx4 s[{S_KA + 16}:{S_KA + 19}], s[0:1], 64")
    e.salu(f"s_load_dwordx2 s[{S_KA + 20}:{S_KA + 21}], s[0:1], 96")
    e.salu(f"s_and_b32 s{S_T0}, s2, 7")
    e.salu(f"s_lshr_b32 s{S_T1}, s2, 3")
    e.salu(f"s_and_b32 s{S_T2}, s{S_T1}, 15")
    e.salu(f"s_mov_b32 s{S_B}, s{S_T2}")
    L = V_LANE

    def V(s, d, *src):
        e.valu(s, dst=[d], src=list(src))

    V("v_lshrrev_b32 v1, 6, v0", 1, 0)
    V(f"v_and_b32 v{L}, 63, v0", L, 0)
    e.salu("s_nop 0")
    e.raw(f"v_readfirstlane_b32 s{S_W}, v1")
    e.salu("s_nop 3")
    e.salu(f"s_lshr_b32 s{S_HH}, s{S_W}, 2")
    e.salu(f"s_and_b32 s{S_QH}, s{S_W}, 3")
    e.salu(f"s_bfe_u32 s{S_SK}, s{S_W}, {(1 << 16) | 1}")
    e.salu(f"s_lshl_b32 s{S_SK}, s{S_SK}, 3")
    t1, t2, t3 = 1, 2, 3
    V(f"v_lshlrev_b32 v{V_DLIN}, 4, v{L}", V_DLIN, L)
    V(f"v_bfe_u32 v{t1}, v{L}, 4, 2", t1, L)
    V(f"v_sub_u32 v{t1}, 4, v{t1}", t1, t1)
    V(f"v_and_b32 v{t1}, 3, v{t1}", t1, t1)
    V(f"v_and_b32 v{t2}, 3, v{L}", t2, L)
    V(f"v_xor_b32 v{t1}, v{t1}, v{t2}", t1, t1, t2)
    V(f"v_lshlrev_b32 v{t1}, 4, v{t1}", t1, t1)
    V(f"v_lshrrev_b32 v{t2}, 2, v{L}", t2, L)
    V(f"v_mul_u32_u24 v{t2}, 896, v{t2}", t2, t2)
    V(f"v_add_u32 v{V_DX}, v{t1}, v{t2}", V_DX, t1, t2)
    e.salu(f"s_mul_i32 s{S_WM0A}, s{S_W}, {4 * 1088}")
    e.salu(f"s_add_u32 s{S_WM0A}, s{S_WM0A}, s{S_SK}")
    e.salu(f"s_lshl_b32 s{S_OFFA}, s{S_W}, 15")
    e.salu(f"s_mov_b32 s{S_DM}, 0")
    e.salu(f"s_mov_b32 s{S_RD}, 0")
    e.salu(f"s_mul_i32 s{S_XOFF}, s{S_W}, {16 * 896}")
    e.salu(f"s_lshl_b32 s{S_XW}, s{S_W}, 10")
    e.salu(f"s_add_u32 s{S_XW}, s{S_XW}, {RING}")
    e.salu(f"s_mov_b32 s{S_XR}, 0")
    e.salu(f"s_mov_b32 s{S_XD}, 0")
    e.salu("s_waitcnt lgkmcnt(0)")
    e.salu(f"s_cmp_ge_u32 s{S_T1}, 16")
    for i in range(10):
        e.salu(f"s_cselect_b32 s{S_KA + i}, s{S_KA + 10 + i}, s{S_KA + i}")
    e.salu(f"s_lshl_b32 s{S_T3}, s{S_T0}, 10")
    e.salu(f"s_add_u32 s{S_KA + 6}, s{S_KA + 6}, s{S_T3}")
    e.salu(f"s_addc_u32 s{S_KA + 7}, s{S_KA + 7}, 0")
    srd(e, S_WQ, S_KA + 6, S_KA + 7, 448 * 8192)
    e.salu(f"s_sub_u32 s{S_WQ + 2}, s{S_WQ + 2}, s{S_T3}")
    e.salu(f"s_mul_i32 s{S_T3}, s{S_T2}, 114688")
    e.salu(f"s_add_u32 s{S_KA}, s{S_KA}, s{S_T3}")
    e.salu(f"s_addc_u32 s{S_KA + 1}, s{S_KA + 1}, 0")
    srd(e, S_X, S_KA, S_KA + 1, 114688)
    e.salu(f"s_lshl_b32 s{S_T3}, s{S_T2}, 3")
    e.salu(f"s_add_u32 s{S_T3}, s{S_T3}, s{S_T0}")
    e.salu(f"s_lshl_b32 s{S_T3}, s{S_T3}, 18")
    e.salu(f"s_add_u32 s{S_KA + 2}, s{S_KA + 2}, s{S_T3}")
    e.salu(f"s_addc_u32 s{S_KA + 3}, s{S_KA + 3}, 0")
    srd(e, S_K, S_KA + 2, S_KA + 3, 262144)
    e.salu(f"s_add_u32 s{S_KA + 4}, s{S_KA + 4}, s{S_T3}")
    e.salu(f"s_addc_u32 s{S_KA + 5}, s{S_KA + 5}, 0")
    srd(e, S_V, S_KA + 4, S_KA + 5, 262144)
    e.salu(f"s_mul_i32 s{S_T3}, s{S_T0}, 458752")
    e.salu(f"s_add_u32 s{S_KA + 8}, s{S_KA + 8}, s{S_T3}")
    e.salu(f"s_addc_u32 s{S_KA + 9}, s{S_KA + 9}, 0")
    srd(e, S_WO, S_KA + 8, S_KA + 9, 458752)
    e.salu(f"s_mul_i32 s{S_T3}, s2, 114688")
    e.salu(f"s_add_u32 s{S_KA + 20}, s{S_KA + 20}, s{S_T3}")
    e.salu(f"s_addc_u32 s{S_KA + 21}, s{S_KA + 21}, 0")
    srd(e, S_P, S_KA + 20, S_KA + 21, 114688)
    stamp(e, 0)

    def adv_x(sr):
        e.salu(f"s_add_u32 s{sr}, s{sr}, 8192")
        e.salu(f"s_cmp_ge_u32 s{sr}, 24576")
        e.salu(f"s_cselect_b32 s{sr}, 0, s{sr}")

    def xdma(tag):
        def f():
            e.salu(f"s_add_u32 s{S_T0}, s{S_XW}, s{S_XD}")
            dma(e, V_DX, S_X, S_XOFF, (S_T0, 0), tag)
            e.salu(f"s_add_u32 s{S_XOFF}, s{S_XOFF}, 64")
            adv_x(S_XD)
        return [f]

    def run(lst):
        for f in lst:
            f()

    run(dma_wq_pair(e, ("D", 0)))
    run(xdma(("X", 0)))
    run(dma_wq_pair(e, ("D", 1)))
    run(xdma(("X", 1)))
    run(dma_wq_pair(e, ("D", 2)))
    if NODMA:
        run(dma_wq_pair(e, ("D", 99)))
        run(xdma(("X", 99)))
        e.raw("s_waitcnt vmcnt(0)")
        e.vm_q = []
        NODMA_ON[0] = True
    V(f"v_lshrrev_b32 v{t1}, 4, v{L}", t1, L)
    V(f"v_lshlrev_b32 v{t1}, 13, v{t1}", t1, t1)
    V(f"v_and_b32 v{t2}, 15, v{L}", t2, L)
    V(f"v_lshl_add_u32 v{t1}, v{t2}, 6, v{t1}", t1, t2, t1)
    e.salu(f"s_mul_i32 s{S_T0}, s{S_B}, 28")
    e.salu(f"s_lshl_b32 s{S_T1}, s{S_W}, 2")
    e.salu(f"s_add_u32 s{S_T0}, s{S_T0}, s{S_T1}")
    e.salu(f"s_lshl_b32 s{S_T0}, s{S_T0}, 13")
    if PF_WQ:
        e.raw(f"buffer_load_dword v{V_PF}, v{t1}, s[{S_WQ}:{S_WQ + 3}], s{S_T0} offen")
    if PF_X:
        V(f"v_lshlrev_b32 v{t1}, 5, v{L}", t1, L)
        e.salu(f"s_and_b32 s{S_T0}, s2, 7")
        e.salu(f"s_mul_i32 s{S_T0}, s{S_T0}, 14336")
        e.salu(f"s_mul_i32 s{S_T1}, s{S_W}, 1792")
        e.salu(f"s_add_u32 s{S_T0}, s{S_T0}, s{S_T1}")
        e.raw(f"buffer_load_dword v{V_Q}, v{t1}, s[{S_X}:{S_X + 3}], s{S_T0} offen")

    c = math.log2(math.e) / 16.0
    e.salu(f"s_mov_b32 s{S_C}, {struct.unpack('<I', struct.pack('<f', c))[0]:#x}")
    e.salu(f"s_mov_b32 s{S_NC}, {struct.unpack('<I', struct.pack('<f', -c))[0]:#x}")
    e.salu(f"s_mov_b32 s{S_THR}, 0x41000000")
    V(f"v_lshrrev_b32 v{t1}, 4, v{L}", t1, L)
    V(f"v_bfe_u32 v{t2}, v{L}, 2, 2", t2, L)
    V(f"v_lshl_add_u32 v{t2}, v{t1}, 3, v{t2}", t2, t1, t2)
    V(f"v_mul_u32_u24 v{t2}, 1088, v{t2}", t2, t2)
    V(f"v_and_b32 v{t1}, 1, v{t1}", t1, t1)
    V(f"v_lshl_add_u32 v{t2}, v{t1}, 3, v{t2}", t2, t1, t2)
    V(f"v_and_b32 v{t1}, 3, v{L}", t1, L)
    V(f"v_lshl_add_u32 v{t2}, v{t1}, 4, v{t2}", t2, t1, t2)
    e.salu(f"s_lshl_b32 s{S_T3}, s{S_HH}, 9")
    V(f"v_add_u32 v{V_PATA}, s{S_T3}, v{t2}", V_PATA, t2)
    V(f"v_bfe_u32 v{t1}, v{L}, 2, 2", t1, L)
    V(f"v_sub_u32 v{t1}, 4, v{t1}", t1, t1)
    V(f"v_and_b32 v{t1}, 3, v{t1}", t1, t1)
    V(f"v_lshrrev_b32 v{t2}, 4, v{L}", t2, L)
    V(f"v_xor_b32 v{t1}, v{t1}, v{t2}", t1, t1, t2)
    V(f"v_lshlrev_b32 v{t1}, 4, v{t1}", t1, t1)
    V(f"v_and_b32 v{t2}, 15, v{L}", t2, L)
    V(f"v_lshl_add_u32 v{t1}, v{t2}, 6, v{t1}", t1, t2, t1)
    e.salu(f"s_lshl_b32 s{S_T3}, s{S_QH}, 11")
    e.salu(f"s_add_u32 s{S_T3}, s{S_T3}, {RING}")
    V(f"v_add_u32 v{V_PATB}, s{S_T3}, v{t1}", V_PATB, t1)
    V(f"v_lshrrev_b32 v{t2}, 5, v{L}", t2, L)
    V(f"v_and_b32 v{t1}, 31, v{L}", t1, L)
    V(f"v_xor_b32 v{t1}, v{t1}, v{t2}", t1, t1, t2)
    V(f"v_lshlrev_b32 v{t1}, 4, v{t1}", t1, t1)
    V(f"v_lshl_add_u32 v{V_DK}, v{t2}, 9, v{t1}", V_DK, t2, t1)
    V(f"v_add_u32 v{V_RDA}, s{S_RD}, v{V_PATA}", V_RDA, V_PATA)

    def xread(xs, G):
        V(f"v_add_u32 v{V_RDB}, s{S_XR}, v{V_PATB}", V_RDB, V_PATB)
        for cb in range(NCB):
            e.ds(f"ds_read_b128 {rn(xs + 4 * cb, 4)}, v{V_RDB} offset:{1024 * cb}", ("x", G), dst=range(xs + 4 * cb, xs + 4 * cb + 4))
        adv_x(S_XR)

    e.wait_vm(("X", 0))
    e.salu("s_barrier")
    stamp(e, 1)
    xread(V_S0, 0)
    e.wait_lds(("x", 0))

    fs = FragStream(e)
    dq = []
    dqs = {"sp": 4, "cnt": 0}

    def defer(lst, sp):
        assert not dq, "previous DMA pieces still pending"
        dq.extend(lst)
        dqs["sp"] = sp
        dqs["cnt"] = 0

    fidx = [0]

    def tick():
        if dq:
            dqs["cnt"] += 1
            if dqs["cnt"] >= dqs["sp"]:
                dqs["cnt"] = 0
                dq.pop(0)()

    def frag_begin():
        i = fidx[0]
        assert i < fs.issued
        if PAIRW:
            if i % 2 == 0:
                e.wait_lds(("fr", i + 1) if i + 1 < fs.issued else ("fr", i))
            else:
                e.wait_lds(("fr", i))
        else:
            e.wait_lds(("fr", i))
        return fs.buf(i)

    def frag_end():
        fidx[0] += 1

    def group(dsts, bs, zero, hooks):
        a = frag_begin()
        for k in range(NCB):
            e.mfma(dsts[k], a, bs[k], None if zero else dsts[k])
            if PAIRW:
                if k == NCB - 1:
                    fs.issue_next()
            elif k == 0:
                fs.issue_next()
            tick()
            hooks(k)
        frag_end()

    def p1_frags():
        for ct in range(16):
            off = 64 * (ct >> 1) + 8 * (ct & 1)
            fs.push(rd_tr(e, V_RDA, off, off + 4 * 1088))

    def next_rd_a():
        adv_slot(e, S_RD)
        V(f"v_add_u32 v{V_RDA}, s{S_RD}, v{V_PATA}", V_RDA, V_PATA)

    def p1_step(G, issue, push_next):
        xs = V_S0 if G % 2 == 0 else V_S1
        xn = V_S1 if G % 2 == 0 else V_S0
        e.wait_lds(("x", G))
        for ct in range(16):
            def hooks(k, ct=ct):
                if NCB * ct + k == BAR1:
                    if G + 1 <= 13:
                        e.wait_vm(("X", G + 1))
                    e.wait_vm(("D", G + 1))
                    e.salu("s_barrier")
                    if G + 1 <= 13:
                        xread(xn, G + 1)
                    pieces = xdma(("X", G + 2)) if G + 2 <= 13 else []
                    pieces += issue()
                    defer(pieces, SP1)
                    push_next()
            group([V_O + 8 * ct + 4 * cb for cb in range(NCB)], [xs + 4 * cb for cb in range(NCB)], G == 0, hooks)

    p1_frags()
    for _ in range(DPF):
        fs.issue_next()

    def push_p1():
        fs.push(("pre", next_rd_a))
        p1_frags()

    p1_step(0, lambda: dma_wq_pair(e, ("D", 3)), push_p1)

    def p1_body(i):
        G = 1 + 2 * i
        p1_step(G, lambda: dma_wq_pair(e, ("D", G + 3)), push_p1)
        p1_step(G + 1, lambda: dma_wq_pair(e, ("D", G + 4)), push_p1)

    e.loop("L_p1", 5, p1_body, f"s{S_CNT}")

    def kv_setup():
        e.salu(f"s_mul_i32 s{S_WM0A}, s{S_W}, {2 * 1056}")
        e.salu(f"s_mul_i32 s{S_WM0B}, s{S_W}, {2 * 1088}")
        e.salu(f"s_add_u32 s{S_WM0B}, s{S_WM0B}, s{S_SK}")
        e.salu(f"s_add_u32 s{S_WM0B}, s{S_WM0B}, {TILE}")
        e.salu(f"s_lshr_b32 s{S_OFFA}, s2, 4")
        e.salu(f"s_xor_b32 s{S_OFFA}, s{S_OFFA}, s2")
        e.salu(f"s_and_b32 s{S_OFFA}, s{S_OFFA}, 15")
        e.salu(f"s_lshl_b32 s{S_OFFA}, s{S_OFFA}, 14")
        e.salu(f"s_lshl_b32 s{S_OFFB}, s{S_W}, 11")
        e.salu(f"s_add_u32 s{S_OFFA}, s{S_OFFA}, s{S_OFFB}")
        e.salu(f"s_mov_b32 s{S_OFFB}, s{S_OFFA}")

    def iss14():
        kv_setup()
        return dma_kv_pair(e, ("D", 14), k=True, v=False)
    p1_step(11, iss14, push_p1)
    p1_step(12, lambda: dma_kv_pair(e, ("D", 15)), push_p1)

    def kv_patterns():
        a, b2 = V_T2, V_T3
        V(f"v_and_b32 v{a}, 15, v{L}", a, L)
        V(f"v_mul_u32_u24 v{a}, 1056, v{a}", a, a)
        V(f"v_lshrrev_b32 v{b2}, 4, v{L}", b2, L)
        V(f"v_lshl_add_u32 v{V_PATA}, v{b2}, 4, v{a}", V_PATA, b2, a)
        V(f"v_bfe_u32 v{a}, v{L}, 2, 2", a, L)
        V(f"v_lshl_add_u32 v{a}, v{b2}, 2, v{a}", a, b2, a)
        V(f"v_mul_u32_u24 v{a}, 1088, v{a}", a, a)
        V(f"v_and_b32 v{b2}, 1, v{b2}", b2, b2)
        V(f"v_lshl_add_u32 v{a}, v{b2}, 3, v{a}", a, b2, a)
        V(f"v_and_b32 v{b2}, 3, v{L}", b2, L)
        V(f"v_lshl_add_u32 v{a}, v{b2}, 4, v{a}", a, b2, a)
        V(f"v_add_u32 v{V_PATB}, {TILE}, v{a}", V_PATB, a)

    def k_frags():
        for ks in range(8):
            for t in range(2):
                fs.push(rd_128(e, V_RDA if t == 0 else V_RDC, ks * 64 + 512 * t))

    def v_frags():
        for dt in range(16):
            off = 64 * (dt >> 1) + 8 * (dt & 1)
            fs.push(rd_tr(e, V_RDB, off, off + 512))

    def next_rd_kv():
        adv_slot(e, S_RD)
        V(f"v_add_u32 v{V_RDA}, s{S_RD}, v{V_PATA}", V_RDA, V_PATA)
        V(f"v_xor_b32 v{V_RDC}, 16, v{V_RDA}", V_RDC, V_RDA)
        V(f"v_add_u32 v{V_RDB}, s{S_RD}, v{V_PATB}", V_RDB, V_PATB)

    def push_k0():
        def pre():
            kv_patterns()
            next_rd_kv()
        fs.push(("pre", pre))
        k_frags()

    p1_step(13, lambda: dma_kv_pair(e, ("D", 16)), push_k0)
    stamp(e, 2)

    def pack_pair(T, cb, scale=False):
        fl = []
        for tp in range(2):
            src = V_O + 8 * (2 * T + tp) + 4 * cb
            if scale:
                for i in range(4):
                    fl.append(lambda i=i, src=src: V(f"v_mul_f32 v{src + i}, v{src + i}, v{V_LSUM + cb}",
                                                     src + i, src + i, V_LSUM + cb))
            for h2 in range(2):
                d = V_Q + 32 * cb + 4 * T + 2 * tp + h2
                fl.append(lambda d=d, src=src, h2=h2: e.valu(
                    f"v_cvt_pk_bf16_f32 v{d}, v{src + 2 * h2}, v{src + 2 * h2 + 1}",
                    dst=[d], src=[src + 2 * h2, src + 2 * h2 + 1]))
        return fl

    for T in range(8):
        for cb in range(NCB):
            run(pack_pair(T, cb))
    for cb in range(NCB):
        V(f"v_mov_b32 v{V_LSUM + cb}, 0", V_LSUM + cb)

    def spread(fl, nslots):
        st = {"k": 0}

        def f(slot):
            tgt = (len(fl) * (slot + 1) + nslots - 1) // nslots
            while st["k"] < min(tgt, len(fl)):
                fl[st["k"]]()
                st["k"] += 1
        return f

    def qk_stage(sn, fl, mid=None):
        sp = spread(fl, 31)
        for ks in range(8):
            for t in range(2):
                def hooks(k, ks=ks, t=t):
                    slot = 4 * ks + 2 * t + k
                    sp(slot)
                    if mid is not None and slot == mid[0]:
                        mid[1]()
                group([sn + 8 * cb + 4 * t for cb in range(NCB)], [V_Q + 32 * cb + 4 * ks for cb in range(NCB)], ks == 0, hooks)

    def exp_fillers(sc):
        fl = []
        for cb in range(NCB):
            for p in range(4):
                a, b = sc + 8 * cb + 2 * p, sc + 8 * cb + 2 * p + 1
                nm, ls = V_NEGM + cb, V_LSUM + cb
                if PK_FMA:
                    sel = "op_sel_hi:[1,0,0]" if cb == 0 else "op_sel:[0,0,1] op_sel_hi:[1,0,1]"
                    fl.append(lambda a=a, sel=sel: e.valu(
                        f"v_pk_fma_f32 v[{a}:{a + 1}], v[{a}:{a + 1}], s[{S_C}:{S_C + 1}], v[{V_NEGM}:{V_NEGM + 1}] {sel}",
                        dst=[a, a + 1], src=[a, a + 1, V_NEGM, V_NEGM + 1]))
                else:
                    fl.append(lambda a=a, nm=nm: e.valu(f"v_fma_f32 v{a}, v{a}, s{S_C}, v{nm}", dst=[a], src=[a, nm]))
                    fl.append(lambda b=b, nm=nm: e.valu(f"v_fma_f32 v{b}, v{b}, s{S_C}, v{nm}", dst=[b], src=[b, nm]))
                fl.append(lambda a=a: e.valu(f"v_exp_f32 v{a}, v{a}", dst=[a], src=[a], trans=True))
                fl.append(lambda b=b: e.valu(f"v_exp_f32 v{b}, v{b}", dst=[b], src=[b], trans=True))
                fl.append(lambda a=a, ls=ls: e.valu(f"v_add_f32 v{ls}, v{ls}, v{a}", dst=[ls], src=[ls, a]))
                fl.append(lambda b=b, ls=ls: e.valu(f"v_add_f32 v{ls}, v{ls}, v{b}", dst=[ls], src=[ls, b]))
                d = sc + 8 * cb + p
                fl.append(lambda a=a, b=b, d=d: e.valu(f"v_cvt_pk_bf16_f32 v{d}, v{a}, v{b}", dst=[d], src=[a, b]))
        return fl

    def max_fillers(sn):
        fl = []
        for cb in range(NCB):
            s0 = sn + 8 * cb
            tm = V_TM + cb
            fl.append(lambda s0=s0, tm=tm: e.valu(f"v_max3_f32 v{tm}, v{s0}, v{s0 + 1}, v{s0 + 2}", dst=[tm], src=[s0, s0 + 1, s0 + 2]))
            fl.append(lambda s0=s0, tm=tm: e.valu(f"v_max3_f32 v{tm}, v{tm}, v{s0 + 3}, v{s0 + 4}", dst=[tm], src=[tm, s0 + 3, s0 + 4]))
            fl.append(lambda s0=s0, tm=tm: e.valu(f"v_max3_f32 v{tm}, v{tm}, v{s0 + 5}, v{s0 + 6}", dst=[tm], src=[tm, s0 + 5, s0 + 6]))
            fl.append(lambda s0=s0, tm=tm: e.valu(f"v_max_f32 v{tm}, v{tm}, v{s0 + 7}", dst=[tm], src=[tm, s0 + 7]))
        return fl

    def check_fillers():
        fl = []
        fl.append(lambda: e.valu(f"v_fma_f32 v{V_TMP}, v{V_TM}, s{S_C}, v{V_NEGM}", dst=[V_TMP], src=[V_TM, V_NEGM]))
        fl.append(lambda: e.valu(f"v_cmp_lt_f32 s[{S_T0 + 55}:{S_T0 + 56}], s{S_THR}, v{V_TMP}", dst=[], src=[V_TMP]))
        fl.append(lambda: e.valu(f"v_fma_f32 v{V_TMP}, v{V_TM + 1}, s{S_C}, v{V_NEGM + 1}", dst=[V_TMP], src=[V_TM + 1, V_NEGM + 1]))
        fl.append(lambda: e.valu(f"v_cmp_lt_f32 vcc, s{S_THR}, v{V_TMP}", dst=[], src=[V_TMP]))
        return fl

    def cross_g(op, reg, tmp):
        for sw in ("v_permlane16_swap_b32", "v_permlane32_swap_b32"):
            V(f"v_mov_b32 v{tmp}, v{reg}", tmp, reg)
            e.nop(2)
            e.valu(f"{sw} v{reg}, v{tmp}", dst=[reg, tmp], src=[reg, tmp])
            V(f"{op} v{reg}, v{reg}, v{tmp}", reg, reg, tmp)

    def push_kv():
        fs.push(("pre", next_rd_kv))
        k_frags()
        v_frags()

    def mid14():
        e.wait_vm(("D", 15))
        e.salu("s_barrier")
        defer(dma_kv_pair(e, ("D", 17)), SP2)
        push_kv()
    qk_stage(V_S0, [], mid=(BAR2, mid14))
    V(f"v_lshlrev_b32 v{V_T2}, 6, v{L}", V_T2, L)
    e.salu(f"s_mul_i32 s{S_T0}, s{S_B}, 28672")
    e.salu(f"s_lshl_b32 s{S_T1}, s{S_W}, 12")
    e.salu(f"s_add_u32 s{S_T0}, s{S_T0}, s{S_T1}")
    e.salu(f"s_lshl_b32 s{S_T1}, s{S_W}, 8")
    e.salu(f"s_add_u32 m0, s{S_T1}, {RING}")
    e.salu("s_nop 0")
    if PF_WO:
        e.raw(f"buffer_load_dword v{V_T2}, s[{S_WO}:{S_WO + 3}], s{S_T0} offen lds")
    run(max_fillers(V_S0))
    for cb in range(NCB):
        cross_g("v_max_f32", V_TM + cb, V_TMP)
        V(f"v_mul_f32 v{V_NEGM + cb}, s{S_NC}, v{V_TM + cb}", V_NEGM + cb, V_TM + cb)

    rare = []

    def p2_step(t, issue, push_next, tagname):
        G = 15 + t
        sc = V_S0 if t % 2 == 0 else V_S1
        sn = V_S1 if t % 2 == 0 else V_S0
        qk_stage(sn, exp_fillers(sc))
        mx = max_fillers(sn) + check_fillers()
        sp = spread(mx, 16)
        for dt in range(16):
            def hooks(k, dt=dt):
                slot = 2 * dt + k
                if slot == BAR2:
                    e.wait_vm(("D", G + 1))
                    e.salu("s_barrier")
                    defer(issue(), SP2)
                    push_next()
                if slot >= 10:
                    sp(slot - 10)
            group([V_O + 8 * dt + 4 * cb for cb in range(NCB)], [sc + 8 * cb for cb in range(NCB)], t == 0, hooks)
        e.salu(f"s_or_b64 vcc, vcc, s[{S_T0 + 55}:{S_T0 + 56}]")
        e.salu(f"s_cbranch_scc1 L_rare_{tagname}")
        e.label(f"L_back_{tagname}")
        rare.append(tagname)

    p2_step(0, lambda: dma_kv_pair(e, ("D", 18)), push_kv, "z")
    p2_step(1, lambda: dma_kv_pair(e, ("D", 19)), push_kv, "y")

    def p2_body(i):
        t = 2 + 2 * i
        p2_step(t, lambda: dma_kv_pair(e, ("D", 15 + t + 3)), push_kv, "a")
        p2_step(t + 1, lambda: dma_kv_pair(e, ("D", 15 + t + 4)), push_kv, "b")

    e.loop("L_p2", 5, p2_body, f"s{S_CNT}")
    rare[:] = ["z", "y", "a", "b"]
    p2_step(12, lambda: dma_kv_pair(e, ("D", 30), k=False, v=True), push_kv, "c")

    def wo_setup():
        a, b2 = V_T3, V_T2
        V(f"v_bfe_u32 v{a}, v{L}, 4, 1", a, L)
        V(f"v_lshlrev_b32 v{a}, 1, v{a}", a, a)
        V(f"v_and_b32 v{b2}, 7, v{L}", b2, L)
        V(f"v_xor_b32 v{a}, v{a}, v{b2}", a, a, b2)
        V(f"v_lshlrev_b32 v{a}, 4, v{a}", a, a)
        V(f"v_lshrrev_b32 v{b2}, 3, v{L}", b2, L)
        V(f"v_mul_u32_u24 v{b2}, 896, v{b2}", b2, b2)
        V(f"v_add_u32 v{V_DWO0}, v{a}, v{b2}", V_DWO0, a, b2)
        V(f"v_xor_b32 v{a}, 64, v{a}", a, a)
        V(f"v_add_u32 v{V_DWO1}, v{a}, v{b2}", V_DWO1, a, b2)
        e.salu(f"s_lshl_b32 s{S_WM0C}, s{S_W}, 11")
        e.salu(f"s_mul_i32 s{S_XOFF}, s{S_W}, {16 * 896}")

    def iss_wo0():
        wo_setup()
        return dma_wo_pair(e, ("D", 31), 0)
    p2_step(13, iss_wo0, push_kv, "d")

    def push_v_only():
        fs.push(("pre", next_rd_kv))
        v_frags()
    p2_step(14, lambda: dma_wo_pair(e, ("D", 32), 1), push_v_only, "e")

    RD3 = [V_RDA, V_RDB, V_RDC, V_RDD]

    def wo_patterns():
        a, b2 = V_T2, V_T3
        V(f"v_lshrrev_b32 v{a}, 4, v{L}", a, L)
        V(f"v_bfe_u32 v{b2}, v{L}, 2, 2", b2, L)
        V(f"v_lshl_add_u32 v{a}, v{a}, 3, v{b2}", a, a, b2)
        V(f"v_lshlrev_b32 v{a}, 7, v{a}", a, a)
        V(f"v_bfe_u32 v{b2}, v{L}, 3, 2", b2, L)
        e.salu(f"s_lshl_b32 s{S_T3}, s{S_HH}, 1")
        V(f"v_xor_b32 v{b2}, s{S_T3}, v{b2}", b2, b2)
        V(f"v_lshl_add_u32 v{a}, v{b2}, 5, v{a}", a, b2, a)
        V(f"v_and_b32 v{b2}, 3, v{L}", b2, L)
        V(f"v_lshl_add_u32 v{a}, v{b2}, 3, v{a}", a, b2, a)
        e.salu(f"s_mul_i32 s{S_T3}, s{S_HH}, {TILE}")
        V(f"v_add_u32 v{V_PATA}, s{S_T3}, v{a}", V_PATA, a)

    def next_rd3():
        adv_slot(e, S_RD)
        V(f"v_add_u32 v{RD3[0]}, s{S_RD}, v{V_PATA}", RD3[0], V_PATA)
        for u in range(1, 4):
            V(f"v_xor_b32 v{RD3[u]}, {32 * u}, v{RD3[0]}", RD3[u], RD3[0])

    ULORD = (2, 3, 0, 1)

    def p3_frags():
        for kk in range(4):
            for ul in ULORD:
                off = kk * 4096
                fs.push(rd_tr(e, RD3[ul], off, off + 512))

    def push_p3_first():
        def pre():
            wo_patterns()
            next_rd3()
        fs.push(("pre", pre))
        p3_frags()

    def push_p3():
        fs.push(("pre", next_rd3))
        p3_frags()

    sc = V_S1
    run(exp_fillers(sc))
    for cb in range(NCB):
        cross_g("v_add_f32", V_LSUM + cb, V_TMP)
        e.valu(f"v_rcp_f32 v{V_LSUM + cb}, v{V_LSUM + cb}", dst=[V_LSUM + cb], src=[V_LSUM + cb], trans=True)

    pend = []
    for dt in range(16):
        def hooks(k, dt=dt):
            slot = 2 * dt + k
            if slot == BAR2:
                e.wait_vm(("D", 31))
                e.salu("s_barrier")
                defer(dma_wo_pair(e, ("D", 33), 2), SP2)
                push_p3_first()
            if k == 1 and dt % 2 == 1 and dt >= 3:
                T = (dt - 3) // 2
                for cb in range(NCB):
                    pend.extend(pack_pair(T, cb, scale=True))
            for _ in range(6):
                if pend:
                    pend.pop(0)()
        group([V_O + 8 * dt + 4 * cb for cb in range(NCB)], [sc + 8 * cb for cb in range(NCB)], False, hooks)
    for cb in range(NCB):
        pend.extend(pack_pair(7, cb, scale=True))
    stamp(e, 3)
    stamp(e, 4)

    ACC = [V_S0, 0]
    V_R = 32
    V_PK = 48
    V_EXW = [56, 57, 58, 59]
    V_EXR = [60, 61, 62, 63]

    def ex_addr(dst, wreg):
        e.salu(f"s_lshl_b32 s{S_T0}, s{wreg}, 12")
        e.salu(f"s_add_u32 s{S_T0}, s{S_T0}, {RING}")
        e.salu(f"s_sub_u32 s{S_T1}, s{wreg}, 6")
        e.salu(f"s_mul_i32 s{S_T1}, s{S_T1}, {4 * TILE}")
        e.salu(f"s_add_u32 s{S_T1}, s{S_T1}, 16384")
        e.salu(f"s_cmp_ge_u32 s{wreg}, 6")
        e.salu(f"s_cselect_b32 s{S_T0}, s{S_T1}, s{S_T0}")
        e.salu(f"s_mov_b32 s{S_T1}, 1024")
        e.salu(f"s_cselect_b32 s{S_T1}, {TILE}, s{S_T1}")
        for i in range(4):
            V(f"v_add_u32 v{dst[i]}, s{S_T0}, v{V_DLIN}", dst[i], V_DLIN)
            if i < 3:
                e.salu(f"s_add_u32 s{S_T0}, s{S_T0}, s{S_T1}")

    def p3_setup():
        ex_addr(V_EXW, S_W)
        e.salu(f"s_xor_b32 s{S_XR}, s{S_W}, 4")
        ex_addr(V_EXR, S_XR)
        e.salu(f"s_mul_i32 s{S_POFF}, s{S_W}, {7 * 2048}")

    def send_fillers(s_):
        acc = ACC[s_ & 1] + 16
        return [(lambda i=i: e.ds(f"ds_write_b128 v{V_EXW[i]}, {rn(acc + 4 * i, 4)}", ("exw", s_),
                                  src=range(acc + 4 * i, acc + 4 * i + 4))) for i in range(4)]

    def recv_fillers(s_):
        return [(lambda i=i: e.ds(f"ds_read_b128 {rn(V_R + 4 * i, 4)}, v{V_EXR[i]}", ("exr", s_),
                                  dst=range(V_R + 4 * i, V_R + 4 * i + 4))) for i in range(4)]

    def fin_fillers(s_):
        acc = ACC[s_ & 1]
        fl = [lambda: None] * 6 + [lambda: e.wait_lds(("exr", s_))]
        for j in range(16):
            fl.append(lambda j=j: V(f"v_add_f32 v{V_R + j}, v{V_R + j}, v{acc + j}", V_R + j, V_R + j, acc + j))
        for ul in range(2):
            for cb in range(NCB):
                tb = V_R + 8 * ul + 4 * cb
                for h2 in range(2):
                    d = V_PK + 4 * cb + 2 * ul + h2
                    fl.append(lambda d=d, tb=tb, h2=h2: e.valu(f"v_cvt_pk_bf16_f32 v{d}, v{tb + 2 * h2}, v{tb + 2 * h2 + 1}",
                                                               dst=[d], src=[tb + 2 * h2, tb + 2 * h2 + 1]))

        def st():
            for cb in range(NCB):
                rg = V_PK + 4 * cb
                e.raw(f"buffer_store_dwordx4 {rn(rg, 4)}, v{V_DLIN}, s[{S_P}:{S_P + 3}], s{S_POFF} offen offset:{cb * 1024} sc1")
            e.salu(f"s_add_u32 s{S_POFF}, s{S_POFF}, 2048")
            e.nop(1)
        fl.append(st)
        return fl

    def p3_step(p, issue, push, extra=None):
        G = 31 + p
        s_, ip = p >> 1, p & 1
        acc = ACC[s_ & 1]
        ext = list(extra) if extra else []
        pre = send_fillers(s_ - 1) if (ip == 0 and s_ >= 1) else []
        post = []
        slot = [0]
        for kk in range(4):
            for ul in ULORD:
                def hooks(k):
                    sl = slot[0]
                    slot[0] += 1
                    if sl >= 2:
                        for _ in range(3):
                            if pre:
                                pre.pop(0)()
                            elif ext:
                                ext.pop(0)()
                                if ext:
                                    ext.pop(0)()
                            elif post:
                                post.pop(0)()
                    if sl == BAR3:
                        assert not pre
                        if ip == 0 and s_ >= 1:
                            e.wait_lds(("exw", s_ - 1))
                        e.wait_vm(("D", G + 1))
                        e.salu("s_barrier")
                        if ip == 0 and s_ >= 1:
                            post.extend(recv_fillers(s_ - 1) + fin_fillers(s_ - 1))
                        defer(issue(), SP3)
                        if push:
                            push_p3()
                group([acc + 8 * ul + 4 * cb for cb in range(NCB)],
                      [V_Q + 32 * cb + 4 * (4 * ip + kk) for cb in range(NCB)], ip == 0 and kk == 0, hooks)
        assert not post and not pre and not ext, (len(post), len(pre), len(ext))

    p3_setup()

    def iss3(p):
        return (lambda: dma_wo_pair(e, ("D", 31 + p), p)) if p <= 13 else (lambda: [])

    p3_step(0, iss3(3), True, extra=pend)
    p3_step(1, iss3(4), True)

    def p3_body(i):
        p = 2 + 4 * i
        for d in range(4):
            p3_step(p + d, iss3(p + d + 3), True)

    e.loop("L_p3", 2, p3_body, f"s{S_CNT}")
    p3_step(10, iss3(13), True)
    p3_step(11, iss3(14), True)
    p3_step(12, iss3(15), True)
    p3_step(13, iss3(16), False)
    run(send_fillers(6))
    e.wait_lds(("exw", 6))
    e.salu("s_barrier")
    run(recv_fillers(6))
    run(fin_fillers(6))
    stamp(e, 5)
    stamp_flush(e, 8)
    e.label("L_attn_exit")
    e.salu("s_endpgm")

    for tg in rare:
        e.label(f"L_rare_{tg}")
        e.raw("s_nop 15", 16)
        for cb in range(NCB):
            tm, nm, ls = V_TM + cb, V_NEGM + cb, V_LSUM + cb
            for sw in ("v_permlane16_swap_b32", "v_permlane32_swap_b32"):
                e.raw(f"v_mov_b32 v{V_TMP}, v{tm}")
                e.raw("s_nop 1", 2)
                e.raw(f"{sw} v{tm}, v{V_TMP}")
                e.raw(f"v_max_f32 v{tm}, v{tm}, v{V_TMP}")
            e.raw(f"v_mul_f32 v{tm}, s{S_NC}, v{tm}")
            e.raw(f"v_min_f32 v{V_TMP}, v{tm}, v{nm}")
            e.raw(f"v_sub_f32 v{tm}, v{V_TMP}, v{nm}")
            e.raw(f"v_exp_f32 v{tm}, v{tm}")
            e.raw(f"v_mov_b32 v{nm}, v{V_TMP}")
            e.raw("s_nop 0")
            e.raw(f"v_mul_f32 v{ls}, v{ls}, v{tm}")
        for dt in range(16):
            for cb in range(NCB):
                for i in range(4):
                    a = V_O + 8 * dt + 4 * cb + i
                    e.raw(f"v_mul_f32 v{a}, v{a}, v{V_TM + cb}")
        e.raw("s_nop 1", 2)
        e.raw(f"s_branch L_back_{tg}")


def gen_reduce(e):
    e.label("reduce_kernel")
    e.salu("s_cmp_ge_u32 s2, 896")
    e.salu("s_cbranch_scc1 L_red_exit")
    e.salu("s_load_dwordx2 s[4:5], s[0:1], 80")
    e.salu("s_load_dwordx2 s[6:7], s[0:1], 96")
    e.salu("s_mul_hi_u32 s8, s2, 0x924924a")
    e.salu("s_mul_i32 s9, s8, 28")
    e.salu("s_sub_u32 s9, s2, s9")
    e.raw("v_lshlrev_b32 v4, 4, v0")
    e.salu("s_lshl_b32 s26, s9, 12")
    e.salu("s_lshl_b32 s9, s9, 1")
    e.raw("v_lshrrev_b32 v3, 7, v0")
    e.raw("v_add_u32 v3, s9, v3")
    e.salu("s_waitcnt lgkmcnt(0)")
    e.salu("s_mul_i32 s10, s8, 917504")
    e.salu("s_add_u32 s6, s6, s10")
    e.salu("s_addc_u32 s7, s7, 0")
    e.salu("s_mov_b32 s12, s6")
    e.salu("s_and_b32 s13, s7, 0xffff")
    e.salu("s_mov_b32 s14, 917504")
    e.salu("s_mov_b32 s15, 0x00020000")
    e.salu("s_mov_b32 s16, s4")
    e.salu("s_and_b32 s17, s5, 0xffff")
    e.salu("s_mov_b32 s18, 3670016")
    e.salu("s_mov_b32 s19, 0x00020000")
    for h in range(8):
        e.salu(f"s_add_u32 s20, s26, {h * 114688}")
        e.raw(f"buffer_load_dwordx4 v[{24 + 4 * h}:{27 + 4 * h}], v4, s[12:15], s20 offen")
    e.raw("v_mul_u32_u24 v5, 37, v3")
    e.raw("v_lshrrev_b32 v5, 8, v5")
    e.raw("v_mul_u32_u24 v6, 7, v5")
    e.raw("v_sub_u32 v6, v3, v6")
    e.raw("v_and_b32 v8, 15, v0")
    e.raw("v_bfe_u32 v9, v0, 6, 1")
    e.raw("v_lshl_add_u32 v8, v9, 4, v8")
    e.raw("v_and_b32 v9, 3, v5")
    e.raw("v_lshl_add_u32 v8, v9, 5, v8")
    e.raw("v_mul_u32_u24 v8, 1792, v8")
    e.raw("v_bfe_u32 v9, v0, 4, 2")
    e.raw("v_lshl_add_u32 v8, v9, 3, v8")
    e.raw("v_lshrrev_b32 v9, 2, v5")
    e.raw("v_lshl_add_u32 v8, v9, 6, v8")
    e.raw("v_lshl_add_u32 v8, v6, 7, v8")
    e.salu("s_and_b32 s21, s8, 15")
    e.salu("s_lshr_b32 s22, s8, 4")
    e.salu("s_mul_i32 s21, s21, 229376")
    e.salu("s_mul_i32 s22, s22, 896")
    e.salu("s_add_u32 s21, s21, s22")
    e.salu("s_mov_b32 s23, 0xffff0000")
    for h in range(8):
        e.salu(f"s_waitcnt vmcnt({7 - h})")
        for i in range(4):
            r = 24 + 4 * h + i
            if h == 0:
                e.raw(f"v_lshlrev_b32 v{16 + 2 * i}, 16, v{r}")
                e.raw(f"v_and_b32 v{17 + 2 * i}, s23, v{r}")
            else:
                e.raw(f"v_lshlrev_b32 v11, 16, v{r}")
                e.raw(f"v_and_b32 v12, s23, v{r}")
                e.raw(f"v_add_f32 v{16 + 2 * i}, v{16 + 2 * i}, v11")
                e.raw(f"v_add_f32 v{17 + 2 * i}, v{17 + 2 * i}, v12")
    for i in range(4):
        e.raw(f"v_cvt_pk_bf16_f32 v{12 + i}, v{16 + 2 * i}, v{17 + 2 * i}")
    e.raw("buffer_store_dwordx2 v[12:13], v8, s[16:19], s21 offen")
    e.raw("buffer_store_dwordx2 v[14:15], v8, s[16:19], s21 offen offset:32")
    if STAMPS_DBG:
        e.salu("s_cmp_lg_u32 s2, 0")
        e.salu("s_cbranch_scc1 L_red_exit")
        e.salu("s_load_dwordx4 s[4:7], s[0:1], 88")
        e.salu("s_waitcnt lgkmcnt(0)")
        e.salu("s_add_u32 s6, s6, 0x8000000")
        e.salu("s_addc_u32 s7, s7, 0")
        e.salu("s_mov_b32 s12, s6")
        e.salu("s_and_b32 s13, s7, 0xffff")
        e.salu("s_mov_b32 s14, 64")
        e.salu("s_mov_b32 s16, s4")
        e.salu("s_and_b32 s17, s5, 0xffff")
        e.salu("s_mov_b32 s18, 64")
        e.raw("v_lshlrev_b32 v1, 2, v0")
        e.raw("buffer_load_dword v2, v1, s[12:15], 0 offen")
        e.raw("s_waitcnt vmcnt(0)")
        e.raw("buffer_store_dword v2, v1, s[16:19], 0 offen")
    e.label("L_red_exit")
    e.salu("s_endpgm")


def main():
    ref = open(OUT + ".ref").read().splitlines()
    out = [l for l in ref if l.startswith(";") and "@launch" not in l]
    out.append(f"; @launch kernel=attn_kernel grid=(256,1,1) block=(512,1,1) lds={LDS_BYTES}")
    out.append("; @launch kernel=reduce_kernel grid=(896,1,1) block=(256,1,1) lds=0")
    out.append('.amdgcn_target "amdgcn-amd-amdhsa--gfx950"')
    out.append(".text")
    e = Em()
    out += [".globl attn_kernel", ".p2align 8", ".type attn_kernel,@function"]
    gen_attn(e)
    out += e.lines
    e2 = Em()
    out += [".globl reduce_kernel", ".p2align 8", ".type reduce_kernel,@function"]
    gen_reduce(e2)
    out += e2.lines
    out.append('.section .rodata,"a"')
    for k, vg, ao, sg in (("attn_kernel", 256, 256, 102), ("reduce_kernel", 56, 56, 32)):
        out += [".p2align 6", f".amdhsa_kernel {k}",
                f"  .amdhsa_next_free_vgpr {vg}",
                f"  .amdhsa_next_free_sgpr {sg}",
                f"  .amdhsa_accum_offset {ao}",
                "  .amdhsa_group_segment_fixed_size 0",
                "  .amdhsa_kernarg_size 104",
                "  .amdhsa_user_sgpr_count 2",
                "  .amdhsa_user_sgpr_kernarg_segment_ptr 1",
                "  .amdhsa_system_sgpr_workgroup_id_x 1",
                ".end_amdhsa_kernel"]
    open(OUTFILE, "w").write("\n".join(out) + "\n")
    print("wrote", OUTFILE, len(out), "lines")


if __name__ == "__main__":
    main()
```

```python
import math
import os
import struct
import sys

NAME = "concat_heads__gqa_block_cached__gqa_block_cached__near_ridge"
OUT = f"cdna_kernels/{NAME}.s"
OUTFILE = sys.argv[1] if len(sys.argv) > 1 else OUT

STAMPS = os.environ.get("STAMPS", "0") in ("1", "2")
STAMPS_DBG = os.environ.get("STAMPS", "0") == "2"
TILE = 17408
PAIR = 2 * TILE
RING = 4 * PAIR
LDS_BYTES = 160 * 1024
NB = 4
KVPF = int(os.environ.get("KVPF", "0"))
KVPF_T0 = int(os.environ.get("KVPF_T0", "2"))
KVPF_PAR = int(os.environ.get("KVPF_PAR", "0"))
PF_WQ = os.environ.get("PF_WQ", "1") == "1"
PF_WO = os.environ.get("PF_WO", "1") == "1"
PF_X = os.environ.get("PF_X", "0") == "1"
PK_FMA = os.environ.get("PK_FMA", "0") == "1"
PAIRW = os.environ.get("PAIRW", "0") == "1"
DPF = int(os.environ.get("DPF", "3"))
SP1 = int(os.environ.get("SP1", "3"))
SP2 = int(os.environ.get("SP2", "5"))
SP3 = int(os.environ.get("SP3", "4"))
BAR1 = int(os.environ.get("BAR1", "15"))
BAR2 = int(os.environ.get("BAR2", "7"))
BAR3 = int(os.environ.get("BAR3", "11"))
AG = 256


def rn(r, n=1):
    if r >= AG:
        r -= AG
        return f"a{r}" if n == 1 else f"a[{r}:{r + n - 1}]"
    return f"v{r}" if n == 1 else f"v[{r}:{r + n - 1}]"


class Em:
    def __init__(self):
        self.lines = []
        self.pos = 0
        self.mfma_w = {}
        self.mfma_c = {}
        self.valu_w = {}
        self.trans_w = {}
        self.lds_q = []
        self.vm_q = []
        self.capture = None

    def raw(self, s, slots=1):
        (self.capture if self.capture is not None else self.lines).append("    " + s)
        self.pos += slots

    def label(self, s):
        (self.capture if self.capture is not None else self.lines).append(s + ":")

    def nop(self, n):
        while n > 0:
            k = min(n, 16)
            self.raw(f"s_nop {k - 1}", k)
            n -= k

    def _need(self, table, regs, dist):
        need = 0
        for r in regs:
            p = table.get(r)
            if p is not None:
                need = max(need, dist - (self.pos - p - 1))
        return need

    def salu(self, s):
        self.raw(s)

    def valu(self, s, dst=(), src=(), trans=False):
        n = self._need(self.mfma_w, list(dst) + list(src), 8)
        n = max(n, self._need(self.mfma_c, dst, 3))
        if not trans:
            n = max(n, self._need(self.trans_w, src, 1))
        if n > 0:
            self.nop(n)
        p = self.pos
        self.raw(s)
        for r in dst:
            self.valu_w[r] = p
            if trans:
                self.trans_w[r] = p
            else:
                self.trans_w.pop(r, None)

    def mfma(self, d, a, b, c):
        D = list(range(d, d + 4))
        A = list(range(a, a + 4))
        B = list(range(b, b + 4))
        C = list(range(c, c + 4)) if c is not None else []
        n = self._need(self.valu_w, A + B + C, 2)
        n = max(n, self._need(self.mfma_w, A + B, 8))
        assert c is None or c == d
        if n > 0:
            self.nop(n)
        p = self.pos
        cs = rn(c, 4) if c is not None else "0"
        self.raw(f"v_mfma_f32_16x16x32_bf16 {rn(d, 4)}, {rn(a, 4)}, {rn(b, 4)}, {cs}")
        for r in D:
            self.mfma_w[r] = p
        for r in C:
            self.mfma_c[r] = p

    def ds(self, s, tag, dst=(), src=()):
        n = self._need(self.mfma_w, list(dst) + list(src), 8)
        if n > 0:
            self.nop(n)
        self.raw(s)
        self.lds_q.append(tag)
        assert len(self.lds_q) <= 15, "too many LDS ops outstanding"

    def vmem(self, s, tag, dst=(), src=()):
        n = self._need(self.mfma_w, list(dst) + list(src), 8)
        if n > 0:
            self.nop(n)
        self.raw(s)
        self.vm_q.append(tag)
        assert len(self.vm_q) <= 63

    def wait_lds(self, tag):
        idx = max((i for i, t in enumerate(self.lds_q) if t == tag), default=-1)
        if idx < 0:
            return
        self.raw(f"s_waitcnt lgkmcnt({len(self.lds_q) - 1 - idx})")
        self.lds_q = self.lds_q[idx + 1:]

    def wait_vm(self, tag):
        idx = max((i for i, t in enumerate(self.vm_q) if t == tag), default=-1)
        if idx < 0:
            return
        self.raw(f"s_waitcnt vmcnt({len(self.vm_q) - 1 - idx})")
        self.vm_q = self.vm_q[idx + 1:]

    def loop(self, name, n, body, counter):
        assert self.capture is None
        self.salu(f"s_mov_b32 {counter}, {n}")
        texts = []
        for i in range(n):
            self.capture = []
            body(i)
            self.salu(f"s_sub_u32 {counter}, {counter}, 1")
            self.salu(f"s_cmp_lg_u32 {counter}, 0")
            self.salu(f"s_cbranch_scc1 {name}")
            texts.append(self.capture)
            self.capture = None
        for i in range(1, n):
            if texts[i] != texts[0]:
                for a, b in zip(texts[0], texts[i]):
                    if a != b:
                        print("LOOP MISMATCH", name, i, a, "|", b)
                        break
                raise SystemExit(f"loop {name}: iteration {i} differs from iteration 0")
        self.label(name)
        self.lines.extend(texts[0])


S_X, S_K, S_V, S_WQ, S_WO, S_P = 8, 12, 16, 20, 24, 28
S_W, S_HH, S_QH, S_RD, S_DM = 32, 33, 34, 35, 36
S_T0, S_T1, S_T2, S_T3 = 37, 38, 39, 40
S_CNT, S_C, S_NC, S_THR = 41, 42, 43, 44
S_OFFA, S_OFFB, S_XOFF = 45, 46, 47
S_WM0A, S_WM0B, S_WM0C = 48, 49, 50
S_POFF, S_XW, S_XR, S_XD = 51, 52, 53, 54
S_D0, S_D1, S_B, S_SK, S_PFO, S_PFS = 55, 78, 79, 90, 91, 60
S_KA = 56
S_ST = 80

V_O = 0
V_Q = 128
V_S0, V_S1 = 192, 208
V_FR = 224
V_PATA, V_PATB, V_RDA, V_RDB, V_RDC = 240, 241, 242, 243, 244
V_RDD = V_PATB
V_DLIN, V_DK, V_DX = 245, 246, 247
V_DWO0, V_DWO1 = V_DX, V_DK
V_NEGM, V_LSUM, V_TM = 248, 250, 252
V_TMP, V_LANE = 254, 255
V_T2, V_T3 = V_TM, V_TM + 1
V_PF = V_TMP
NCB = 2


def stamp(e, i):
    if not STAMPS:
        return
    e.raw("s_memtime s[96:97]")
    e.raw("s_waitcnt lgkmcnt(0)")
    e.lds_q = []
    e.salu(f"s_mov_b32 s{S_ST + i}, s96")
    if i in (0, 5):
        e.raw("s_memrealtime s[96:97]")
        e.raw("s_waitcnt lgkmcnt(0)")
        e.salu(f"s_mov_b32 s{S_ST + 6 + (i == 5)}, s96")


def stamp_flush(e, n):
    if not STAMPS:
        return
    if STAMPS_DBG:
        e.salu(f"s_cmp_lg_u32 s{S_W}, 0")
        e.salu("s_cbranch_scc1 L_attn_exit")
        e.salu("s_cmp_eq_u32 s2, 0")
        e.salu("s_cselect_b32 s94, 0, 32")
        e.salu("s_cbranch_scc1 L_st_go")
        e.salu("s_cmp_lg_u32 s2, 133")
        e.salu("s_cbranch_scc1 L_attn_exit")
        e.label("L_st_go")
        e.salu("s_load_dwordx2 s[96:97], s[0:1], 96")
        e.salu("s_waitcnt lgkmcnt(0)")
        e.salu("s_add_u32 s96, s96, 0x8000000")
        e.salu("s_addc_u32 s97, s97, 0")
        e.salu("s_mov_b32 s8, s96")
        e.salu("s_and_b32 s9, s97, 0xffff")
        e.salu("s_mov_b32 s10, 256")
        e.salu("s_mov_b32 s11, 0x00020000")
        e.raw("s_nop 15", 16)
        e.raw("v_mov_b32 v1, 0")
        for i in range(6):
            a, b = (S_ST + i, S_ST + i + 1) if i < 5 else (S_ST + 6, S_ST + 7)
            e.salu(f"s_sub_u32 s95, s{b}, s{a}")
            e.raw("v_mov_b32 v0, s95")
            e.raw(f"buffer_store_dword v0, v1, s[8:11], s94 offen offset:{4 * i}")
            e.raw("s_waitcnt vmcnt(0)")
        return
    e.salu("s_load_dwordx2 s[96:97], s[0:1], 96")
    e.salu("s_waitcnt lgkmcnt(0)")
    e.salu("s_add_u32 s96, s96, 0x8000000")
    e.salu("s_addc_u32 s97, s97, 0")
    e.salu("s_mov_b32 s8, s96")
    e.salu("s_and_b32 s9, s97, 0xffff")
    e.salu("s_mov_b32 s10, 0x100000")
    e.salu("s_mov_b32 s11, 0x00020000")
    e.salu("s_lshl_b32 s96, s2, 3")
    e.salu(f"s_add_u32 s96, s96, s{S_W}")
    e.salu("s_lshl_b32 s96, s96, 6")
    e.raw("s_nop 15", 16)
    e.raw("v_mov_b32 v1, 0")
    for i in range(n):
        e.raw(f"v_mov_b32 v0, s{S_ST + i}")
        e.raw(f"buffer_store_dword v0, v1, s[8:11], s96 offen offset:{4 * i}")
        e.raw("s_waitcnt vmcnt(0)")


def srd(e, dst, lo, hi, size):
    e.salu(f"s_mov_b32 s{dst}, s{lo}")
    e.salu(f"s_and_b32 s{dst + 1}, s{hi}, 0xffff")
    e.salu(f"s_mov_b32 s{dst + 2}, {size}")
    e.salu(f"s_mov_b32 s{dst + 3}, 0x00020000")


def adv_slot(e, s):
    e.salu(f"s_add_u32 s{s}, s{s}, {PAIR}")
    e.salu(f"s_cmp_ge_u32 s{s}, {RING}")
    e.salu(f"s_cselect_b32 s{S_T3}, {RING}, 0")
    e.salu(f"s_sub_u32 s{s}, s{s}, s{S_T3}")


NODMA = os.environ.get("NODMA", "0") == "1"
NODMA_ON = [False]


def dma(e, voff, sr, soff, m0expr, tag, off=0):
    if NODMA and NODMA_ON[0]:
        return
    sg, imm = m0expr
    e.salu(f"s_add_u32 m0, s{sg}, {imm}")
    e.salu("s_nop 0")
    o = f" offset:{off}" if off else ""
    pol = " nt" if sr in (S_K, S_V) else ""
    e.vmem(f"buffer_load_dwordx4 v{voff}, s[{sr}:{sr + 3}], s{soff} offen{o}{pol} lds", tag)


def dma_wq_pair(e, tag):
    e.salu(f"s_add_u32 s{S_D0}, s{S_DM}, s{S_WM0A}")
    adv_slot(e, S_DM)
    out = []
    for i in range(4):
        def f(i=i):
            e.salu(f"s_add_u32 s{S_T1}, s{S_OFFA}, {i * 8192}")
            dma(e, V_DLIN, S_WQ, S_T1, (S_D0, i * 1088), tag)
            if i == 3:
                e.salu(f"s_add_u32 s{S_OFFA}, s{S_OFFA}, {32 * 8192}")
        out.append(f)
    return out


def dma_kv_pair(e, tag, k=True, v=True):
    e.salu(f"s_add_u32 s{S_D0}, s{S_DM}, s{S_WM0A}")
    e.salu(f"s_add_u32 s{S_D1}, s{S_DM}, s{S_WM0B}")
    adv_slot(e, S_DM)
    out = []
    if k:
        for i in range(2):
            def f(i=i):
                dma(e, V_DK, S_K, S_OFFA, (S_D0, 32 * i), tag, off=1024 * i)
                if i == 1:
                    e.salu(f"s_add_u32 s{S_OFFA}, s{S_OFFA}, 16384")
                    e.salu(f"s_and_b32 s{S_OFFA}, s{S_OFFA}, 0x3ffff")
            out.append(f)
    if v:
        for i in range(2):
            def f(i=i):
                dma(e, V_DLIN, S_V, S_OFFB, (S_D1, 64 * i), tag, off=1024 * i)
                if i == 1:
                    e.salu(f"s_add_u32 s{S_OFFB}, s{S_OFFB}, 16384")
                    e.salu(f"s_and_b32 s{S_OFFB}, s{S_OFFB}, 0x3ffff")
            out.append(f)
    return out


def dma_wo_pair(e, tag, p):
    e.salu(f"s_add_u32 s{S_D0}, s{S_DM}, s{S_WM0C}")
    adv_slot(e, S_DM)
    out = []
    ip = p & 1
    for hd in range(2):
        for i in range(2):
            def f(hd=hd, i=i):
                e.salu(f"s_add_u32 s{S_T1}, s{S_XOFF}, {(256 * hd + 128 * ip + 8 * i) * 896}")
                dma(e, V_DWO1 if i & 1 else V_DWO0, S_WO, S_T1, (S_D0, hd * TILE + i * 1024), tag)
                if hd == 1 and i == 1 and ip == 1:
                    e.salu(f"s_add_u32 s{S_XOFF}, s{S_XOFF}, 128")
            out.append(f)
    return out


class FragStream:
    def __init__(self, e):
        self.e = e
        self.issued = 0
        self.queue = []

    def buf(self, i):
        return V_FR + 4 * (i % NB)

    def push(self, fn):
        self.queue.append(fn)

    def issue_next(self):
        while self.queue:
            fn = self.queue.pop(0)
            if fn[0] == "pre":
                fn[1]()
                continue
            i = self.issued
            fn[1](self.buf(i), ("fr", i))
            self.issued += 1
            return True
        return False


def rd_tr(e, areg, off0, off1):
    def f(dst, tag):
        e.ds(f"ds_read_b64_tr_b16 {rn(dst, 2)}, v{areg} offset:{off0}", tag, dst=range(dst, dst + 2))
        e.ds(f"ds_read_b64_tr_b16 {rn(dst + 2, 2)}, v{areg} offset:{off1}", tag, dst=range(dst + 2, dst + 4))
    return ("rd", f)


def rd_128(e, areg, off):
    def f(dst, tag):
        e.ds(f"ds_read_b128 {rn(dst, 4)}, v{areg} offset:{off}", tag, dst=range(dst, dst + 4))
    return ("rd", f)


def gen_attn(e):
    e.label("attn_kernel")
    e.salu("s_cmp_ge_u32 s2, 256")
    e.salu("s_cbranch_scc1 L_attn_exit")
    e.salu(f"s_load_dwordx16 s[{S_KA}:{S_KA + 15}], s[0:1], 0")
    e.salu(f"s_load_dwordx4 s[{S_KA + 16}:{S_KA + 19}], s[0:1], 64")
    e.salu(f"s_load_dwordx2 s[{S_KA + 20}:{S_KA + 21}], s[0:1], 96")
    e.salu(f"s_and_b32 s{S_T0}, s2, 7")
    e.salu(f"s_lshr_b32 s{S_T1}, s2, 3")
    e.salu(f"s_and_b32 s{S_T2}, s{S_T1}, 15")
    e.salu(f"s_mov_b32 s{S_B}, s{S_T2}")
    L = V_LANE

    def V(s, d, *src):
        e.valu(s, dst=[d], src=list(src))

    V("v_lshrrev_b32 v1, 6, v0", 1, 0)
    V(f"v_and_b32 v{L}, 63, v0", L, 0)
    e.salu("s_nop 0")
    e.raw(f"v_readfirstlane_b32 s{S_W}, v1")
    e.salu("s_nop 3")
    e.salu(f"s_lshr_b32 s{S_HH}, s{S_W}, 2")
    e.salu(f"s_and_b32 s{S_QH}, s{S_W}, 3")
    e.salu(f"s_bfe_u32 s{S_SK}, s{S_W}, {(1 << 16) | 1}")
    e.salu(f"s_lshl_b32 s{S_SK}, s{S_SK}, 3")
    t1, t2, t3 = 1, 2, 3
    V(f"v_lshlrev_b32 v{V_DLIN}, 4, v{L}", V_DLIN, L)
    V(f"v_bfe_u32 v{t1}, v{L}, 4, 2", t1, L)
    V(f"v_sub_u32 v{t1}, 4, v{t1}", t1, t1)
    V(f"v_and_b32 v{t1}, 3, v{t1}", t1, t1)
    V(f"v_and_b32 v{t2}, 3, v{L}", t2, L)
    V(f"v_xor_b32 v{t1}, v{t1}, v{t2}", t1, t1, t2)
    V(f"v_lshlrev_b32 v{t1}, 4, v{t1}", t1, t1)
    V(f"v_lshrrev_b32 v{t2}, 2, v{L}", t2, L)
    V(f"v_mul_u32_u24 v{t2}, 896, v{t2}", t2, t2)
    V(f"v_add_u32 v{V_DX}, v{t1}, v{t2}", V_DX, t1, t2)
    e.salu(f"s_mul_i32 s{S_WM0A}, s{S_W}, {4 * 1088}")
    e.salu(f"s_add_u32 s{S_WM0A}, s{S_WM0A}, s{S_SK}")
    e.salu(f"s_lshl_b32 s{S_OFFA}, s{S_W}, 15")
    e.salu(f"s_mov_b32 s{S_DM}, 0")
    e.salu(f"s_mov_b32 s{S_RD}, 0")
    e.salu(f"s_mul_i32 s{S_XOFF}, s{S_W}, {16 * 896}")
    e.salu(f"s_lshl_b32 s{S_XW}, s{S_W}, 10")
    e.salu(f"s_add_u32 s{S_XW}, s{S_XW}, {RING}")
    e.salu(f"s_mov_b32 s{S_XR}, 0")
    e.salu(f"s_mov_b32 s{S_XD}, 0")
    e.salu("s_waitcnt lgkmcnt(0)")
    e.salu(f"s_cmp_ge_u32 s{S_T1}, 16")
    for i in range(10):
        e.salu(f"s_cselect_b32 s{S_KA + i}, s{S_KA + 10 + i}, s{S_KA + i}")
    e.salu(f"s_lshl_b32 s{S_T3}, s{S_T0}, 10")
    e.salu(f"s_add_u32 s{S_KA + 6}, s{S_KA + 6}, s{S_T3}")
    e.salu(f"s_addc_u32 s{S_KA + 7}, s{S_KA + 7}, 0")
    srd(e, S_WQ, S_KA + 6, S_KA + 7, 448 * 8192)
    e.salu(f"s_sub_u32 s{S_WQ + 2}, s{S_WQ + 2}, s{S_T3}")
    e.salu(f"s_mul_i32 s{S_T3}, s{S_T2}, 114688")
    e.salu(f"s_add_u32 s{S_KA}, s{S_KA}, s{S_T3}")
    e.salu(f"s_addc_u32 s{S_KA + 1}, s{S_KA + 1}, 0")
    srd(e, S_X, S_KA, S_KA + 1, 114688)
    e.salu(f"s_lshl_b32 s{S_T3}, s{S_T2}, 3")
    e.salu(f"s_add_u32 s{S_T3}, s{S_T3}, s{S_T0}")
    e.salu(f"s_lshl_b32 s{S_T3}, s{S_T3}, 18")
    e.salu(f"s_add_u32 s{S_KA + 2}, s{S_KA + 2}, s{S_T3}")
    e.salu(f"s_addc_u32 s{S_KA + 3}, s{S_KA + 3}, 0")
    srd(e, S_K, S_KA + 2, S_KA + 3, 262144)
    e.salu(f"s_add_u32 s{S_KA + 4}, s{S_KA + 4}, s{S_T3}")
    e.salu(f"s_addc_u32 s{S_KA + 5}, s{S_KA + 5}, 0")
    srd(e, S_V, S_KA + 4, S_KA + 5, 262144)
    e.salu(f"s_mul_i32 s{S_T3}, s{S_T0}, 458752")
    e.salu(f"s_add_u32 s{S_KA + 8}, s{S_KA + 8}, s{S_T3}")
    e.salu(f"s_addc_u32 s{S_KA + 9}, s{S_KA + 9}, 0")
    srd(e, S_WO, S_KA + 8, S_KA + 9, 458752)
    e.salu(f"s_mul_i32 s{S_T3}, s2, 114688")
    e.salu(f"s_add_u32 s{S_KA + 20}, s{S_KA + 20}, s{S_T3}")
    e.salu(f"s_addc_u32 s{S_KA + 21}, s{S_KA + 21}, 0")
    srd(e, S_P, S_KA + 20, S_KA + 21, 114688)
    stamp(e, 0)

    def adv_x(sr):
        e.salu(f"s_add_u32 s{sr}, s{sr}, 8192")
        e.salu(f"s_cmp_ge_u32 s{sr}, 24576")
        e.salu(f"s_cselect_b32 s{sr}, 0, s{sr}")

    def xdma(tag):
        def f():
            e.salu(f"s_add_u32 s{S_T0}, s{S_XW}, s{S_XD}")
            dma(e, V_DX, S_X, S_XOFF, (S_T0, 0), tag)
            e.salu(f"s_add_u32 s{S_XOFF}, s{S_XOFF}, 64")
            adv_x(S_XD)
        return [f]

    def run(lst):
        for f in lst:
            f()

    run(dma_wq_pair(e, ("D", 0)))
    run(xdma(("X", 0)))
    run(dma_wq_pair(e, ("D", 1)))
    run(xdma(("X", 1)))
    run(dma_wq_pair(e, ("D", 2)))
    if NODMA:
        run(dma_wq_pair(e, ("D", 99)))
        run(xdma(("X", 99)))
        e.raw("s_waitcnt vmcnt(0)")
        e.vm_q = []
        NODMA_ON[0] = True
    V(f"v_lshrrev_b32 v{t1}, 4, v{L}", t1, L)
    V(f"v_lshlrev_b32 v{t1}, 13, v{t1}", t1, t1)
    V(f"v_and_b32 v{t2}, 15, v{L}", t2, L)
    V(f"v_lshl_add_u32 v{t1}, v{t2}, 6, v{t1}", t1, t2, t1)
    e.salu(f"s_mul_i32 s{S_T0}, s{S_B}, 28")
    e.salu(f"s_lshl_b32 s{S_T1}, s{S_W}, 2")
    e.salu(f"s_add_u32 s{S_T0}, s{S_T0}, s{S_T1}")
    e.salu(f"s_lshl_b32 s{S_T0}, s{S_T0}, 13")
    if PF_WQ:
        e.raw(f"buffer_load_dword v{V_PF}, v{t1}, s[{S_WQ}:{S_WQ + 3}], s{S_T0} offen")
    if PF_X:
        V(f"v_lshlrev_b32 v{t1}, 5, v{L}", t1, L)
        e.salu(f"s_and_b32 s{S_T0}, s2, 7")
        e.salu(f"s_mul_i32 s{S_T0}, s{S_T0}, 14336")
        e.salu(f"s_mul_i32 s{S_T1}, s{S_W}, 1792")
        e.salu(f"s_add_u32 s{S_T0}, s{S_T0}, s{S_T1}")
        e.raw(f"buffer_load_dword v{V_Q}, v{t1}, s[{S_X}:{S_X + 3}], s{S_T0} offen")

    c = math.log2(math.e) / 16.0
    e.salu(f"s_mov_b32 s{S_C}, {struct.unpack('<I', struct.pack('<f', c))[0]:#x}")
    e.salu(f"s_mov_b32 s{S_NC}, {struct.unpack('<I', struct.pack('<f', -c))[0]:#x}")
    e.salu(f"s_mov_b32 s{S_THR}, 0x41000000")
    V(f"v_lshrrev_b32 v{t1}, 4, v{L}", t1, L)
    V(f"v_bfe_u32 v{t2}, v{L}, 2, 2", t2, L)
    V(f"v_lshl_add_u32 v{t2}, v{t1}, 3, v{t2}", t2, t1, t2)
    V(f"v_mul_u32_u24 v{t2}, 1088, v{t2}", t2, t2)
    V(f"v_and_b32 v{t1}, 1, v{t1}", t1, t1)
    V(f"v_lshl_add_u32 v{t2}, v{t1}, 3, v{t2}", t2, t1, t2)
    V(f"v_and_b32 v{t1}, 3, v{L}", t1, L)
    V(f"v_lshl_add_u32 v{t2}, v{t1}, 4, v{t2}", t2, t1, t2)
    e.salu(f"s_lshl_b32 s{S_T3}, s{S_HH}, 9")
    V(f"v_add_u32 v{V_PATA}, s{S_T3}, v{t2}", V_PATA, t2)
    V(f"v_bfe_u32 v{t1}, v{L}, 2, 2", t1, L)
    V(f"v_sub_u32 v{t1}, 4, v{t1}", t1, t1)
    V(f"v_and_b32 v{t1}, 3, v{t1}", t1, t1)
    V(f"v_lshrrev_b32 v{t2}, 4, v{L}", t2, L)
    V(f"v_xor_b32 v{t1}, v{t1}, v{t2}", t1, t1, t2)
    V(f"v_lshlrev_b32 v{t1}, 4, v{t1}", t1, t1)
    V(f"v_and_b32 v{t2}, 15, v{L}", t2, L)
    V(f"v_lshl_add_u32 v{t1}, v{t2}, 6, v{t1}", t1, t2, t1)
    e.salu(f"s_lshl_b32 s{S_T3}, s{S_QH}, 11")
    e.salu(f"s_add_u32 s{S_T3}, s{S_T3}, {RING}")
    V(f"v_add_u32 v{V_PATB}, s{S_T3}, v{t1}", V_PATB, t1)
    V(f"v_lshrrev_b32 v{t2}, 5, v{L}", t2, L)
    V(f"v_and_b32 v{t1}, 31, v{L}", t1, L)
    V(f"v_xor_b32 v{t1}, v{t1}, v{t2}", t1, t1, t2)
    V(f"v_lshlrev_b32 v{t1}, 4, v{t1}", t1, t1)
    V(f"v_lshl_add_u32 v{V_DK}, v{t2}, 9, v{t1}", V_DK, t2, t1)
    V(f"v_add_u32 v{V_RDA}, s{S_RD}, v{V_PATA}", V_RDA, V_PATA)

    def xread(xs, G):
        V(f"v_add_u32 v{V_RDB}, s{S_XR}, v{V_PATB}", V_RDB, V_PATB)
        for cb in range(NCB):
            e.ds(f"ds_read_b128 {rn(xs + 4 * cb, 4)}, v{V_RDB} offset:{1024 * cb}", ("x", G), dst=range(xs + 4 * cb, xs + 4 * cb + 4))
        adv_x(S_XR)

    e.wait_vm(("X", 0))
    e.salu("s_barrier")
    stamp(e, 1)
    xread(V_S0, 0)
    e.wait_lds(("x", 0))

    fs = FragStream(e)
    dq = []
    dqs = {"sp": 4, "cnt": 0}

    def defer(lst, sp):
        assert not dq, "previous DMA pieces still pending"
        dq.extend(lst)
        dqs["sp"] = sp
        dqs["cnt"] = 0

    fidx = [0]

    def tick():
        if dq:
            dqs["cnt"] += 1
            if dqs["cnt"] >= dqs["sp"]:
                dqs["cnt"] = 0
                dq.pop(0)()

    def frag_begin():
        i = fidx[0]
        assert i < fs.issued
        if PAIRW:
            if i % 2 == 0:
                e.wait_lds(("fr", i + 1) if i + 1 < fs.issued else ("fr", i))
            else:
                e.wait_lds(("fr", i))
        else:
            e.wait_lds(("fr", i))
        return fs.buf(i)

    def frag_end():
        fidx[0] += 1

    def group(dsts, bs, zero, hooks):
        a = frag_begin()
        for k in range(NCB):
            e.mfma(dsts[k], a, bs[k], None if zero else dsts[k])
            if PAIRW:
                if k == NCB - 1:
                    fs.issue_next()
            elif k == 0:
                fs.issue_next()
            tick()
            hooks(k)
        frag_end()

    def p1_frags():
        for ct in range(16):
            off = 64 * (ct >> 1) + 8 * (ct & 1)
            fs.push(rd_tr(e, V_RDA, off, off + 4 * 1088))

    def next_rd_a():
        adv_slot(e, S_RD)
        V(f"v_add_u32 v{V_RDA}, s{S_RD}, v{V_PATA}", V_RDA, V_PATA)

    def kvpf_setup():
        e.salu(f"s_and_b32 s{S_T0}, s{S_W}, 1")
        e.salu(f"s_cmp_eq_u32 s{S_T0}, 1")
        for i in range(4):
            e.salu(f"s_cselect_b32 s{S_PFS + i}, s{S_V + i}, s{S_K + i}")
        e.salu(f"s_lshr_b32 s{S_PFO}, s2, 4")
        e.salu(f"s_xor_b32 s{S_PFO}, s{S_PFO}, s2")
        e.salu(f"s_add_u32 s{S_PFO}, s{S_PFO}, {KVPF_T0}")
        e.salu(f"s_add_u32 s{S_PFO}, s{S_PFO}, s{S_HH}")
        e.salu(f"s_and_b32 s{S_PFO}, s{S_PFO}, 15")
        e.salu(f"s_lshl_b32 s{S_PFO}, s{S_PFO}, 14")
        e.salu(f"s_lshl_b32 s{S_T0}, s{S_SK}, 10")
        e.salu(f"s_add_u32 s{S_PFO}, s{S_PFO}, s{S_T0}")
        V(f"v_lshlrev_b32 v{V_Q + 1}, 7, v{L}", V_Q + 1, L)

    def kvpf():
        e.raw(f"buffer_load_dword v{V_Q}, v{V_Q + 1}, s[{S_PFS}:{S_PFS + 3}], s{S_PFO} offen")
        e.salu(f"s_add_u32 s{S_PFO}, s{S_PFO}, 32768")
        e.salu(f"s_and_b32 s{S_PFO}, s{S_PFO}, 0x3ffff")

    def p1_step(G, issue, push_next):
        xs = V_S0 if G % 2 == 0 else V_S1
        xn = V_S1 if G % 2 == 0 else V_S0
        e.wait_lds(("x", G))
        for ct in range(16):
            def hooks(k, ct=ct):
                if NCB * ct + k == BAR1:
                    if G + 1 <= 13:
                        e.wait_vm(("X", G + 1))
                    e.wait_vm(("D", G + 1))
                    e.salu("s_barrier")
                    if G + 1 <= 13:
                        xread(xn, G + 1)
                    pieces = xdma(("X", G + 2)) if G + 2 <= 13 else []
                    pieces += issue()
                    if KVPF and (G == 0 or (1 <= G <= 10 and G % 2 == KVPF_PAR and KVPF >= 2)):
                        pieces.append(kvpf)
                    defer(pieces, SP1 if len(pieces) <= 5 else 2)
                    push_next()
            group([V_O + 8 * ct + 4 * cb for cb in range(NCB)], [xs + 4 * cb for cb in range(NCB)], G == 0, hooks)

    if KVPF:
        kvpf_setup()
    p1_frags()
    for _ in range(DPF):
        fs.issue_next()

    def push_p1():
        fs.push(("pre", next_rd_a))
        p1_frags()

    p1_step(0, lambda: dma_wq_pair(e, ("D", 3)), push_p1)

    def p1_body(i):
        G = 1 + 2 * i
        p1_step(G, lambda: dma_wq_pair(e, ("D", G + 3)), push_p1)
        p1_step(G + 1, lambda: dma_wq_pair(e, ("D", G + 4)), push_p1)

    e.loop("L_p1", 5, p1_body, f"s{S_CNT}")

    def kv_setup():
        e.salu(f"s_mul_i32 s{S_WM0A}, s{S_W}, {2 * 1056}")
        e.salu(f"s_mul_i32 s{S_WM0B}, s{S_W}, {2 * 1088}")
        e.salu(f"s_add_u32 s{S_WM0B}, s{S_WM0B}, s{S_SK}")
        e.salu(f"s_add_u32 s{S_WM0B}, s{S_WM0B}, {TILE}")
        e.salu(f"s_lshr_b32 s{S_OFFA}, s2, 4")
        e.salu(f"s_xor_b32 s{S_OFFA}, s{S_OFFA}, s2")
        e.salu(f"s_and_b32 s{S_OFFA}, s{S_OFFA}, 15")
        e.salu(f"s_lshl_b32 s{S_OFFA}, s{S_OFFA}, 14")
        e.salu(f"s_lshl_b32 s{S_OFFB}, s{S_W}, 11")
        e.salu(f"s_add_u32 s{S_OFFA}, s{S_OFFA}, s{S_OFFB}")
        e.salu(f"s_mov_b32 s{S_OFFB}, s{S_OFFA}")

    def iss14():
        kv_setup()
        return dma_kv_pair(e, ("D", 14), k=True, v=False)
    p1_step(11, iss14, push_p1)
    p1_step(12, lambda: dma_kv_pair(e, ("D", 15)), push_p1)

    def kv_patterns():
        a, b2 = V_T2, V_T3
        V(f"v_and_b32 v{a}, 15, v{L}", a, L)
        V(f"v_mul_u32_u24 v{a}, 1056, v{a}", a, a)
        V(f"v_lshrrev_b32 v{b2}, 4, v{L}", b2, L)
        V(f"v_lshl_add_u32 v{V_PATA}, v{b2}, 4, v{a}", V_PATA, b2, a)
        V(f"v_bfe_u32 v{a}, v{L}, 2, 2", a, L)
        V(f"v_lshl_add_u32 v{a}, v{b2}, 2, v{a}", a, b2, a)
        V(f"v_mul_u32_u24 v{a}, 1088, v{a}", a, a)
        V(f"v_and_b32 v{b2}, 1, v{b2}", b2, b2)
        V(f"v_lshl_add_u32 v{a}, v{b2}, 3, v{a}", a, b2, a)
        V(f"v_and_b32 v{b2}, 3, v{L}", b2, L)
        V(f"v_lshl_add_u32 v{a}, v{b2}, 4, v{a}", a, b2, a)
        V(f"v_add_u32 v{V_PATB}, {TILE}, v{a}", V_PATB, a)

    def k_frags():
        for ks in range(8):
            for t in range(2):
                fs.push(rd_128(e, V_RDA if t == 0 else V_RDC, ks * 64 + 512 * t))

    def v_frags():
        for dt in range(16):
            off = 64 * (dt >> 1) + 8 * (dt & 1)
            fs.push(rd_tr(e, V_RDB, off, off + 512))

    def next_rd_kv():
        adv_slot(e, S_RD)
        V(f"v_add_u32 v{V_RDA}, s{S_RD}, v{V_PATA}", V_RDA, V_PATA)
        V(f"v_xor_b32 v{V_RDC}, 16, v{V_RDA}", V_RDC, V_RDA)
        V(f"v_add_u32 v{V_RDB}, s{S_RD}, v{V_PATB}", V_RDB, V_PATB)

    def push_k0():
        def pre():
            kv_patterns()
            next_rd_kv()
        fs.push(("pre", pre))
        k_frags()

    p1_step(13, lambda: dma_kv_pair(e, ("D", 16)), push_k0)
    stamp(e, 2)

    def pack_pair(T, cb, scale=False):
        fl = []
        for tp in range(2):
            src = V_O + 8 * (2 * T + tp) + 4 * cb
            if scale:
                for i in range(4):
                    fl.append(lambda i=i, src=src: V(f"v_mul_f32 v{src + i}, v{src + i}, v{V_LSUM + cb}",
                                                     src + i, src + i, V_LSUM + cb))
            for h2 in range(2):
                d = V_Q + 32 * cb + 4 * T + 2 * tp + h2
                fl.append(lambda d=d, src=src, h2=h2: e.valu(
                    f"v_cvt_pk_bf16_f32 v{d}, v{src + 2 * h2}, v{src + 2 * h2 + 1}",
                    dst=[d], src=[src + 2 * h2, src + 2 * h2 + 1]))
        return fl

    for T in range(8):
        for cb in range(NCB):
            run(pack_pair(T, cb))
    for cb in range(NCB):
        V(f"v_mov_b32 v{V_LSUM + cb}, 0", V_LSUM + cb)

    def spread(fl, nslots):
        st = {"k": 0}

        def f(slot):
            tgt = (len(fl) * (slot + 1) + nslots - 1) // nslots
            while st["k"] < min(tgt, len(fl)):
                fl[st["k"]]()
                st["k"] += 1
        return f

    def qk_stage(sn, fl, mid=None):
        sp = spread(fl, 31)
        for ks in range(8):
            for t in range(2):
                def hooks(k, ks=ks, t=t):
                    slot = 4 * ks + 2 * t + k
                    sp(slot)
                    if mid is not None and slot == mid[0]:
                        mid[1]()
                group([sn + 8 * cb + 4 * t for cb in range(NCB)], [V_Q + 32 * cb + 4 * ks for cb in range(NCB)], ks == 0, hooks)

    def exp_fillers(sc):
        fl = []
        for cb in range(NCB):
            for p in range(4):
                a, b = sc + 8 * cb + 2 * p, sc + 8 * cb + 2 * p + 1
                nm, ls = V_NEGM + cb, V_LSUM + cb
                if PK_FMA:
                    sel = "op_sel_hi:[1,0,0]" if cb == 0 else "op_sel:[0,0,1] op_sel_hi:[1,0,1]"
                    fl.append(lambda a=a, sel=sel: e.valu(
                        f"v_pk_fma_f32 v[{a}:{a + 1}], v[{a}:{a + 1}], s[{S_C}:{S_C + 1}], v[{V_NEGM}:{V_NEGM + 1}] {sel}",
                        dst=[a, a + 1], src=[a, a + 1, V_NEGM, V_NEGM + 1]))
                else:
                    fl.append(lambda a=a, nm=nm: e.valu(f"v_fma_f32 v{a}, v{a}, s{S_C}, v{nm}", dst=[a], src=[a, nm]))
                    fl.append(lambda b=b, nm=nm: e.valu(f"v_fma_f32 v{b}, v{b}, s{S_C}, v{nm}", dst=[b], src=[b, nm]))
                fl.append(lambda a=a: e.valu(f"v_exp_f32 v{a}, v{a}", dst=[a], src=[a], trans=True))
                fl.append(lambda b=b: e.valu(f"v_exp_f32 v{b}, v{b}", dst=[b], src=[b], trans=True))
                fl.append(lambda a=a, ls=ls: e.valu(f"v_add_f32 v{ls}, v{ls}, v{a}", dst=[ls], src=[ls, a]))
                fl.append(lambda b=b, ls=ls: e.valu(f"v_add_f32 v{ls}, v{ls}, v{b}", dst=[ls], src=[ls, b]))
                d = sc + 8 * cb + p
                fl.append(lambda a=a, b=b, d=d: e.valu(f"v_cvt_pk_bf16_f32 v{d}, v{a}, v{b}", dst=[d], src=[a, b]))
        return fl

    def max_fillers(sn):
        fl = []
        for cb in range(NCB):
            s0 = sn + 8 * cb
            tm = V_TM + cb
            fl.append(lambda s0=s0, tm=tm: e.valu(f"v_max3_f32 v{tm}, v{s0}, v{s0 + 1}, v{s0 + 2}", dst=[tm], src=[s0, s0 + 1, s0 + 2]))
            fl.append(lambda s0=s0, tm=tm: e.valu(f"v_max3_f32 v{tm}, v{tm}, v{s0 + 3}, v{s0 + 4}", dst=[tm], src=[tm, s0 + 3, s0 + 4]))
            fl.append(lambda s0=s0, tm=tm: e.valu(f"v_max3_f32 v{tm}, v{tm}, v{s0 + 5}, v{s0 + 6}", dst=[tm], src=[tm, s0 + 5, s0 + 6]))
            fl.append(lambda s0=s0, tm=tm: e.valu(f"v_max_f32 v{tm}, v{tm}, v{s0 + 7}", dst=[tm], src=[tm, s0 + 7]))
        return fl

    def check_fillers():
        fl = []
        fl.append(lambda: e.valu(f"v_fma_f32 v{V_TMP}, v{V_TM}, s{S_C}, v{V_NEGM}", dst=[V_TMP], src=[V_TM, V_NEGM]))
        fl.append(lambda: e.valu(f"v_cmp_lt_f32 s[{S_T0 + 55}:{S_T0 + 56}], s{S_THR}, v{V_TMP}", dst=[], src=[V_TMP]))
        fl.append(lambda: e.valu(f"v_fma_f32 v{V_TMP}, v{V_TM + 1}, s{S_C}, v{V_NEGM + 1}", dst=[V_TMP], src=[V_TM + 1, V_NEGM + 1]))
        fl.append(lambda: e.valu(f"v_cmp_lt_f32 vcc, s{S_THR}, v{V_TMP}", dst=[], src=[V_TMP]))
        return fl

    def cross_g(op, reg, tmp):
        for sw in ("v_permlane16_swap_b32", "v_permlane32_swap_b32"):
            V(f"v_mov_b32 v{tmp}, v{reg}", tmp, reg)
            e.nop(2)
            e.valu(f"{sw} v{reg}, v{tmp}", dst=[reg, tmp], src=[reg, tmp])
            V(f"{op} v{reg}, v{reg}, v{tmp}", reg, reg, tmp)

    def push_kv():
        fs.push(("pre", next_rd_kv))
        k_frags()
        v_frags()

    def mid14():
        e.wait_vm(("D", 15))
        e.salu("s_barrier")
        defer(dma_kv_pair(e, ("D", 17)), SP2)
        push_kv()
    qk_stage(V_S0, [], mid=(BAR2, mid14))
    V(f"v_lshlrev_b32 v{V_T2}, 6, v{L}", V_T2, L)
    e.salu(f"s_mul_i32 s{S_T0}, s{S_B}, 28672")
    e.salu(f"s_lshl_b32 s{S_T1}, s{S_W}, 12")
    e.salu(f"s_add_u32 s{S_T0}, s{S_T0}, s{S_T1}")
    e.salu(f"s_lshl_b32 s{S_T1}, s{S_W}, 8")
    e.salu(f"s_add_u32 m0, s{S_T1}, {RING}")
    e.salu("s_nop 0")
    if PF_WO:
        e.raw(f"buffer_load_dword v{V_T2}, s[{S_WO}:{S_WO + 3}], s{S_T0} offen lds")
    run(max_fillers(V_S0))
    for cb in range(NCB):
        cross_g("v_max_f32", V_TM + cb, V_TMP)
        V(f"v_mul_f32 v{V_NEGM + cb}, s{S_NC}, v{V_TM + cb}", V_NEGM + cb, V_TM + cb)

    rare = []

    def p2_step(t, issue, push_next, tagname):
        G = 15 + t
        sc = V_S0 if t % 2 == 0 else V_S1
        sn = V_S1 if t % 2 == 0 else V_S0
        qk_stage(sn, exp_fillers(sc))
        mx = max_fillers(sn) + check_fillers()
        sp = spread(mx, 16)
        for dt in range(16):
            def hooks(k, dt=dt):
                slot = 2 * dt + k
                if slot == BAR2:
                    e.wait_vm(("D", G + 1))
                    e.salu("s_barrier")
                    defer(issue(), SP2)
                    push_next()
                if slot >= 10:
                    sp(slot - 10)
            group([V_O + 8 * dt + 4 * cb for cb in range(NCB)], [sc + 8 * cb for cb in range(NCB)], t == 0, hooks)
        e.salu(f"s_or_b64 vcc, vcc, s[{S_T0 + 55}:{S_T0 + 56}]")
        e.salu(f"s_cbranch_scc1 L_rare_{tagname}")
        e.label(f"L_back_{tagname}")
        rare.append(tagname)

    p2_step(0, lambda: dma_kv_pair(e, ("D", 18)), push_kv, "z")
    p2_step(1, lambda: dma_kv_pair(e, ("D", 19)), push_kv, "y")

    def p2_body(i):
        t = 2 + 2 * i
        p2_step(t, lambda: dma_kv_pair(e, ("D", 15 + t + 3)), push_kv, "a")
        p2_step(t + 1, lambda: dma_kv_pair(e, ("D", 15 + t + 4)), push_kv, "b")

    e.loop("L_p2", 5, p2_body, f"s{S_CNT}")
    rare[:] = ["z", "y", "a", "b"]
    p2_step(12, lambda: dma_kv_pair(e, ("D", 30), k=False, v=True), push_kv, "c")

    def wo_setup():
        a, b2 = V_T3, V_T2
        V(f"v_bfe_u32 v{a}, v{L}, 4, 1", a, L)
        V(f"v_lshlrev_b32 v{a}, 1, v{a}", a, a)
        V(f"v_and_b32 v{b2}, 7, v{L}", b2, L)
        V(f"v_xor_b32 v{a}, v{a}, v{b2}", a, a, b2)
        V(f"v_lshlrev_b32 v{a}, 4, v{a}", a, a)
        V(f"v_lshrrev_b32 v{b2}, 3, v{L}", b2, L)
        V(f"v_mul_u32_u24 v{b2}, 896, v{b2}", b2, b2)
        V(f"v_add_u32 v{V_DWO0}, v{a}, v{b2}", V_DWO0, a, b2)
        V(f"v_xor_b32 v{a}, 64, v{a}", a, a)
        V(f"v_add_u32 v{V_DWO1}, v{a}, v{b2}", V_DWO1, a, b2)
        e.salu(f"s_lshl_b32 s{S_WM0C}, s{S_W}, 11")
        e.salu(f"s_mul_i32 s{S_XOFF}, s{S_W}, {16 * 896}")

    def iss_wo0():
        wo_setup()
        return dma_wo_pair(e, ("D", 31), 0)
    p2_step(13, iss_wo0, push_kv, "d")

    def push_v_only():
        fs.push(("pre", next_rd_kv))
        v_frags()
    p2_step(14, lambda: dma_wo_pair(e, ("D", 32), 1), push_v_only, "e")

    RD3 = [V_RDA, V_RDB, V_RDC, V_RDD]

    def wo_patterns():
        a, b2 = V_T2, V_T3
        V(f"v_lshrrev_b32 v{a}, 4, v{L}", a, L)
        V(f"v_bfe_u32 v{b2}, v{L}, 2, 2", b2, L)
        V(f"v_lshl_add_u32 v{a}, v{a}, 3, v{b2}", a, a, b2)
        V(f"v_lshlrev_b32 v{a}, 7, v{a}", a, a)
        V(f"v_bfe_u32 v{b2}, v{L}, 3, 2", b2, L)
        e.salu(f"s_lshl_b32 s{S_T3}, s{S_HH}, 1")
        V(f"v_xor_b32 v{b2}, s{S_T3}, v{b2}", b2, b2)
        V(f"v_lshl_add_u32 v{a}, v{b2}, 5, v{a}", a, b2, a)
        V(f"v_and_b32 v{b2}, 3, v{L}", b2, L)
        V(f"v_lshl_add_u32 v{a}, v{b2}, 3, v{a}", a, b2, a)
        e.salu(f"s_mul_i32 s{S_T3}, s{S_HH}, {TILE}")
        V(f"v_add_u32 v{V_PATA}, s{S_T3}, v{a}", V_PATA, a)

    def next_rd3():
        adv_slot(e, S_RD)
        V(f"v_add_u32 v{RD3[0]}, s{S_RD}, v{V_PATA}", RD3[0], V_PATA)
        for u in range(1, 4):
            V(f"v_xor_b32 v{RD3[u]}, {32 * u}, v{RD3[0]}", RD3[u], RD3[0])

    ULORD = (2, 3, 0, 1)

    def p3_frags():
        for kk in range(4):
            for ul in ULORD:
                off = kk * 4096
                fs.push(rd_tr(e, RD3[ul], off, off + 512))

    def push_p3_first():
        def pre():
            wo_patterns()
            next_rd3()
        fs.push(("pre", pre))
        p3_frags()

    def push_p3():
        fs.push(("pre", next_rd3))
        p3_frags()

    sc = V_S1
    run(exp_fillers(sc))
    for cb in range(NCB):
        cross_g("v_add_f32", V_LSUM + cb, V_TMP)
        e.valu(f"v_rcp_f32 v{V_LSUM + cb}, v{V_LSUM + cb}", dst=[V_LSUM + cb], src=[V_LSUM + cb], trans=True)

    pend = []
    for dt in range(16):
        def hooks(k, dt=dt):
            slot = 2 * dt + k
            if slot == BAR2:
                e.wait_vm(("D", 31))
                e.salu("s_barrier")
                defer(dma_wo_pair(e, ("D", 33), 2), SP2)
                push_p3_first()
            if k == 1 and dt % 2 == 1 and dt >= 3:
                T = (dt - 3) // 2
                for cb in range(NCB):
                    pend.extend(pack_pair(T, cb, scale=True))
            for _ in range(6):
                if pend:
                    pend.pop(0)()
        group([V_O + 8 * dt + 4 * cb for cb in range(NCB)], [sc + 8 * cb for cb in range(NCB)], False, hooks)
    for cb in range(NCB):
        pend.extend(pack_pair(7, cb, scale=True))
    stamp(e, 3)
    stamp(e, 4)

    ACC = [V_S0, 0]
    V_R = 32
    V_PK = 48
    V_EXW = [56, 57, 58, 59]
    V_EXR = [60, 61, 62, 63]

    def ex_addr(dst, wreg):
        e.salu(f"s_lshl_b32 s{S_T0}, s{wreg}, 12")
        e.salu(f"s_add_u32 s{S_T0}, s{S_T0}, {RING}")
        e.salu(f"s_sub_u32 s{S_T1}, s{wreg}, 6")
        e.salu(f"s_mul_i32 s{S_T1}, s{S_T1}, {4 * TILE}")
        e.salu(f"s_add_u32 s{S_T1}, s{S_T1}, 16384")
        e.salu(f"s_cmp_ge_u32 s{wreg}, 6")
        e.salu(f"s_cselect_b32 s{S_T0}, s{S_T1}, s{S_T0}")
        e.salu(f"s_mov_b32 s{S_T1}, 1024")
        e.salu(f"s_cselect_b32 s{S_T1}, {TILE}, s{S_T1}")
        for i in range(4):
            V(f"v_add_u32 v{dst[i]}, s{S_T0}, v{V_DLIN}", dst[i], V_DLIN)
            if i < 3:
                e.salu(f"s_add_u32 s{S_T0}, s{S_T0}, s{S_T1}")

    def p3_setup():
        ex_addr(V_EXW, S_W)
        e.salu(f"s_xor_b32 s{S_XR}, s{S_W}, 4")
        ex_addr(V_EXR, S_XR)
        e.salu(f"s_mul_i32 s{S_POFF}, s{S_W}, {7 * 2048}")

    def send_fillers(s_):
        acc = ACC[s_ & 1] + 16
        return [(lambda i=i: e.ds(f"ds_write_b128 v{V_EXW[i]}, {rn(acc + 4 * i, 4)}", ("exw", s_),
                                  src=range(acc + 4 * i, acc + 4 * i + 4))) for i in range(4)]

    def recv_fillers(s_):
        return [(lambda i=i: e.ds(f"ds_read_b128 {rn(V_R + 4 * i, 4)}, v{V_EXR[i]}", ("exr", s_),
                                  dst=range(V_R + 4 * i, V_R + 4 * i + 4))) for i in range(4)]

    def fin_fillers(s_):
        acc = ACC[s_ & 1]
        fl = [lambda: None] * 6 + [lambda: e.wait_lds(("exr", s_))]
        for j in range(16):
            fl.append(lambda j=j: V(f"v_add_f32 v{V_R + j}, v{V_R + j}, v{acc + j}", V_R + j, V_R + j, acc + j))
        for ul in range(2):
            for cb in range(NCB):
                tb = V_R + 8 * ul + 4 * cb
                for h2 in range(2):
                    d = V_PK + 4 * cb + 2 * ul + h2
                    fl.append(lambda d=d, tb=tb, h2=h2: e.valu(f"v_cvt_pk_bf16_f32 v{d}, v{tb + 2 * h2}, v{tb + 2 * h2 + 1}",
                                                               dst=[d], src=[tb + 2 * h2, tb + 2 * h2 + 1]))

        def st():
            for cb in range(NCB):
                rg = V_PK + 4 * cb
                e.raw(f"buffer_store_dwordx4 {rn(rg, 4)}, v{V_DLIN}, s[{S_P}:{S_P + 3}], s{S_POFF} offen offset:{cb * 1024} sc1")
            e.salu(f"s_add_u32 s{S_POFF}, s{S_POFF}, 2048")
            e.nop(1)
        fl.append(st)
        return fl

    def p3_step(p, issue, push, extra=None):
        G = 31 + p
        s_, ip = p >> 1, p & 1
        acc = ACC[s_ & 1]
        ext = list(extra) if extra else []
        pre = send_fillers(s_ - 1) if (ip == 0 and s_ >= 1) else []
        post = []
        slot = [0]
        for kk in range(4):
            for ul in ULORD:
                def hooks(k):
                    sl = slot[0]
                    slot[0] += 1
                    if sl >= 2:
                        for _ in range(3):
                            if pre:
                                pre.pop(0)()
                            elif ext:
                                ext.pop(0)()
                                if ext:
                                    ext.pop(0)()
                            elif post:
                                post.pop(0)()
                    if sl == BAR3:
                        assert not pre
                        if ip == 0 and s_ >= 1:
                            e.wait_lds(("exw", s_ - 1))
                        e.wait_vm(("D", G + 1))
                        e.salu("s_barrier")
                        if ip == 0 and s_ >= 1:
                            post.extend(recv_fillers(s_ - 1) + fin_fillers(s_ - 1))
                        defer(issue(), SP3)
                        if push:
                            push_p3()
                group([acc + 8 * ul + 4 * cb for cb in range(NCB)],
                      [V_Q + 32 * cb + 4 * (4 * ip + kk) for cb in range(NCB)], ip == 0 and kk == 0, hooks)
        assert not post and not pre and not ext, (len(post), len(pre), len(ext))

    p3_setup()

    def iss3(p):
        return (lambda: dma_wo_pair(e, ("D", 31 + p), p)) if p <= 13 else (lambda: [])

    p3_step(0, iss3(3), True, extra=pend)
    p3_step(1, iss3(4), True)

    def p3_body(i):
        p = 2 + 4 * i
        for d in range(4):
            p3_step(p + d, iss3(p + d + 3), True)

    e.loop("L_p3", 2, p3_body, f"s{S_CNT}")
    p3_step(10, iss3(13), True)
    p3_step(11, iss3(14), True)
    p3_step(12, iss3(15), True)
    p3_step(13, iss3(16), False)
    run(send_fillers(6))
    e.wait_lds(("exw", 6))
    e.salu("s_barrier")
    run(recv_fillers(6))
    run(fin_fillers(6))
    stamp(e, 5)
    stamp_flush(e, 8)
    e.label("L_attn_exit")
    e.salu("s_endpgm")

    for tg in rare:
        e.label(f"L_rare_{tg}")
        e.raw("s_nop 15", 16)
        for cb in range(NCB):
            tm, nm, ls = V_TM + cb, V_NEGM + cb, V_LSUM + cb
            for sw in ("v_permlane16_swap_b32", "v_permlane32_swap_b32"):
                e.raw(f"v_mov_b32 v{V_TMP}, v{tm}")
                e.raw("s_nop 1", 2)
                e.raw(f"{sw} v{tm}, v{V_TMP}")
                e.raw(f"v_max_f32 v{tm}, v{tm}, v{V_TMP}")
            e.raw(f"v_mul_f32 v{tm}, s{S_NC}, v{tm}")
            e.raw(f"v_min_f32 v{V_TMP}, v{tm}, v{nm}")
            e.raw(f"v_sub_f32 v{tm}, v{V_TMP}, v{nm}")
            e.raw(f"v_exp_f32 v{tm}, v{tm}")
            e.raw(f"v_mov_b32 v{nm}, v{V_TMP}")
            e.raw("s_nop 0")
            e.raw(f"v_mul_f32 v{ls}, v{ls}, v{tm}")
        for dt in range(16):
            for cb in range(NCB):
                for i in range(4):
                    a = V_O + 8 * dt + 4 * cb + i
                    e.raw(f"v_mul_f32 v{a}, v{a}, v{V_TM + cb}")
        e.raw("s_nop 1", 2)
        e.raw(f"s_branch L_back_{tg}")


def gen_reduce(e):
    e.label("reduce_kernel")
    e.salu("s_cmp_ge_u32 s2, 896")
    e.salu("s_cbranch_scc1 L_red_exit")
    e.salu("s_load_dwordx2 s[4:5], s[0:1], 80")
    e.salu("s_load_dwordx2 s[6:7], s[0:1], 96")
    e.salu("s_mul_hi_u32 s8, s2, 0x924924a")
    e.salu("s_mul_i32 s9, s8, 28")
    e.salu("s_sub_u32 s9, s2, s9")
    e.raw("v_lshlrev_b32 v4, 4, v0")
    e.salu("s_lshl_b32 s26, s9, 12")
    e.salu("s_lshl_b32 s9, s9, 1")
    e.raw("v_lshrrev_b32 v3, 7, v0")
    e.raw("v_add_u32 v3, s9, v3")
    e.salu("s_waitcnt lgkmcnt(0)")
    e.salu("s_mul_i32 s10, s8, 917504")
    e.salu("s_add_u32 s6, s6, s10")
    e.salu("s_addc_u32 s7, s7, 0")
    e.salu("s_mov_b32 s12, s6")
    e.salu("s_and_b32 s13, s7, 0xffff")
    e.salu("s_mov_b32 s14, 917504")
    e.salu("s_mov_b32 s15, 0x00020000")
    e.salu("s_mov_b32 s16, s4")
    e.salu("s_and_b32 s17, s5, 0xffff")
    e.salu("s_mov_b32 s18, 3670016")
    e.salu("s_mov_b32 s19, 0x00020000")
    for h in range(8):
        e.salu(f"s_add_u32 s20, s26, {h * 114688}")
        e.raw(f"buffer_load_dwordx4 v[{24 + 4 * h}:{27 + 4 * h}], v4, s[12:15], s20 offen")
    e.raw("v_mul_u32_u24 v5, 37, v3")
    e.raw("v_lshrrev_b32 v5, 8, v5")
    e.raw("v_mul_u32_u24 v6, 7, v5")
    e.raw("v_sub_u32 v6, v3, v6")
    e.raw("v_and_b32 v8, 15, v0")
    e.raw("v_bfe_u32 v9, v0, 6, 1")
    e.raw("v_lshl_add_u32 v8, v9, 4, v8")
    e.raw("v_and_b32 v9, 3, v5")
    e.raw("v_lshl_add_u32 v8, v9, 5, v8")
    e.raw("v_mul_u32_u24 v8, 1792, v8")
    e.raw("v_bfe_u32 v9, v0, 4, 2")
    e.raw("v_lshl_add_u32 v8, v9, 3, v8")
    e.raw("v_lshrrev_b32 v9, 2, v5")
    e.raw("v_lshl_add_u32 v8, v9, 6, v8")
    e.raw("v_lshl_add_u32 v8, v6, 7, v8")
    e.salu("s_and_b32 s21, s8, 15")
    e.salu("s_lshr_b32 s22, s8, 4")
    e.salu("s_mul_i32 s21, s21, 229376")
    e.salu("s_mul_i32 s22, s22, 896")
    e.salu("s_add_u32 s21, s21, s22")
    e.salu("s_mov_b32 s23, 0xffff0000")
    for h in range(8):
        e.salu(f"s_waitcnt vmcnt({7 - h})")
        for i in range(4):
            r = 24 + 4 * h + i
            if h == 0:
                e.raw(f"v_lshlrev_b32 v{16 + 2 * i}, 16, v{r}")
                e.raw(f"v_and_b32 v{17 + 2 * i}, s23, v{r}")
            else:
                e.raw(f"v_lshlrev_b32 v11, 16, v{r}")
                e.raw(f"v_and_b32 v12, s23, v{r}")
                e.raw(f"v_add_f32 v{16 + 2 * i}, v{16 + 2 * i}, v11")
                e.raw(f"v_add_f32 v{17 + 2 * i}, v{17 + 2 * i}, v12")
    for i in range(4):
        e.raw(f"v_cvt_pk_bf16_f32 v{12 + i}, v{16 + 2 * i}, v{17 + 2 * i}")
    e.raw("buffer_store_dwordx2 v[12:13], v8, s[16:19], s21 offen")
    e.raw("buffer_store_dwordx2 v[14:15], v8, s[16:19], s21 offen offset:32")
    if STAMPS_DBG:
        e.salu("s_cmp_lg_u32 s2, 0")
        e.salu("s_cbranch_scc1 L_red_exit")
        e.salu("s_load_dwordx4 s[4:7], s[0:1], 88")
        e.salu("s_waitcnt lgkmcnt(0)")
        e.salu("s_add_u32 s6, s6, 0x8000000")
        e.salu("s_addc_u32 s7, s7, 0")
        e.salu("s_mov_b32 s12, s6")
        e.salu("s_and_b32 s13, s7, 0xffff")
        e.salu("s_mov_b32 s14, 64")
        e.salu("s_mov_b32 s16, s4")
        e.salu("s_and_b32 s17, s5, 0xffff")
        e.salu("s_mov_b32 s18, 64")
        e.raw("v_lshlrev_b32 v1, 2, v0")
        e.raw("buffer_load_dword v2, v1, s[12:15], 0 offen")
        e.raw("s_waitcnt vmcnt(0)")
        e.raw("buffer_store_dword v2, v1, s[16:19], 0 offen")
    e.label("L_red_exit")
    e.salu("s_endpgm")


def main():
    ref = open(OUT + ".ref").read().splitlines()
    out = [l for l in ref if l.startswith(";") and "@launch" not in l]
    out.append(f"; @launch kernel=attn_kernel grid=(256,1,1) block=(512,1,1) lds={LDS_BYTES}")
    out.append("; @launch kernel=reduce_kernel grid=(896,1,1) block=(256,1,1) lds=0")
    out.append('.amdgcn_target "amdgcn-amd-amdhsa--gfx950"')
    out.append(".text")
    e = Em()
    out += [".globl attn_kernel", ".p2align 8", ".type attn_kernel,@function"]
    gen_attn(e)
    out += e.lines
    e2 = Em()
    out += [".globl reduce_kernel", ".p2align 8", ".type reduce_kernel,@function"]
    gen_reduce(e2)
    out += e2.lines
    out.append('.section .rodata,"a"')
    for k, vg, ao, sg in (("attn_kernel", 256, 256, 102), ("reduce_kernel", 56, 56, 32)):
        out += [".p2align 6", f".amdhsa_kernel {k}",
                f"  .amdhsa_next_free_vgpr {vg}",
                f"  .amdhsa_next_free_sgpr {sg}",
                f"  .amdhsa_accum_offset {ao}",
                "  .amdhsa_group_segment_fixed_size 0",
                "  .amdhsa_kernarg_size 104",
                "  .amdhsa_user_sgpr_count 2",
                "  .amdhsa_user_sgpr_kernarg_segment_ptr 1",
                "  .amdhsa_system_sgpr_workgroup_id_x 1",
                ".end_amdhsa_kernel"]
    open(OUTFILE, "w").write("\n".join(out) + "\n")
    print("wrote", OUTFILE, len(out), "lines")


if __name__ == "__main__":
    main()
```

```python
import math
import os
import struct
import sys

NAME = "concat_heads__gqa_block_cached__gqa_block_cached__near_ridge"
OUT = f"cdna_kernels/{NAME}.s"
OUTFILE = sys.argv[1] if len(sys.argv) > 1 else OUT

STAMPS = os.environ.get("STAMPS", "0") in ("1", "2")
STAMPS_DBG = os.environ.get("STAMPS", "0") == "2"
TILE = 17408
PAIR = 2 * TILE
RING = 4 * PAIR
LDS_BYTES = 160 * 1024
NB = 4
KVPF_POL = " " + os.environ.get("KVPF_POL", "") if os.environ.get("KVPF_POL") else ""
KVPF_LATE = int(os.environ.get("KVPF_LATE", "0"))
KVPF = int(os.environ.get("KVPF", "0"))
KVPF_T0 = int(os.environ.get("KVPF_T0", "2"))
KVPF_PAR = int(os.environ.get("KVPF_PAR", "0"))
PF_WQ = os.environ.get("PF_WQ", "1") == "1"
PF_WO = os.environ.get("PF_WO", "1") == "1"
PF_X = os.environ.get("PF_X", "0") == "1"
PK_FMA = os.environ.get("PK_FMA", "0") == "1"
PAIRW = os.environ.get("PAIRW", "0") == "1"
DPF = int(os.environ.get("DPF", "3"))
SP1 = int(os.environ.get("SP1", "3"))
SP2 = int(os.environ.get("SP2", "5"))
SP3 = int(os.environ.get("SP3", "4"))
BAR1 = int(os.environ.get("BAR1", "15"))
BAR2 = int(os.environ.get("BAR2", "7"))
BAR3 = int(os.environ.get("BAR3", "11"))
AG = 256


def rn(r, n=1):
    if r >= AG:
        r -= AG
        return f"a{r}" if n == 1 else f"a[{r}:{r + n - 1}]"
    return f"v{r}" if n == 1 else f"v[{r}:{r + n - 1}]"


class Em:
    def __init__(self):
        self.lines = []
        self.pos = 0
        self.mfma_w = {}
        self.mfma_c = {}
        self.valu_w = {}
        self.trans_w = {}
        self.lds_q = []
        self.vm_q = []
        self.capture = None

    def raw(self, s, slots=1):
        (self.capture if self.capture is not None else self.lines).append("    " + s)
        self.pos += slots

    def label(self, s):
        (self.capture if self.capture is not None else self.lines).append(s + ":")

    def nop(self, n):
        while n > 0:
            k = min(n, 16)
            self.raw(f"s_nop {k - 1}", k)
            n -= k

    def _need(self, table, regs, dist):
        need = 0
        for r in regs:
            p = table.get(r)
            if p is not None:
                need = max(need, dist - (self.pos - p - 1))
        return need

    def salu(self, s):
        self.raw(s)

    def valu(self, s, dst=(), src=(), trans=False):
        n = self._need(self.mfma_w, list(dst) + list(src), 8)
        n = max(n, self._need(self.mfma_c, dst, 3))
        if not trans:
            n = max(n, self._need(self.trans_w, src, 1))
        if n > 0:
            self.nop(n)
        p = self.pos
        self.raw(s)
        for r in dst:
            self.valu_w[r] = p
            if trans:
                self.trans_w[r] = p
            else:
                self.trans_w.pop(r, None)

    def mfma(self, d, a, b, c):
        D = list(range(d, d + 4))
        A = list(range(a, a + 4))
        B = list(range(b, b + 4))
        C = list(range(c, c + 4)) if c is not None else []
        n = self._need(self.valu_w, A + B + C, 2)
        n = max(n, self._need(self.mfma_w, A + B, 8))
        assert c is None or c == d
        if n > 0:
            self.nop(n)
        p = self.pos
        cs = rn(c, 4) if c is not None else "0"
        self.raw(f"v_mfma_f32_16x16x32_bf16 {rn(d, 4)}, {rn(a, 4)}, {rn(b, 4)}, {cs}")
        for r in D:
            self.mfma_w[r] = p
        for r in C:
            self.mfma_c[r] = p

    def ds(self, s, tag, dst=(), src=()):
        n = self._need(self.mfma_w, list(dst) + list(src), 8)
        if n > 0:
            self.nop(n)
        self.raw(s)
        self.lds_q.append(tag)
        assert len(self.lds_q) <= 15, "too many LDS ops outstanding"

    def vmem(self, s, tag, dst=(), src=()):
        n = self._need(self.mfma_w, list(dst) + list(src), 8)
        if n > 0:
            self.nop(n)
        self.raw(s)
        self.vm_q.append(tag)
        assert len(self.vm_q) <= 63

    def wait_lds(self, tag):
        idx = max((i for i, t in enumerate(self.lds_q) if t == tag), default=-1)
        if idx < 0:
            return
        self.raw(f"s_waitcnt lgkmcnt({len(self.lds_q) - 1 - idx})")
        self.lds_q = self.lds_q[idx + 1:]

    def wait_vm(self, tag):
        idx = max((i for i, t in enumerate(self.vm_q) if t == tag), default=-1)
        if idx < 0:
            return
        self.raw(f"s_waitcnt vmcnt({len(self.vm_q) - 1 - idx})")
        self.vm_q = self.vm_q[idx + 1:]

    def loop(self, name, n, body, counter):
        assert self.capture is None
        self.salu(f"s_mov_b32 {counter}, {n}")
        texts = []
        for i in range(n):
            self.capture = []
            body(i)
            self.salu(f"s_sub_u32 {counter}, {counter}, 1")
            self.salu(f"s_cmp_lg_u32 {counter}, 0")
            self.salu(f"s_cbranch_scc1 {name}")
            texts.append(self.capture)
            self.capture = None
        for i in range(1, n):
            if texts[i] != texts[0]:
                for a, b in zip(texts[0], texts[i]):
                    if a != b:
                        print("LOOP MISMATCH", name, i, a, "|", b)
                        break
                raise SystemExit(f"loop {name}: iteration {i} differs from iteration 0")
        self.label(name)
        self.lines.extend(texts[0])


S_X, S_K, S_V, S_WQ, S_WO, S_P = 8, 12, 16, 20, 24, 28
S_W, S_HH, S_QH, S_RD, S_DM = 32, 33, 34, 35, 36
S_T0, S_T1, S_T2, S_T3 = 37, 38, 39, 40
S_CNT, S_C, S_NC, S_THR = 41, 42, 43, 44
S_OFFA, S_OFFB, S_XOFF = 45, 46, 47
S_WM0A, S_WM0B, S_WM0C = 48, 49, 50
S_POFF, S_XW, S_XR, S_XD = 51, 52, 53, 54
S_D0, S_D1, S_B, S_SK, S_PFO, S_PFS = 55, 78, 79, 90, 91, 60
S_KA = 56
S_ST = 80

V_O = 0
V_Q = 128
V_S0, V_S1 = 192, 208
V_FR = 224
V_PATA, V_PATB, V_RDA, V_RDB, V_RDC = 240, 241, 242, 243, 244
V_RDD = V_PATB
V_DLIN, V_DK, V_DX = 245, 246, 247
V_DWO0, V_DWO1 = V_DX, V_DK
V_NEGM, V_LSUM, V_TM = 248, 250, 252
V_TMP, V_LANE = 254, 255
V_T2, V_T3 = V_TM, V_TM + 1
V_PF = V_TMP
NCB = 2


def stamp(e, i):
    if not STAMPS:
        return
    e.raw("s_memtime s[96:97]")
    e.raw("s_waitcnt lgkmcnt(0)")
    e.lds_q = []
    e.salu(f"s_mov_b32 s{S_ST + i}, s96")
    if i in (0, 5):
        e.raw("s_memrealtime s[96:97]")
        e.raw("s_waitcnt lgkmcnt(0)")
        e.salu(f"s_mov_b32 s{S_ST + 6 + (i == 5)}, s96")


def stamp_flush(e, n):
    if not STAMPS:
        return
    if STAMPS_DBG:
        e.salu(f"s_cmp_lg_u32 s{S_W}, 0")
        e.salu("s_cbranch_scc1 L_attn_exit")
        e.salu("s_cmp_eq_u32 s2, 0")
        e.salu("s_cselect_b32 s94, 0, 32")
        e.salu("s_cbranch_scc1 L_st_go")
        e.salu("s_cmp_lg_u32 s2, 133")
        e.salu("s_cbranch_scc1 L_attn_exit")
        e.label("L_st_go")
        e.salu("s_load_dwordx2 s[96:97], s[0:1], 96")
        e.salu("s_waitcnt lgkmcnt(0)")
        e.salu("s_add_u32 s96, s96, 0x8000000")
        e.salu("s_addc_u32 s97, s97, 0")
        e.salu("s_mov_b32 s8, s96")
        e.salu("s_and_b32 s9, s97, 0xffff")
        e.salu("s_mov_b32 s10, 256")
        e.salu("s_mov_b32 s11, 0x00020000")
        e.raw("s_nop 15", 16)
        e.raw("v_mov_b32 v1, 0")
        for i in range(6):
            a, b = (S_ST + i, S_ST + i + 1) if i < 5 else (S_ST + 6, S_ST + 7)
            e.salu(f"s_sub_u32 s95, s{b}, s{a}")
            e.raw("v_mov_b32 v0, s95")
            e.raw(f"buffer_store_dword v0, v1, s[8:11], s94 offen offset:{4 * i}")
            e.raw("s_waitcnt vmcnt(0)")
        return
    e.salu("s_load_dwordx2 s[96:97], s[0:1], 96")
    e.salu("s_waitcnt lgkmcnt(0)")
    e.salu("s_add_u32 s96, s96, 0x8000000")
    e.salu("s_addc_u32 s97, s97, 0")
    e.salu("s_mov_b32 s8, s96")
    e.salu("s_and_b32 s9, s97, 0xffff")
    e.salu("s_mov_b32 s10, 0x100000")
    e.salu("s_mov_b32 s11, 0x00020000")
    e.salu("s_lshl_b32 s96, s2, 3")
    e.salu(f"s_add_u32 s96, s96, s{S_W}")
    e.salu("s_lshl_b32 s96, s96, 6")
    e.raw("s_nop 15", 16)
    e.raw("v_mov_b32 v1, 0")
    for i in range(n):
        e.raw(f"v_mov_b32 v0, s{S_ST + i}")
        e.raw(f"buffer_store_dword v0, v1, s[8:11], s96 offen offset:{4 * i}")
        e.raw("s_waitcnt vmcnt(0)")


def srd(e, dst, lo, hi, size):
    e.salu(f"s_mov_b32 s{dst}, s{lo}")
    e.salu(f"s_and_b32 s{dst + 1}, s{hi}, 0xffff")
    e.salu(f"s_mov_b32 s{dst + 2}, {size}")
    e.salu(f"s_mov_b32 s{dst + 3}, 0x00020000")


def adv_slot(e, s):
    e.salu(f"s_add_u32 s{s}, s{s}, {PAIR}")
    e.salu(f"s_cmp_ge_u32 s{s}, {RING}")
    e.salu(f"s_cselect_b32 s{S_T3}, {RING}, 0")
    e.salu(f"s_sub_u32 s{s}, s{s}, s{S_T3}")


NODMA = os.environ.get("NODMA", "0") == "1"
NODMA_ON = [False]


def dma(e, voff, sr, soff, m0expr, tag, off=0):
    if NODMA and NODMA_ON[0]:
        return
    sg, imm = m0expr
    e.salu(f"s_add_u32 m0, s{sg}, {imm}")
    e.salu("s_nop 0")
    o = f" offset:{off}" if off else ""
    pol = " nt" if sr in (S_K, S_V) else ""
    e.vmem(f"buffer_load_dwordx4 v{voff}, s[{sr}:{sr + 3}], s{soff} offen{o}{pol} lds", tag)


def dma_wq_pair(e, tag):
    e.salu(f"s_add_u32 s{S_D0}, s{S_DM}, s{S_WM0A}")
    adv_slot(e, S_DM)
    out = []
    for i in range(4):
        def f(i=i):
            e.salu(f"s_add_u32 s{S_T1}, s{S_OFFA}, {i * 8192}")
            dma(e, V_DLIN, S_WQ, S_T1, (S_D0, i * 1088), tag)
            if i == 3:
                e.salu(f"s_add_u32 s{S_OFFA}, s{S_OFFA}, {32 * 8192}")
        out.append(f)
    return out


def dma_kv_pair(e, tag, k=True, v=True):
    e.salu(f"s_add_u32 s{S_D0}, s{S_DM}, s{S_WM0A}")
    e.salu(f"s_add_u32 s{S_D1}, s{S_DM}, s{S_WM0B}")
    adv_slot(e, S_DM)
    out = []
    if k:
        for i in range(2):
            def f(i=i):
                dma(e, V_DK, S_K, S_OFFA, (S_D0, 32 * i), tag, off=1024 * i)
                if i == 1:
                    e.salu(f"s_add_u32 s{S_OFFA}, s{S_OFFA}, 16384")
                    e.salu(f"s_and_b32 s{S_OFFA}, s{S_OFFA}, 0x3ffff")
            out.append(f)
    if v:
        for i in range(2):
            def f(i=i):
                dma(e, V_DLIN, S_V, S_OFFB, (S_D1, 64 * i), tag, off=1024 * i)
                if i == 1:
                    e.salu(f"s_add_u32 s{S_OFFB}, s{S_OFFB}, 16384")
                    e.salu(f"s_and_b32 s{S_OFFB}, s{S_OFFB}, 0x3ffff")
            out.append(f)
    return out


def dma_wo_pair(e, tag, p):
    e.salu(f"s_add_u32 s{S_D0}, s{S_DM}, s{S_WM0C}")
    adv_slot(e, S_DM)
    out = []
    ip = p & 1
    for hd in range(2):
        for i in range(2):
            def f(hd=hd, i=i):
                e.salu(f"s_add_u32 s{S_T1}, s{S_XOFF}, {(256 * hd + 128 * ip + 8 * i) * 896}")
                dma(e, V_DWO1 if i & 1 else V_DWO0, S_WO, S_T1, (S_D0, hd * TILE + i * 1024), tag)
                if hd == 1 and i == 1 and ip == 1:
                    e.salu(f"s_add_u32 s{S_XOFF}, s{S_XOFF}, 128")
            out.append(f)
    return out


class FragStream:
    def __init__(self, e):
        self.e = e
        self.issued = 0
        self.queue = []

    def buf(self, i):
        return V_FR + 4 * (i % NB)

    def push(self, fn):
        self.queue.append(fn)

    def issue_next(self):
        while self.queue:
            fn = self.queue.pop(0)
            if fn[0] == "pre":
                fn[1]()
                continue
            i = self.issued
            fn[1](self.buf(i), ("fr", i))
            self.issued += 1
            return True
        return False


def rd_tr(e, areg, off0, off1):
    def f(dst, tag):
        e.ds(f"ds_read_b64_tr_b16 {rn(dst, 2)}, v{areg} offset:{off0}", tag, dst=range(dst, dst + 2))
        e.ds(f"ds_read_b64_tr_b16 {rn(dst + 2, 2)}, v{areg} offset:{off1}", tag, dst=range(dst + 2, dst + 4))
    return ("rd", f)


def rd_128(e, areg, off):
    def f(dst, tag):
        e.ds(f"ds_read_b128 {rn(dst, 4)}, v{areg} offset:{off}", tag, dst=range(dst, dst + 4))
    return ("rd", f)


def gen_attn(e):
    e.label("attn_kernel")
    e.salu("s_cmp_ge_u32 s2, 256")
    e.salu("s_cbranch_scc1 L_attn_exit")
    e.salu(f"s_load_dwordx16 s[{S_KA}:{S_KA + 15}], s[0:1], 0")
    e.salu(f"s_load_dwordx4 s[{S_KA + 16}:{S_KA + 19}], s[0:1], 64")
    e.salu(f"s_load_dwordx2 s[{S_KA + 20}:{S_KA + 21}], s[0:1], 96")
    e.salu(f"s_and_b32 s{S_T0}, s2, 7")
    e.salu(f"s_lshr_b32 s{S_T1}, s2, 3")
    e.salu(f"s_and_b32 s{S_T2}, s{S_T1}, 15")
    e.salu(f"s_mov_b32 s{S_B}, s{S_T2}")
    L = V_LANE

    def V(s, d, *src):
        e.valu(s, dst=[d], src=list(src))

    V("v_lshrrev_b32 v1, 6, v0", 1, 0)
    V(f"v_and_b32 v{L}, 63, v0", L, 0)
    e.salu("s_nop 0")
    e.raw(f"v_readfirstlane_b32 s{S_W}, v1")
    e.salu("s_nop 3")
    e.salu(f"s_lshr_b32 s{S_HH}, s{S_W}, 2")
    e.salu(f"s_and_b32 s{S_QH}, s{S_W}, 3")
    e.salu(f"s_bfe_u32 s{S_SK}, s{S_W}, {(1 << 16) | 1}")
    e.salu(f"s_lshl_b32 s{S_SK}, s{S_SK}, 3")
    t1, t2, t3 = 1, 2, 3
    V(f"v_lshlrev_b32 v{V_DLIN}, 4, v{L}", V_DLIN, L)
    V(f"v_bfe_u32 v{t1}, v{L}, 4, 2", t1, L)
    V(f"v_sub_u32 v{t1}, 4, v{t1}", t1, t1)
    V(f"v_and_b32 v{t1}, 3, v{t1}", t1, t1)
    V(f"v_and_b32 v{t2}, 3, v{L}", t2, L)
    V(f"v_xor_b32 v{t1}, v{t1}, v{t2}", t1, t1, t2)
    V(f"v_lshlrev_b32 v{t1}, 4, v{t1}", t1, t1)
    V(f"v_lshrrev_b32 v{t2}, 2, v{L}", t2, L)
    V(f"v_mul_u32_u24 v{t2}, 896, v{t2}", t2, t2)
    V(f"v_add_u32 v{V_DX}, v{t1}, v{t2}", V_DX, t1, t2)
    e.salu(f"s_mul_i32 s{S_WM0A}, s{S_W}, {4 * 1088}")
    e.salu(f"s_add_u32 s{S_WM0A}, s{S_WM0A}, s{S_SK}")
    e.salu(f"s_lshl_b32 s{S_OFFA}, s{S_W}, 15")
    e.salu(f"s_mov_b32 s{S_DM}, 0")
    e.salu(f"s_mov_b32 s{S_RD}, 0")
    e.salu(f"s_mul_i32 s{S_XOFF}, s{S_W}, {16 * 896}")
    e.salu(f"s_lshl_b32 s{S_XW}, s{S_W}, 10")
    e.salu(f"s_add_u32 s{S_XW}, s{S_XW}, {RING}")
    e.salu(f"s_mov_b32 s{S_XR}, 0")
    e.salu(f"s_mov_b32 s{S_XD}, 0")
    e.salu("s_waitcnt lgkmcnt(0)")
    e.salu(f"s_cmp_ge_u32 s{S_T1}, 16")
    for i in range(10):
        e.salu(f"s_cselect_b32 s{S_KA + i}, s{S_KA + 10 + i}, s{S_KA + i}")
    e.salu(f"s_lshl_b32 s{S_T3}, s{S_T0}, 10")
    e.salu(f"s_add_u32 s{S_KA + 6}, s{S_KA + 6}, s{S_T3}")
    e.salu(f"s_addc_u32 s{S_KA + 7}, s{S_KA + 7}, 0")
    srd(e, S_WQ, S_KA + 6, S_KA + 7, 448 * 8192)
    e.salu(f"s_sub_u32 s{S_WQ + 2}, s{S_WQ + 2}, s{S_T3}")
    e.salu(f"s_mul_i32 s{S_T3}, s{S_T2}, 114688")
    e.salu(f"s_add_u32 s{S_KA}, s{S_KA}, s{S_T3}")
    e.salu(f"s_addc_u32 s{S_KA + 1}, s{S_KA + 1}, 0")
    srd(e, S_X, S_KA, S_KA + 1, 114688)
    e.salu(f"s_lshl_b32 s{S_T3}, s{S_T2}, 3")
    e.salu(f"s_add_u32 s{S_T3}, s{S_T3}, s{S_T0}")
    e.salu(f"s_lshl_b32 s{S_T3}, s{S_T3}, 18")
    e.salu(f"s_add_u32 s{S_KA + 2}, s{S_KA + 2}, s{S_T3}")
    e.salu(f"s_addc_u32 s{S_KA + 3}, s{S_KA + 3}, 0")
    srd(e, S_K, S_KA + 2, S_KA + 3, 262144)
    e.salu(f"s_add_u32 s{S_KA + 4}, s{S_KA + 4}, s{S_T3}")
    e.salu(f"s_addc_u32 s{S_KA + 5}, s{S_KA + 5}, 0")
    srd(e, S_V, S_KA + 4, S_KA + 5, 262144)
    e.salu(f"s_mul_i32 s{S_T3}, s{S_T0}, 458752")
    e.salu(f"s_add_u32 s{S_KA + 8}, s{S_KA + 8}, s{S_T3}")
    e.salu(f"s_addc_u32 s{S_KA + 9}, s{S_KA + 9}, 0")
    srd(e, S_WO, S_KA + 8, S_KA + 9, 458752)
    e.salu(f"s_mul_i32 s{S_T3}, s2, 114688")
    e.salu(f"s_add_u32 s{S_KA + 20}, s{S_KA + 20}, s{S_T3}")
    e.salu(f"s_addc_u32 s{S_KA + 21}, s{S_KA + 21}, 0")
    srd(e, S_P, S_KA + 20, S_KA + 21, 114688)
    stamp(e, 0)

    def adv_x(sr):
        e.salu(f"s_add_u32 s{sr}, s{sr}, 8192")
        e.salu(f"s_cmp_ge_u32 s{sr}, 24576")
        e.salu(f"s_cselect_b32 s{sr}, 0, s{sr}")

    def xdma(tag):
        def f():
            e.salu(f"s_add_u32 s{S_T0}, s{S_XW}, s{S_XD}")
            dma(e, V_DX, S_X, S_XOFF, (S_T0, 0), tag)
            e.salu(f"s_add_u32 s{S_XOFF}, s{S_XOFF}, 64")
            adv_x(S_XD)
        return [f]

    def run(lst):
        for f in lst:
            f()

    run(dma_wq_pair(e, ("D", 0)))
    run(xdma(("X", 0)))
    run(dma_wq_pair(e, ("D", 1)))
    run(xdma(("X", 1)))
    run(dma_wq_pair(e, ("D", 2)))
    if NODMA:
        run(dma_wq_pair(e, ("D", 99)))
        run(xdma(("X", 99)))
        e.raw("s_waitcnt vmcnt(0)")
        e.vm_q = []
        NODMA_ON[0] = True
    V(f"v_lshrrev_b32 v{t1}, 4, v{L}", t1, L)
    V(f"v_lshlrev_b32 v{t1}, 13, v{t1}", t1, t1)
    V(f"v_and_b32 v{t2}, 15, v{L}", t2, L)
    V(f"v_lshl_add_u32 v{t1}, v{t2}, 6, v{t1}", t1, t2, t1)
    e.salu(f"s_mul_i32 s{S_T0}, s{S_B}, 28")
    e.salu(f"s_lshl_b32 s{S_T1}, s{S_W}, 2")
    e.salu(f"s_add_u32 s{S_T0}, s{S_T0}, s{S_T1}")
    e.salu(f"s_lshl_b32 s{S_T0}, s{S_T0}, 13")
    if PF_WQ:
        e.raw(f"buffer_load_dword v{V_PF}, v{t1}, s[{S_WQ}:{S_WQ + 3}], s{S_T0} offen")
    if PF_X:
        V(f"v_lshlrev_b32 v{t1}, 5, v{L}", t1, L)
        e.salu(f"s_and_b32 s{S_T0}, s2, 7")
        e.salu(f"s_mul_i32 s{S_T0}, s{S_T0}, 14336")
        e.salu(f"s_mul_i32 s{S_T1}, s{S_W}, 1792")
        e.salu(f"s_add_u32 s{S_T0}, s{S_T0}, s{S_T1}")
        e.raw(f"buffer_load_dword v{V_Q}, v{t1}, s[{S_X}:{S_X + 3}], s{S_T0} offen")

    c = math.log2(math.e) / 16.0
    e.salu(f"s_mov_b32 s{S_C}, {struct.unpack('<I', struct.pack('<f', c))[0]:#x}")
    e.salu(f"s_mov_b32 s{S_NC}, {struct.unpack('<I', struct.pack('<f', -c))[0]:#x}")
    e.salu(f"s_mov_b32 s{S_THR}, 0x41000000")
    V(f"v_lshrrev_b32 v{t1}, 4, v{L}", t1, L)
    V(f"v_bfe_u32 v{t2}, v{L}, 2, 2", t2, L)
    V(f"v_lshl_add_u32 v{t2}, v{t1}, 3, v{t2}", t2, t1, t2)
    V(f"v_mul_u32_u24 v{t2}, 1088, v{t2}", t2, t2)
    V(f"v_and_b32 v{t1}, 1, v{t1}", t1, t1)
    V(f"v_lshl_add_u32 v{t2}, v{t1}, 3, v{t2}", t2, t1, t2)
    V(f"v_and_b32 v{t1}, 3, v{L}", t1, L)
    V(f"v_lshl_add_u32 v{t2}, v{t1}, 4, v{t2}", t2, t1, t2)
    e.salu(f"s_lshl_b32 s{S_T3}, s{S_HH}, 9")
    V(f"v_add_u32 v{V_PATA}, s{S_T3}, v{t2}", V_PATA, t2)
    V(f"v_bfe_u32 v{t1}, v{L}, 2, 2", t1, L)
    V(f"v_sub_u32 v{t1}, 4, v{t1}", t1, t1)
    V(f"v_and_b32 v{t1}, 3, v{t1}", t1, t1)
    V(f"v_lshrrev_b32 v{t2}, 4, v{L}", t2, L)
    V(f"v_xor_b32 v{t1}, v{t1}, v{t2}", t1, t1, t2)
    V(f"v_lshlrev_b32 v{t1}, 4, v{t1}", t1, t1)
    V(f"v_and_b32 v{t2}, 15, v{L}", t2, L)
    V(f"v_lshl_add_u32 v{t1}, v{t2}, 6, v{t1}", t1, t2, t1)
    e.salu(f"s_lshl_b32 s{S_T3}, s{S_QH}, 11")
    e.salu(f"s_add_u32 s{S_T3}, s{S_T3}, {RING}")
    V(f"v_add_u32 v{V_PATB}, s{S_T3}, v{t1}", V_PATB, t1)
    V(f"v_lshrrev_b32 v{t2}, 5, v{L}", t2, L)
    V(f"v_and_b32 v{t1}, 31, v{L}", t1, L)
    V(f"v_xor_b32 v{t1}, v{t1}, v{t2}", t1, t1, t2)
    V(f"v_lshlrev_b32 v{t1}, 4, v{t1}", t1, t1)
    V(f"v_lshl_add_u32 v{V_DK}, v{t2}, 9, v{t1}", V_DK, t2, t1)
    V(f"v_add_u32 v{V_RDA}, s{S_RD}, v{V_PATA}", V_RDA, V_PATA)

    def xread(xs, G):
        V(f"v_add_u32 v{V_RDB}, s{S_XR}, v{V_PATB}", V_RDB, V_PATB)
        for cb in range(NCB):
            e.ds(f"ds_read_b128 {rn(xs + 4 * cb, 4)}, v{V_RDB} offset:{1024 * cb}", ("x", G), dst=range(xs + 4 * cb, xs + 4 * cb + 4))
        adv_x(S_XR)

    e.wait_vm(("X", 0))
    e.salu("s_barrier")
    stamp(e, 1)
    xread(V_S0, 0)
    e.wait_lds(("x", 0))

    fs = FragStream(e)
    dq = []
    dqs = {"sp": 4, "cnt": 0}

    def defer(lst, sp):
        assert not dq, "previous DMA pieces still pending"
        dq.extend(lst)
        dqs["sp"] = sp
        dqs["cnt"] = 0

    fidx = [0]

    def tick():
        if dq:
            dqs["cnt"] += 1
            if dqs["cnt"] >= dqs["sp"]:
                dqs["cnt"] = 0
                dq.pop(0)()

    def frag_begin():
        i = fidx[0]
        assert i < fs.issued
        if PAIRW:
            if i % 2 == 0:
                e.wait_lds(("fr", i + 1) if i + 1 < fs.issued else ("fr", i))
            else:
                e.wait_lds(("fr", i))
        else:
            e.wait_lds(("fr", i))
        return fs.buf(i)

    def frag_end():
        fidx[0] += 1

    def group(dsts, bs, zero, hooks):
        a = frag_begin()
        for k in range(NCB):
            e.mfma(dsts[k], a, bs[k], None if zero else dsts[k])
            if PAIRW:
                if k == NCB - 1:
                    fs.issue_next()
            elif k == 0:
                fs.issue_next()
            tick()
            hooks(k)
        frag_end()

    def p1_frags():
        for ct in range(16):
            off = 64 * (ct >> 1) + 8 * (ct & 1)
            fs.push(rd_tr(e, V_RDA, off, off + 4 * 1088))

    def next_rd_a():
        adv_slot(e, S_RD)
        V(f"v_add_u32 v{V_RDA}, s{S_RD}, v{V_PATA}", V_RDA, V_PATA)

    def kvpf_setup():
        e.salu(f"s_and_b32 s{S_T0}, s{S_W}, 1")
        e.salu(f"s_cmp_eq_u32 s{S_T0}, 1")
        for i in range(4):
            e.salu(f"s_cselect_b32 s{S_PFS + i}, s{S_V + i}, s{S_K + i}")
        e.salu(f"s_lshr_b32 s{S_PFO}, s2, 4")
        e.salu(f"s_xor_b32 s{S_PFO}, s{S_PFO}, s2")
        e.salu(f"s_add_u32 s{S_PFO}, s{S_PFO}, {KVPF_T0}")
        e.salu(f"s_add_u32 s{S_PFO}, s{S_PFO}, s{S_HH}")
        e.salu(f"s_and_b32 s{S_PFO}, s{S_PFO}, 15")
        e.salu(f"s_lshl_b32 s{S_PFO}, s{S_PFO}, 14")
        e.salu(f"s_lshl_b32 s{S_T0}, s{S_SK}, 10")
        e.salu(f"s_add_u32 s{S_PFO}, s{S_PFO}, s{S_T0}")
        V(f"v_lshlrev_b32 v{V_Q + 1}, 7, v{L}", V_Q + 1, L)

    def kvpf():
        e.raw(f"buffer_load_dword v{V_Q}, v{V_Q + 1}, s[{S_PFS}:{S_PFS + 3}], s{S_PFO} offen{KVPF_POL}")
        e.salu(f"s_add_u32 s{S_PFO}, s{S_PFO}, 32768")
        e.salu(f"s_and_b32 s{S_PFO}, s{S_PFO}, 0x3ffff")

    def p1_step(G, issue, push_next):
        xs = V_S0 if G % 2 == 0 else V_S1
        xn = V_S1 if G % 2 == 0 else V_S0
        e.wait_lds(("x", G))
        for ct in range(16):
            def hooks(k, ct=ct):
                if NCB * ct + k == BAR1:
                    if G + 1 <= 13:
                        e.wait_vm(("X", G + 1))
                    e.wait_vm(("D", G + 1))
                    e.salu("s_barrier")
                    if G + 1 <= 13:
                        xread(xn, G + 1)
                    pieces = xdma(("X", G + 2)) if G + 2 <= 13 else []
                    pieces += issue()
                    if G == 0:
                        pieces += [kvpf] * KVPF
                    if G in (11, 12, 13) and KVPF_LATE > G - 11:
                        pieces.append(kvpf)
                    defer(pieces, SP1 if len(pieces) <= 5 else 2 if len(pieces) <= 8 else 1)
                    push_next()
            group([V_O + 8 * ct + 4 * cb for cb in range(NCB)], [xs + 4 * cb for cb in range(NCB)], G == 0, hooks)

    if KVPF:
        kvpf_setup()
    p1_frags()
    for _ in range(DPF):
        fs.issue_next()

    def push_p1():
        fs.push(("pre", next_rd_a))
        p1_frags()

    p1_step(0, lambda: dma_wq_pair(e, ("D", 3)), push_p1)

    def p1_body(i):
        G = 1 + 2 * i
        p1_step(G, lambda: dma_wq_pair(e, ("D", G + 3)), push_p1)
        p1_step(G + 1, lambda: dma_wq_pair(e, ("D", G + 4)), push_p1)

    e.loop("L_p1", 5, p1_body, f"s{S_CNT}")

    def kv_setup():
        e.salu(f"s_mul_i32 s{S_WM0A}, s{S_W}, {2 * 1056}")
        e.salu(f"s_mul_i32 s{S_WM0B}, s{S_W}, {2 * 1088}")
        e.salu(f"s_add_u32 s{S_WM0B}, s{S_WM0B}, s{S_SK}")
        e.salu(f"s_add_u32 s{S_WM0B}, s{S_WM0B}, {TILE}")
        e.salu(f"s_lshr_b32 s{S_OFFA}, s2, 4")
        e.salu(f"s_xor_b32 s{S_OFFA}, s{S_OFFA}, s2")
        e.salu(f"s_and_b32 s{S_OFFA}, s{S_OFFA}, 15")
        e.salu(f"s_lshl_b32 s{S_OFFA}, s{S_OFFA}, 14")
        e.salu(f"s_lshl_b32 s{S_OFFB}, s{S_W}, 11")
        e.salu(f"s_add_u32 s{S_OFFA}, s{S_OFFA}, s{S_OFFB}")
        e.salu(f"s_mov_b32 s{S_OFFB}, s{S_OFFA}")

    def iss14():
        kv_setup()
        return dma_kv_pair(e, ("D", 14), k=True, v=False)
    p1_step(11, iss14, push_p1)
    p1_step(12, lambda: dma_kv_pair(e, ("D", 15)), push_p1)

    def kv_patterns():
        a, b2 = V_T2, V_T3
        V(f"v_and_b32 v{a}, 15, v{L}", a, L)
        V(f"v_mul_u32_u24 v{a}, 1056, v{a}", a, a)
        V(f"v_lshrrev_b32 v{b2}, 4, v{L}", b2, L)
        V(f"v_lshl_add_u32 v{V_PATA}, v{b2}, 4, v{a}", V_PATA, b2, a)
        V(f"v_bfe_u32 v{a}, v{L}, 2, 2", a, L)
        V(f"v_lshl_add_u32 v{a}, v{b2}, 2, v{a}", a, b2, a)
        V(f"v_mul_u32_u24 v{a}, 1088, v{a}", a, a)
        V(f"v_and_b32 v{b2}, 1, v{b2}", b2, b2)
        V(f"v_lshl_add_u32 v{a}, v{b2}, 3, v{a}", a, b2, a)
        V(f"v_and_b32 v{b2}, 3, v{L}", b2, L)
        V(f"v_lshl_add_u32 v{a}, v{b2}, 4, v{a}", a, b2, a)
        V(f"v_add_u32 v{V_PATB}, {TILE}, v{a}", V_PATB, a)

    def k_frags():
        for ks in range(8):
            for t in range(2):
                fs.push(rd_128(e, V_RDA if t == 0 else V_RDC, ks * 64 + 512 * t))

    def v_frags():
        for dt in range(16):
            off = 64 * (dt >> 1) + 8 * (dt & 1)
            fs.push(rd_tr(e, V_RDB, off, off + 512))

    def next_rd_kv():
        adv_slot(e, S_RD)
        V(f"v_add_u32 v{V_RDA}, s{S_RD}, v{V_PATA}", V_RDA, V_PATA)
        V(f"v_xor_b32 v{V_RDC}, 16, v{V_RDA}", V_RDC, V_RDA)
        V(f"v_add_u32 v{V_RDB}, s{S_RD}, v{V_PATB}", V_RDB, V_PATB)

    def push_k0():
        def pre():
            kv_patterns()
            next_rd_kv()
        fs.push(("pre", pre))
        k_frags()

    p1_step(13, lambda: dma_kv_pair(e, ("D", 16)), push_k0)
    stamp(e, 2)

    def pack_pair(T, cb, scale=False):
        fl = []
        for tp in range(2):
            src = V_O + 8 * (2 * T + tp) + 4 * cb
            if scale:
                for i in range(4):
                    fl.append(lambda i=i, src=src: V(f"v_mul_f32 v{src + i}, v{src + i}, v{V_LSUM + cb}",
                                                     src + i, src + i, V_LSUM + cb))
            for h2 in range(2):
                d = V_Q + 32 * cb + 4 * T + 2 * tp + h2
                fl.append(lambda d=d, src=src, h2=h2: e.valu(
                    f"v_cvt_pk_bf16_f32 v{d}, v{src + 2 * h2}, v{src + 2 * h2 + 1}",
                    dst=[d], src=[src + 2 * h2, src + 2 * h2 + 1]))
        return fl

    for T in range(8):
        for cb in range(NCB):
            run(pack_pair(T, cb))
    for cb in range(NCB):
        V(f"v_mov_b32 v{V_LSUM + cb}, 0", V_LSUM + cb)

    def spread(fl, nslots):
        st = {"k": 0}

        def f(slot):
            tgt = (len(fl) * (slot + 1) + nslots - 1) // nslots
            while st["k"] < min(tgt, len(fl)):
                fl[st["k"]]()
                st["k"] += 1
        return f

    def qk_stage(sn, fl, mid=None):
        sp = spread(fl, 31)
        for ks in range(8):
            for t in range(2):
                def hooks(k, ks=ks, t=t):
                    slot = 4 * ks + 2 * t + k
                    sp(slot)
                    if mid is not None and slot == mid[0]:
                        mid[1]()
                group([sn + 8 * cb + 4 * t for cb in range(NCB)], [V_Q + 32 * cb + 4 * ks for cb in range(NCB)], ks == 0, hooks)

    def exp_fillers(sc):
        fl = []
        for cb in range(NCB):
            for p in range(4):
                a, b = sc + 8 * cb + 2 * p, sc + 8 * cb + 2 * p + 1
                nm, ls = V_NEGM + cb, V_LSUM + cb
                if PK_FMA:
                    sel = "op_sel_hi:[1,0,0]" if cb == 0 else "op_sel:[0,0,1] op_sel_hi:[1,0,1]"
                    fl.append(lambda a=a, sel=sel: e.valu(
                        f"v_pk_fma_f32 v[{a}:{a + 1}], v[{a}:{a + 1}], s[{S_C}:{S_C + 1}], v[{V_NEGM}:{V_NEGM + 1}] {sel}",
                        dst=[a, a + 1], src=[a, a + 1, V_NEGM, V_NEGM + 1]))
                else:
                    fl.append(lambda a=a, nm=nm: e.valu(f"v_fma_f32 v{a}, v{a}, s{S_C}, v{nm}", dst=[a], src=[a, nm]))
                    fl.append(lambda b=b, nm=nm: e.valu(f"v_fma_f32 v{b}, v{b}, s{S_C}, v{nm}", dst=[b], src=[b, nm]))
                fl.append(lambda a=a: e.valu(f"v_exp_f32 v{a}, v{a}", dst=[a], src=[a], trans=True))
                fl.append(lambda b=b: e.valu(f"v_exp_f32 v{b}, v{b}", dst=[b], src=[b], trans=True))
                fl.append(lambda a=a, ls=ls: e.valu(f"v_add_f32 v{ls}, v{ls}, v{a}", dst=[ls], src=[ls, a]))
                fl.append(lambda b=b, ls=ls: e.valu(f"v_add_f32 v{ls}, v{ls}, v{b}", dst=[ls], src=[ls, b]))
                d = sc + 8 * cb + p
                fl.append(lambda a=a, b=b, d=d: e.valu(f"v_cvt_pk_bf16_f32 v{d}, v{a}, v{b}", dst=[d], src=[a, b]))
        return fl

    def max_fillers(sn):
        fl = []
        for cb in range(NCB):
            s0 = sn + 8 * cb
            tm = V_TM + cb
            fl.append(lambda s0=s0, tm=tm: e.valu(f"v_max3_f32 v{tm}, v{s0}, v{s0 + 1}, v{s0 + 2}", dst=[tm], src=[s0, s0 + 1, s0 + 2]))
            fl.append(lambda s0=s0, tm=tm: e.valu(f"v_max3_f32 v{tm}, v{tm}, v{s0 + 3}, v{s0 + 4}", dst=[tm], src=[tm, s0 + 3, s0 + 4]))
            fl.append(lambda s0=s0, tm=tm: e.valu(f"v_max3_f32 v{tm}, v{tm}, v{s0 + 5}, v{s0 + 6}", dst=[tm], src=[tm, s0 + 5, s0 + 6]))
            fl.append(lambda s0=s0, tm=tm: e.valu(f"v_max_f32 v{tm}, v{tm}, v{s0 + 7}", dst=[tm], src=[tm, s0 + 7]))
        return fl

    def check_fillers():
        fl = []
        fl.append(lambda: e.valu(f"v_fma_f32 v{V_TMP}, v{V_TM}, s{S_C}, v{V_NEGM}", dst=[V_TMP], src=[V_TM, V_NEGM]))
        fl.append(lambda: e.valu(f"v_cmp_lt_f32 s[{S_T0 + 55}:{S_T0 + 56}], s{S_THR}, v{V_TMP}", dst=[], src=[V_TMP]))
        fl.append(lambda: e.valu(f"v_fma_f32 v{V_TMP}, v{V_TM + 1}, s{S_C}, v{V_NEGM + 1}", dst=[V_TMP], src=[V_TM + 1, V_NEGM + 1]))
        fl.append(lambda: e.valu(f"v_cmp_lt_f32 vcc, s{S_THR}, v{V_TMP}", dst=[], src=[V_TMP]))
        return fl

    def cross_g(op, reg, tmp):
        for sw in ("v_permlane16_swap_b32", "v_permlane32_swap_b32"):
            V(f"v_mov_b32 v{tmp}, v{reg}", tmp, reg)
            e.nop(2)
            e.valu(f"{sw} v{reg}, v{tmp}", dst=[reg, tmp], src=[reg, tmp])
            V(f"{op} v{reg}, v{reg}, v{tmp}", reg, reg, tmp)

    def push_kv():
        fs.push(("pre", next_rd_kv))
        k_frags()
        v_frags()

    def mid14():
        e.wait_vm(("D", 15))
        e.salu("s_barrier")
        defer(dma_kv_pair(e, ("D", 17)), SP2)
        push_kv()
    qk_stage(V_S0, [], mid=(BAR2, mid14))
    V(f"v_lshlrev_b32 v{V_T2}, 6, v{L}", V_T2, L)
    e.salu(f"s_mul_i32 s{S_T0}, s{S_B}, 28672")
    e.salu(f"s_lshl_b32 s{S_T1}, s{S_W}, 12")
    e.salu(f"s_add_u32 s{S_T0}, s{S_T0}, s{S_T1}")
    e.salu(f"s_lshl_b32 s{S_T1}, s{S_W}, 8")
    e.salu(f"s_add_u32 m0, s{S_T1}, {RING}")
    e.salu("s_nop 0")
    if PF_WO:
        e.raw(f"buffer_load_dword v{V_T2}, s[{S_WO}:{S_WO + 3}], s{S_T0} offen lds")
    run(max_fillers(V_S0))
    for cb in range(NCB):
        cross_g("v_max_f32", V_TM + cb, V_TMP)
        V(f"v_mul_f32 v{V_NEGM + cb}, s{S_NC}, v{V_TM + cb}", V_NEGM + cb, V_TM + cb)

    rare = []

    def p2_step(t, issue, push_next, tagname):
        G = 15 + t
        sc = V_S0 if t % 2 == 0 else V_S1
        sn = V_S1 if t % 2 == 0 else V_S0
        qk_stage(sn, exp_fillers(sc))
        mx = max_fillers(sn) + check_fillers()
        sp = spread(mx, 16)
        for dt in range(16):
            def hooks(k, dt=dt):
                slot = 2 * dt + k
                if slot == BAR2:
                    e.wait_vm(("D", G + 1))
                    e.salu("s_barrier")
                    defer(issue(), SP2)
                    push_next()
                if slot >= 10:
                    sp(slot - 10)
            group([V_O + 8 * dt + 4 * cb for cb in range(NCB)], [sc + 8 * cb for cb in range(NCB)], t == 0, hooks)
        e.salu(f"s_or_b64 vcc, vcc, s[{S_T0 + 55}:{S_T0 + 56}]")
        e.salu(f"s_cbranch_scc1 L_rare_{tagname}")
        e.label(f"L_back_{tagname}")
        rare.append(tagname)

    p2_step(0, lambda: dma_kv_pair(e, ("D", 18)), push_kv, "z")
    p2_step(1, lambda: dma_kv_pair(e, ("D", 19)), push_kv, "y")

    def p2_body(i):
        t = 2 + 2 * i
        p2_step(t, lambda: dma_kv_pair(e, ("D", 15 + t + 3)), push_kv, "a")
        p2_step(t + 1, lambda: dma_kv_pair(e, ("D", 15 + t + 4)), push_kv, "b")

    e.loop("L_p2", 5, p2_body, f"s{S_CNT}")
    rare[:] = ["z", "y", "a", "b"]
    p2_step(12, lambda: dma_kv_pair(e, ("D", 30), k=False, v=True), push_kv, "c")

    def wo_setup():
        a, b2 = V_T3, V_T2
        V(f"v_bfe_u32 v{a}, v{L}, 4, 1", a, L)
        V(f"v_lshlrev_b32 v{a}, 1, v{a}", a, a)
        V(f"v_and_b32 v{b2}, 7, v{L}", b2, L)
        V(f"v_xor_b32 v{a}, v{a}, v{b2}", a, a, b2)
        V(f"v_lshlrev_b32 v{a}, 4, v{a}", a, a)
        V(f"v_lshrrev_b32 v{b2}, 3, v{L}", b2, L)
        V(f"v_mul_u32_u24 v{b2}, 896, v{b2}", b2, b2)
        V(f"v_add_u32 v{V_DWO0}, v{a}, v{b2}", V_DWO0, a, b2)
        V(f"v_xor_b32 v{a}, 64, v{a}", a, a)
        V(f"v_add_u32 v{V_DWO1}, v{a}, v{b2}", V_DWO1, a, b2)
        e.salu(f"s_lshl_b32 s{S_WM0C}, s{S_W}, 11")
        e.salu(f"s_mul_i32 s{S_XOFF}, s{S_W}, {16 * 896}")

    def iss_wo0():
        wo_setup()
        return dma_wo_pair(e, ("D", 31), 0)
    p2_step(13, iss_wo0, push_kv, "d")

    def push_v_only():
        fs.push(("pre", next_rd_kv))
        v_frags()
    p2_step(14, lambda: dma_wo_pair(e, ("D", 32), 1), push_v_only, "e")

    RD3 = [V_RDA, V_RDB, V_RDC, V_RDD]

    def wo_patterns():
        a, b2 = V_T2, V_T3
        V(f"v_lshrrev_b32 v{a}, 4, v{L}", a, L)
        V(f"v_bfe_u32 v{b2}, v{L}, 2, 2", b2, L)
        V(f"v_lshl_add_u32 v{a}, v{a}, 3, v{b2}", a, a, b2)
        V(f"v_lshlrev_b32 v{a}, 7, v{a}", a, a)
        V(f"v_bfe_u32 v{b2}, v{L}, 3, 2", b2, L)
        e.salu(f"s_lshl_b32 s{S_T3}, s{S_HH}, 1")
        V(f"v_xor_b32 v{b2}, s{S_T3}, v{b2}", b2, b2)
        V(f"v_lshl_add_u32 v{a}, v{b2}, 5, v{a}", a, b2, a)
        V(f"v_and_b32 v{b2}, 3, v{L}", b2, L)
        V(f"v_lshl_add_u32 v{a}, v{b2}, 3, v{a}", a, b2, a)
        e.salu(f"s_mul_i32 s{S_T3}, s{S_HH}, {TILE}")
        V(f"v_add_u32 v{V_PATA}, s{S_T3}, v{a}", V_PATA, a)

    def next_rd3():
        adv_slot(e, S_RD)
        V(f"v_add_u32 v{RD3[0]}, s{S_RD}, v{V_PATA}", RD3[0], V_PATA)
        for u in range(1, 4):
            V(f"v_xor_b32 v{RD3[u]}, {32 * u}, v{RD3[0]}", RD3[u], RD3[0])

    ULORD = (2, 3, 0, 1)

    def p3_frags():
        for kk in range(4):
            for ul in ULORD:
                off = kk * 4096
                fs.push(rd_tr(e, RD3[ul], off, off + 512))

    def push_p3_first():
        def pre():
            wo_patterns()
            next_rd3()
        fs.push(("pre", pre))
        p3_frags()

    def push_p3():
        fs.push(("pre", next_rd3))
        p3_frags()

    sc = V_S1
    run(exp_fillers(sc))
    for cb in range(NCB):
        cross_g("v_add_f32", V_LSUM + cb, V_TMP)
        e.valu(f"v_rcp_f32 v{V_LSUM + cb}, v{V_LSUM + cb}", dst=[V_LSUM + cb], src=[V_LSUM + cb], trans=True)

    pend = []
    for dt in range(16):
        def hooks(k, dt=dt):
            slot = 2 * dt + k
            if slot == BAR2:
                e.wait_vm(("D", 31))
                e.salu("s_barrier")
                defer(dma_wo_pair(e, ("D", 33), 2), SP2)
                push_p3_first()
            if k == 1 and dt % 2 == 1 and dt >= 3:
                T = (dt - 3) // 2
                for cb in range(NCB):
                    pend.extend(pack_pair(T, cb, scale=True))
            for _ in range(6):
                if pend:
                    pend.pop(0)()
        group([V_O + 8 * dt + 4 * cb for cb in range(NCB)], [sc + 8 * cb for cb in range(NCB)], False, hooks)
    for cb in range(NCB):
        pend.extend(pack_pair(7, cb, scale=True))
    stamp(e, 3)
    stamp(e, 4)

    ACC = [V_S0, 0]
    V_R = 32
    V_PK = 48
    V_EXW = [56, 57, 58, 59]
    V_EXR = [60, 61, 62, 63]

    def ex_addr(dst, wreg):
        e.salu(f"s_lshl_b32 s{S_T0}, s{wreg}, 12")
        e.salu(f"s_add_u32 s{S_T0}, s{S_T0}, {RING}")
        e.salu(f"s_sub_u32 s{S_T1}, s{wreg}, 6")
        e.salu(f"s_mul_i32 s{S_T1}, s{S_T1}, {4 * TILE}")
        e.salu(f"s_add_u32 s{S_T1}, s{S_T1}, 16384")
        e.salu(f"s_cmp_ge_u32 s{wreg}, 6")
        e.salu(f"s_cselect_b32 s{S_T0}, s{S_T1}, s{S_T0}")
        e.salu(f"s_mov_b32 s{S_T1}, 1024")
        e.salu(f"s_cselect_b32 s{S_T1}, {TILE}, s{S_T1}")
        for i in range(4):
            V(f"v_add_u32 v{dst[i]}, s{S_T0}, v{V_DLIN}", dst[i], V_DLIN)
            if i < 3:
                e.salu(f"s_add_u32 s{S_T0}, s{S_T0}, s{S_T1}")

    def p3_setup():
        ex_addr(V_EXW, S_W)
        e.salu(f"s_xor_b32 s{S_XR}, s{S_W}, 4")
        ex_addr(V_EXR, S_XR)
        e.salu(f"s_mul_i32 s{S_POFF}, s{S_W}, {7 * 2048}")

    def send_fillers(s_):
        acc = ACC[s_ & 1] + 16
        return [(lambda i=i: e.ds(f"ds_write_b128 v{V_EXW[i]}, {rn(acc + 4 * i, 4)}", ("exw", s_),
                                  src=range(acc + 4 * i, acc + 4 * i + 4))) for i in range(4)]

    def recv_fillers(s_):
        return [(lambda i=i: e.ds(f"ds_read_b128 {rn(V_R + 4 * i, 4)}, v{V_EXR[i]}", ("exr", s_),
                                  dst=range(V_R + 4 * i, V_R + 4 * i + 4))) for i in range(4)]

    def fin_fillers(s_):
        acc = ACC[s_ & 1]
        fl = [lambda: None] * 6 + [lambda: e.wait_lds(("exr", s_))]
        for j in range(16):
            fl.append(lambda j=j: V(f"v_add_f32 v{V_R + j}, v{V_R + j}, v{acc + j}", V_R + j, V_R + j, acc + j))
        for ul in range(2):
            for cb in range(NCB):
                tb = V_R + 8 * ul + 4 * cb
                for h2 in range(2):
                    d = V_PK + 4 * cb + 2 * ul + h2
                    fl.append(lambda d=d, tb=tb, h2=h2: e.valu(f"v_cvt_pk_bf16_f32 v{d}, v{tb + 2 * h2}, v{tb + 2 * h2 + 1}",
                                                               dst=[d], src=[tb + 2 * h2, tb + 2 * h2 + 1]))

        def st():
            for cb in range(NCB):
                rg = V_PK + 4 * cb
                e.raw(f"buffer_store_dwordx4 {rn(rg, 4)}, v{V_DLIN}, s[{S_P}:{S_P + 3}], s{S_POFF} offen offset:{cb * 1024} sc1")
            e.salu(f"s_add_u32 s{S_POFF}, s{S_POFF}, 2048")
            e.nop(1)
        fl.append(st)
        return fl

    def p3_step(p, issue, push, extra=None):
        G = 31 + p
        s_, ip = p >> 1, p & 1
        acc = ACC[s_ & 1]
        ext = list(extra) if extra else []
        pre = send_fillers(s_ - 1) if (ip == 0 and s_ >= 1) else []
        post = []
        slot = [0]
        for kk in range(4):
            for ul in ULORD:
                def hooks(k):
                    sl = slot[0]
                    slot[0] += 1
                    if sl >= 2:
                        for _ in range(3):
                            if pre:
                                pre.pop(0)()
                            elif ext:
                                ext.pop(0)()
                                if ext:
                                    ext.pop(0)()
                            elif post:
                                post.pop(0)()
                    if sl == BAR3:
                        assert not pre
                        if ip == 0 and s_ >= 1:
                            e.wait_lds(("exw", s_ - 1))
                        e.wait_vm(("D", G + 1))
                        e.salu("s_barrier")
                        if ip == 0 and s_ >= 1:
                            post.extend(recv_fillers(s_ - 1) + fin_fillers(s_ - 1))
                        defer(issue(), SP3)
                        if push:
                            push_p3()
                group([acc + 8 * ul + 4 * cb for cb in range(NCB)],
                      [V_Q + 32 * cb + 4 * (4 * ip + kk) for cb in range(NCB)], ip == 0 and kk == 0, hooks)
        assert not post and not pre and not ext, (len(post), len(pre), len(ext))

    p3_setup()

    def iss3(p):
        return (lambda: dma_wo_pair(e, ("D", 31 + p), p)) if p <= 13 else (lambda: [])

    p3_step(0, iss3(3), True, extra=pend)
    p3_step(1, iss3(4), True)

    def p3_body(i):
        p = 2 + 4 * i
        for d in range(4):
            p3_step(p + d, iss3(p + d + 3), True)

    e.loop("L_p3", 2, p3_body, f"s{S_CNT}")
    p3_step(10, iss3(13), True)
    p3_step(11, iss3(14), True)
    p3_step(12, iss3(15), True)
    p3_step(13, iss3(16), False)
    run(send_fillers(6))
    e.wait_lds(("exw", 6))
    e.salu("s_barrier")
    run(recv_fillers(6))
    run(fin_fillers(6))
    stamp(e, 5)
    stamp_flush(e, 8)
    e.label("L_attn_exit")
    e.salu("s_endpgm")

    for tg in rare:
        e.label(f"L_rare_{tg}")
        e.raw("s_nop 15", 16)
        for cb in range(NCB):
            tm, nm, ls = V_TM + cb, V_NEGM + cb, V_LSUM + cb
            for sw in ("v_permlane16_swap_b32", "v_permlane32_swap_b32"):
                e.raw(f"v_mov_b32 v{V_TMP}, v{tm}")
                e.raw("s_nop 1", 2)
                e.raw(f"{sw} v{tm}, v{V_TMP}")
                e.raw(f"v_max_f32 v{tm}, v{tm}, v{V_TMP}")
            e.raw(f"v_mul_f32 v{tm}, s{S_NC}, v{tm}")
            e.raw(f"v_min_f32 v{V_TMP}, v{tm}, v{nm}")
            e.raw(f"v_sub_f32 v{tm}, v{V_TMP}, v{nm}")
            e.raw(f"v_exp_f32 v{tm}, v{tm}")
            e.raw(f"v_mov_b32 v{nm}, v{V_TMP}")
            e.raw("s_nop 0")
            e.raw(f"v_mul_f32 v{ls}, v{ls}, v{tm}")
        for dt in range(16):
            for cb in range(NCB):
                for i in range(4):
                    a = V_O + 8 * dt + 4 * cb + i
                    e.raw(f"v_mul_f32 v{a}, v{a}, v{V_TM + cb}")
        e.raw("s_nop 1", 2)
        e.raw(f"s_branch L_back_{tg}")


def gen_reduce(e):
    e.label("reduce_kernel")
    e.salu("s_cmp_ge_u32 s2, 896")
    e.salu("s_cbranch_scc1 L_red_exit")
    e.salu("s_load_dwordx2 s[4:5], s[0:1], 80")
    e.salu("s_load_dwordx2 s[6:7], s[0:1], 96")
    e.salu("s_mul_hi_u32 s8, s2, 0x924924a")
    e.salu("s_mul_i32 s9, s8, 28")
    e.salu("s_sub_u32 s9, s2, s9")
    e.raw("v_lshlrev_b32 v4, 4, v0")
    e.salu("s_lshl_b32 s26, s9, 12")
    e.salu("s_lshl_b32 s9, s9, 1")
    e.raw("v_lshrrev_b32 v3, 7, v0")
    e.raw("v_add_u32 v3, s9, v3")
    e.salu("s_waitcnt lgkmcnt(0)")
    e.salu("s_mul_i32 s10, s8, 917504")
    e.salu("s_add_u32 s6, s6, s10")
    e.salu("s_addc_u32 s7, s7, 0")
    e.salu("s_mov_b32 s12, s6")
    e.salu("s_and_b32 s13, s7, 0xffff")
    e.salu("s_mov_b32 s14, 917504")
    e.salu("s_mov_b32 s15, 0x00020000")
    e.salu("s_mov_b32 s16, s4")
    e.salu("s_and_b32 s17, s5, 0xffff")
    e.salu("s_mov_b32 s18, 3670016")
    e.salu("s_mov_b32 s19, 0x00020000")
    for h in range(8):
        e.salu(f"s_add_u32 s20, s26, {h * 114688}")
        e.raw(f"buffer_load_dwordx4 v[{24 + 4 * h}:{27 + 4 * h}], v4, s[12:15], s20 offen")
    e.raw("v_mul_u32_u24 v5, 37, v3")
    e.raw("v_lshrrev_b32 v5, 8, v5")
    e.raw("v_mul_u32_u24 v6, 7, v5")
    e.raw("v_sub_u32 v6, v3, v6")
    e.raw("v_and_b32 v8, 15, v0")
    e.raw("v_bfe_u32 v9, v0, 6, 1")
    e.raw("v_lshl_add_u32 v8, v9, 4, v8")
    e.raw("v_and_b32 v9, 3, v5")
    e.raw("v_lshl_add_u32 v8, v9, 5, v8")
    e.raw("v_mul_u32_u24 v8, 1792, v8")
    e.raw("v_bfe_u32 v9, v0, 4, 2")
    e.raw("v_lshl_add_u32 v8, v9, 3, v8")
    e.raw("v_lshrrev_b32 v9, 2, v5")
    e.raw("v_lshl_add_u32 v8, v9, 6, v8")
    e.raw("v_lshl_add_u32 v8, v6, 7, v8")
    e.salu("s_and_b32 s21, s8, 15")
    e.salu("s_lshr_b32 s22, s8, 4")
    e.salu("s_mul_i32 s21, s21, 229376")
    e.salu("s_mul_i32 s22, s22, 896")
    e.salu("s_add_u32 s21, s21, s22")
    e.salu("s_mov_b32 s23, 0xffff0000")
    for h in range(8):
        e.salu(f"s_waitcnt vmcnt({7 - h})")
        for i in range(4):
            r = 24 + 4 * h + i
            if h == 0:
                e.raw(f"v_lshlrev_b32 v{16 + 2 * i}, 16, v{r}")
                e.raw(f"v_and_b32 v{17 + 2 * i}, s23, v{r}")
            else:
                e.raw(f"v_lshlrev_b32 v11, 16, v{r}")
                e.raw(f"v_and_b32 v12, s23, v{r}")
                e.raw(f"v_add_f32 v{16 + 2 * i}, v{16 + 2 * i}, v11")
                e.raw(f"v_add_f32 v{17 + 2 * i}, v{17 + 2 * i}, v12")
    for i in range(4):
        e.raw(f"v_cvt_pk_bf16_f32 v{12 + i}, v{16 + 2 * i}, v{17 + 2 * i}")
    e.raw("buffer_store_dwordx2 v[12:13], v8, s[16:19], s21 offen")
    e.raw("buffer_store_dwordx2 v[14:15], v8, s[16:19], s21 offen offset:32")
    if STAMPS_DBG:
        e.salu("s_cmp_lg_u32 s2, 0")
        e.salu("s_cbranch_scc1 L_red_exit")
        e.salu("s_load_dwordx4 s[4:7], s[0:1], 88")
        e.salu("s_waitcnt lgkmcnt(0)")
        e.salu("s_add_u32 s6, s6, 0x8000000")
        e.salu("s_addc_u32 s7, s7, 0")
        e.salu("s_mov_b32 s12, s6")
        e.salu("s_and_b32 s13, s7, 0xffff")
        e.salu("s_mov_b32 s14, 64")
        e.salu("s_mov_b32 s16, s4")
        e.salu("s_and_b32 s17, s5, 0xffff")
        e.salu("s_mov_b32 s18, 64")
        e.raw("v_lshlrev_b32 v1, 2, v0")
        e.raw("buffer_load_dword v2, v1, s[12:15], 0 offen")
        e.raw("s_waitcnt vmcnt(0)")
        e.raw("buffer_store_dword v2, v1, s[16:19], 0 offen")
    e.label("L_red_exit")
    e.salu("s_endpgm")


def main():
    ref = open(OUT + ".ref").read().splitlines()
    out = [l for l in ref if l.startswith(";") and "@launch" not in l]
    out.append(f"; @launch kernel=attn_kernel grid=(256,1,1) block=(512,1,1) lds={LDS_BYTES}")
    out.append("; @launch kernel=reduce_kernel grid=(896,1,1) block=(256,1,1) lds=0")
    out.append('.amdgcn_target "amdgcn-amd-amdhsa--gfx950"')
    out.append(".text")
    e = Em()
    out += [".globl attn_kernel", ".p2align 8", ".type attn_kernel,@function"]
    gen_attn(e)
    out += e.lines
    e2 = Em()
    out += [".globl reduce_kernel", ".p2align 8", ".type reduce_kernel,@function"]
    gen_reduce(e2)
    out += e2.lines
    out.append('.section .rodata,"a"')
    for k, vg, ao, sg in (("attn_kernel", 256, 256, 102), ("reduce_kernel", 56, 56, 32)):
        out += [".p2align 6", f".amdhsa_kernel {k}",
                f"  .amdhsa_next_free_vgpr {vg}",
                f"  .amdhsa_next_free_sgpr {sg}",
                f"  .amdhsa_accum_offset {ao}",
                "  .amdhsa_group_segment_fixed_size 0",
                "  .amdhsa_kernarg_size 104",
                "  .amdhsa_user_sgpr_count 2",
                "  .amdhsa_user_sgpr_kernarg_segment_ptr 1",
                "  .amdhsa_system_sgpr_workgroup_id_x 1",
                ".end_amdhsa_kernel"]
    open(OUTFILE, "w").write("\n".join(out) + "\n")
    print("wrote", OUTFILE, len(out), "lines")


if __name__ == "__main__":
    main()
```

```python
import math
import os
import struct
import sys

NAME = "concat_heads__gqa_block_cached__gqa_block_cached__near_ridge"
OUT = f"cdna_kernels/{NAME}.s"
OUTFILE = sys.argv[1] if len(sys.argv) > 1 else OUT

STAMPS = os.environ.get("STAMPS", "0") in ("1", "2")
STAMPS_DBG = os.environ.get("STAMPS", "0") == "2"
TILE = 17408
PAIR = 2 * TILE
RING = 4 * PAIR
LDS_BYTES = 160 * 1024
NB = 4
RED_UNITS = int(os.environ.get("RED_UNITS", "1"))
RED_POL = " " + os.environ["RED_POL"] if os.environ.get("RED_POL") else ""
KVPF_POL = " " + os.environ.get("KVPF_POL", "") if os.environ.get("KVPF_POL") else ""
KVPF_LATE = int(os.environ.get("KVPF_LATE", "0"))
KVPF = int(os.environ.get("KVPF", "1"))
KVPF_T0 = int(os.environ.get("KVPF_T0", "2"))
KVPF_PAR = int(os.environ.get("KVPF_PAR", "0"))
PF_WQ = os.environ.get("PF_WQ", "1") == "1"
PF_WO = os.environ.get("PF_WO", "1") == "1"
PF_X = os.environ.get("PF_X", "0") == "1"
PK_FMA = os.environ.get("PK_FMA", "0") == "1"
PAIRW = os.environ.get("PAIRW", "0") == "1"
DPF = int(os.environ.get("DPF", "3"))
SP1 = int(os.environ.get("SP1", "3"))
SP2 = int(os.environ.get("SP2", "5"))
SP3 = int(os.environ.get("SP3", "4"))
BAR1 = int(os.environ.get("BAR1", "15"))
BAR2 = int(os.environ.get("BAR2", "7"))
BAR3 = int(os.environ.get("BAR3", "11"))
AG = 256


def rn(r, n=1):
    if r >= AG:
        r -= AG
        return f"a{r}" if n == 1 else f"a[{r}:{r + n - 1}]"
    return f"v{r}" if n == 1 else f"v[{r}:{r + n - 1}]"


class Em:
    def __init__(self):
        self.lines = []
        self.pos = 0
        self.mfma_w = {}
        self.mfma_c = {}
        self.valu_w = {}
        self.trans_w = {}
        self.lds_q = []
        self.vm_q = []
        self.capture = None

    def raw(self, s, slots=1):
        (self.capture if self.capture is not None else self.lines).append("    " + s)
        self.pos += slots

    def label(self, s):
        (self.capture if self.capture is not None else self.lines).append(s + ":")

    def nop(self, n):
        while n > 0:
            k = min(n, 16)
            self.raw(f"s_nop {k - 1}", k)
            n -= k

    def _need(self, table, regs, dist):
        need = 0
        for r in regs:
            p = table.get(r)
            if p is not None:
                need = max(need, dist - (self.pos - p - 1))
        return need

    def salu(self, s):
        self.raw(s)

    def valu(self, s, dst=(), src=(), trans=False):
        n = self._need(self.mfma_w, list(dst) + list(src), 8)
        n = max(n, self._need(self.mfma_c, dst, 3))
        if not trans:
            n = max(n, self._need(self.trans_w, src, 1))
        if n > 0:
            self.nop(n)
        p = self.pos
        self.raw(s)
        for r in dst:
            self.valu_w[r] = p
            if trans:
                self.trans_w[r] = p
            else:
                self.trans_w.pop(r, None)

    def mfma(self, d, a, b, c):
        D = list(range(d, d + 4))
        A = list(range(a, a + 4))
        B = list(range(b, b + 4))
        C = list(range(c, c + 4)) if c is not None else []
        n = self._need(self.valu_w, A + B + C, 2)
        n = max(n, self._need(self.mfma_w, A + B, 8))
        assert c is None or c == d
        if n > 0:
            self.nop(n)
        p = self.pos
        cs = rn(c, 4) if c is not None else "0"
        self.raw(f"v_mfma_f32_16x16x32_bf16 {rn(d, 4)}, {rn(a, 4)}, {rn(b, 4)}, {cs}")
        for r in D:
            self.mfma_w[r] = p
        for r in C:
            self.mfma_c[r] = p

    def ds(self, s, tag, dst=(), src=()):
        n = self._need(self.mfma_w, list(dst) + list(src), 8)
        if n > 0:
            self.nop(n)
        self.raw(s)
        self.lds_q.append(tag)
        assert len(self.lds_q) <= 15, "too many LDS ops outstanding"

    def vmem(self, s, tag, dst=(), src=()):
        n = self._need(self.mfma_w, list(dst) + list(src), 8)
        if n > 0:
            self.nop(n)
        self.raw(s)
        self.vm_q.append(tag)
        assert len(self.vm_q) <= 63

    def wait_lds(self, tag):
        idx = max((i for i, t in enumerate(self.lds_q) if t == tag), default=-1)
        if idx < 0:
            return
        self.raw(f"s_waitcnt lgkmcnt({len(self.lds_q) - 1 - idx})")
        self.lds_q = self.lds_q[idx + 1:]

    def wait_vm(self, tag):
        idx = max((i for i, t in enumerate(self.vm_q) if t == tag), default=-1)
        if idx < 0:
            return
        self.raw(f"s_waitcnt vmcnt({len(self.vm_q) - 1 - idx})")
        self.vm_q = self.vm_q[idx + 1:]

    def loop(self, name, n, body, counter):
        assert self.capture is None
        self.salu(f"s_mov_b32 {counter}, {n}")
        texts = []
        for i in range(n):
            self.capture = []
            body(i)
            self.salu(f"s_sub_u32 {counter}, {counter}, 1")
            self.salu(f"s_cmp_lg_u32 {counter}, 0")
            self.salu(f"s_cbranch_scc1 {name}")
            texts.append(self.capture)
            self.capture = None
        for i in range(1, n):
            if texts[i] != texts[0]:
                for a, b in zip(texts[0], texts[i]):
                    if a != b:
                        print("LOOP MISMATCH", name, i, a, "|", b)
                        break
                raise SystemExit(f"loop {name}: iteration {i} differs from iteration 0")
        self.label(name)
        self.lines.extend(texts[0])


S_X, S_K, S_V, S_WQ, S_WO, S_P = 8, 12, 16, 20, 24, 28
S_W, S_HH, S_QH, S_RD, S_DM = 32, 33, 34, 35, 36
S_T0, S_T1, S_T2, S_T3 = 37, 38, 39, 40
S_CNT, S_C, S_NC, S_THR = 41, 42, 43, 44
S_OFFA, S_OFFB, S_XOFF = 45, 46, 47
S_WM0A, S_WM0B, S_WM0C = 48, 49, 50
S_POFF, S_XW, S_XR, S_XD = 51, 52, 53, 54
S_D0, S_D1, S_B, S_SK, S_PFO, S_PFS = 55, 78, 79, 90, 91, 60
S_KA = 56
S_ST = 80

V_O = 0
V_Q = 128
V_S0, V_S1 = 192, 208
V_FR = 224
V_PATA, V_PATB, V_RDA, V_RDB, V_RDC = 240, 241, 242, 243, 244
V_RDD = V_PATB
V_DLIN, V_DK, V_DX = 245, 246, 247
V_DWO0, V_DWO1 = V_DX, V_DK
V_NEGM, V_LSUM, V_TM = 248, 250, 252
V_TMP, V_LANE = 254, 255
V_T2, V_T3 = V_TM, V_TM + 1
V_PF = V_TMP
NCB = 2


def stamp(e, i):
    if not STAMPS:
        return
    e.raw("s_memtime s[96:97]")
    e.raw("s_waitcnt lgkmcnt(0)")
    e.lds_q = []
    e.salu(f"s_mov_b32 s{S_ST + i}, s96")
    if i in (0, 5):
        e.raw("s_memrealtime s[96:97]")
        e.raw("s_waitcnt lgkmcnt(0)")
        e.salu(f"s_mov_b32 s{S_ST + 6 + (i == 5)}, s96")


def stamp_flush(e, n):
    if not STAMPS:
        return
    if STAMPS_DBG:
        e.salu(f"s_cmp_lg_u32 s{S_W}, 0")
        e.salu("s_cbranch_scc1 L_attn_exit")
        e.salu("s_cmp_eq_u32 s2, 0")
        e.salu("s_cselect_b32 s94, 0, 32")
        e.salu("s_cbranch_scc1 L_st_go")
        e.salu("s_cmp_lg_u32 s2, 133")
        e.salu("s_cbranch_scc1 L_attn_exit")
        e.label("L_st_go")
        e.salu("s_load_dwordx2 s[96:97], s[0:1], 96")
        e.salu("s_waitcnt lgkmcnt(0)")
        e.salu("s_add_u32 s96, s96, 0x8000000")
        e.salu("s_addc_u32 s97, s97, 0")
        e.salu("s_mov_b32 s8, s96")
        e.salu("s_and_b32 s9, s97, 0xffff")
        e.salu("s_mov_b32 s10, 256")
        e.salu("s_mov_b32 s11, 0x00020000")
        e.raw("s_nop 15", 16)
        e.raw("v_mov_b32 v1, 0")
        for i in range(6):
            a, b = (S_ST + i, S_ST + i + 1) if i < 5 else (S_ST + 6, S_ST + 7)
            e.salu(f"s_sub_u32 s95, s{b}, s{a}")
            e.raw("v_mov_b32 v0, s95")
            e.raw(f"buffer_store_dword v0, v1, s[8:11], s94 offen offset:{4 * i}")
            e.raw("s_waitcnt vmcnt(0)")
        return
    e.salu("s_load_dwordx2 s[96:97], s[0:1], 96")
    e.salu("s_waitcnt lgkmcnt(0)")
    e.salu("s_add_u32 s96, s96, 0x8000000")
    e.salu("s_addc_u32 s97, s97, 0")
    e.salu("s_mov_b32 s8, s96")
    e.salu("s_and_b32 s9, s97, 0xffff")
    e.salu("s_mov_b32 s10, 0x100000")
    e.salu("s_mov_b32 s11, 0x00020000")
    e.salu("s_lshl_b32 s96, s2, 3")
    e.salu(f"s_add_u32 s96, s96, s{S_W}")
    e.salu("s_lshl_b32 s96, s96, 6")
    e.raw("s_nop 15", 16)
    e.raw("v_mov_b32 v1, 0")
    for i in range(n):
        e.raw(f"v_mov_b32 v0, s{S_ST + i}")
        e.raw(f"buffer_store_dword v0, v1, s[8:11], s96 offen offset:{4 * i}")
        e.raw("s_waitcnt vmcnt(0)")


def srd(e, dst, lo, hi, size):
    e.salu(f"s_mov_b32 s{dst}, s{lo}")
    e.salu(f"s_and_b32 s{dst + 1}, s{hi}, 0xffff")
    e.salu(f"s_mov_b32 s{dst + 2}, {size}")
    e.salu(f"s_mov_b32 s{dst + 3}, 0x00020000")


def adv_slot(e, s):
    e.salu(f"s_add_u32 s{s}, s{s}, {PAIR}")
    e.salu(f"s_cmp_ge_u32 s{s}, {RING}")
    e.salu(f"s_cselect_b32 s{S_T3}, {RING}, 0")
    e.salu(f"s_sub_u32 s{s}, s{s}, s{S_T3}")


NODMA = os.environ.get("NODMA", "0") == "1"
NODMA_ON = [False]


def dma(e, voff, sr, soff, m0expr, tag, off=0):
    if NODMA and NODMA_ON[0]:
        return
    sg, imm = m0expr
    e.salu(f"s_add_u32 m0, s{sg}, {imm}")
    e.salu("s_nop 0")
    o = f" offset:{off}" if off else ""
    pol = (" " + os.environ.get("KVPOL", "nt")) if sr in (S_K, S_V) else ""
    e.vmem(f"buffer_load_dwordx4 v{voff}, s[{sr}:{sr + 3}], s{soff} offen{o}{pol} lds", tag)


def dma_wq_pair(e, tag):
    e.salu(f"s_add_u32 s{S_D0}, s{S_DM}, s{S_WM0A}")
    adv_slot(e, S_DM)
    out = []
    for i in range(4):
        def f(i=i):
            e.salu(f"s_add_u32 s{S_T1}, s{S_OFFA}, {i * 8192}")
            dma(e, V_DLIN, S_WQ, S_T1, (S_D0, i * 1088), tag)
            if i == 3:
                e.salu(f"s_add_u32 s{S_OFFA}, s{S_OFFA}, {32 * 8192}")
        out.append(f)
    return out


def dma_kv_pair(e, tag, k=True, v=True):
    e.salu(f"s_add_u32 s{S_D0}, s{S_DM}, s{S_WM0A}")
    e.salu(f"s_add_u32 s{S_D1}, s{S_DM}, s{S_WM0B}")
    adv_slot(e, S_DM)
    out = []
    if k:
        for i in range(2):
            def f(i=i):
                dma(e, V_DK, S_K, S_OFFA, (S_D0, 32 * i), tag, off=1024 * i)
                if i == 1:
                    e.salu(f"s_add_u32 s{S_OFFA}, s{S_OFFA}, 16384")
                    e.salu(f"s_and_b32 s{S_OFFA}, s{S_OFFA}, 0x3ffff")
            out.append(f)
    if v:
        for i in range(2):
            def f(i=i):
                dma(e, V_DLIN, S_V, S_OFFB, (S_D1, 64 * i), tag, off=1024 * i)
                if i == 1:
                    e.salu(f"s_add_u32 s{S_OFFB}, s{S_OFFB}, 16384")
                    e.salu(f"s_and_b32 s{S_OFFB}, s{S_OFFB}, 0x3ffff")
            out.append(f)
    return out


def dma_wo_pair(e, tag, p):
    e.salu(f"s_add_u32 s{S_D0}, s{S_DM}, s{S_WM0C}")
    adv_slot(e, S_DM)
    out = []
    ip = p & 1
    for hd in range(2):
        for i in range(2):
            def f(hd=hd, i=i):
                e.salu(f"s_add_u32 s{S_T1}, s{S_XOFF}, {(256 * hd + 128 * ip + 8 * i) * 896}")
                dma(e, V_DWO1 if i & 1 else V_DWO0, S_WO, S_T1, (S_D0, hd * TILE + i * 1024), tag)
                if hd == 1 and i == 1 and ip == 1:
                    e.salu(f"s_add_u32 s{S_XOFF}, s{S_XOFF}, 128")
            out.append(f)
    return out


class FragStream:
    def __init__(self, e):
        self.e = e
        self.issued = 0
        self.queue = []

    def buf(self, i):
        return V_FR + 4 * (i % NB)

    def push(self, fn):
        self.queue.append(fn)

    def issue_next(self):
        while self.queue:
            fn = self.queue.pop(0)
            if fn[0] == "pre":
                fn[1]()
                continue
            i = self.issued
            fn[1](self.buf(i), ("fr", i))
            self.issued += 1
            return True
        return False


def rd_tr(e, areg, off0, off1):
    def f(dst, tag):
        e.ds(f"ds_read_b64_tr_b16 {rn(dst, 2)}, v{areg} offset:{off0}", tag, dst=range(dst, dst + 2))
        e.ds(f"ds_read_b64_tr_b16 {rn(dst + 2, 2)}, v{areg} offset:{off1}", tag, dst=range(dst + 2, dst + 4))
    return ("rd", f)


def rd_128(e, areg, off):
    def f(dst, tag):
        e.ds(f"ds_read_b128 {rn(dst, 4)}, v{areg} offset:{off}", tag, dst=range(dst, dst + 4))
    return ("rd", f)


def gen_attn(e):
    e.label("attn_kernel")
    e.salu("s_cmp_ge_u32 s2, 256")
    e.salu("s_cbranch_scc1 L_attn_exit")
    e.salu(f"s_load_dwordx16 s[{S_KA}:{S_KA + 15}], s[0:1], 0")
    e.salu(f"s_load_dwordx4 s[{S_KA + 16}:{S_KA + 19}], s[0:1], 64")
    e.salu(f"s_load_dwordx2 s[{S_KA + 20}:{S_KA + 21}], s[0:1], 96")
    e.salu(f"s_and_b32 s{S_T0}, s2, 7")
    e.salu(f"s_lshr_b32 s{S_T1}, s2, 3")
    e.salu(f"s_and_b32 s{S_T2}, s{S_T1}, 15")
    e.salu(f"s_mov_b32 s{S_B}, s{S_T2}")
    L = V_LANE

    def V(s, d, *src):
        e.valu(s, dst=[d], src=list(src))

    V("v_lshrrev_b32 v1, 6, v0", 1, 0)
    V(f"v_and_b32 v{L}, 63, v0", L, 0)
    e.salu("s_nop 0")
    e.raw(f"v_readfirstlane_b32 s{S_W}, v1")
    e.salu("s_nop 3")
    e.salu(f"s_lshr_b32 s{S_HH}, s{S_W}, 2")
    e.salu(f"s_and_b32 s{S_QH}, s{S_W}, 3")
    e.salu(f"s_bfe_u32 s{S_SK}, s{S_W}, {(1 << 16) | 1}")
    e.salu(f"s_lshl_b32 s{S_SK}, s{S_SK}, 3")
    t1, t2, t3 = 1, 2, 3
    V(f"v_lshlrev_b32 v{V_DLIN}, 4, v{L}", V_DLIN, L)
    V(f"v_bfe_u32 v{t1}, v{L}, 4, 2", t1, L)
    V(f"v_sub_u32 v{t1}, 4, v{t1}", t1, t1)
    V(f"v_and_b32 v{t1}, 3, v{t1}", t1, t1)
    V(f"v_and_b32 v{t2}, 3, v{L}", t2, L)
    V(f"v_xor_b32 v{t1}, v{t1}, v{t2}", t1, t1, t2)
    V(f"v_lshlrev_b32 v{t1}, 4, v{t1}", t1, t1)
    V(f"v_lshrrev_b32 v{t2}, 2, v{L}", t2, L)
    V(f"v_mul_u32_u24 v{t2}, 896, v{t2}", t2, t2)
    V(f"v_add_u32 v{V_DX}, v{t1}, v{t2}", V_DX, t1, t2)
    e.salu(f"s_mul_i32 s{S_WM0A}, s{S_W}, {4 * 1088}")
    e.salu(f"s_add_u32 s{S_WM0A}, s{S_WM0A}, s{S_SK}")
    e.salu(f"s_lshl_b32 s{S_OFFA}, s{S_W}, 15")
    e.salu(f"s_mov_b32 s{S_DM}, 0")
    e.salu(f"s_mov_b32 s{S_RD}, 0")
    e.salu(f"s_mul_i32 s{S_XOFF}, s{S_W}, {16 * 896}")
    e.salu(f"s_lshl_b32 s{S_XW}, s{S_W}, 10")
    e.salu(f"s_add_u32 s{S_XW}, s{S_XW}, {RING}")
    e.salu(f"s_mov_b32 s{S_XR}, 0")
    e.salu(f"s_mov_b32 s{S_XD}, 0")
    e.salu("s_waitcnt lgkmcnt(0)")
    e.salu(f"s_cmp_ge_u32 s{S_T1}, 16")
    for i in range(10):
        e.salu(f"s_cselect_b32 s{S_KA + i}, s{S_KA + 10 + i}, s{S_KA + i}")
    e.salu(f"s_lshl_b32 s{S_T3}, s{S_T0}, 10")
    e.salu(f"s_add_u32 s{S_KA + 6}, s{S_KA + 6}, s{S_T3}")
    e.salu(f"s_addc_u32 s{S_KA + 7}, s{S_KA + 7}, 0")
    srd(e, S_WQ, S_KA + 6, S_KA + 7, 448 * 8192)
    e.salu(f"s_sub_u32 s{S_WQ + 2}, s{S_WQ + 2}, s{S_T3}")
    e.salu(f"s_mul_i32 s{S_T3}, s{S_T2}, 114688")
    e.salu(f"s_add_u32 s{S_KA}, s{S_KA}, s{S_T3}")
    e.salu(f"s_addc_u32 s{S_KA + 1}, s{S_KA + 1}, 0")
    srd(e, S_X, S_KA, S_KA + 1, 114688)
    e.salu(f"s_lshl_b32 s{S_T3}, s{S_T2}, 3")
    e.salu(f"s_add_u32 s{S_T3}, s{S_T3}, s{S_T0}")
    e.salu(f"s_lshl_b32 s{S_T3}, s{S_T3}, 18")
    e.salu(f"s_add_u32 s{S_KA + 2}, s{S_KA + 2}, s{S_T3}")
    e.salu(f"s_addc_u32 s{S_KA + 3}, s{S_KA + 3}, 0")
    srd(e, S_K, S_KA + 2, S_KA + 3, 262144)
    e.salu(f"s_add_u32 s{S_KA + 4}, s{S_KA + 4}, s{S_T3}")
    e.salu(f"s_addc_u32 s{S_KA + 5}, s{S_KA + 5}, 0")
    srd(e, S_V, S_KA + 4, S_KA + 5, 262144)
    e.salu(f"s_mul_i32 s{S_T3}, s{S_T0}, 458752")
    e.salu(f"s_add_u32 s{S_KA + 8}, s{S_KA + 8}, s{S_T3}")
    e.salu(f"s_addc_u32 s{S_KA + 9}, s{S_KA + 9}, 0")
    srd(e, S_WO, S_KA + 8, S_KA + 9, 458752)
    e.salu(f"s_mul_i32 s{S_T3}, s2, 114688")
    e.salu(f"s_add_u32 s{S_KA + 20}, s{S_KA + 20}, s{S_T3}")
    e.salu(f"s_addc_u32 s{S_KA + 21}, s{S_KA + 21}, 0")
    srd(e, S_P, S_KA + 20, S_KA + 21, 114688)
    stamp(e, 0)

    def adv_x(sr):
        e.salu(f"s_add_u32 s{sr}, s{sr}, 8192")
        e.salu(f"s_cmp_ge_u32 s{sr}, 24576")
        e.salu(f"s_cselect_b32 s{sr}, 0, s{sr}")

    def xdma(tag):
        def f():
            e.salu(f"s_add_u32 s{S_T0}, s{S_XW}, s{S_XD}")
            dma(e, V_DX, S_X, S_XOFF, (S_T0, 0), tag)
            e.salu(f"s_add_u32 s{S_XOFF}, s{S_XOFF}, 64")
            adv_x(S_XD)
        return [f]

    def run(lst):
        for f in lst:
            f()

    run(dma_wq_pair(e, ("D", 0)))
    run(xdma(("X", 0)))
    run(dma_wq_pair(e, ("D", 1)))
    run(xdma(("X", 1)))
    run(dma_wq_pair(e, ("D", 2)))
    if NODMA:
        run(dma_wq_pair(e, ("D", 99)))
        run(xdma(("X", 99)))
        e.raw("s_waitcnt vmcnt(0)")
        e.vm_q = []
        NODMA_ON[0] = True
    V(f"v_lshrrev_b32 v{t1}, 4, v{L}", t1, L)
    V(f"v_lshlrev_b32 v{t1}, 13, v{t1}", t1, t1)
    V(f"v_and_b32 v{t2}, 15, v{L}", t2, L)
    V(f"v_lshl_add_u32 v{t1}, v{t2}, 6, v{t1}", t1, t2, t1)
    e.salu(f"s_mul_i32 s{S_T0}, s{S_B}, 28")
    e.salu(f"s_lshl_b32 s{S_T1}, s{S_W}, 2")
    e.salu(f"s_add_u32 s{S_T0}, s{S_T0}, s{S_T1}")
    e.salu(f"s_lshl_b32 s{S_T0}, s{S_T0}, 13")
    if PF_WQ:
        e.raw(f"buffer_load_dword v{V_PF}, v{t1}, s[{S_WQ}:{S_WQ + 3}], s{S_T0} offen")
    if PF_X:
        V(f"v_lshlrev_b32 v{t1}, 5, v{L}", t1, L)
        e.salu(f"s_and_b32 s{S_T0}, s2, 7")
        e.salu(f"s_mul_i32 s{S_T0}, s{S_T0}, 14336")
        e.salu(f"s_mul_i32 s{S_T1}, s{S_W}, 1792")
        e.salu(f"s_add_u32 s{S_T0}, s{S_T0}, s{S_T1}")
        e.raw(f"buffer_load_dword v{V_Q}, v{t1}, s[{S_X}:{S_X + 3}], s{S_T0} offen")

    c = math.log2(math.e) / 16.0
    e.salu(f"s_mov_b32 s{S_C}, {struct.unpack('<I', struct.pack('<f', c))[0]:#x}")
    e.salu(f"s_mov_b32 s{S_NC}, {struct.unpack('<I', struct.pack('<f', -c))[0]:#x}")
    e.salu(f"s_mov_b32 s{S_THR}, 0x41000000")
    V(f"v_lshrrev_b32 v{t1}, 4, v{L}", t1, L)
    V(f"v_bfe_u32 v{t2}, v{L}, 2, 2", t2, L)
    V(f"v_lshl_add_u32 v{t2}, v{t1}, 3, v{t2}", t2, t1, t2)
    V(f"v_mul_u32_u24 v{t2}, 1088, v{t2}", t2, t2)
    V(f"v_and_b32 v{t1}, 1, v{t1}", t1, t1)
    V(f"v_lshl_add_u32 v{t2}, v{t1}, 3, v{t2}", t2, t1, t2)
    V(f"v_and_b32 v{t1}, 3, v{L}", t1, L)
    V(f"v_lshl_add_u32 v{t2}, v{t1}, 4, v{t2}", t2, t1, t2)
    e.salu(f"s_lshl_b32 s{S_T3}, s{S_HH}, 9")
    V(f"v_add_u32 v{V_PATA}, s{S_T3}, v{t2}", V_PATA, t2)
    V(f"v_bfe_u32 v{t1}, v{L}, 2, 2", t1, L)
    V(f"v_sub_u32 v{t1}, 4, v{t1}", t1, t1)
    V(f"v_and_b32 v{t1}, 3, v{t1}", t1, t1)
    V(f"v_lshrrev_b32 v{t2}, 4, v{L}", t2, L)
    V(f"v_xor_b32 v{t1}, v{t1}, v{t2}", t1, t1, t2)
    V(f"v_lshlrev_b32 v{t1}, 4, v{t1}", t1, t1)
    V(f"v_and_b32 v{t2}, 15, v{L}", t2, L)
    V(f"v_lshl_add_u32 v{t1}, v{t2}, 6, v{t1}", t1, t2, t1)
    e.salu(f"s_lshl_b32 s{S_T3}, s{S_QH}, 11")
    e.salu(f"s_add_u32 s{S_T3}, s{S_T3}, {RING}")
    V(f"v_add_u32 v{V_PATB}, s{S_T3}, v{t1}", V_PATB, t1)
    V(f"v_lshrrev_b32 v{t2}, 5, v{L}", t2, L)
    V(f"v_and_b32 v{t1}, 31, v{L}", t1, L)
    V(f"v_xor_b32 v{t1}, v{t1}, v{t2}", t1, t1, t2)
    V(f"v_lshlrev_b32 v{t1}, 4, v{t1}", t1, t1)
    V(f"v_lshl_add_u32 v{V_DK}, v{t2}, 9, v{t1}", V_DK, t2, t1)
    V(f"v_add_u32 v{V_RDA}, s{S_RD}, v{V_PATA}", V_RDA, V_PATA)

    def xread(xs, G):
        V(f"v_add_u32 v{V_RDB}, s{S_XR}, v{V_PATB}", V_RDB, V_PATB)
        for cb in range(NCB):
            e.ds(f"ds_read_b128 {rn(xs + 4 * cb, 4)}, v{V_RDB} offset:{1024 * cb}", ("x", G), dst=range(xs + 4 * cb, xs + 4 * cb + 4))
        adv_x(S_XR)

    e.wait_vm(("X", 0))
    e.salu("s_barrier")
    stamp(e, 1)
    xread(V_S0, 0)
    e.wait_lds(("x", 0))

    fs = FragStream(e)
    dq = []
    dqs = {"sp": 4, "cnt": 0}

    def defer(lst, sp):
        assert not dq, "previous DMA pieces still pending"
        dq.extend(lst)
        dqs["sp"] = sp
        dqs["cnt"] = 0

    fidx = [0]

    def tick():
        if dq:
            dqs["cnt"] += 1
            if dqs["cnt"] >= dqs["sp"]:
                dqs["cnt"] = 0
                dq.pop(0)()

    def frag_begin():
        i = fidx[0]
        assert i < fs.issued
        if PAIRW:
            if i % 2 == 0:
                e.wait_lds(("fr", i + 1) if i + 1 < fs.issued else ("fr", i))
            else:
                e.wait_lds(("fr", i))
        else:
            e.wait_lds(("fr", i))
        return fs.buf(i)

    def frag_end():
        fidx[0] += 1

    def group(dsts, bs, zero, hooks):
        a = frag_begin()
        for k in range(NCB):
            e.mfma(dsts[k], a, bs[k], None if zero else dsts[k])
            if PAIRW:
                if k == NCB - 1:
                    fs.issue_next()
            elif k == 0:
                fs.issue_next()
            tick()
            hooks(k)
        frag_end()

    def p1_frags():
        for ct in range(16):
            off = 64 * (ct >> 1) + 8 * (ct & 1)
            fs.push(rd_tr(e, V_RDA, off, off + 4 * 1088))

    def next_rd_a():
        adv_slot(e, S_RD)
        V(f"v_add_u32 v{V_RDA}, s{S_RD}, v{V_PATA}", V_RDA, V_PATA)

    def kvpf_setup():
        e.salu(f"s_and_b32 s{S_T0}, s{S_W}, 1")
        e.salu(f"s_cmp_eq_u32 s{S_T0}, 1")
        for i in range(4):
            e.salu(f"s_cselect_b32 s{S_PFS + i}, s{S_V + i}, s{S_K + i}")
        e.salu(f"s_lshr_b32 s{S_PFO}, s2, 4")
        e.salu(f"s_xor_b32 s{S_PFO}, s{S_PFO}, s2")
        e.salu(f"s_add_u32 s{S_PFO}, s{S_PFO}, {KVPF_T0}")
        e.salu(f"s_add_u32 s{S_PFO}, s{S_PFO}, s{S_HH}")
        e.salu(f"s_and_b32 s{S_PFO}, s{S_PFO}, 15")
        e.salu(f"s_lshl_b32 s{S_PFO}, s{S_PFO}, 14")
        e.salu(f"s_lshl_b32 s{S_T0}, s{S_SK}, 10")
        e.salu(f"s_add_u32 s{S_PFO}, s{S_PFO}, s{S_T0}")
        V(f"v_lshlrev_b32 v{V_Q + 1}, 7, v{L}", V_Q + 1, L)

    def kvpf():
        e.raw(f"buffer_load_dword v{V_Q}, v{V_Q + 1}, s[{S_PFS}:{S_PFS + 3}], s{S_PFO} offen{KVPF_POL}")
        e.salu(f"s_add_u32 s{S_PFO}, s{S_PFO}, 32768")
        e.salu(f"s_and_b32 s{S_PFO}, s{S_PFO}, 0x3ffff")

    def p1_step(G, issue, push_next):
        xs = V_S0 if G % 2 == 0 else V_S1
        xn = V_S1 if G % 2 == 0 else V_S0
        e.wait_lds(("x", G))
        for ct in range(16):
            def hooks(k, ct=ct):
                if NCB * ct + k == BAR1:
                    if G + 1 <= 13:
                        e.wait_vm(("X", G + 1))
                    e.wait_vm(("D", G + 1))
                    e.salu("s_barrier")
                    if G + 1 <= 13:
                        xread(xn, G + 1)
                    pieces = xdma(("X", G + 2)) if G + 2 <= 13 else []
                    pieces += issue()
                    if G == 0:
                        pieces += [kvpf] * KVPF
                    if G in (11, 12, 13) and KVPF_LATE > G - 11:
                        pieces.append(kvpf)
                    defer(pieces, SP1 if len(pieces) <= 5 else 2 if len(pieces) <= 8 else 1)
                    push_next()
            group([V_O + 8 * ct + 4 * cb for cb in range(NCB)], [xs + 4 * cb for cb in range(NCB)], G == 0, hooks)

    if KVPF:
        kvpf_setup()
    p1_frags()
    for _ in range(DPF):
        fs.issue_next()

    def push_p1():
        fs.push(("pre", next_rd_a))
        p1_frags()

    p1_step(0, lambda: dma_wq_pair(e, ("D", 3)), push_p1)

    def p1_body(i):
        G = 1 + 2 * i
        p1_step(G, lambda: dma_wq_pair(e, ("D", G + 3)), push_p1)
        p1_step(G + 1, lambda: dma_wq_pair(e, ("D", G + 4)), push_p1)

    e.loop("L_p1", 5, p1_body, f"s{S_CNT}")

    def kv_setup():
        e.salu(f"s_mul_i32 s{S_WM0A}, s{S_W}, {2 * 1056}")
        e.salu(f"s_mul_i32 s{S_WM0B}, s{S_W}, {2 * 1088}")
        e.salu(f"s_add_u32 s{S_WM0B}, s{S_WM0B}, s{S_SK}")
        e.salu(f"s_add_u32 s{S_WM0B}, s{S_WM0B}, {TILE}")
        e.salu(f"s_lshr_b32 s{S_OFFA}, s2, 4")
        e.salu(f"s_xor_b32 s{S_OFFA}, s{S_OFFA}, s2")
        e.salu(f"s_and_b32 s{S_OFFA}, s{S_OFFA}, 15")
        e.salu(f"s_lshl_b32 s{S_OFFA}, s{S_OFFA}, 14")
        e.salu(f"s_lshl_b32 s{S_OFFB}, s{S_W}, 11")
        e.salu(f"s_add_u32 s{S_OFFA}, s{S_OFFA}, s{S_OFFB}")
        e.salu(f"s_mov_b32 s{S_OFFB}, s{S_OFFA}")

    def iss14():
        kv_setup()
        return dma_kv_pair(e, ("D", 14), k=True, v=False)
    p1_step(11, iss14, push_p1)
    p1_step(12, lambda: dma_kv_pair(e, ("D", 15)), push_p1)

    def kv_patterns():
        a, b2 = V_T2, V_T3
        V(f"v_and_b32 v{a}, 15, v{L}", a, L)
        V(f"v_mul_u32_u24 v{a}, 1056, v{a}", a, a)
        V(f"v_lshrrev_b32 v{b2}, 4, v{L}", b2, L)
        V(f"v_lshl_add_u32 v{V_PATA}, v{b2}, 4, v{a}", V_PATA, b2, a)
        V(f"v_bfe_u32 v{a}, v{L}, 2, 2", a, L)
        V(f"v_lshl_add_u32 v{a}, v{b2}, 2, v{a}", a, b2, a)
        V(f"v_mul_u32_u24 v{a}, 1088, v{a}", a, a)
        V(f"v_and_b32 v{b2}, 1, v{b2}", b2, b2)
        V(f"v_lshl_add_u32 v{a}, v{b2}, 3, v{a}", a, b2, a)
        V(f"v_and_b32 v{b2}, 3, v{L}", b2, L)
        V(f"v_lshl_add_u32 v{a}, v{b2}, 4, v{a}", a, b2, a)
        V(f"v_add_u32 v{V_PATB}, {TILE}, v{a}", V_PATB, a)

    def k_frags():
        for ks in range(8):
            for t in range(2):
                fs.push(rd_128(e, V_RDA if t == 0 else V_RDC, ks * 64 + 512 * t))

    def v_frags():
        for dt in range(16):
            off = 64 * (dt >> 1) + 8 * (dt & 1)
            fs.push(rd_tr(e, V_RDB, off, off + 512))

    def next_rd_kv():
        adv_slot(e, S_RD)
        V(f"v_add_u32 v{V_RDA}, s{S_RD}, v{V_PATA}", V_RDA, V_PATA)
        V(f"v_xor_b32 v{V_RDC}, 16, v{V_RDA}", V_RDC, V_RDA)
        V(f"v_add_u32 v{V_RDB}, s{S_RD}, v{V_PATB}", V_RDB, V_PATB)

    def push_k0():
        def pre():
            kv_patterns()
            next_rd_kv()
        fs.push(("pre", pre))
        k_frags()

    p1_step(13, lambda: dma_kv_pair(e, ("D", 16)), push_k0)
    stamp(e, 2)

    def pack_pair(T, cb, scale=False):
        fl = []
        for tp in range(2):
            src = V_O + 8 * (2 * T + tp) + 4 * cb
            if scale:
                for i in range(4):
                    fl.append(lambda i=i, src=src: V(f"v_mul_f32 v{src + i}, v{src + i}, v{V_LSUM + cb}",
                                                     src + i, src + i, V_LSUM + cb))
            for h2 in range(2):
                d = V_Q + 32 * cb + 4 * T + 2 * tp + h2
                fl.append(lambda d=d, src=src, h2=h2: e.valu(
                    f"v_cvt_pk_bf16_f32 v{d}, v{src + 2 * h2}, v{src + 2 * h2 + 1}",
                    dst=[d], src=[src + 2 * h2, src + 2 * h2 + 1]))
        return fl

    for T in range(8):
        for cb in range(NCB):
            run(pack_pair(T, cb))
    for cb in range(NCB):
        V(f"v_mov_b32 v{V_LSUM + cb}, 0", V_LSUM + cb)

    def spread(fl, nslots):
        st = {"k": 0}

        def f(slot):
            tgt = (len(fl) * (slot + 1) + nslots - 1) // nslots
            while st["k"] < min(tgt, len(fl)):
                fl[st["k"]]()
                st["k"] += 1
        return f

    def qk_stage(sn, fl, mid=None):
        sp = spread(fl, 31)
        for ks in range(8):
            for t in range(2):
                def hooks(k, ks=ks, t=t):
                    slot = 4 * ks + 2 * t + k
                    sp(slot)
                    if mid is not None and slot == mid[0]:
                        mid[1]()
                group([sn + 8 * cb + 4 * t for cb in range(NCB)], [V_Q + 32 * cb + 4 * ks for cb in range(NCB)], ks == 0, hooks)

    def exp_fillers(sc):
        fl = []
        for cb in range(NCB):
            for p in range(4):
                a, b = sc + 8 * cb + 2 * p, sc + 8 * cb + 2 * p + 1
                nm, ls = V_NEGM + cb, V_LSUM + cb
                if PK_FMA:
                    sel = "op_sel_hi:[1,0,0]" if cb == 0 else "op_sel:[0,0,1] op_sel_hi:[1,0,1]"
                    fl.append(lambda a=a, sel=sel: e.valu(
                        f"v_pk_fma_f32 v[{a}:{a + 1}], v[{a}:{a + 1}], s[{S_C}:{S_C + 1}], v[{V_NEGM}:{V_NEGM + 1}] {sel}",
                        dst=[a, a + 1], src=[a, a + 1, V_NEGM, V_NEGM + 1]))
                else:
                    fl.append(lambda a=a, nm=nm: e.valu(f"v_fma_f32 v{a}, v{a}, s{S_C}, v{nm}", dst=[a], src=[a, nm]))
                    fl.append(lambda b=b, nm=nm: e.valu(f"v_fma_f32 v{b}, v{b}, s{S_C}, v{nm}", dst=[b], src=[b, nm]))
                fl.append(lambda a=a: e.valu(f"v_exp_f32 v{a}, v{a}", dst=[a], src=[a], trans=True))
                fl.append(lambda b=b: e.valu(f"v_exp_f32 v{b}, v{b}", dst=[b], src=[b], trans=True))
                fl.append(lambda a=a, ls=ls: e.valu(f"v_add_f32 v{ls}, v{ls}, v{a}", dst=[ls], src=[ls, a]))
                fl.append(lambda b=b, ls=ls: e.valu(f"v_add_f32 v{ls}, v{ls}, v{b}", dst=[ls], src=[ls, b]))
                d = sc + 8 * cb + p
                fl.append(lambda a=a, b=b, d=d: e.valu(f"v_cvt_pk_bf16_f32 v{d}, v{a}, v{b}", dst=[d], src=[a, b]))
        return fl

    def max_fillers(sn):
        fl = []
        for cb in range(NCB):
            s0 = sn + 8 * cb
            tm = V_TM + cb
            fl.append(lambda s0=s0, tm=tm: e.valu(f"v_max3_f32 v{tm}, v{s0}, v{s0 + 1}, v{s0 + 2}", dst=[tm], src=[s0, s0 + 1, s0 + 2]))
            fl.append(lambda s0=s0, tm=tm: e.valu(f"v_max3_f32 v{tm}, v{tm}, v{s0 + 3}, v{s0 + 4}", dst=[tm], src=[tm, s0 + 3, s0 + 4]))
            fl.append(lambda s0=s0, tm=tm: e.valu(f"v_max3_f32 v{tm}, v{tm}, v{s0 + 5}, v{s0 + 6}", dst=[tm], src=[tm, s0 + 5, s0 + 6]))
            fl.append(lambda s0=s0, tm=tm: e.valu(f"v_max_f32 v{tm}, v{tm}, v{s0 + 7}", dst=[tm], src=[tm, s0 + 7]))
        return fl

    def check_fillers():
        fl = []
        fl.append(lambda: e.valu(f"v_fma_f32 v{V_TMP}, v{V_TM}, s{S_C}, v{V_NEGM}", dst=[V_TMP], src=[V_TM, V_NEGM]))
        fl.append(lambda: e.valu(f"v_cmp_lt_f32 s[{S_T0 + 55}:{S_T0 + 56}], s{S_THR}, v{V_TMP}", dst=[], src=[V_TMP]))
        fl.append(lambda: e.valu(f"v_fma_f32 v{V_TMP}, v{V_TM + 1}, s{S_C}, v{V_NEGM + 1}", dst=[V_TMP], src=[V_TM + 1, V_NEGM + 1]))
        fl.append(lambda: e.valu(f"v_cmp_lt_f32 vcc, s{S_THR}, v{V_TMP}", dst=[], src=[V_TMP]))
        return fl

    def cross_g(op, reg, tmp):
        for sw in ("v_permlane16_swap_b32", "v_permlane32_swap_b32"):
            V(f"v_mov_b32 v{tmp}, v{reg}", tmp, reg)
            e.nop(2)
            e.valu(f"{sw} v{reg}, v{tmp}", dst=[reg, tmp], src=[reg, tmp])
            V(f"{op} v{reg}, v{reg}, v{tmp}", reg, reg, tmp)

    def push_kv():
        fs.push(("pre", next_rd_kv))
        k_frags()
        v_frags()

    def mid14():
        e.wait_vm(("D", 15))
        e.salu("s_barrier")
        defer(dma_kv_pair(e, ("D", 17)), SP2)
        push_kv()
    qk_stage(V_S0, [], mid=(BAR2, mid14))
    V(f"v_lshlrev_b32 v{V_T2}, 6, v{L}", V_T2, L)
    e.salu(f"s_mul_i32 s{S_T0}, s{S_B}, 28672")
    e.salu(f"s_lshl_b32 s{S_T1}, s{S_W}, 12")
    e.salu(f"s_add_u32 s{S_T0}, s{S_T0}, s{S_T1}")
    e.salu(f"s_lshl_b32 s{S_T1}, s{S_W}, 8")
    e.salu(f"s_add_u32 m0, s{S_T1}, {RING}")
    e.salu("s_nop 0")
    if PF_WO:
        e.raw(f"buffer_load_dword v{V_T2}, s[{S_WO}:{S_WO + 3}], s{S_T0} offen lds")
    run(max_fillers(V_S0))
    for cb in range(NCB):
        cross_g("v_max_f32", V_TM + cb, V_TMP)
        V(f"v_mul_f32 v{V_NEGM + cb}, s{S_NC}, v{V_TM + cb}", V_NEGM + cb, V_TM + cb)

    rare = []

    def p2_step(t, issue, push_next, tagname):
        G = 15 + t
        sc = V_S0 if t % 2 == 0 else V_S1
        sn = V_S1 if t % 2 == 0 else V_S0
        qk_stage(sn, exp_fillers(sc))
        mx = max_fillers(sn) + check_fillers()
        sp = spread(mx, 16)
        for dt in range(16):
            def hooks(k, dt=dt):
                slot = 2 * dt + k
                if slot == BAR2:
                    e.wait_vm(("D", G + 1))
                    e.salu("s_barrier")
                    defer(issue(), SP2)
                    push_next()
                if slot >= 10:
                    sp(slot - 10)
            group([V_O + 8 * dt + 4 * cb for cb in range(NCB)], [sc + 8 * cb for cb in range(NCB)], t == 0, hooks)
        e.salu(f"s_or_b64 vcc, vcc, s[{S_T0 + 55}:{S_T0 + 56}]")
        e.salu(f"s_cbranch_scc1 L_rare_{tagname}")
        e.label(f"L_back_{tagname}")
        rare.append(tagname)

    p2_step(0, lambda: dma_kv_pair(e, ("D", 18)), push_kv, "z")
    p2_step(1, lambda: dma_kv_pair(e, ("D", 19)), push_kv, "y")

    def p2_body(i):
        t = 2 + 2 * i
        p2_step(t, lambda: dma_kv_pair(e, ("D", 15 + t + 3)), push_kv, "a")
        p2_step(t + 1, lambda: dma_kv_pair(e, ("D", 15 + t + 4)), push_kv, "b")

    e.loop("L_p2", 5, p2_body, f"s{S_CNT}")
    rare[:] = ["z", "y", "a", "b"]
    p2_step(12, lambda: dma_kv_pair(e, ("D", 30), k=False, v=True), push_kv, "c")

    def wo_setup():
        a, b2 = V_T3, V_T2
        V(f"v_bfe_u32 v{a}, v{L}, 4, 1", a, L)
        V(f"v_lshlrev_b32 v{a}, 1, v{a}", a, a)
        V(f"v_and_b32 v{b2}, 7, v{L}", b2, L)
        V(f"v_xor_b32 v{a}, v{a}, v{b2}", a, a, b2)
        V(f"v_lshlrev_b32 v{a}, 4, v{a}", a, a)
        V(f"v_lshrrev_b32 v{b2}, 3, v{L}", b2, L)
        V(f"v_mul_u32_u24 v{b2}, 896, v{b2}", b2, b2)
        V(f"v_add_u32 v{V_DWO0}, v{a}, v{b2}", V_DWO0, a, b2)
        V(f"v_xor_b32 v{a}, 64, v{a}", a, a)
        V(f"v_add_u32 v{V_DWO1}, v{a}, v{b2}", V_DWO1, a, b2)
        e.salu(f"s_lshl_b32 s{S_WM0C}, s{S_W}, 11")
        e.salu(f"s_mul_i32 s{S_XOFF}, s{S_W}, {16 * 896}")

    def iss_wo0():
        wo_setup()
        return dma_wo_pair(e, ("D", 31), 0)
    p2_step(13, iss_wo0, push_kv, "d")

    def push_v_only():
        fs.push(("pre", next_rd_kv))
        v_frags()
    p2_step(14, lambda: dma_wo_pair(e, ("D", 32), 1), push_v_only, "e")

    RD3 = [V_RDA, V_RDB, V_RDC, V_RDD]

    def wo_patterns():
        a, b2 = V_T2, V_T3
        V(f"v_lshrrev_b32 v{a}, 4, v{L}", a, L)
        V(f"v_bfe_u32 v{b2}, v{L}, 2, 2", b2, L)
        V(f"v_lshl_add_u32 v{a}, v{a}, 3, v{b2}", a, a, b2)
        V(f"v_lshlrev_b32 v{a}, 7, v{a}", a, a)
        V(f"v_bfe_u32 v{b2}, v{L}, 3, 2", b2, L)
        e.salu(f"s_lshl_b32 s{S_T3}, s{S_HH}, 1")
        V(f"v_xor_b32 v{b2}, s{S_T3}, v{b2}", b2, b2)
        V(f"v_lshl_add_u32 v{a}, v{b2}, 5, v{a}", a, b2, a)
        V(f"v_and_b32 v{b2}, 3, v{L}", b2, L)
        V(f"v_lshl_add_u32 v{a}, v{b2}, 3, v{a}", a, b2, a)
        e.salu(f"s_mul_i32 s{S_T3}, s{S_HH}, {TILE}")
        V(f"v_add_u32 v{V_PATA}, s{S_T3}, v{a}", V_PATA, a)

    def next_rd3():
        adv_slot(e, S_RD)
        V(f"v_add_u32 v{RD3[0]}, s{S_RD}, v{V_PATA}", RD3[0], V_PATA)
        for u in range(1, 4):
            V(f"v_xor_b32 v{RD3[u]}, {32 * u}, v{RD3[0]}", RD3[u], RD3[0])

    ULORD = (2, 3, 0, 1)

    def p3_frags():
        for kk in range(4):
            for ul in ULORD:
                off = kk * 4096
                fs.push(rd_tr(e, RD3[ul], off, off + 512))

    def push_p3_first():
        def pre():
            wo_patterns()
            next_rd3()
        fs.push(("pre", pre))
        p3_frags()

    def push_p3():
        fs.push(("pre", next_rd3))
        p3_frags()

    sc = V_S1
    run(exp_fillers(sc))
    for cb in range(NCB):
        cross_g("v_add_f32", V_LSUM + cb, V_TMP)
        e.valu(f"v_rcp_f32 v{V_LSUM + cb}, v{V_LSUM + cb}", dst=[V_LSUM + cb], src=[V_LSUM + cb], trans=True)

    pend = []
    for dt in range(16):
        def hooks(k, dt=dt):
            slot = 2 * dt + k
            if slot == BAR2:
                e.wait_vm(("D", 31))
                e.salu("s_barrier")
                defer(dma_wo_pair(e, ("D", 33), 2), SP2)
                push_p3_first()
            if k == 1 and dt % 2 == 1 and dt >= 3:
                T = (dt - 3) // 2
                for cb in range(NCB):
                    pend.extend(pack_pair(T, cb, scale=True))
            for _ in range(6):
                if pend:
                    pend.pop(0)()
        group([V_O + 8 * dt + 4 * cb for cb in range(NCB)], [sc + 8 * cb for cb in range(NCB)], False, hooks)
    for cb in range(NCB):
        pend.extend(pack_pair(7, cb, scale=True))
    stamp(e, 3)
    stamp(e, 4)

    ACC = [V_S0, 0]
    V_R = 32
    V_PK = 48
    V_EXW = [56, 57, 58, 59]
    V_EXR = [60, 61, 62, 63]

    def ex_addr(dst, wreg):
        e.salu(f"s_lshl_b32 s{S_T0}, s{wreg}, 12")
        e.salu(f"s_add_u32 s{S_T0}, s{S_T0}, {RING}")
        e.salu(f"s_sub_u32 s{S_T1}, s{wreg}, 6")
        e.salu(f"s_mul_i32 s{S_T1}, s{S_T1}, {4 * TILE}")
        e.salu(f"s_add_u32 s{S_T1}, s{S_T1}, 16384")
        e.salu(f"s_cmp_ge_u32 s{wreg}, 6")
        e.salu(f"s_cselect_b32 s{S_T0}, s{S_T1}, s{S_T0}")
        e.salu(f"s_mov_b32 s{S_T1}, 1024")
        e.salu(f"s_cselect_b32 s{S_T1}, {TILE}, s{S_T1}")
        for i in range(4):
            V(f"v_add_u32 v{dst[i]}, s{S_T0}, v{V_DLIN}", dst[i], V_DLIN)
            if i < 3:
                e.salu(f"s_add_u32 s{S_T0}, s{S_T0}, s{S_T1}")

    def p3_setup():
        ex_addr(V_EXW, S_W)
        e.salu(f"s_xor_b32 s{S_XR}, s{S_W}, 4")
        ex_addr(V_EXR, S_XR)
        e.salu(f"s_mul_i32 s{S_POFF}, s{S_W}, {7 * 2048}")

    def send_fillers(s_):
        acc = ACC[s_ & 1] + 16
        return [(lambda i=i: e.ds(f"ds_write_b128 v{V_EXW[i]}, {rn(acc + 4 * i, 4)}", ("exw", s_),
                                  src=range(acc + 4 * i, acc + 4 * i + 4))) for i in range(4)]

    def recv_fillers(s_):
        return [(lambda i=i: e.ds(f"ds_read_b128 {rn(V_R + 4 * i, 4)}, v{V_EXR[i]}", ("exr", s_),
                                  dst=range(V_R + 4 * i, V_R + 4 * i + 4))) for i in range(4)]

    def fin_fillers(s_):
        acc = ACC[s_ & 1]
        fl = [lambda: None] * 6 + [lambda: e.wait_lds(("exr", s_))]
        for j in range(16):
            fl.append(lambda j=j: V(f"v_add_f32 v{V_R + j}, v{V_R + j}, v{acc + j}", V_R + j, V_R + j, acc + j))
        for ul in range(2):
            for cb in range(NCB):
                tb = V_R + 8 * ul + 4 * cb
                for h2 in range(2):
                    d = V_PK + 4 * cb + 2 * ul + h2
                    fl.append(lambda d=d, tb=tb, h2=h2: e.valu(f"v_cvt_pk_bf16_f32 v{d}, v{tb + 2 * h2}, v{tb + 2 * h2 + 1}",
                                                               dst=[d], src=[tb + 2 * h2, tb + 2 * h2 + 1]))

        def st():
            for cb in range(NCB):
                rg = V_PK + 4 * cb
                e.raw(f"buffer_store_dwordx4 {rn(rg, 4)}, v{V_DLIN}, s[{S_P}:{S_P + 3}], s{S_POFF} offen offset:{cb * 1024} sc1")
            e.salu(f"s_add_u32 s{S_POFF}, s{S_POFF}, 2048")
            e.nop(1)
        fl.append(st)
        return fl

    def p3_step(p, issue, push, extra=None):
        G = 31 + p
        s_, ip = p >> 1, p & 1
        acc = ACC[s_ & 1]
        ext = list(extra) if extra else []
        pre = send_fillers(s_ - 1) if (ip == 0 and s_ >= 1) else []
        post = []
        slot = [0]
        for kk in range(4):
            for ul in ULORD:
                def hooks(k):
                    sl = slot[0]
                    slot[0] += 1
                    if sl >= 2:
                        for _ in range(3):
                            if pre:
                                pre.pop(0)()
                            elif ext:
                                ext.pop(0)()
                                if ext:
                                    ext.pop(0)()
                            elif post:
                                post.pop(0)()
                    if sl == BAR3:
                        assert not pre
                        if ip == 0 and s_ >= 1:
                            e.wait_lds(("exw", s_ - 1))
                        e.wait_vm(("D", G + 1))
                        e.salu("s_barrier")
                        if ip == 0 and s_ >= 1:
                            post.extend(recv_fillers(s_ - 1) + fin_fillers(s_ - 1))
                        defer(issue(), SP3)
                        if push:
                            push_p3()
                group([acc + 8 * ul + 4 * cb for cb in range(NCB)],
                      [V_Q + 32 * cb + 4 * (4 * ip + kk) for cb in range(NCB)], ip == 0 and kk == 0, hooks)
        assert not post and not pre and not ext, (len(post), len(pre), len(ext))

    p3_setup()

    def iss3(p):
        return (lambda: dma_wo_pair(e, ("D", 31 + p), p)) if p <= 13 else (lambda: [])

    p3_step(0, iss3(3), True, extra=pend)
    p3_step(1, iss3(4), True)

    def p3_body(i):
        p = 2 + 4 * i
        for d in range(4):
            p3_step(p + d, iss3(p + d + 3), True)

    e.loop("L_p3", 2, p3_body, f"s{S_CNT}")
    p3_step(10, iss3(13), True)
    p3_step(11, iss3(14), True)
    p3_step(12, iss3(15), True)
    p3_step(13, iss3(16), False)
    run(send_fillers(6))
    e.wait_lds(("exw", 6))
    e.salu("s_barrier")
    run(recv_fillers(6))
    run(fin_fillers(6))
    stamp(e, 5)
    stamp_flush(e, 8)
    e.label("L_attn_exit")
    e.salu("s_endpgm")

    for tg in rare:
        e.label(f"L_rare_{tg}")
        e.raw("s_nop 15", 16)
        for cb in range(NCB):
            tm, nm, ls = V_TM + cb, V_NEGM + cb, V_LSUM + cb
            for sw in ("v_permlane16_swap_b32", "v_permlane32_swap_b32"):
                e.raw(f"v_mov_b32 v{V_TMP}, v{tm}")
                e.raw("s_nop 1", 2)
                e.raw(f"{sw} v{tm}, v{V_TMP}")
                e.raw(f"v_max_f32 v{tm}, v{tm}, v{V_TMP}")
            e.raw(f"v_mul_f32 v{tm}, s{S_NC}, v{tm}")
            e.raw(f"v_min_f32 v{V_TMP}, v{tm}, v{nm}")
            e.raw(f"v_sub_f32 v{tm}, v{V_TMP}, v{nm}")
            e.raw(f"v_exp_f32 v{tm}, v{tm}")
            e.raw(f"v_mov_b32 v{nm}, v{V_TMP}")
            e.raw("s_nop 0")
            e.raw(f"v_mul_f32 v{ls}, v{ls}, v{tm}")
        for dt in range(16):
            for cb in range(NCB):
                for i in range(4):
                    a = V_O + 8 * dt + 4 * cb + i
                    e.raw(f"v_mul_f32 v{a}, v{a}, v{V_TM + cb}")
        e.raw("s_nop 1", 2)
        e.raw(f"s_branch L_back_{tg}")


def gen_reduce(e):
    NU = RED_UNITS
    NR = 28 // NU
    e.label("reduce_kernel")
    e.salu(f"s_cmp_ge_u32 s2, {32 * NR}")
    e.salu("s_cbranch_scc1 L_red_exit")
    e.salu("s_load_dwordx2 s[4:5], s[0:1], 80")
    e.salu("s_load_dwordx2 s[6:7], s[0:1], 96")
    e.salu(f"s_mul_hi_u32 s8, s2, {(2**32 + NR - 1) // NR:#x}")
    e.salu(f"s_mul_i32 s9, s8, {NR}")
    e.salu("s_sub_u32 s9, s2, s9")
    e.raw("v_lshlrev_b32 v4, 4, v0")
    e.salu("s_lshl_b32 s26, s9, 12")
    e.salu("s_lshl_b32 s9, s9, 1")
    e.raw("v_lshrrev_b32 v3, 7, v0")
    e.raw("v_add_u32 v3, s9, v3")
    e.salu("s_waitcnt lgkmcnt(0)")
    e.salu("s_mul_i32 s10, s8, 917504")
    e.salu("s_add_u32 s6, s6, s10")
    e.salu("s_addc_u32 s7, s7, 0")
    e.salu("s_mov_b32 s12, s6")
    e.salu("s_and_b32 s13, s7, 0xffff")
    e.salu("s_mov_b32 s14, 917504")
    e.salu("s_mov_b32 s15, 0x00020000")
    e.salu("s_mov_b32 s16, s4")
    e.salu("s_and_b32 s17, s5, 0xffff")
    e.salu("s_mov_b32 s18, 3670016")
    e.salu("s_mov_b32 s19, 0x00020000")
    for u in range(NU):
        for h in range(8):
            e.salu(f"s_add_u32 s20, s26, {h * 114688 + u * NR * 4096}")
            r0 = 24 + 32 * u + 4 * h
            e.raw(f"buffer_load_dwordx4 v[{r0}:{r0 + 3}], v4, s[12:15], s20 offen{RED_POL}")
    e.salu("s_and_b32 s21, s8, 15")
    e.salu("s_lshr_b32 s22, s8, 4")
    e.salu("s_mul_i32 s21, s21, 229376")
    e.salu("s_mul_i32 s22, s22, 896")
    e.salu("s_add_u32 s21, s21, s22")
    e.salu("s_mov_b32 s23, 0xffff0000")
    for u in range(NU):
        e.raw("v_mul_u32_u24 v5, 37, v3")
        e.raw("v_lshrrev_b32 v5, 8, v5")
        e.raw("v_mul_u32_u24 v6, 7, v5")
        e.raw("v_sub_u32 v6, v3, v6")
        e.raw("v_and_b32 v8, 15, v0")
        e.raw("v_bfe_u32 v9, v0, 6, 1")
        e.raw("v_lshl_add_u32 v8, v9, 4, v8")
        e.raw("v_and_b32 v9, 3, v5")
        e.raw("v_lshl_add_u32 v8, v9, 5, v8")
        e.raw("v_mul_u32_u24 v8, 1792, v8")
        e.raw("v_bfe_u32 v9, v0, 4, 2")
        e.raw("v_lshl_add_u32 v8, v9, 3, v8")
        e.raw("v_lshrrev_b32 v9, 2, v5")
        e.raw("v_lshl_add_u32 v8, v9, 6, v8")
        e.raw("v_lshl_add_u32 v8, v6, 7, v8")
        for h in range(8):
            e.salu(f"s_waitcnt vmcnt({8 * (NU - 1 - u) + 7 - h + 2 * u})")
            for i in range(4):
                r = 24 + 32 * u + 4 * h + i
                if h == 0:
                    e.raw(f"v_lshlrev_b32 v{16 + 2 * i}, 16, v{r}")
                    e.raw(f"v_and_b32 v{17 + 2 * i}, s23, v{r}")
                else:
                    e.raw(f"v_lshlrev_b32 v11, 16, v{r}")
                    e.raw(f"v_and_b32 v12, s23, v{r}")
                    e.raw(f"v_add_f32 v{16 + 2 * i}, v{16 + 2 * i}, v11")
                    e.raw(f"v_add_f32 v{17 + 2 * i}, v{17 + 2 * i}, v12")
        for i in range(4):
            e.raw(f"v_cvt_pk_bf16_f32 v{12 + i}, v{16 + 2 * i}, v{17 + 2 * i}")
        e.raw("buffer_store_dwordx2 v[12:13], v8, s[16:19], s21 offen")
        e.raw("buffer_store_dwordx2 v[14:15], v8, s[16:19], s21 offen offset:32")
        if u + 1 < NU:
            e.raw(f"v_add_u32 v3, {2 * NR}, v3")
            e.raw("s_nop 1")
    if STAMPS_DBG:
        e.salu("s_cmp_lg_u32 s2, 0")
        e.salu("s_cbranch_scc1 L_red_exit")
        e.salu("s_load_dwordx4 s[4:7], s[0:1], 88")
        e.salu("s_waitcnt lgkmcnt(0)")
        e.salu("s_add_u32 s6, s6, 0x8000000")
        e.salu("s_addc_u32 s7, s7, 0")
        e.salu("s_mov_b32 s12, s6")
        e.salu("s_and_b32 s13, s7, 0xffff")
        e.salu("s_mov_b32 s14, 64")
        e.salu("s_mov_b32 s16, s4")
        e.salu("s_and_b32 s17, s5, 0xffff")
        e.salu("s_mov_b32 s18, 64")
        e.raw("v_lshlrev_b32 v1, 2, v0")
        e.raw("buffer_load_dword v2, v1, s[12:15], 0 offen")
        e.raw("s_waitcnt vmcnt(0)")
        e.raw("buffer_store_dword v2, v1, s[16:19], 0 offen")
    e.label("L_red_exit")
    e.salu("s_endpgm")


def main():
    ref = open(OUT + ".ref").read().splitlines()
    out = [l for l in ref if l.startswith(";") and "@launch" not in l]
    out.append(f"; @launch kernel=attn_kernel grid=(256,1,1) block=(512,1,1) lds={LDS_BYTES}")
    out.append(f"; @launch kernel=reduce_kernel grid=({896 // RED_UNITS},1,1) block=(256,1,1) lds=0")
    out.append('.amdgcn_target "amdgcn-amd-amdhsa--gfx950"')
    out.append(".text")
    e = Em()
    out += [".globl attn_kernel", ".p2align 8", ".type attn_kernel,@function"]
    gen_attn(e)
    out += e.lines
    e2 = Em()
    out += [".globl reduce_kernel", ".p2align 8", ".type reduce_kernel,@function"]
    gen_reduce(e2)
    out += e2.lines
    out.append('.section .rodata,"a"')
    for k, vg, ao, sg in (("attn_kernel", 256, 256, 102), ("reduce_kernel", 24 + 32 * RED_UNITS, 24 + 32 * RED_UNITS, 32)):
        out += [".p2align 6", f".amdhsa_kernel {k}",
                f"  .amdhsa_next_free_vgpr {vg}",
                f"  .amdhsa_next_free_sgpr {sg}",
                f"  .amdhsa_accum_offset {ao}",
                "  .amdhsa_group_segment_fixed_size 0",
                "  .amdhsa_kernarg_size 104",
                "  .amdhsa_user_sgpr_count 2",
                "  .amdhsa_user_sgpr_kernarg_segment_ptr 1",
                "  .amdhsa_system_sgpr_workgroup_id_x 1",
                ".end_amdhsa_kernel"]
    open(OUTFILE, "w").write("\n".join(out) + "\n")
    print("wrote", OUTFILE, len(out), "lines")


if __name__ == "__main__":
    main()
```

```python
import math
import os
import struct
import sys

NAME = "concat_heads__gqa_block_cached__gqa_block_cached__near_ridge"
OUT = f"cdna_kernels/{NAME}.s"
OUTFILE = sys.argv[1] if len(sys.argv) > 1 else OUT

STAMPS = os.environ.get("STAMPS", "0") in ("1", "2")
STAMPS_DBG = os.environ.get("STAMPS", "0") == "2"
TILE = 17408
PAIR = 2 * TILE
RING = 4 * PAIR
LDS_BYTES = 160 * 1024
NB = 4
RED_UNITS = int(os.environ.get("RED_UNITS", "1"))
RED_POL = " " + os.environ["RED_POL"] if os.environ.get("RED_POL") else ""
KVPF_POL = " " + os.environ.get("KVPF_POL", "") if os.environ.get("KVPF_POL") else ""
KVPF_LATE = int(os.environ.get("KVPF_LATE", "0"))
KVPF = int(os.environ.get("KVPF", "1"))
KVPF_T0 = int(os.environ.get("KVPF_T0", "2"))
KVPF_PAR = int(os.environ.get("KVPF_PAR", "0"))
PF_WQ = os.environ.get("PF_WQ", "1") == "1"
PF_WO = os.environ.get("PF_WO", "1") == "1"
PF_X = os.environ.get("PF_X", "0") == "1"
PK_FMA = os.environ.get("PK_FMA", "0") == "1"
PAIRW = os.environ.get("PAIRW", "0") == "1"
DPF = int(os.environ.get("DPF", "3"))
SP1 = int(os.environ.get("SP1", "3"))
SP2 = int(os.environ.get("SP2", "5"))
SP3 = int(os.environ.get("SP3", "4"))
BAR1 = int(os.environ.get("BAR1", "15"))
BAR2 = int(os.environ.get("BAR2", "7"))
BAR3 = int(os.environ.get("BAR3", "11"))
AG = 256


def rn(r, n=1):
    if r >= AG:
        r -= AG
        return f"a{r}" if n == 1 else f"a[{r}:{r + n - 1}]"
    return f"v{r}" if n == 1 else f"v[{r}:{r + n - 1}]"


class Em:
    def __init__(self):
        self.lines = []
        self.pos = 0
        self.mfma_w = {}
        self.mfma_c = {}
        self.valu_w = {}
        self.trans_w = {}
        self.lds_q = []
        self.vm_q = []
        self.capture = None

    def raw(self, s, slots=1):
        (self.capture if self.capture is not None else self.lines).append("    " + s)
        self.pos += slots

    def label(self, s):
        (self.capture if self.capture is not None else self.lines).append(s + ":")

    def nop(self, n):
        while n > 0:
            k = min(n, 16)
            self.raw(f"s_nop {k - 1}", k)
            n -= k

    def _need(self, table, regs, dist):
        need = 0
        for r in regs:
            p = table.get(r)
            if p is not None:
                need = max(need, dist - (self.pos - p - 1))
        return need

    def salu(self, s):
        self.raw(s)

    def valu(self, s, dst=(), src=(), trans=False):
        n = self._need(self.mfma_w, list(dst) + list(src), 8)
        n = max(n, self._need(self.mfma_c, dst, 3))
        if not trans:
            n = max(n, self._need(self.trans_w, src, 1))
        if n > 0:
            self.nop(n)
        p = self.pos
        self.raw(s)
        for r in dst:
            self.valu_w[r] = p
            if trans:
                self.trans_w[r] = p
            else:
                self.trans_w.pop(r, None)

    def mfma(self, d, a, b, c):
        D = list(range(d, d + 4))
        A = list(range(a, a + 4))
        B = list(range(b, b + 4))
        C = list(range(c, c + 4)) if c is not None else []
        n = self._need(self.valu_w, A + B + C, 2)
        n = max(n, self._need(self.mfma_w, A + B, 8))
        assert c is None or c == d
        if n > 0:
            self.nop(n)
        p = self.pos
        cs = rn(c, 4) if c is not None else "0"
        self.raw(f"v_mfma_f32_16x16x32_bf16 {rn(d, 4)}, {rn(a, 4)}, {rn(b, 4)}, {cs}")
        for r in D:
            self.mfma_w[r] = p
        for r in C:
            self.mfma_c[r] = p

    def ds(self, s, tag, dst=(), src=()):
        n = self._need(self.mfma_w, list(dst) + list(src), 8)
        if n > 0:
            self.nop(n)
        self.raw(s)
        self.lds_q.append(tag)
        assert len(self.lds_q) <= 15, "too many LDS ops outstanding"

    def vmem(self, s, tag, dst=(), src=()):
        n = self._need(self.mfma_w, list(dst) + list(src), 8)
        if n > 0:
            self.nop(n)
        self.raw(s)
        self.vm_q.append(tag)
        assert len(self.vm_q) <= 63

    def wait_lds(self, tag):
        idx = max((i for i, t in enumerate(self.lds_q) if t == tag), default=-1)
        if idx < 0:
            return
        self.raw(f"s_waitcnt lgkmcnt({len(self.lds_q) - 1 - idx})")
        self.lds_q = self.lds_q[idx + 1:]

    def wait_vm(self, tag):
        idx = max((i for i, t in enumerate(self.vm_q) if t == tag), default=-1)
        if idx < 0:
            return
        self.raw(f"s_waitcnt vmcnt({len(self.vm_q) - 1 - idx})")
        self.vm_q = self.vm_q[idx + 1:]

    def loop(self, name, n, body, counter):
        assert self.capture is None
        if os.environ.get("UNROLL", "0") == "1":
            for i in range(n):
                self.capture = []
                body(i)
                t = self.capture
                self.capture = None
                self.lines.extend(l.replace("L_back_", f"L_back_u{i}").replace("L_rare_", f"L_rare_u{i}") for l in t)
            return
        self.salu(f"s_mov_b32 {counter}, {n}")
        texts = []
        for i in range(n):
            self.capture = []
            body(i)
            self.salu(f"s_sub_u32 {counter}, {counter}, 1")
            self.salu(f"s_cmp_lg_u32 {counter}, 0")
            self.salu(f"s_cbranch_scc1 {name}")
            texts.append(self.capture)
            self.capture = None
        for i in range(1, n):
            if texts[i] != texts[0]:
                for a, b in zip(texts[0], texts[i]):
                    if a != b:
                        print("LOOP MISMATCH", name, i, a, "|", b)
                        break
                raise SystemExit(f"loop {name}: iteration {i} differs from iteration 0")
        self.label(name)
        self.lines.extend(texts[0])


S_X, S_K, S_V, S_WQ, S_WO, S_P = 8, 12, 16, 20, 24, 28
S_W, S_HH, S_QH, S_RD, S_DM = 32, 33, 34, 35, 36
S_T0, S_T1, S_T2, S_T3 = 37, 38, 39, 40
S_CNT, S_C, S_NC, S_THR = 41, 42, 43, 44
S_OFFA, S_OFFB, S_XOFF = 45, 46, 47
S_WM0A, S_WM0B, S_WM0C = 48, 49, 50
S_POFF, S_XW, S_XR, S_XD = 51, 52, 53, 54
S_D0, S_D1, S_B, S_SK, S_PFO, S_PFS = 55, 78, 79, 90, 91, 60
S_KA = 56
S_ST = 80

V_O = 0
V_Q = 128
V_S0, V_S1 = 192, 208
V_FR = 224
V_PATA, V_PATB, V_RDA, V_RDB, V_RDC = 240, 241, 242, 243, 244
V_RDD = V_PATB
V_DLIN, V_DK, V_DX = 245, 246, 247
V_DWO0, V_DWO1 = V_DX, V_DK
V_NEGM, V_LSUM, V_TM = 248, 250, 252
V_TMP, V_LANE = 254, 255
V_T2, V_T3 = V_TM, V_TM + 1
V_PF = V_TMP
NCB = 2


def stamp(e, i):
    if not STAMPS:
        return
    e.raw("s_memtime s[96:97]")
    e.raw("s_waitcnt lgkmcnt(0)")
    e.lds_q = []
    e.salu(f"s_mov_b32 s{S_ST + i}, s96")
    if i in (0, 5):
        e.raw("s_memrealtime s[96:97]")
        e.raw("s_waitcnt lgkmcnt(0)")
        e.salu(f"s_mov_b32 s{S_ST + 6 + (i == 5)}, s96")


def stamp_flush(e, n):
    if not STAMPS:
        return
    if STAMPS_DBG:
        e.salu(f"s_cmp_lg_u32 s{S_W}, 0")
        e.salu("s_cbranch_scc1 L_attn_exit")
        e.salu("s_cmp_eq_u32 s2, 0")
        e.salu("s_cselect_b32 s94, 0, 32")
        e.salu("s_cbranch_scc1 L_st_go")
        e.salu("s_cmp_lg_u32 s2, 133")
        e.salu("s_cbranch_scc1 L_attn_exit")
        e.label("L_st_go")
        e.salu("s_load_dwordx2 s[96:97], s[0:1], 96")
        e.salu("s_waitcnt lgkmcnt(0)")
        e.salu("s_add_u32 s96, s96, 0x8000000")
        e.salu("s_addc_u32 s97, s97, 0")
        e.salu("s_mov_b32 s8, s96")
        e.salu("s_and_b32 s9, s97, 0xffff")
        e.salu("s_mov_b32 s10, 256")
        e.salu("s_mov_b32 s11, 0x00020000")
        e.raw("s_nop 15", 16)
        e.raw("v_mov_b32 v1, 0")
        for i in range(6):
            a, b = (S_ST + i, S_ST + i + 1) if i < 5 else (S_ST + 6, S_ST + 7)
            e.salu(f"s_sub_u32 s95, s{b}, s{a}")
            e.raw("v_mov_b32 v0, s95")
            e.raw(f"buffer_store_dword v0, v1, s[8:11], s94 offen offset:{4 * i}")
            e.raw("s_waitcnt vmcnt(0)")
        return
    e.salu("s_load_dwordx2 s[96:97], s[0:1], 96")
    e.salu("s_waitcnt lgkmcnt(0)")
    e.salu("s_add_u32 s96, s96, 0x8000000")
    e.salu("s_addc_u32 s97, s97, 0")
    e.salu("s_mov_b32 s8, s96")
    e.salu("s_and_b32 s9, s97, 0xffff")
    e.salu("s_mov_b32 s10, 0x100000")
    e.salu("s_mov_b32 s11, 0x00020000")
    e.salu("s_lshl_b32 s96, s2, 3")
    e.salu(f"s_add_u32 s96, s96, s{S_W}")
    e.salu("s_lshl_b32 s96, s96, 6")
    e.raw("s_nop 15", 16)
    e.raw("v_mov_b32 v1, 0")
    for i in range(n):
        e.raw(f"v_mov_b32 v0, s{S_ST + i}")
        e.raw(f"buffer_store_dword v0, v1, s[8:11], s96 offen offset:{4 * i}")
        e.raw("s_waitcnt vmcnt(0)")


def srd(e, dst, lo, hi, size):
    e.salu(f"s_mov_b32 s{dst}, s{lo}")
    e.salu(f"s_and_b32 s{dst + 1}, s{hi}, 0xffff")
    e.salu(f"s_mov_b32 s{dst + 2}, {size}")
    e.salu(f"s_mov_b32 s{dst + 3}, 0x00020000")


def adv_slot(e, s):
    e.salu(f"s_add_u32 s{s}, s{s}, {PAIR}")
    e.salu(f"s_cmp_ge_u32 s{s}, {RING}")
    e.salu(f"s_cselect_b32 s{S_T3}, {RING}, 0")
    e.salu(f"s_sub_u32 s{s}, s{s}, s{S_T3}")


NODMA = os.environ.get("NODMA", "0") == "1"
NODMA_ON = [False]


def dma(e, voff, sr, soff, m0expr, tag, off=0):
    if NODMA and NODMA_ON[0]:
        return
    sg, imm = m0expr
    e.salu(f"s_add_u32 m0, s{sg}, {imm}")
    e.salu("s_nop 0")
    o = f" offset:{off}" if off else ""
    pol = (" " + os.environ.get("KVPOL", "nt")) if sr in (S_K, S_V) else ""
    e.vmem(f"buffer_load_dwordx4 v{voff}, s[{sr}:{sr + 3}], s{soff} offen{o}{pol} lds", tag)


def dma_wq_pair(e, tag):
    e.salu(f"s_add_u32 s{S_D0}, s{S_DM}, s{S_WM0A}")
    adv_slot(e, S_DM)
    out = []
    for i in range(4):
        def f(i=i):
            e.salu(f"s_add_u32 s{S_T1}, s{S_OFFA}, {i * 8192}")
            dma(e, V_DLIN, S_WQ, S_T1, (S_D0, i * 1088), tag)
            if i == 3:
                e.salu(f"s_add_u32 s{S_OFFA}, s{S_OFFA}, {32 * 8192}")
        out.append(f)
    return out


def dma_kv_pair(e, tag, k=True, v=True):
    e.salu(f"s_add_u32 s{S_D0}, s{S_DM}, s{S_WM0A}")
    e.salu(f"s_add_u32 s{S_D1}, s{S_DM}, s{S_WM0B}")
    adv_slot(e, S_DM)
    out = []
    if k:
        for i in range(2):
            def f(i=i):
                dma(e, V_DK, S_K, S_OFFA, (S_D0, 32 * i), tag, off=1024 * i)
                if i == 1:
                    e.salu(f"s_add_u32 s{S_OFFA}, s{S_OFFA}, 16384")
                    e.salu(f"s_and_b32 s{S_OFFA}, s{S_OFFA}, 0x3ffff")
            out.append(f)
    if v:
        for i in range(2):
            def f(i=i):
                dma(e, V_DLIN, S_V, S_OFFB, (S_D1, 64 * i), tag, off=1024 * i)
                if i == 1:
                    e.salu(f"s_add_u32 s{S_OFFB}, s{S_OFFB}, 16384")
                    e.salu(f"s_and_b32 s{S_OFFB}, s{S_OFFB}, 0x3ffff")
            out.append(f)
    return out


def dma_wo_pair(e, tag, p):
    e.salu(f"s_add_u32 s{S_D0}, s{S_DM}, s{S_WM0C}")
    adv_slot(e, S_DM)
    out = []
    ip = p & 1
    for hd in range(2):
        for i in range(2):
            def f(hd=hd, i=i):
                e.salu(f"s_add_u32 s{S_T1}, s{S_XOFF}, {(256 * hd + 128 * ip + 8 * i) * 896}")
                dma(e, V_DWO1 if i & 1 else V_DWO0, S_WO, S_T1, (S_D0, hd * TILE + i * 1024), tag)
                if hd == 1 and i == 1 and ip == 1:
                    e.salu(f"s_add_u32 s{S_XOFF}, s{S_XOFF}, 128")
            out.append(f)
    return out


class FragStream:
    def __init__(self, e):
        self.e = e
        self.issued = 0
        self.queue = []

    def buf(self, i):
        return V_FR + 4 * (i % NB)

    def push(self, fn):
        self.queue.append(fn)

    def issue_next(self):
        while self.queue:
            fn = self.queue.pop(0)
            if fn[0] == "pre":
                fn[1]()
                continue
            i = self.issued
            fn[1](self.buf(i), ("fr", i))
            self.issued += 1
            return True
        return False


def rd_tr(e, areg, off0, off1):
    def f(dst, tag):
        e.ds(f"ds_read_b64_tr_b16 {rn(dst, 2)}, v{areg} offset:{off0}", tag, dst=range(dst, dst + 2))
        e.ds(f"ds_read_b64_tr_b16 {rn(dst + 2, 2)}, v{areg} offset:{off1}", tag, dst=range(dst + 2, dst + 4))
    return ("rd", f)


def rd_128(e, areg, off):
    def f(dst, tag):
        e.ds(f"ds_read_b128 {rn(dst, 4)}, v{areg} offset:{off}", tag, dst=range(dst, dst + 4))
    return ("rd", f)


def gen_attn(e):
    e.label("attn_kernel")
    e.salu("s_cmp_ge_u32 s2, 256")
    e.salu("s_cbranch_scc1 L_attn_exit")
    e.salu(f"s_load_dwordx16 s[{S_KA}:{S_KA + 15}], s[0:1], 0")
    e.salu(f"s_load_dwordx4 s[{S_KA + 16}:{S_KA + 19}], s[0:1], 64")
    e.salu(f"s_load_dwordx2 s[{S_KA + 20}:{S_KA + 21}], s[0:1], 96")
    e.salu(f"s_and_b32 s{S_T0}, s2, 7")
    e.salu(f"s_lshr_b32 s{S_T1}, s2, 3")
    e.salu(f"s_and_b32 s{S_T2}, s{S_T1}, 15")
    e.salu(f"s_mov_b32 s{S_B}, s{S_T2}")
    L = V_LANE

    def V(s, d, *src):
        e.valu(s, dst=[d], src=list(src))

    V("v_lshrrev_b32 v1, 6, v0", 1, 0)
    V(f"v_and_b32 v{L}, 63, v0", L, 0)
    e.salu("s_nop 0")
    e.raw(f"v_readfirstlane_b32 s{S_W}, v1")
    e.salu("s_nop 3")
    e.salu(f"s_lshr_b32 s{S_HH}, s{S_W}, 2")
    e.salu(f"s_and_b32 s{S_QH}, s{S_W}, 3")
    e.salu(f"s_bfe_u32 s{S_SK}, s{S_W}, {(1 << 16) | 1}")
    e.salu(f"s_lshl_b32 s{S_SK}, s{S_SK}, 3")
    t1, t2, t3 = 1, 2, 3
    V(f"v_lshlrev_b32 v{V_DLIN}, 4, v{L}", V_DLIN, L)
    V(f"v_bfe_u32 v{t1}, v{L}, 4, 2", t1, L)
    V(f"v_sub_u32 v{t1}, 4, v{t1}", t1, t1)
    V(f"v_and_b32 v{t1}, 3, v{t1}", t1, t1)
    V(f"v_and_b32 v{t2}, 3, v{L}", t2, L)
    V(f"v_xor_b32 v{t1}, v{t1}, v{t2}", t1, t1, t2)
    V(f"v_lshlrev_b32 v{t1}, 4, v{t1}", t1, t1)
    V(f"v_lshrrev_b32 v{t2}, 2, v{L}", t2, L)
    V(f"v_mul_u32_u24 v{t2}, 896, v{t2}", t2, t2)
    V(f"v_add_u32 v{V_DX}, v{t1}, v{t2}", V_DX, t1, t2)
    e.salu(f"s_mul_i32 s{S_WM0A}, s{S_W}, {4 * 1088}")
    e.salu(f"s_add_u32 s{S_WM0A}, s{S_WM0A}, s{S_SK}")
    e.salu(f"s_lshl_b32 s{S_OFFA}, s{S_W}, 15")
    e.salu(f"s_mov_b32 s{S_DM}, 0")
    e.salu(f"s_mov_b32 s{S_RD}, 0")
    e.salu(f"s_mul_i32 s{S_XOFF}, s{S_W}, {16 * 896}")
    e.salu(f"s_lshl_b32 s{S_XW}, s{S_W}, 10")
    e.salu(f"s_add_u32 s{S_XW}, s{S_XW}, {RING}")
    e.salu(f"s_mov_b32 s{S_XR}, 0")
    e.salu(f"s_mov_b32 s{S_XD}, 0")
    e.salu("s_waitcnt lgkmcnt(0)")
    e.salu(f"s_cmp_ge_u32 s{S_T1}, 16")
    for i in range(10):
        e.salu(f"s_cselect_b32 s{S_KA + i}, s{S_KA + 10 + i}, s{S_KA + i}")
    e.salu(f"s_lshl_b32 s{S_T3}, s{S_T0}, 10")
    e.salu(f"s_add_u32 s{S_KA + 6}, s{S_KA + 6}, s{S_T3}")
    e.salu(f"s_addc_u32 s{S_KA + 7}, s{S_KA + 7}, 0")
    srd(e, S_WQ, S_KA + 6, S_KA + 7, 448 * 8192)
    e.salu(f"s_sub_u32 s{S_WQ + 2}, s{S_WQ + 2}, s{S_T3}")
    e.salu(f"s_mul_i32 s{S_T3}, s{S_T2}, 114688")
    e.salu(f"s_add_u32 s{S_KA}, s{S_KA}, s{S_T3}")
    e.salu(f"s_addc_u32 s{S_KA + 1}, s{S_KA + 1}, 0")
    srd(e, S_X, S_KA, S_KA + 1, 114688)
    e.salu(f"s_lshl_b32 s{S_T3}, s{S_T2}, 3")
    e.salu(f"s_add_u32 s{S_T3}, s{S_T3}, s{S_T0}")
    e.salu(f"s_lshl_b32 s{S_T3}, s{S_T3}, 18")
    e.salu(f"s_add_u32 s{S_KA + 2}, s{S_KA + 2}, s{S_T3}")
    e.salu(f"s_addc_u32 s{S_KA + 3}, s{S_KA + 3}, 0")
    srd(e, S_K, S_KA + 2, S_KA + 3, 262144)
    e.salu(f"s_add_u32 s{S_KA + 4}, s{S_KA + 4}, s{S_T3}")
    e.salu(f"s_addc_u32 s{S_KA + 5}, s{S_KA + 5}, 0")
    srd(e, S_V, S_KA + 4, S_KA + 5, 262144)
    e.salu(f"s_mul_i32 s{S_T3}, s{S_T0}, 458752")
    e.salu(f"s_add_u32 s{S_KA + 8}, s{S_KA + 8}, s{S_T3}")
    e.salu(f"s_addc_u32 s{S_KA + 9}, s{S_KA + 9}, 0")
    srd(e, S_WO, S_KA + 8, S_KA + 9, 458752)
    e.salu(f"s_mul_i32 s{S_T3}, s2, 114688")
    e.salu(f"s_add_u32 s{S_KA + 20}, s{S_KA + 20}, s{S_T3}")
    e.salu(f"s_addc_u32 s{S_KA + 21}, s{S_KA + 21}, 0")
    srd(e, S_P, S_KA + 20, S_KA + 21, 114688)
    stamp(e, 0)

    def adv_x(sr):
        e.salu(f"s_add_u32 s{sr}, s{sr}, 8192")
        e.salu(f"s_cmp_ge_u32 s{sr}, 24576")
        e.salu(f"s_cselect_b32 s{sr}, 0, s{sr}")

    def xdma(tag):
        def f():
            e.salu(f"s_add_u32 s{S_T0}, s{S_XW}, s{S_XD}")
            dma(e, V_DX, S_X, S_XOFF, (S_T0, 0), tag)
            e.salu(f"s_add_u32 s{S_XOFF}, s{S_XOFF}, 64")
            adv_x(S_XD)
        return [f]

    def run(lst):
        for f in lst:
            f()

    run(dma_wq_pair(e, ("D", 0)))
    run(xdma(("X", 0)))
    run(dma_wq_pair(e, ("D", 1)))
    run(xdma(("X", 1)))
    run(dma_wq_pair(e, ("D", 2)))
    if NODMA:
        run(dma_wq_pair(e, ("D", 99)))
        run(xdma(("X", 99)))
        e.raw("s_waitcnt vmcnt(0)")
        e.vm_q = []
        NODMA_ON[0] = True
    V(f"v_lshrrev_b32 v{t1}, 4, v{L}", t1, L)
    V(f"v_lshlrev_b32 v{t1}, 13, v{t1}", t1, t1)
    V(f"v_and_b32 v{t2}, 15, v{L}", t2, L)
    V(f"v_lshl_add_u32 v{t1}, v{t2}, 6, v{t1}", t1, t2, t1)
    e.salu(f"s_mul_i32 s{S_T0}, s{S_B}, 28")
    e.salu(f"s_lshl_b32 s{S_T1}, s{S_W}, 2")
    e.salu(f"s_add_u32 s{S_T0}, s{S_T0}, s{S_T1}")
    e.salu(f"s_lshl_b32 s{S_T0}, s{S_T0}, 13")
    if PF_WQ:
        e.raw(f"buffer_load_dword v{V_PF}, v{t1}, s[{S_WQ}:{S_WQ + 3}], s{S_T0} offen")
    if PF_X:
        V(f"v_lshlrev_b32 v{t1}, 5, v{L}", t1, L)
        e.salu(f"s_and_b32 s{S_T0}, s2, 7")
        e.salu(f"s_mul_i32 s{S_T0}, s{S_T0}, 14336")
        e.salu(f"s_mul_i32 s{S_T1}, s{S_W}, 1792")
        e.salu(f"s_add_u32 s{S_T0}, s{S_T0}, s{S_T1}")
        e.raw(f"buffer_load_dword v{V_Q}, v{t1}, s[{S_X}:{S_X + 3}], s{S_T0} offen")

    c = math.log2(math.e) / 16.0
    e.salu(f"s_mov_b32 s{S_C}, {struct.unpack('<I', struct.pack('<f', c))[0]:#x}")
    e.salu(f"s_mov_b32 s{S_NC}, {struct.unpack('<I', struct.pack('<f', -c))[0]:#x}")
    e.salu(f"s_mov_b32 s{S_THR}, 0x41000000")
    V(f"v_lshrrev_b32 v{t1}, 4, v{L}", t1, L)
    V(f"v_bfe_u32 v{t2}, v{L}, 2, 2", t2, L)
    V(f"v_lshl_add_u32 v{t2}, v{t1}, 3, v{t2}", t2, t1, t2)
    V(f"v_mul_u32_u24 v{t2}, 1088, v{t2}", t2, t2)
    V(f"v_and_b32 v{t1}, 1, v{t1}", t1, t1)
    V(f"v_lshl_add_u32 v{t2}, v{t1}, 3, v{t2}", t2, t1, t2)
    V(f"v_and_b32 v{t1}, 3, v{L}", t1, L)
    V(f"v_lshl_add_u32 v{t2}, v{t1}, 4, v{t2}", t2, t1, t2)
    e.salu(f"s_lshl_b32 s{S_T3}, s{S_HH}, 9")
    V(f"v_add_u32 v{V_PATA}, s{S_T3}, v{t2}", V_PATA, t2)
    V(f"v_bfe_u32 v{t1}, v{L}, 2, 2", t1, L)
    V(f"v_sub_u32 v{t1}, 4, v{t1}", t1, t1)
    V(f"v_and_b32 v{t1}, 3, v{t1}", t1, t1)
    V(f"v_lshrrev_b32 v{t2}, 4, v{L}", t2, L)
    V(f"v_xor_b32 v{t1}, v{t1}, v{t2}", t1, t1, t2)
    V(f"v_lshlrev_b32 v{t1}, 4, v{t1}", t1, t1)
    V(f"v_and_b32 v{t2}, 15, v{L}", t2, L)
    V(f"v_lshl_add_u32 v{t1}, v{t2}, 6, v{t1}", t1, t2, t1)
    e.salu(f"s_lshl_b32 s{S_T3}, s{S_QH}, 11")
    e.salu(f"s_add_u32 s{S_T3}, s{S_T3}, {RING}")
    V(f"v_add_u32 v{V_PATB}, s{S_T3}, v{t1}", V_PATB, t1)
    V(f"v_lshrrev_b32 v{t2}, 5, v{L}", t2, L)
    V(f"v_and_b32 v{t1}, 31, v{L}", t1, L)
    V(f"v_xor_b32 v{t1}, v{t1}, v{t2}", t1, t1, t2)
    V(f"v_lshlrev_b32 v{t1}, 4, v{t1}", t1, t1)
    V(f"v_lshl_add_u32 v{V_DK}, v{t2}, 9, v{t1}", V_DK, t2, t1)
    V(f"v_add_u32 v{V_RDA}, s{S_RD}, v{V_PATA}", V_RDA, V_PATA)

    def xread(xs, G):
        V(f"v_add_u32 v{V_RDB}, s{S_XR}, v{V_PATB}", V_RDB, V_PATB)
        for cb in range(NCB):
            e.ds(f"ds_read_b128 {rn(xs + 4 * cb, 4)}, v{V_RDB} offset:{1024 * cb}", ("x", G), dst=range(xs + 4 * cb, xs + 4 * cb + 4))
        adv_x(S_XR)

    e.wait_vm(("X", 0))
    e.salu("s_barrier")
    stamp(e, 1)
    xread(V_S0, 0)
    e.wait_lds(("x", 0))

    fs = FragStream(e)
    dq = []
    dqs = {"sp": 4, "cnt": 0}

    def defer(lst, sp):
        assert not dq, "previous DMA pieces still pending"
        dq.extend(lst)
        dqs["sp"] = sp
        dqs["cnt"] = 0

    fidx = [0]

    def tick():
        if dq:
            dqs["cnt"] += 1
            if dqs["cnt"] >= dqs["sp"]:
                dqs["cnt"] = 0
                dq.pop(0)()

    def frag_begin():
        i = fidx[0]
        assert i < fs.issued
        if PAIRW:
            if i % 2 == 0:
                e.wait_lds(("fr", i + 1) if i + 1 < fs.issued else ("fr", i))
            else:
                e.wait_lds(("fr", i))
        else:
            e.wait_lds(("fr", i))
        return fs.buf(i)

    def frag_end():
        fidx[0] += 1

    def group(dsts, bs, zero, hooks):
        a = frag_begin()
        for k in range(NCB):
            e.mfma(dsts[k], a, bs[k], None if zero else dsts[k])
            if PAIRW:
                if k == NCB - 1:
                    fs.issue_next()
            elif k == 0:
                fs.issue_next()
            tick()
            hooks(k)
        frag_end()

    def p1_frags():
        for ct in range(16):
            off = 64 * (ct >> 1) + 8 * (ct & 1)
            fs.push(rd_tr(e, V_RDA, off, off + 4 * 1088))

    def next_rd_a():
        adv_slot(e, S_RD)
        V(f"v_add_u32 v{V_RDA}, s{S_RD}, v{V_PATA}", V_RDA, V_PATA)

    def kvpf_setup():
        e.salu(f"s_and_b32 s{S_T0}, s{S_W}, 1")
        e.salu(f"s_cmp_eq_u32 s{S_T0}, 1")
        for i in range(4):
            e.salu(f"s_cselect_b32 s{S_PFS + i}, s{S_V + i}, s{S_K + i}")
        e.salu(f"s_lshr_b32 s{S_PFO}, s2, 4")
        e.salu(f"s_xor_b32 s{S_PFO}, s{S_PFO}, s2")
        e.salu(f"s_add_u32 s{S_PFO}, s{S_PFO}, {KVPF_T0}")
        e.salu(f"s_add_u32 s{S_PFO}, s{S_PFO}, s{S_HH}")
        e.salu(f"s_and_b32 s{S_PFO}, s{S_PFO}, 15")
        e.salu(f"s_lshl_b32 s{S_PFO}, s{S_PFO}, 14")
        e.salu(f"s_lshl_b32 s{S_T0}, s{S_SK}, 10")
        e.salu(f"s_add_u32 s{S_PFO}, s{S_PFO}, s{S_T0}")
        V(f"v_lshlrev_b32 v{V_Q + 1}, 7, v{L}", V_Q + 1, L)

    def kvpf():
        e.raw(f"buffer_load_dword v{V_Q}, v{V_Q + 1}, s[{S_PFS}:{S_PFS + 3}], s{S_PFO} offen{KVPF_POL}")
        e.salu(f"s_add_u32 s{S_PFO}, s{S_PFO}, 32768")
        e.salu(f"s_and_b32 s{S_PFO}, s{S_PFO}, 0x3ffff")

    def p1_step(G, issue, push_next):
        xs = V_S0 if G % 2 == 0 else V_S1
        xn = V_S1 if G % 2 == 0 else V_S0
        e.wait_lds(("x", G))
        for ct in range(16):
            def hooks(k, ct=ct):
                if NCB * ct + k == BAR1:
                    if G + 1 <= 13:
                        e.wait_vm(("X", G + 1))
                    e.wait_vm(("D", G + 1))
                    e.salu("s_barrier")
                    if G + 1 <= 13:
                        xread(xn, G + 1)
                    pieces = xdma(("X", G + 2)) if G + 2 <= 13 else []
                    pieces += issue()
                    if G == 0:
                        pieces += [kvpf] * KVPF
                    if G in (11, 12, 13) and KVPF_LATE > G - 11:
                        pieces.append(kvpf)
                    defer(pieces, SP1 if len(pieces) <= 5 else 2 if len(pieces) <= 8 else 1)
                    push_next()
            group([V_O + 8 * ct + 4 * cb for cb in range(NCB)], [xs + 4 * cb for cb in range(NCB)], G == 0, hooks)

    if KVPF:
        kvpf_setup()
    p1_frags()
    for _ in range(DPF):
        fs.issue_next()

    def push_p1():
        fs.push(("pre", next_rd_a))
        p1_frags()

    p1_step(0, lambda: dma_wq_pair(e, ("D", 3)), push_p1)

    def p1_body(i):
        G = 1 + 2 * i
        p1_step(G, lambda: dma_wq_pair(e, ("D", G + 3)), push_p1)
        p1_step(G + 1, lambda: dma_wq_pair(e, ("D", G + 4)), push_p1)

    e.loop("L_p1", 5, p1_body, f"s{S_CNT}")

    def kv_setup():
        e.salu(f"s_mul_i32 s{S_WM0A}, s{S_W}, {2 * 1056}")
        e.salu(f"s_mul_i32 s{S_WM0B}, s{S_W}, {2 * 1088}")
        e.salu(f"s_add_u32 s{S_WM0B}, s{S_WM0B}, s{S_SK}")
        e.salu(f"s_add_u32 s{S_WM0B}, s{S_WM0B}, {TILE}")
        e.salu(f"s_lshr_b32 s{S_OFFA}, s2, 4")
        e.salu(f"s_xor_b32 s{S_OFFA}, s{S_OFFA}, s2")
        e.salu(f"s_and_b32 s{S_OFFA}, s{S_OFFA}, 15")
        e.salu(f"s_lshl_b32 s{S_OFFA}, s{S_OFFA}, 14")
        e.salu(f"s_lshl_b32 s{S_OFFB}, s{S_W}, 11")
        e.salu(f"s_add_u32 s{S_OFFA}, s{S_OFFA}, s{S_OFFB}")
        e.salu(f"s_mov_b32 s{S_OFFB}, s{S_OFFA}")

    def iss14():
        kv_setup()
        return dma_kv_pair(e, ("D", 14), k=True, v=False)
    p1_step(11, iss14, push_p1)
    p1_step(12, lambda: dma_kv_pair(e, ("D", 15)), push_p1)

    def kv_patterns():
        a, b2 = V_T2, V_T3
        V(f"v_and_b32 v{a}, 15, v{L}", a, L)
        V(f"v_mul_u32_u24 v{a}, 1056, v{a}", a, a)
        V(f"v_lshrrev_b32 v{b2}, 4, v{L}", b2, L)
        V(f"v_lshl_add_u32 v{V_PATA}, v{b2}, 4, v{a}", V_PATA, b2, a)
        V(f"v_bfe_u32 v{a}, v{L}, 2, 2", a, L)
        V(f"v_lshl_add_u32 v{a}, v{b2}, 2, v{a}", a, b2, a)
        V(f"v_mul_u32_u24 v{a}, 1088, v{a}", a, a)
        V(f"v_and_b32 v{b2}, 1, v{b2}", b2, b2)
        V(f"v_lshl_add_u32 v{a}, v{b2}, 3, v{a}", a, b2, a)
        V(f"v_and_b32 v{b2}, 3, v{L}", b2, L)
        V(f"v_lshl_add_u32 v{a}, v{b2}, 4, v{a}", a, b2, a)
        V(f"v_add_u32 v{V_PATB}, {TILE}, v{a}", V_PATB, a)

    def k_frags():
        for ks in range(8):
            for t in range(2):
                fs.push(rd_128(e, V_RDA if t == 0 else V_RDC, ks * 64 + 512 * t))

    def v_frags():
        for dt in range(16):
            off = 64 * (dt >> 1) + 8 * (dt & 1)
            fs.push(rd_tr(e, V_RDB, off, off + 512))

    def next_rd_kv():
        adv_slot(e, S_RD)
        V(f"v_add_u32 v{V_RDA}, s{S_RD}, v{V_PATA}", V_RDA, V_PATA)
        V(f"v_xor_b32 v{V_RDC}, 16, v{V_RDA}", V_RDC, V_RDA)
        V(f"v_add_u32 v{V_RDB}, s{S_RD}, v{V_PATB}", V_RDB, V_PATB)

    def push_k0():
        def pre():
            kv_patterns()
            next_rd_kv()
        fs.push(("pre", pre))
        k_frags()

    p1_step(13, lambda: dma_kv_pair(e, ("D", 16)), push_k0)
    stamp(e, 2)

    def pack_pair(T, cb, scale=False):
        fl = []
        for tp in range(2):
            src = V_O + 8 * (2 * T + tp) + 4 * cb
            if scale:
                for i in range(4):
                    fl.append(lambda i=i, src=src: V(f"v_mul_f32 v{src + i}, v{src + i}, v{V_LSUM + cb}",
                                                     src + i, src + i, V_LSUM + cb))
            for h2 in range(2):
                d = V_Q + 32 * cb + 4 * T + 2 * tp + h2
                fl.append(lambda d=d, src=src, h2=h2: e.valu(
                    f"v_cvt_pk_bf16_f32 v{d}, v{src + 2 * h2}, v{src + 2 * h2 + 1}",
                    dst=[d], src=[src + 2 * h2, src + 2 * h2 + 1]))
        return fl

    for T in range(8):
        for cb in range(NCB):
            run(pack_pair(T, cb))
    for cb in range(NCB):
        V(f"v_mov_b32 v{V_LSUM + cb}, 0", V_LSUM + cb)

    def spread(fl, nslots):
        st = {"k": 0}

        def f(slot):
            tgt = (len(fl) * (slot + 1) + nslots - 1) // nslots
            while st["k"] < min(tgt, len(fl)):
                fl[st["k"]]()
                st["k"] += 1
        return f

    def qk_stage(sn, fl, mid=None):
        sp = spread(fl, 31)
        for ks in range(8):
            for t in range(2):
                def hooks(k, ks=ks, t=t):
                    slot = 4 * ks + 2 * t + k
                    sp(slot)
                    if mid is not None and slot == mid[0]:
                        mid[1]()
                group([sn + 8 * cb + 4 * t for cb in range(NCB)], [V_Q + 32 * cb + 4 * ks for cb in range(NCB)], ks == 0, hooks)

    def exp_fillers(sc):
        fl = []
        for cb in range(NCB):
            for p in range(4):
                a, b = sc + 8 * cb + 2 * p, sc + 8 * cb + 2 * p + 1
                nm, ls = V_NEGM + cb, V_LSUM + cb
                if PK_FMA:
                    sel = "op_sel_hi:[1,0,0]" if cb == 0 else "op_sel:[0,0,1] op_sel_hi:[1,0,1]"
                    fl.append(lambda a=a, sel=sel: e.valu(
                        f"v_pk_fma_f32 v[{a}:{a + 1}], v[{a}:{a + 1}], s[{S_C}:{S_C + 1}], v[{V_NEGM}:{V_NEGM + 1}] {sel}",
                        dst=[a, a + 1], src=[a, a + 1, V_NEGM, V_NEGM + 1]))
                else:
                    fl.append(lambda a=a, nm=nm: e.valu(f"v_fma_f32 v{a}, v{a}, s{S_C}, v{nm}", dst=[a], src=[a, nm]))
                    fl.append(lambda b=b, nm=nm: e.valu(f"v_fma_f32 v{b}, v{b}, s{S_C}, v{nm}", dst=[b], src=[b, nm]))
                fl.append(lambda a=a: e.valu(f"v_exp_f32 v{a}, v{a}", dst=[a], src=[a], trans=True))
                fl.append(lambda b=b: e.valu(f"v_exp_f32 v{b}, v{b}", dst=[b], src=[b], trans=True))
                fl.append(lambda a=a, ls=ls: e.valu(f"v_add_f32 v{ls}, v{ls}, v{a}", dst=[ls], src=[ls, a]))
                fl.append(lambda b=b, ls=ls: e.valu(f"v_add_f32 v{ls}, v{ls}, v{b}", dst=[ls], src=[ls, b]))
                d = sc + 8 * cb + p
                fl.append(lambda a=a, b=b, d=d: e.valu(f"v_cvt_pk_bf16_f32 v{d}, v{a}, v{b}", dst=[d], src=[a, b]))
        return fl

    def max_fillers(sn):
        fl = []
        for cb in range(NCB):
            s0 = sn + 8 * cb
            tm = V_TM + cb
            fl.append(lambda s0=s0, tm=tm: e.valu(f"v_max3_f32 v{tm}, v{s0}, v{s0 + 1}, v{s0 + 2}", dst=[tm], src=[s0, s0 + 1, s0 + 2]))
            fl.append(lambda s0=s0, tm=tm: e.valu(f"v_max3_f32 v{tm}, v{tm}, v{s0 + 3}, v{s0 + 4}", dst=[tm], src=[tm, s0 + 3, s0 + 4]))
            fl.append(lambda s0=s0, tm=tm: e.valu(f"v_max3_f32 v{tm}, v{tm}, v{s0 + 5}, v{s0 + 6}", dst=[tm], src=[tm, s0 + 5, s0 + 6]))
            fl.append(lambda s0=s0, tm=tm: e.valu(f"v_max_f32 v{tm}, v{tm}, v{s0 + 7}", dst=[tm], src=[tm, s0 + 7]))
        return fl

    def check_fillers():
        fl = []
        fl.append(lambda: e.valu(f"v_fma_f32 v{V_TMP}, v{V_TM}, s{S_C}, v{V_NEGM}", dst=[V_TMP], src=[V_TM, V_NEGM]))
        fl.append(lambda: e.valu(f"v_cmp_lt_f32 s[{S_T0 + 55}:{S_T0 + 56}], s{S_THR}, v{V_TMP}", dst=[], src=[V_TMP]))
        fl.append(lambda: e.valu(f"v_fma_f32 v{V_TMP}, v{V_TM + 1}, s{S_C}, v{V_NEGM + 1}", dst=[V_TMP], src=[V_TM + 1, V_NEGM + 1]))
        fl.append(lambda: e.valu(f"v_cmp_lt_f32 vcc, s{S_THR}, v{V_TMP}", dst=[], src=[V_TMP]))
        return fl

    def cross_g(op, reg, tmp):
        for sw in ("v_permlane16_swap_b32", "v_permlane32_swap_b32"):
            V(f"v_mov_b32 v{tmp}, v{reg}", tmp, reg)
            e.nop(2)
            e.valu(f"{sw} v{reg}, v{tmp}", dst=[reg, tmp], src=[reg, tmp])
            V(f"{op} v{reg}, v{reg}, v{tmp}", reg, reg, tmp)

    def push_kv():
        fs.push(("pre", next_rd_kv))
        k_frags()
        v_frags()

    def mid14():
        e.wait_vm(("D", 15))
        e.salu("s_barrier")
        defer(dma_kv_pair(e, ("D", 17)), SP2)
        push_kv()
    qk_stage(V_S0, [], mid=(BAR2, mid14))
    V(f"v_lshlrev_b32 v{V_T2}, 6, v{L}", V_T2, L)
    e.salu(f"s_mul_i32 s{S_T0}, s{S_B}, 28672")
    e.salu(f"s_lshl_b32 s{S_T1}, s{S_W}, 12")
    e.salu(f"s_add_u32 s{S_T0}, s{S_T0}, s{S_T1}")
    e.salu(f"s_lshl_b32 s{S_T1}, s{S_W}, 8")
    e.salu(f"s_add_u32 m0, s{S_T1}, {RING}")
    e.salu("s_nop 0")
    if PF_WO:
        e.raw(f"buffer_load_dword v{V_T2}, s[{S_WO}:{S_WO + 3}], s{S_T0} offen lds")
    run(max_fillers(V_S0))
    for cb in range(NCB):
        cross_g("v_max_f32", V_TM + cb, V_TMP)
        V(f"v_mul_f32 v{V_NEGM + cb}, s{S_NC}, v{V_TM + cb}", V_NEGM + cb, V_TM + cb)

    rare = []

    def p2_step(t, issue, push_next, tagname):
        G = 15 + t
        sc = V_S0 if t % 2 == 0 else V_S1
        sn = V_S1 if t % 2 == 0 else V_S0
        qk_stage(sn, exp_fillers(sc))
        mx = max_fillers(sn) + check_fillers()
        sp = spread(mx, 16)
        for dt in range(16):
            def hooks(k, dt=dt):
                slot = 2 * dt + k
                if slot == BAR2:
                    e.wait_vm(("D", G + 1))
                    e.salu("s_barrier")
                    defer(issue(), SP2)
                    push_next()
                if slot >= 10:
                    sp(slot - 10)
            group([V_O + 8 * dt + 4 * cb for cb in range(NCB)], [sc + 8 * cb for cb in range(NCB)], t == 0, hooks)
        e.salu(f"s_or_b64 vcc, vcc, s[{S_T0 + 55}:{S_T0 + 56}]")
        e.salu(f"s_cbranch_scc1 L_rare_{tagname}")
        e.label(f"L_back_{tagname}")
        rare.append(tagname)

    p2_step(0, lambda: dma_kv_pair(e, ("D", 18)), push_kv, "z")
    p2_step(1, lambda: dma_kv_pair(e, ("D", 19)), push_kv, "y")

    def p2_body(i):
        t = 2 + 2 * i
        p2_step(t, lambda: dma_kv_pair(e, ("D", 15 + t + 3)), push_kv, "a")
        p2_step(t + 1, lambda: dma_kv_pair(e, ("D", 15 + t + 4)), push_kv, "b")

    e.loop("L_p2", 5, p2_body, f"s{S_CNT}")
    rare[:] = ["z", "y", "a", "b"]
    if os.environ.get("UNROLL", "0") == "1":
        rare[:] = ["z", "y"] + [f"u{i}{c_}" for i in range(5) for c_ in "ab"]
    p2_step(12, lambda: dma_kv_pair(e, ("D", 30), k=False, v=True), push_kv, "c")

    def wo_setup():
        a, b2 = V_T3, V_T2
        V(f"v_bfe_u32 v{a}, v{L}, 4, 1", a, L)
        V(f"v_lshlrev_b32 v{a}, 1, v{a}", a, a)
        V(f"v_and_b32 v{b2}, 7, v{L}", b2, L)
        V(f"v_xor_b32 v{a}, v{a}, v{b2}", a, a, b2)
        V(f"v_lshlrev_b32 v{a}, 4, v{a}", a, a)
        V(f"v_lshrrev_b32 v{b2}, 3, v{L}", b2, L)
        V(f"v_mul_u32_u24 v{b2}, 896, v{b2}", b2, b2)
        V(f"v_add_u32 v{V_DWO0}, v{a}, v{b2}", V_DWO0, a, b2)
        V(f"v_xor_b32 v{a}, 64, v{a}", a, a)
        V(f"v_add_u32 v{V_DWO1}, v{a}, v{b2}", V_DWO1, a, b2)
        e.salu(f"s_lshl_b32 s{S_WM0C}, s{S_W}, 11")
        e.salu(f"s_mul_i32 s{S_XOFF}, s{S_W}, {16 * 896}")

    def iss_wo0():
        wo_setup()
        return dma_wo_pair(e, ("D", 31), 0)
    p2_step(13, iss_wo0, push_kv, "d")

    def push_v_only():
        fs.push(("pre", next_rd_kv))
        v_frags()
    p2_step(14, lambda: dma_wo_pair(e, ("D", 32), 1), push_v_only, "e")

    RD3 = [V_RDA, V_RDB, V_RDC, V_RDD]

    def wo_patterns():
        a, b2 = V_T2, V_T3
        V(f"v_lshrrev_b32 v{a}, 4, v{L}", a, L)
        V(f"v_bfe_u32 v{b2}, v{L}, 2, 2", b2, L)
        V(f"v_lshl_add_u32 v{a}, v{a}, 3, v{b2}", a, a, b2)
        V(f"v_lshlrev_b32 v{a}, 7, v{a}", a, a)
        V(f"v_bfe_u32 v{b2}, v{L}, 3, 2", b2, L)
        e.salu(f"s_lshl_b32 s{S_T3}, s{S_HH}, 1")
        V(f"v_xor_b32 v{b2}, s{S_T3}, v{b2}", b2, b2)
        V(f"v_lshl_add_u32 v{a}, v{b2}, 5, v{a}", a, b2, a)
        V(f"v_and_b32 v{b2}, 3, v{L}", b2, L)
        V(f"v_lshl_add_u32 v{a}, v{b2}, 3, v{a}", a, b2, a)
        e.salu(f"s_mul_i32 s{S_T3}, s{S_HH}, {TILE}")
        V(f"v_add_u32 v{V_PATA}, s{S_T3}, v{a}", V_PATA, a)

    def next_rd3():
        adv_slot(e, S_RD)
        V(f"v_add_u32 v{RD3[0]}, s{S_RD}, v{V_PATA}", RD3[0], V_PATA)
        for u in range(1, 4):
            V(f"v_xor_b32 v{RD3[u]}, {32 * u}, v{RD3[0]}", RD3[u], RD3[0])

    ULORD = (2, 3, 0, 1)

    def p3_frags():
        for kk in range(4):
            for ul in ULORD:
                off = kk * 4096
                fs.push(rd_tr(e, RD3[ul], off, off + 512))

    def push_p3_first():
        def pre():
            wo_patterns()
            next_rd3()
        fs.push(("pre", pre))
        p3_frags()

    def push_p3():
        fs.push(("pre", next_rd3))
        p3_frags()

    sc = V_S1
    run(exp_fillers(sc))
    for cb in range(NCB):
        cross_g("v_add_f32", V_LSUM + cb, V_TMP)
        e.valu(f"v_rcp_f32 v{V_LSUM + cb}, v{V_LSUM + cb}", dst=[V_LSUM + cb], src=[V_LSUM + cb], trans=True)

    pend = []
    for dt in range(16):
        def hooks(k, dt=dt):
            slot = 2 * dt + k
            if slot == BAR2:
                e.wait_vm(("D", 31))
                e.salu("s_barrier")
                defer(dma_wo_pair(e, ("D", 33), 2), SP2)
                push_p3_first()
            if k == 1 and dt % 2 == 1 and dt >= 3:
                T = (dt - 3) // 2
                for cb in range(NCB):
                    pend.extend(pack_pair(T, cb, scale=True))
            for _ in range(6):
                if pend:
                    pend.pop(0)()
        group([V_O + 8 * dt + 4 * cb for cb in range(NCB)], [sc + 8 * cb for cb in range(NCB)], False, hooks)
    for cb in range(NCB):
        pend.extend(pack_pair(7, cb, scale=True))
    stamp(e, 3)
    stamp(e, 4)

    ACC = [V_S0, 0]
    V_R = 32
    V_PK = 48
    V_EXW = [56, 57, 58, 59]
    V_EXR = [60, 61, 62, 63]

    def ex_addr(dst, wreg):
        e.salu(f"s_lshl_b32 s{S_T0}, s{wreg}, 12")
        e.salu(f"s_add_u32 s{S_T0}, s{S_T0}, {RING}")
        e.salu(f"s_sub_u32 s{S_T1}, s{wreg}, 6")
        e.salu(f"s_mul_i32 s{S_T1}, s{S_T1}, {4 * TILE}")
        e.salu(f"s_add_u32 s{S_T1}, s{S_T1}, 16384")
        e.salu(f"s_cmp_ge_u32 s{wreg}, 6")
        e.salu(f"s_cselect_b32 s{S_T0}, s{S_T1}, s{S_T0}")
        e.salu(f"s_mov_b32 s{S_T1}, 1024")
        e.salu(f"s_cselect_b32 s{S_T1}, {TILE}, s{S_T1}")
        for i in range(4):
            V(f"v_add_u32 v{dst[i]}, s{S_T0}, v{V_DLIN}", dst[i], V_DLIN)
            if i < 3:
                e.salu(f"s_add_u32 s{S_T0}, s{S_T0}, s{S_T1}")

    def p3_setup():
        ex_addr(V_EXW, S_W)
        e.salu(f"s_xor_b32 s{S_XR}, s{S_W}, 4")
        ex_addr(V_EXR, S_XR)
        e.salu(f"s_mul_i32 s{S_POFF}, s{S_W}, {7 * 2048}")

    def send_fillers(s_):
        acc = ACC[s_ & 1] + 16
        return [(lambda i=i: e.ds(f"ds_write_b128 v{V_EXW[i]}, {rn(acc + 4 * i, 4)}", ("exw", s_),
                                  src=range(acc + 4 * i, acc + 4 * i + 4))) for i in range(4)]

    def recv_fillers(s_):
        return [(lambda i=i: e.ds(f"ds_read_b128 {rn(V_R + 4 * i, 4)}, v{V_EXR[i]}", ("exr", s_),
                                  dst=range(V_R + 4 * i, V_R + 4 * i + 4))) for i in range(4)]

    def fin_fillers(s_):
        acc = ACC[s_ & 1]
        fl = [lambda: None] * 6 + [lambda: e.wait_lds(("exr", s_))]
        for j in range(16):
            fl.append(lambda j=j: V(f"v_add_f32 v{V_R + j}, v{V_R + j}, v{acc + j}", V_R + j, V_R + j, acc + j))
        for ul in range(2):
            for cb in range(NCB):
                tb = V_R + 8 * ul + 4 * cb
                for h2 in range(2):
                    d = V_PK + 4 * cb + 2 * ul + h2
                    fl.append(lambda d=d, tb=tb, h2=h2: e.valu(f"v_cvt_pk_bf16_f32 v{d}, v{tb + 2 * h2}, v{tb + 2 * h2 + 1}",
                                                               dst=[d], src=[tb + 2 * h2, tb + 2 * h2 + 1]))

        def st():
            for cb in range(NCB):
                rg = V_PK + 4 * cb
                e.raw(f"buffer_store_dwordx4 {rn(rg, 4)}, v{V_DLIN}, s[{S_P}:{S_P + 3}], s{S_POFF} offen offset:{cb * 1024} sc1")
            e.salu(f"s_add_u32 s{S_POFF}, s{S_POFF}, 2048")
            e.nop(1)
        fl.append(st)
        return fl

    def p3_step(p, issue, push, extra=None):
        G = 31 + p
        s_, ip = p >> 1, p & 1
        acc = ACC[s_ & 1]
        ext = list(extra) if extra else []
        pre = send_fillers(s_ - 1) if (ip == 0 and s_ >= 1) else []
        post = []
        slot = [0]
        for kk in range(4):
            for ul in ULORD:
                def hooks(k):
                    sl = slot[0]
                    slot[0] += 1
                    if sl >= 2:
                        for _ in range(3):
                            if pre:
                                pre.pop(0)()
                            elif ext:
                                ext.pop(0)()
                                if ext:
                                    ext.pop(0)()
                            elif post:
                                post.pop(0)()
                    if sl == BAR3:
                        assert not pre
                        if ip == 0 and s_ >= 1:
                            e.wait_lds(("exw", s_ - 1))
                        e.wait_vm(("D", G + 1))
                        e.salu("s_barrier")
                        if ip == 0 and s_ >= 1:
                            post.extend(recv_fillers(s_ - 1) + fin_fillers(s_ - 1))
                        defer(issue(), SP3)
                        if push:
                            push_p3()
                group([acc + 8 * ul + 4 * cb for cb in range(NCB)],
                      [V_Q + 32 * cb + 4 * (4 * ip + kk) for cb in range(NCB)], ip == 0 and kk == 0, hooks)
        assert not post and not pre and not ext, (len(post), len(pre), len(ext))

    p3_setup()

    def iss3(p):
        return (lambda: dma_wo_pair(e, ("D", 31 + p), p)) if p <= 13 else (lambda: [])

    p3_step(0, iss3(3), True, extra=pend)
    p3_step(1, iss3(4), True)

    def p3_body(i):
        p = 2 + 4 * i
        for d in range(4):
            p3_step(p + d, iss3(p + d + 3), True)

    e.loop("L_p3", 2, p3_body, f"s{S_CNT}")
    p3_step(10, iss3(13), True)
    p3_step(11, iss3(14), True)
    p3_step(12, iss3(15), True)
    p3_step(13, iss3(16), False)
    run(send_fillers(6))
    e.wait_lds(("exw", 6))
    e.salu("s_barrier")
    run(recv_fillers(6))
    run(fin_fillers(6))
    stamp(e, 5)
    stamp_flush(e, 8)
    e.label("L_attn_exit")
    e.salu("s_endpgm")

    for tg in rare:
        e.label(f"L_rare_{tg}")
        e.raw("s_nop 15", 16)
        for cb in range(NCB):
            tm, nm, ls = V_TM + cb, V_NEGM + cb, V_LSUM + cb
            for sw in ("v_permlane16_swap_b32", "v_permlane32_swap_b32"):
                e.raw(f"v_mov_b32 v{V_TMP}, v{tm}")
                e.raw("s_nop 1", 2)
                e.raw(f"{sw} v{tm}, v{V_TMP}")
                e.raw(f"v_max_f32 v{tm}, v{tm}, v{V_TMP}")
            e.raw(f"v_mul_f32 v{tm}, s{S_NC}, v{tm}")
            e.raw(f"v_min_f32 v{V_TMP}, v{tm}, v{nm}")
            e.raw(f"v_sub_f32 v{tm}, v{V_TMP}, v{nm}")
            e.raw(f"v_exp_f32 v{tm}, v{tm}")
            e.raw(f"v_mov_b32 v{nm}, v{V_TMP}")
            e.raw("s_nop 0")
            e.raw(f"v_mul_f32 v{ls}, v{ls}, v{tm}")
        for dt in range(16):
            for cb in range(NCB):
                for i in range(4):
                    a = V_O + 8 * dt + 4 * cb + i
                    e.raw(f"v_mul_f32 v{a}, v{a}, v{V_TM + cb}")
        e.raw("s_nop 1", 2)
        e.raw(f"s_branch L_back_{tg}")


def gen_reduce(e):
    NU = RED_UNITS
    NR = 28 // NU
    e.label("reduce_kernel")
    e.salu(f"s_cmp_ge_u32 s2, {32 * NR}")
    e.salu("s_cbranch_scc1 L_red_exit")
    e.salu("s_load_dwordx2 s[4:5], s[0:1], 80")
    e.salu("s_load_dwordx2 s[6:7], s[0:1], 96")
    e.salu(f"s_mul_hi_u32 s8, s2, {(2**32 + NR - 1) // NR:#x}")
    e.salu(f"s_mul_i32 s9, s8, {NR}")
    e.salu("s_sub_u32 s9, s2, s9")
    e.raw("v_lshlrev_b32 v4, 4, v0")
    e.salu("s_lshl_b32 s26, s9, 12")
    e.salu("s_lshl_b32 s9, s9, 1")
    e.raw("v_lshrrev_b32 v3, 7, v0")
    e.raw("v_add_u32 v3, s9, v3")
    e.salu("s_waitcnt lgkmcnt(0)")
    e.salu("s_mul_i32 s10, s8, 917504")
    e.salu("s_add_u32 s6, s6, s10")
    e.salu("s_addc_u32 s7, s7, 0")
    e.salu("s_mov_b32 s12, s6")
    e.salu("s_and_b32 s13, s7, 0xffff")
    e.salu("s_mov_b32 s14, 917504")
    e.salu("s_mov_b32 s15, 0x00020000")
    e.salu("s_mov_b32 s16, s4")
    e.salu("s_and_b32 s17, s5, 0xffff")
    e.salu("s_mov_b32 s18, 3670016")
    e.salu("s_mov_b32 s19, 0x00020000")
    for u in range(NU):
        for h in range(8):
            e.salu(f"s_add_u32 s20, s26, {h * 114688 + u * NR * 4096}")
            r0 = 24 + 32 * u + 4 * h
            e.raw(f"buffer_load_dwordx4 v[{r0}:{r0 + 3}], v4, s[12:15], s20 offen{RED_POL}")
    e.salu("s_and_b32 s21, s8, 15")
    e.salu("s_lshr_b32 s22, s8, 4")
    e.salu("s_mul_i32 s21, s21, 229376")
    e.salu("s_mul_i32 s22, s22, 896")
    e.salu("s_add_u32 s21, s21, s22")
    e.salu("s_mov_b32 s23, 0xffff0000")
    for u in range(NU):
        e.raw("v_mul_u32_u24 v5, 37, v3")
        e.raw("v_lshrrev_b32 v5, 8, v5")
        e.raw("v_mul_u32_u24 v6, 7, v5")
        e.raw("v_sub_u32 v6, v3, v6")
        e.raw("v_and_b32 v8, 15, v0")
        e.raw("v_bfe_u32 v9, v0, 6, 1")
        e.raw("v_lshl_add_u32 v8, v9, 4, v8")
        e.raw("v_and_b32 v9, 3, v5")
        e.raw("v_lshl_add_u32 v8, v9, 5, v8")
        e.raw("v_mul_u32_u24 v8, 1792, v8")
        e.raw("v_bfe_u32 v9, v0, 4, 2")
        e.raw("v_lshl_add_u32 v8, v9, 3, v8")
        e.raw("v_lshrrev_b32 v9, 2, v5")
        e.raw("v_lshl_add_u32 v8, v9, 6, v8")
        e.raw("v_lshl_add_u32 v8, v6, 7, v8")
        for h in range(8):
            e.salu(f"s_waitcnt vmcnt({8 * (NU - 1 - u) + 7 - h + 2 * u})")
            for i in range(4):
                r = 24 + 32 * u + 4 * h + i
                if h == 0:
                    e.raw(f"v_lshlrev_b32 v{16 + 2 * i}, 16, v{r}")
                    e.raw(f"v_and_b32 v{17 + 2 * i}, s23, v{r}")
                else:
                    e.raw(f"v_lshlrev_b32 v11, 16, v{r}")
                    e.raw(f"v_and_b32 v12, s23, v{r}")
                    e.raw(f"v_add_f32 v{16 + 2 * i}, v{16 + 2 * i}, v11")
                    e.raw(f"v_add_f32 v{17 + 2 * i}, v{17 + 2 * i}, v12")
        for i in range(4):
            e.raw(f"v_cvt_pk_bf16_f32 v{12 + i}, v{16 + 2 * i}, v{17 + 2 * i}")
        e.raw("buffer_store_dwordx2 v[12:13], v8, s[16:19], s21 offen")
        e.raw("buffer_store_dwordx2 v[14:15], v8, s[16:19], s21 offen offset:32")
        if u + 1 < NU:
            e.raw(f"v_add_u32 v3, {2 * NR}, v3")
            e.raw("s_nop 1")
    if STAMPS_DBG:
        e.salu("s_cmp_lg_u32 s2, 0")
        e.salu("s_cbranch_scc1 L_red_exit")
        e.salu("s_load_dwordx4 s[4:7], s[0:1], 88")
        e.salu("s_waitcnt lgkmcnt(0)")
        e.salu("s_add_u32 s6, s6, 0x8000000")
        e.salu("s_addc_u32 s7, s7, 0")
        e.salu("s_mov_b32 s12, s6")
        e.salu("s_and_b32 s13, s7, 0xffff")
        e.salu("s_mov_b32 s14, 64")
        e.salu("s_mov_b32 s16, s4")
        e.salu("s_and_b32 s17, s5, 0xffff")
        e.salu("s_mov_b32 s18, 64")
        e.raw("v_lshlrev_b32 v1, 2, v0")
        e.raw("buffer_load_dword v2, v1, s[12:15], 0 offen")
        e.raw("s_waitcnt vmcnt(0)")
        e.raw("buffer_store_dword v2, v1, s[16:19], 0 offen")
    e.label("L_red_exit")
    e.salu("s_endpgm")


def main():
    ref = open(OUT + ".ref").read().splitlines()
    out = [l for l in ref if l.startswith(";") and "@launch" not in l]
    out.append(f"; @launch kernel=attn_kernel grid=(256,1,1) block=(512,1,1) lds={LDS_BYTES}")
    out.append(f"; @launch kernel=reduce_kernel grid=({896 // RED_UNITS},1,1) block=(256,1,1) lds=0")
    out.append('.amdgcn_target "amdgcn-amd-amdhsa--gfx950"')
    out.append(".text")
    e = Em()
    out += [".globl attn_kernel", ".p2align 8", ".type attn_kernel,@function"]
    gen_attn(e)
    out += e.lines
    e2 = Em()
    out += [".globl reduce_kernel", ".p2align 8", ".type reduce_kernel,@function"]
    gen_reduce(e2)
    out += e2.lines
    out.append('.section .rodata,"a"')
    for k, vg, ao, sg in (("attn_kernel", 256, 256, 102), ("reduce_kernel", 24 + 32 * RED_UNITS, 24 + 32 * RED_UNITS, 32)):
        out += [".p2align 6", f".amdhsa_kernel {k}",
                f"  .amdhsa_next_free_vgpr {vg}",
                f"  .amdhsa_next_free_sgpr {sg}",
                f"  .amdhsa_accum_offset {ao}",
                "  .amdhsa_group_segment_fixed_size 0",
                "  .amdhsa_kernarg_size 104",
                "  .amdhsa_user_sgpr_count 2",
                "  .amdhsa_user_sgpr_kernarg_segment_ptr 1",
                "  .amdhsa_system_sgpr_workgroup_id_x 1",
                ".end_amdhsa_kernel"]
    open(OUTFILE, "w").write("\n".join(out) + "\n")
    print("wrote", OUTFILE, len(out), "lines")


if __name__ == "__main__":
    main()
```
